```python
import torch

def _softmax(x, axis=-1):
    return torch.softmax(x, dim=axis)
def _gelu(x):
    return torch.nn.functional.gelu(x, approximate="tanh")
def _silu(x):
    return torch.nn.functional.silu(x)
def _sigmoid(x):
    return torch.sigmoid(x)
def _layernorm(x, axis=-1, eps=1e-5):
    m = x.mean(dim=axis, keepdim=True)
    v = x.var(dim=axis, keepdim=True, unbiased=False)
    return (x - m) / torch.sqrt(v + eps)
def _scatter_add(tgt, idx, src, axis=0):
    return tgt.clone().index_add_(axis, idx, src)
def _segment_sum(src, seg, n):
    out = torch.zeros((n,) + src.shape[1:], dtype=src.dtype)
    return out.index_add_(0, seg, src)
def _pad(x, pw):
    flat = tuple(v for pair in reversed(pw) for v in pair)
    return torch.nn.functional.pad(x, flat)

kernel_name = 'parallel_sum__gqa_block_cached__glu_gated_swiglu__decode'

def setup_inputs():

    _w = (lambda a: (lambda t: t.to(torch.bfloat16) if t.is_floating_point() else t)(torch.as_tensor(a)))
    def _A_setup():
        B, Sq, D = 1, 1, 640
        Hq, Hkv, Sk, Dh = 32, 32, 4096, 192
        assert Hq % Hkv == 0, (Hq, Hkv)
        return {
            "x": _w((lambda *s: torch.randn(*s, dtype=torch.bfloat16) * 0.05)(B, Sq, D)),
            "k_cache": _w((lambda *s: torch.randn(*s, dtype=torch.bfloat16) * 1.6)(B, Hkv, Sk, Dh)),
            "v_cache": _w((lambda *s: torch.randn(*s, dtype=torch.bfloat16) * 0.8)(B, Hkv, Sk, Dh)),
            "wq": _w((lambda *s: torch.randn(*s, dtype=torch.bfloat16) * 1.6)(D, Hq * Dh) * (D ** -0.5)),
            "wo": _w((lambda *s: torch.randn(*s, dtype=torch.bfloat16) * 0.8)(Hq * Dh, D) * ((Hq * Dh) ** -0.5)),
        }
    _A_in = _A_setup()

    def _B_setup():
        B, S, D, F = 1, 1, 640, 1536
        return {
            "x": _w((lambda *s: torch.randn(*s, dtype=torch.bfloat16) * 0.05)(B, S, D)),
            "w1": _w((lambda *s: torch.randn(*s, dtype=torch.bfloat16) * 0.4)(D, F) * (2.0 / D) ** 0.5),
            "w3": _w((lambda *s: torch.randn(*s, dtype=torch.bfloat16) * 0.4)(D, F) * (2.0 / D) ** 0.5),
            "w2": _w((lambda *s: torch.randn(*s, dtype=torch.bfloat16) * 0.4)(F, D) * (2.0 / F) ** 0.5),
        }
    _B_in = _B_setup()

    return {
        "A_x": _A_in["x"],
        "A_k_cache": _A_in["k_cache"],
        "A_v_cache": _A_in["v_cache"],
        "A_wq": _A_in["wq"],
        "A_wo": _A_in["wo"],
        "B_x": _B_in["x"],
        "B_w1": _B_in["w1"],
        "B_w3": _B_in["w3"],
        "B_w2": _B_in["w2"],
    }

def reference(A_x, A_k_cache, A_v_cache, A_wq, A_wo, B_x, B_w1, B_w3, B_w2):
    def _A_ref(x, k_cache, v_cache, wq, wo):
        B, Sq, D = x.shape
        Hq, Dh = 32, 192
        Hkv = k_cache.shape[1]
        rep = Hq // Hkv
        q = (lambda x, *d: x.permute(*d))((x @ wq).reshape(B, Sq, Hq, Dh), 0, 2, 1, 3)
        k = (lambda x, n, axis: torch.repeat_interleave(x, n, dim=axis))(k_cache, rep, axis=1)
        v = (lambda x, n, axis: torch.repeat_interleave(x, n, dim=axis))(v_cache, rep, axis=1)
        scores = torch.einsum("bhqd,bhkd->bhqk", q, k) * (Dh ** -0.5)
        p = _softmax(scores, axis=-1)
        o = torch.einsum("bhqk,bhkd->bhqd", p, v)
        return (lambda x, *d: x.permute(*d))(o, 0, 2, 1, 3).reshape(B, Sq, Hq * Dh) @ wo

    def _B_ref(x, w1, w3, w2):
        gate = torch.einsum("bsd,df->bsf", x, w1)
        up = torch.einsum("bsd,df->bsf", x, w3)
        h = _silu(gate) * up
        out = torch.einsum("bsf,fd->bsd", h, w2)
        return out

    x = A_x
    xn = _layernorm(x, axis=-1)
    return x + _A_ref(xn, A_k_cache, A_v_cache, A_wq, A_wo) + _B_ref(xn, B_w1, B_w3, B_w2)
```

```python
import re

TRANS = ("v_exp_f32", "v_log_f32", "v_rcp_f32", "v_rsq_f32", "v_sqrt_f32", "v_sin_f32", "v_cos_f32")

def regs_of(tok):
    tok = tok.strip()
    tok = re.sub(r"^-", "", tok)
    m = re.match(r"^abs\((.*)\)$", tok) or re.match(r"^\|(.*)\|$", tok)
    if m: tok = m.group(1)
    m = re.match(r"^([vsa])\[(\d+):(\d+)\]$", tok)
    if m: return {f"{m.group(1)}{i}" for i in range(int(m.group(2)), int(m.group(3)) + 1)}
    m = re.match(r"^([vsa])(\d+)$", tok)
    if m: return {tok}
    if tok == "vcc": return {"vcc"}
    if tok == "exec": return {"exec"}
    if tok == "m0": return {"m0"}
    return set()

class Ins:
    def __init__(self, text):
        self.text = text
        t = text.split(";")[0].strip()
        parts = t.split(None, 1)
        self.op = parts[0]
        rest = parts[1] if len(parts) > 1 else ""
        rest = re.sub(r"\s(op_sel|op_sel_hi|quad_perm):\[[^\]]*\]", "", rest)
        ops = [o.strip() for o in rest.split(",")] if rest else []
        clean = []
        for o in ops:
            clean.append(o.split()[0] if o else o)
        self.ops = clean
        op = self.op
        self.is_valu = op.startswith("v_")
        self.is_mfma = op.startswith("v_mfma")
        self.is_dot = op.startswith("v_dot")
        self.is_dpp = "_dpp" in op
        self.is_sdwa = "_sdwa" in op
        self.is_trans = any(op.startswith(x) for x in TRANS)
        self.is_vmem = op.startswith(("buffer_", "global_"))
        self.is_ds = op.startswith("ds_")
        self.is_perml = op.startswith("v_permlane")
        self.is_rl = op.startswith(("v_readlane", "v_readfirstlane"))
        self.w = set(); self.r = set(); self.srcc = set(); self.stdata = set()
        R = [regs_of(o) for o in clean]
        if self.is_valu:
            if op == "v_nop": pass
            elif self.is_perml:
                self.w = R[0] | R[1]; self.r = R[0] | R[1]
            elif op.startswith(("v_add_co", "v_addc_co", "v_sub_co", "v_subb_co")):
                self.w = R[0] | R[1]; self.r = set().union(*R[2:])
            else:
                self.w = R[0]; self.r = set().union(*R[1:]) if len(R) > 1 else set()
                if op.startswith(("v_fmac", "v_dot2c")) or self.is_dpp or (self.is_sdwa and not op.startswith("v_cmp")): self.r |= R[0]
                if self.is_mfma: self.srcc = R[3]
        elif self.is_vmem:
            if "load" in op:
                self.w = R[0]; self.r = set().union(*R[1:])
            elif op.startswith("buffer_"):
                self.r = set().union(*R); self.stdata = R[0]
            else:
                self.r = set().union(*R); self.stdata = R[1]
        elif self.is_ds:
            if op.startswith(("ds_read", "ds_bpermute", "ds_swizzle")) or "_rtn_" in op:
                self.w = R[0]; self.r = set().union(*R[1:])
            else:
                self.r = set().union(*R)
        elif op.startswith("s_") and R:
            if op.startswith(("s_cmp", "s_bitcmp", "s_waitcnt", "s_nop", "s_cbranch", "s_branch", "s_setprio", "s_sleep", "s_barrier")):
                self.r = set().union(*R)
            else:
                self.w = R[0]; self.r = set().union(*R[1:]) if len(R) > 1 else set()
        self.states = 1
        if op == "s_nop": self.states = int(clean[0]) + 1

def mfma_passes(op):
    if "16x16x32" in op or "16x16x16" in op: return 4
    if "32x32x16" in op or "32x32x8" in op: return 8
    raise ValueError(op)

def need(p, c):
    n = 0
    pv = {x for x in p.w if x[0] in "va" and x != "vcc"}
    ps = {x for x in p.w if x[0] == "s" or x == "vcc"}
    if p.is_mfma:
        ps_ = mfma_passes(p.op)
        big = {4: 8, 8: 12}[ps_]
        if c.is_mfma:
            ab = c.r - c.srcc if not (c.srcc & (regs_of(c.ops[1]) | regs_of(c.ops[2]))) else c.r
            ab = regs_of(c.ops[1]) | regs_of(c.ops[2])
            if pv & ab: n = max(n, big)
            if pv & c.srcc and c.srcc != pv: n = max(n, {4: 6, 8: 10}[ps_])
            if pv & c.w and c.srcc != pv: n = max(n, big)
        elif (c.is_valu or c.is_vmem or c.is_ds) and pv & (c.r | c.w): n = max(n, big)
        if c.is_valu and not c.is_mfma and p.srcc & c.w: n = max(n, {4: 3, 8: 7}[ps_])
        return n
    if p.is_valu:
        if p.is_dot:
            if (c.is_valu or c.is_vmem or c.is_ds) and pv & (c.r | c.w):
                same = c.op == p.op
                ab = (regs_of(c.ops[1]) | regs_of(c.ops[2])) if same else None
                if not same or pv & ab: n = max(n, 3)
        if c.is_mfma and pv & c.r: n = max(n, 2)
        if c.is_dpp and pv & c.r: n = max(n, 2)
        if c.is_perml and pv & c.r: n = max(n, 2)
        if c.is_rl and pv & c.r: n = max(n, 1)
        if p.is_trans and c.is_valu and pv & c.r: n = max(n, 1)
        if p.is_sdwa and c.is_valu and pv & (c.r | c.w): n = max(n, 1)
        if c.is_valu and ps & c.r: n = max(n, 4 if c.is_rl else 2)
        if c.is_vmem and ps & c.r: n = max(n, 5)
    if p.is_vmem and len(p.stdata) >= 3 and p.stdata & c.w: n = max(n, 2)
    if p.op.startswith("s_") and "m0" in p.w and (c.is_vmem or c.is_ds): n = max(n, 1)
    return n

class Asm:
    def __init__(self):
        self.out = []; self.hist = []
        self.vm = []
        self.cond = False
        self.nlabel = 0
    def raw(self, s): self.out.append(s)
    def c(self, s): self.out.append("    ; " + s)
    def label(self, name): self.out.append(name + ":")
    def newlabel(self, base):
        self.nlabel += 1; return f"L_{base}_{self.nlabel}"
    def __call__(self, text, name=None):
        ins = Ins(text)
        dist = 0; pad = 0
        for p in reversed(self.hist):
            pad = max(pad, need(p, ins) - dist)
            dist += p.states
            if dist >= 20: break
        while pad > 0:
            k = min(pad, 16)
            nop = Ins(f"s_nop {k-1}"); self.out.append("    " + nop.text); self.hist.append(nop); pad -= k
        self.out.append("    " + text); self.hist.append(ins)
        if ins.is_vmem: self.vm.append((name, self.cond))
        self.hist = self.hist[-24:]
    def wait_vm(self, name, extra=""):
        idx = max(i for i, (n, _) in enumerate(self.vm) if n == name)
        n = sum(1 for (_, c) in self.vm[idx+1:] if not c)
        assert n <= 63
        self(f"s_waitcnt vmcnt({n}) {extra}".strip())
    def snapshot(self): return (list(self.hist), list(self.vm))
    def restore(self, s): self.hist, self.vm = list(s[0]), list(s[1])
    def text(self): return "\n".join(self.out) + "\n"

class Regs:
    def __init__(self, start, limit, pre):
        self.n = start; self.limit = limit; self.pre = pre
    def get(self, cnt=1, align=None):
        al = align or (1 if cnt == 1 else (2 if cnt < 4 else 4))
        self.n = (self.n + al - 1) // al * al
        b = self.n; self.n += cnt
        assert self.n <= self.limit, "out of registers"
        return b
def vr(b, n=1): return f"v{b}" if n == 1 else f"v[{b}:{b+n-1}]"
def sr(b, n=1): return f"s{b}" if n == 1 else f"s[{b}:{b+n-1}]"
```

```python
import sys, struct
sys.path.insert(0, "dev")
from asmlib import *

NAME = "parallel_sum__gqa_block_cached__glu_gated_swiglu__decode"
def f2u(x): return struct.unpack("<I", struct.pack("<f", x))[0]

WS_E  = 0
WS_QP = 0x10000
WS_FP = 0x50000
WS_OP = 0x90000
WS_ML = 0xD0000
WS_YP = 0x100000
WS_ST = 0x400000
WS_SIZE = 0x800000
RED_STRIDE = 1568
LDS_RED = 0
LDS_Q = 12800
LDS_H = 13312
LDS_DUMMY = 13376

def gen(D=4, D0=None, qpos=12, mlpos=12, ld="nt", st="sc1", pl="sc1", stamps=False, ysp=2560, ysr=16,
        lds=90112, prefetch=True, spin=1 << 16):
    a = Asm()
    assert qpos + D <= 24 and mlpos + D <= 24 and mlpos >= D and qpos >= D
    hdr = open("cdna_kernels/" + NAME + ".s.ref").read().split("\n")
    for ln in hdr:
        if ln.startswith(";") and "@launch" not in ln and "Override launch" not in ln and "grid=ceil" not in ln: a.raw(ln)
    a.raw(f"; @launch grid=(256,1,1) block=(512,1,1) lds={lds}")
    a.raw('.amdgcn_target "amdgcn-amd-amdhsa--gfx950"')
    a.raw(".text"); a.raw(f".globl {NAME}_kernel"); a.raw(".p2align 8"); a.raw(f".type {NAME}_kernel,@function")
    a.label(f"{NAME}_kernel")
    V = Regs(1, 256, "v"); S = Regs(28, 100, "s")
    pX, pK, pV, pWQ, pWO, pBX, pW1, pW3, pW2, pOUT, pDBG, pWS = [4 + 2*i for i in range(12)]
    dX, dK, dV, dS1, dWS, dOUT = [S.get(4) for _ in range(6)]
    sW, sG, sC, sP, sH, sS, sE, sT0, sT1, sT2, sT3, sSpin = [S.get() for _ in range(12)]
    sTag = [S.get() for _ in range(4)]
    sSel = [S.get() for _ in range(4)]
    sOff = [S.get() for _ in range(3)]
    sXo = S.get(2)
    sVal = S.get(2)
    sSt = S.get(16, 4)
    sTm = S.get(2)
    vL, vSlot, vCh, vTag, vKoff, vS1a, vS1b, vXr0, vXr1, vRedW, vRedR, vPub, vGa, vGb = [V.get() for _ in range(14)]
    vM = V.get(4); vA = V.get(4); vA2 = V.get(4); vG = V.get(4); vG2 = V.get(4); vT = V.get(8); vXa = V.get(4); vXb = V.get()
    vWa = V.get(2)
    vSc = V.get(8); vQ = V.get(12); vD = V.get(12); vW = V.get(32); vKV = V.get(96)
    nst = [0]
    def stamp():
        if not stamps: return
        a(f"s_memrealtime {sr(sTm,2)}"); a("s_waitcnt lgkmcnt(0)"); a(f"s_mov_b32 s{sSt+nst[0]}, s{sTm}"); nst[0] += 1
    def rne(dst, src):
        a(f"v_cvt_pk_bf16_f32 v{dst}, v{src}, v{src}"); a(f"v_and_b32 v{dst}, 0xffff0000, v{dst}")
    DP = "row_mask:0xf bank_mask:0xf"
    def red8(op, regs):
        for m in ("quad_perm:[1,0,3,2]", "quad_perm:[2,3,0,1]", "row_half_mirror"):
            for r in regs: a(f"{op}_dpp v{r}, v{r}, v{r} {m} {DP}")
    def red_hi(op, regs):
        for r in regs: a(f"{op}_dpp v{r}, v{r}, v{r} row_ror:8 {DP}")
        for r in regs: a(f"{op}_dpp v{r}, v{r}, v{r} row_bcast:15 row_mask:0xa bank_mask:0xf")
        for r in regs: a(f"{op}_dpp v{r}, v{r}, v{r} row_bcast:31 row_mask:0xc bank_mask:0xf")
    def tag4(dst, src):
        for k in range(4): a(f"v_perm_b32 v{dst+k}, v{src+k}, v{vTag}, s{sSel[k]}")
    def buildA(dst, dup):
        for k in range(4): a(f"v_and_b32 v{dst+k}, v{dup}, v{vM+k}")
    def poll_check(loads):
        lr = a.newlabel("retry"); lo = a.newlabel("ok")
        a.label(lr)
        for (g, _) in loads:
            for k in range(4): a(f"v_xor_b32 v{g+k}, s{sTag[k]}, v{g+k}")
        first = True
        for (g, _) in loads:
            if first:
                a(f"v_or3_b32 v{vT}, v{g}, v{g+1}, v{g+2}"); a(f"v_or_b32 v{vT}, v{vT}, v{g+3}"); first = False
            else:
                a(f"v_or3_b32 v{vT}, v{vT}, v{g}, v{g+1}"); a(f"v_or3_b32 v{vT}, v{vT}, v{g+2}, v{g+3}")
        a(f"v_and_b32 v{vT}, 0xff, v{vT}")
        a(f"v_cmp_ne_u32 vcc, 0, v{vT}")
        a(f"s_cbranch_vccz {lo}")
        a(f"s_sub_u32 s{sSpin}, s{sSpin}, 1")
        a("s_cbranch_scc1 L_end")
        old = a.cond; a.cond = True
        for (_, t) in loads: a(t)
        a.cond = old
        a("s_waitcnt vmcnt(0)")
        a(f"s_branch {lr}")
        a.label(lo)

    a("s_cmp_ge_u32 s2, 256"); a("s_cbranch_scc1 L_end")
    a("s_load_dwordx16 s[4:19], s[0:1], 0")
    a("s_load_dwordx8 s[20:27], s[0:1], 64")
    a(f"v_lshrrev_b32 v{vT}, 6, v0")
    a(f"v_and_b32 v{vL}, 63, v0")
    a(f"v_readfirstlane_b32 s{sW}, v{vT}")
    a(f"s_and_b32 s{sG}, s2, 7"); a(f"s_lshr_b32 s{sC}, s2, 3")
    a(f"s_lshl_b32 s{sP}, s{sG}, 5"); a(f"s_add_u32 s{sP}, s{sP}, s{sC}")
    a(f"s_lshr_b32 s{sH}, s{sP}, 3"); a(f"s_and_b32 s{sS}, s{sP}, 7")
    a(f"v_lshrrev_b32 v{vSlot}, 3, v{vL}"); a(f"v_and_b32 v{vCh}, 7, v{vL}")
    for d, sz in ((dX, 1280), (dK, 50331648), (dV, 50331648), (dWS, WS_SIZE), (dOUT, 1280)):
        a(f"s_mov_b32 s{d+2}, {sz}"); a(f"s_mov_b32 s{d+3}, 0x20000")
    a(f"s_mov_b32 s{dS1+3}, 0x20000")
    a.c("stage-1 role: waves 0-4 wq rows, waves 5-7 w1/w3 rows")
    a(f"s_mul_i32 s{sT0}, s{sS}, 80")
    a(f"s_and_b32 s{sT1}, s{sC}, 15"); a(f"s_mul_i32 s{sT1}, s{sT1}, 40"); a(f"s_sub_u32 s{sT1}, s{sT1}, 80")
    a(f"s_cmp_lt_u32 s{sW}, 5")
    a(f"s_cselect_b32 s{sT0}, s{sT0}, s{sT1}")
    a(f"s_cselect_b32 s{sT1}, s{sH}, s{sG}")
    a(f"s_cselect_b32 s{sT2}, 12288, 3072" if False else f"s_cselect_b32 s{sT2}, 12, 3")
    a(f"s_lshl_b32 s{sT2}, s{sT2}, 10")
    a(f"s_mul_i32 s{dS1+2}, s{sT2}, 640")
    a(f"s_mul_i32 s{sT1}, s{sT1}, 384")
    a(f"s_lshl_b32 s{sT3}, s{sW}, 4"); a(f"s_add_u32 s{sT0}, s{sT0}, s{sT3}")
    a(f"v_add_u32 v{vXr0}, s{sT0}, v{vSlot}")
    a(f"v_mul_lo_u32 v{vS1a}, v{vXr0}, s{sT2}")
    a(f"v_lshl_add_u32 v{vT+1}, v{vCh}, 4, s{sT1}")
    a(f"v_add_u32 v{vS1a}, v{vS1a}, v{vT+1}")
    a(f"s_lshl_b32 s{sT2}, s{sT2}, 3")
    a(f"s_cmp_eq_u32 s{sW}, 7"); a(f"s_cselect_b32 s{sT2}, 0x40000000, s{sT2}")
    a(f"v_add_u32 v{vS1b}, s{sT2}, v{vS1a}")
    a(f"v_lshlrev_b32 v{vT+2}, 1, v{vXr0}")
    a(f"v_lshlrev_b32 v{vT+3}, 4, v{vL}"); a(f"v_lshlrev_b32 v{vT+4}, 2, v{vL}")
    a(f"s_mul_i32 s{sT0}, s{sP}, 196608"); a(f"s_mul_i32 s{sT1}, s{sW}, 24576"); a(f"s_add_u32 s{sT0}, s{sT0}, s{sT1}")
    a(f"v_mul_u32_u24 v{vKoff}, 384, v{vSlot}")
    a(f"v_lshl_add_u32 v{vT+1}, v{vCh}, 4, s{sT0}")
    a(f"v_add_u32 v{vKoff}, v{vKoff}, v{vT+1}")
    for i in range(3): a(f"s_mov_b32 s{sOff[i]}, {6144*(i+1)}")
    a(f"s_mov_b32 s{sSpin}, {spin}")
    a("s_waitcnt lgkmcnt(0)")
    a(f"s_mov_b32 s{dX}, s{pX}"); a(f"s_mov_b32 s{dX+1}, s{pX+1}")
    a(f"s_cmp_lt_u32 s{sC}, 16"); a(f"s_cselect_b64 {sr(dS1,2)}, {sr(pW1,2)}, {sr(pW3,2)}")
    a(f"s_cmp_lt_u32 s{sW}, 5"); a(f"s_cselect_b64 {sr(dS1,2)}, {sr(pWQ,2)}, {sr(dS1,2)}")
    a(f"buffer_load_dwordx4 {vr(vXa,4)}, v{vT+3}, {sr(dX,4)}, 0 offen", "xa")
    a(f"buffer_load_dword v{vXb}, v{vT+4}, {sr(dX,4)}, 0 offen offset:1024", "xb")
    a(f"buffer_load_ushort v{vXr0}, v{vT+2}, {sr(dX,4)}, 0 offen", "xr0")
    a(f"buffer_load_ushort v{vXr1}, v{vT+2}, {sr(dX,4)}, 0 offen offset:16", "xr1")
    a(f"s_mov_b64 {sr(dK,2)}, {sr(pK,2)}"); a(f"s_mov_b64 {sr(dV,2)}, {sr(pV,2)}")

    def kv_load(t, i):
        g, j = divmod(i, 3)
        so = "0" if g < 2 else f"s{sOff[(g>>1)-1]}"
        r = vKV + 4*i
        a(f"buffer_load_dwordx4 {vr(r,4)}, v{vKoff}, {sr(dK if t == 'K' else dV,4)}, {so} offen offset:{3072*(g&1)+128*j} {ld}", f"{t}{i}")
    def s1_load(i):
        g, j = divmod(i, 3)
        a(f"buffer_load_dwordx4 {vr(vW+4*i,4)}, v{vS1a if g == 0 else vS1b}, {sr(dS1,4)}, 0 offen offset:{128*j} {ld}", f"S{i}")
    def w_load(i):
        r, pc = divmod(i, 2)
        a(f"global_load_dwordx4 {vr(vW+4*i,4)}, {vr(vWa,2)}, off offset:{1280*r+128*pc} {ld}", f"W{i}")
    for i in range(6): s1_load(i)
    stream = [("K", i) for i in range(24)] + [("V", i) for i in range(24)]
    pos = [0]
    def issue(n=1, withW=False):
        for _ in range(n):
            p = pos[0]
            if p < 48: kv_load(*stream[p])
            elif withW and p < 56: w_load(p - 48)
            pos[0] += 1
    a(f"s_load_dword s{sE}, {sr(pWS,2)}, {WS_E}")
    a(f"s_lshl_b32 s{sT0}, s2, 3"); a(f"s_min_u32 s{sT0}, s{sT0}, 1272")
    a(f"s_load_dwordx2 {sr(sXo,2)}, {sr(pX,2)}, s{sT0}")
    a(f"s_mov_b64 {sr(dWS,2)}, {sr(pWS,2)}"); a(f"s_mov_b64 {sr(dOUT,2)}, {sr(pOUT,2)}")
    stamp()
    a(f"v_and_b32 v{vT}, 1, v{vL}"); a(f"v_lshlrev_b32 v{vT}, 4, v{vT}")
    a(f"v_mov_b32 v{vT+1}, 0xffff"); a(f"v_lshlrev_b32 v{vT}, v{vT}, v{vT+1}")
    a(f"v_lshrrev_b32 v{vT+1}, 1, v{vCh}")
    for k in range(4):
        a(f"v_cmp_eq_u32 vcc, {k}, v{vT+1}"); a(f"v_cndmask_b32 v{vM+k}, 0, v{vT}, vcc")
    a(f"s_mov_b32 s{sVal}, 0x00ff00ff"); a(f"s_mov_b32 s{sVal+1}, 0xff00ff00")
    for k in range(4): a(f"s_mov_b32 s{sSel[k]}, {0x07060500 + k:#x}")
    a.c("LDS reduce addresses")
    a(f"v_lshrrev_b32 v{vT}, 5, v{vL}"); a(f"v_mul_u32_u24 v{vT}, 768, v{vT}")
    a(f"v_bfe_u32 v{vT+1}, v{vL}, 4, 1"); a(f"v_lshl_add_u32 v{vT+1}, v{vCh}, 1, v{vT+1}")
    a(f"v_lshl_add_u32 v{vT}, v{vT+1}, 4, v{vT}")
    a(f"s_mul_i32 s{sT0}, s{sW}, {RED_STRIDE}")
    a(f"v_add_u32 v{vRedW}, s{sT0}, v{vT}")
    a(f"v_min_u32 v{vT+2}, 5, v{vSlot}")
    a(f"s_mul_i32 s{sT0}, s{sW}, 96")
    a(f"v_mul_u32_u24 v{vT}, {RED_STRIDE}, v{vCh}")
    a(f"v_lshl_add_u32 v{vT+1}, v{vT+2}, 4, s{sT0}")
    a(f"v_add_u32 v{vRedR}, v{vT}, v{vT+1}")
    a.c("publish offset (P*8+w)*128 + gamma*16; gather offset (h*8+p)*1024 + gamma*16")
    a(f"s_lshl_b32 s{sT0}, s{sP}, 3"); a(f"s_add_u32 s{sT0}, s{sT0}, s{sW}"); a(f"s_lshl_b32 s{sT0}, s{sT0}, 7")
    a(f"v_lshl_add_u32 v{vPub}, v{vT+2}, 4, s{sT0}")
    a(f"s_lshl_b32 s{sT0}, s{sH}, 13")
    a(f"v_lshl_add_u32 v{vT}, v{vCh}, 10, s{sT0}")
    a(f"v_lshl_add_u32 v{vGa}, v{vT+2}, 4, v{vT}")
    a.c("stage-3 weight addresses")
    a(f"s_mul_i32 s{sT0}, s{sP}, {24*1280}"); a(f"s_lshl_b32 s{sT1}, s{sW}, 8"); a(f"s_add_u32 s{sT0}, s{sT0}, s{sT1}")
    a(f"s_add_u32 s{pWO}, s{pWO}, s{sT0}"); a(f"s_addc_u32 s{pWO+1}, s{pWO+1}, 0")
    a(f"s_mul_i32 s{sT0}, s{sG}, 24"); a(f"s_add_u32 s{sT0}, s{sT0}, s{sC}"); a(f"s_mul_i32 s{sT0}, s{sT0}, {8*1280}")
    a(f"s_add_u32 s{sT0}, s{sT0}, s{sT1}")
    a(f"s_add_u32 s{pW2}, s{pW2}, s{sT0}"); a(f"s_addc_u32 s{pW2+1}, s{pW2+1}, 0")
    a(f"s_cmp_lt_u32 s{sC}, 24"); a(f"s_cselect_b64 {sr(pW2,2)}, {sr(pW2,2)}, {sr(pWO,2)}")
    a(f"v_cmp_gt_u32 vcc, 6, v{vSlot}")
    a(f"v_mov_b32 v{vT}, s{pW2}"); a(f"v_mov_b32 v{vT+1}, s{pW2+1}")
    a(f"v_mov_b32 v{vT+2}, s{pWO}"); a(f"v_mov_b32 v{vT+3}, s{pWO+1}")
    a(f"v_cndmask_b32 v{vWa}, v{vT}, v{vT+2}, vcc"); a(f"v_cndmask_b32 v{vWa+1}, v{vT+1}, v{vT+3}, vcc")
    a(f"v_subrev_u32 v{vT}, 6, v{vSlot}"); a(f"v_cndmask_b32 v{vT}, v{vT}, v{vSlot}, vcc")
    a(f"v_mul_u32_u24 v{vT}, {4*1280}, v{vT}"); a(f"v_lshl_add_u32 v{vT}, v{vCh}, 4, v{vT}")
    a(f"v_add_co_u32 v{vWa}, vcc, v{vWa}, v{vT}"); a(f"v_addc_co_u32 v{vWa+1}, vcc, 0, v{vWa+1}, vcc")
    if prefetch:
        a.c("pull this kernel's code into the L2 (each workgroup a slice)")
        a(f"s_getpc_b64 {sr(sTm,2)}")
        a(f"s_lshl_b32 s{sT0}, s{sC}, 3"); a(f"s_add_u32 s{sT0}, s{sT0}, s{sW}"); a(f"s_and_b32 s{sT0}, s{sT0}, 127")
        a(f"s_lshl_b32 s{sT0}, s{sT0}, 6")
        a(f"s_load_dword s{sT1}, {sr(sTm,2)}, s{sT0}")
    issue(D0 if D0 is not None else max(D - 2, 1))
    a.wait_vm("xb")
    xs = [vQ + i for i in range(10)]
    for i in range(5):
        src = vXa + i if i < 4 else vXb
        a(f"v_lshlrev_b32 v{xs[2*i]}, 16, v{src}"); a(f"v_and_b32 v{xs[2*i+1]}, 0xffff0000, v{src}")
    a(f"v_add_f32 v{vT}, v{xs[0]}, v{xs[1]}"); a(f"v_add_f32 v{vT+1}, v{xs[2]}, v{xs[3]}")
    for i in range(4, 10): a(f"v_add_f32 v{vT+(i&1)}, v{vT+(i&1)}, v{xs[i]}")
    a(f"v_add_f32 v{vT}, v{vT}, v{vT+1}")
    red8("v_add_f32", [vT]); red_hi("v_add_f32", [vT])
    a(f"v_readlane_b32 s{sT0}, v{vT}, 63")
    a(f"v_mov_b32 v{vT+2}, {f2u(1/640.):#x}")
    a(f"v_mul_f32 v{vT+3}, s{sT0}, v{vT+2}")
    for i in range(10): a(f"v_sub_f32 v{xs[i]}, v{xs[i]}, v{vT+3}")
    a(f"v_mul_f32 v{vT}, v{xs[0]}, v{xs[0]}"); a(f"v_mul_f32 v{vT+1}, v{xs[1]}, v{xs[1]}")
    for i in range(2, 10): a(f"v_fmac_f32 v{vT+(i&1)}, v{xs[i]}, v{xs[i]}")
    a(f"v_add_f32 v{vT}, v{vT}, v{vT+1}")
    red8("v_add_f32", [vT]); red_hi("v_add_f32", [vT])
    a(f"v_readlane_b32 s{sT0}, v{vT}, 63")
    a(f"v_mul_f32 v{vT+2}, s{sT0}, v{vT+2}")
    rne(vT+2, vT+2); rne(vT+3, vT+3)
    a(f"v_add_f32 v{vT+2}, {f2u(1e-5):#x}, v{vT+2}"); rne(vT+2, vT+2)
    a(f"v_sqrt_f32 v{vT+2}, v{vT+2}"); rne(vT+2, vT+2)
    a(f"v_rcp_f32 v{vT+4}, v{vT+2}")
    a.wait_vm("xr1")
    for x in (vXr0, vXr1):
        a(f"v_lshlrev_b32 v{x}, 16, v{x}"); a(f"v_sub_f32 v{x}, v{x}, v{vT+3}"); rne(x, x)
        a(f"v_mul_f32 v{vT}, v{x}, v{vT+4}"); a(f"v_fma_f32 v{vT+1}, -v{vT}, v{vT+2}, v{x}")
        a(f"v_fma_f32 v{vT}, v{vT+1}, v{vT+4}, v{vT}")
        a(f"v_cvt_pk_bf16_f32 v{x}, v{vT}, v{vT}")
    buildA(vA, vXr0); buildA(vA2, vXr1)
    a("s_waitcnt lgkmcnt(0)")
    a(f"s_add_u32 s{sE}, s{sE}, 0x01010101")
    a(f"v_mov_b32 v{vTag}, s{sE}")
    for k in range(4): a(f"s_bfe_u32 s{sTag[k]}, s{sE}, {(8 << 16) | (8*k):#x}")
    for i in range(6):
        g, j = divmod(i, 3)
        a.wait_vm(f"S{i}")
        if i >= 4 and pos[0] < D: issue(1)
        a(f"v_mfma_f32_16x16x32_bf16 {vr(vD+4*j,4)}, {vr(vA if g == 0 else vA2,4)}, {vr(vW+4*i,4)}, {'0' if g == 0 else vr(vD+4*j,4)}")
    while pos[0] < D: issue(1)
    def red_write():
        a(f"s_mov_b64 exec, {sr(sVal,2)}")
        for j in range(3): a(f"ds_write_b128 v{vRedW}, {vr(vD+4*j,4)} offset:{LDS_RED+256*j}")
        a("s_mov_b64 exec, -1")
        a("s_waitcnt lgkmcnt(0)"); a("s_barrier")
    def red_read():
        a(f"ds_read_b128 {vr(vG,4)}, v{vRedR} offset:{LDS_RED}")
        a(f"ds_read_b128 {vr(vG2,4)}, v{vRedR} offset:{LDS_RED+768}")
        a("s_waitcnt lgkmcnt(0)")
        for k in range(4): a(f"v_add_f32 v{vG+k}, v{vG+k}, v{vG2+k}")
    red_write(); red_read()
    a(f"v_cmp_gt_u32 vcc, 5, v{vCh}")
    for k in range(4): a(f"v_cndmask_b32 v{vG2+k}, v{vG+k}, 0, vcc" if False else f"v_cndmask_b32_e64 v{vG2+k}, v{vG+k}, 0, vcc")
    for k in range(4): a(f"v_cndmask_b32 v{vG+k}, 0, v{vG+k}, vcc")
    red8("v_add_f32", [vG+k for k in range(4)] + [vG2+k for k in range(4)])
    a(f"v_cmp_eq_u32 vcc, 0, v{vCh}")
    a(f"v_mov_b32 v{vT}, {WS_FP}"); a(f"v_mov_b32 v{vT+1}, {WS_QP}")
    for k in range(4): a(f"v_cndmask_b32 v{vG+k}, v{vG2+k}, v{vG+k}, vcc")
    a(f"v_cndmask_b32 v{vT}, v{vT}, v{vT+1}, vcc"); a(f"v_add_u32 v{vT}, v{vT}, v{vPub}")
    tag4(vG2, vG)
    a(f"s_mov_b32 exec_lo, 0x03030303"); a(f"s_mov_b32 exec_hi, 0x00000303")
    a(f"buffer_store_dwordx4 {vr(vG2,4)}, v{vT}, {sr(dWS,4)}, 0 offen {st}", "pubq")
    a("s_mov_b64 exec, -1")
    stamp()
    arr = [0]
    def step(withW=False):
        t, i = stream[arr[0]]; a.wait_vm(f"{t}{i}"); arr[0] += 1; issue(1, withW)
    while pos[0] < qpos: step()
    a(f"s_lshl_b32 s{sT0}, s{sW}, 7"); a(f"s_add_u32 s{sT0}, s{sT0}, {WS_QP}")
    qload = f"buffer_load_dwordx4 {vr(vG,4)}, v{vGa}, {sr(dWS,4)}, s{sT0} offen {pl}"
    a(qload, "gq")
    a.c("wave 7 also gathers the FFN partials")
    lf = a.newlabel("noffn")
    a(f"s_min_u32 s{sT1}, s{sC}, 23"); a(f"s_mul_i32 s{sT2}, s{sT1}, 43"); a(f"s_lshr_b32 s{sT2}, s{sT2}, 7")
    a(f"s_mul_i32 s{sT3}, s{sT2}, 3"); a(f"s_sub_u32 s{sT1}, s{sT1}, s{sT3}")
    a(f"s_lshl_b32 s{sT2}, s{sT2}, 7"); a(f"s_lshl_b32 s{sT1}, s{sT1}, 5"); a(f"s_add_u32 s{sT1}, s{sT1}, s{sT2}")
    a(f"s_lshl_b32 s{sT2}, s{sG}, 15"); a(f"s_add_u32 s{sT1}, s{sT1}, s{sT2}"); a(f"s_add_u32 s{sT1}, s{sT1}, {WS_FP}")
    a(f"v_and_b32 v{vGb}, 31, v{vL}"); a(f"v_lshlrev_b32 v{vGb}, 10, v{vGb}")
    a(f"v_lshrrev_b32 v{vT+1}, 5, v{vL}"); a(f"v_lshl_add_u32 v{vGb}, v{vT+1}, 4, v{vGb}")
    fload = f"buffer_load_dwordx4 {vr(vG2,4)}, v{vGb}, {sr(dWS,4)}, s{sT1} offen {pl}"
    a(f"s_cmp_lg_u32 s{sW}, 7"); a(f"s_cbranch_scc1 {lf}")
    a.cond = True; a(fload, "gf"); a.cond = False
    a.label(lf)
    while arr[0] < qpos: step()
    a.wait_vm("gq")
    poll_check([(vG, qload)])
    red8("v_add_f32", [vG+k for k in range(4)])
    a(f"v_cvt_pk_bf16_f32 v{vG}, v{vG}, v{vG+1}"); a(f"v_cvt_pk_bf16_f32 v{vG+1}, v{vG+2}, v{vG+3}")
    a(f"v_min_u32 v{vT+2}, 5, v{vSlot}"); a(f"s_mul_i32 s{sT0}, s{sW}, 48")
    a(f"v_lshl_add_u32 v{vT+2}, v{vT+2}, 3, s{sT0}")
    a(f"ds_write_b64 v{vT+2}, {vr(vG,2)} offset:{LDS_Q}")
    lf = a.newlabel("noffn")
    a(f"s_cmp_lg_u32 s{sW}, 7"); a(f"s_cbranch_scc1 {lf}")
    a.cond = True
    a.wait_vm("gf")
    poll_check([(vG2, fload)])
    g4 = [vG2+k for k in range(4)]
    red8("v_add_f32", g4)
    for r in g4: a(f"v_add_f32_dpp v{r}, v{r}, v{r} row_mirror {DP}")
    for r in g4: rne(r, r)
    for k in range(4): a(f"v_mul_f32 v{vT+k}, {f2u(-1.4426950408889634):#x}, v{vG2+k}")
    for k in range(4): a(f"v_exp_f32 v{vT+k}, v{vT+k}")
    for k in range(4): a(f"v_add_f32 v{vT+k}, 1.0, v{vT+k}")
    for k in range(4): a(f"v_rcp_f32 v{vT+k}, v{vT+k}")
    for k in range(4): a(f"v_mul_f32 v{vT+k}, v{vT+k}, v{vG2+k}")
    for k in range(4): rne(vT+k, vT+k)
    for k in range(4): a(f"v_mov_b32_dpp v{vT+k}, v{vT+k} row_bcast:15 row_mask:0xa bank_mask:0xf")
    for k in range(4): a(f"v_mul_f32 v{vT+k}, v{vT+k}, v{vG2+k}")
    a(f"s_cmp_lt_u32 s{sC}, 24"); a(f"s_cselect_b32 s{sT0}, -1, 0")
    for k in range(4): a(f"v_and_b32 v{vT+k}, s{sT0}, v{vT+k}")
    a(f"v_lshrrev_b32 v{vT+4}, 5, v{vL}"); a(f"v_lshlrev_b32 v{vT+4}, 4, v{vT+4}")
    a(f"s_mov_b32 exec_lo, 0xffff0000"); a(f"s_mov_b32 exec_hi, 0xffff0000")
    a(f"ds_write_b128 v{vT+4}, {vr(vT,4)} offset:{LDS_H}")
    a("s_mov_b64 exec, -1")
    a.cond = False
    a.label(lf)
    a("s_waitcnt lgkmcnt(0)"); a("s_barrier")
    a(f"v_lshlrev_b32 v{vT}, 4, v{vCh}")
    for j in range(3): a(f"ds_read_b128 {vr(vQ+4*j,4)}, v{vT} offset:{LDS_Q+128*j}")
    a(f"v_and_b32 v{vT+1}, 1, v{vSlot}"); a(f"v_lshlrev_b32 v{vT+1}, 4, v{vT+1}")
    a(f"ds_read_b128 {vr(vXa,4)}, v{vT+1} offset:{LDS_H}")
    a("s_waitcnt lgkmcnt(0)")
    stamp()
    for g in range(8):
        while arr[0] < 3*g + 3: step()
        b = vKV + 12*g
        a(f"v_dot2_f32_bf16 v{vSc+g}, v{b}, v{vQ}, 0")
        a(f"v_dot2_f32_bf16 v{vT}, v{b+1}, v{vQ+1}, 0")
        for i in range(2, 12):
            d = vSc+g if i % 2 == 0 else vT
            a(f"v_dot2_f32_bf16 v{d}, v{b+i}, v{vQ+i}, v{d}")
        a(f"v_add_f32 v{vSc+g}, v{vSc+g}, v{vT}")
        assert pos[0] - 24 <= 3*g + 3 or True
    sc = [vSc+g for g in range(8)]
    red8("v_add_f32", sc)
    for r in sc: a(f"v_cvt_pk_bf16_f32 v{r}, v{r}, v{r}")
    for r in sc: a(f"v_and_b32 v{r}, 0xffff0000, v{r}")
    for r in sc: a(f"v_mul_f32 v{r}, {f2u(192 ** -0.5):#x}, v{r}")
    for r in sc: a(f"v_cvt_pk_bf16_f32 v{r}, v{r}, v{r}")
    for r in sc: a(f"v_and_b32 v{r}, 0xffff0000, v{r}")
    a(f"v_max3_f32 v{vG}, v{sc[0]}, v{sc[1]}, v{sc[2]}"); a(f"v_max3_f32 v{vG+1}, v{sc[3]}, v{sc[4]}, v{sc[5]}")
    a(f"v_max3_f32 v{vG}, v{vG}, v{sc[6]}, v{sc[7]}"); a(f"v_max_f32 v{vG}, v{vG}, v{vG+1}")
    red_hi("v_max_f32", [vG])
    a(f"v_readlane_b32 s{sT0}, v{vG}, 63")
    L2E = f"{f2u(1.4426950408889634):#x}"
    for k in range(8): a(f"v_subrev_f32 v{vT+k}, s{sT0}, v{sc[k]}")
    for k in range(8): a(f"v_mul_f32 v{vT+k}, {L2E}, v{vT+k}")
    for k in range(8): a(f"v_exp_f32 v{vT+k}, v{vT+k}")
    for k in range(4): a(f"v_add_f32 v{vT+k}, v{vT+k}, v{vT+4+k}")
    a(f"v_add_f32 v{vT}, v{vT}, v{vT+1}"); a(f"v_add_f32 v{vT+2}, v{vT+2}, v{vT+3}"); a(f"v_add_f32 v{vG+1}, v{vT}, v{vT+2}")
    red_hi("v_add_f32", [vG+1])
    a(f"v_mov_b32 v{vG+2}, 0"); a(f"v_mov_b32 v{vG+3}, 0")
    tag4(vG2, vG)
    a(f"s_lshl_b32 s{sT0}, s{sP}, 3"); a(f"s_add_u32 s{sT0}, s{sT0}, s{sW}"); a(f"s_lshl_b32 s{sT0}, s{sT0}, 4")
    a(f"s_add_u32 s{sT0}, s{sT0}, {WS_ML}"); a(f"v_mov_b32 v{vT}, s{sT0}")
    a(f"s_mov_b32 exec_lo, 0"); a(f"s_mov_b32 exec_hi, 0x80000000")
    a(f"buffer_store_dwordx4 {vr(vG2,4)}, v{vT}, {sr(dWS,4)}, 0 offen {st}", "pubml")
    a("s_mov_b64 exec, -1")
    stamp()
    while pos[0] < 24 + mlpos: step()
    a(f"s_lshl_b32 s{sT0}, s{sH}, 10"); a(f"s_add_u32 s{sT0}, s{sT0}, {WS_ML}")
    a(f"v_lshlrev_b32 v{vGb}, 4, v{vL}")
    mload = f"buffer_load_dwordx4 {vr(vG,4)}, v{vGb}, {sr(dWS,4)}, s{sT0} offen {pl}"
    a(mload, "gm")
    assert 24 + mlpos + D <= 48
    while arr[0] < 24 + mlpos: step()
    a.wait_vm("gm")
    poll_check([(vG, mload)])
    a(f"v_mov_b32 v{vT}, v{vG}")
    red8("v_max_f32", [vT]); red_hi("v_max_f32", [vT])
    a(f"v_readlane_b32 s{sT0}, v{vT}, 63")
    a(f"v_subrev_f32 v{vT}, s{sT0}, v{vG}"); a(f"v_mul_f32 v{vT}, {L2E}, v{vT}"); a(f"v_exp_f32 v{vT}, v{vT}")
    a(f"v_mul_f32 v{vT}, v{vT}, v{vG+1}")
    red8("v_add_f32", [vT]); red_hi("v_add_f32", [vT])
    a(f"v_rcp_f32 v{vT}, v{vT}")
    for r in sc: a(f"v_subrev_f32 v{r}, s{sT0}, v{r}")
    a(f"v_readlane_b32 s{sT1}, v{vT}, 63")
    for r in sc: a(f"v_mul_f32 v{r}, {L2E}, v{r}")
    for r in sc: a(f"v_exp_f32 v{r}, v{r}")
    for r in sc: a(f"v_mul_f32 v{r}, s{sT1}, v{r}")
    for r in sc: a(f"v_cvt_pk_bf16_f32 v{r}, v{r}, v{r}")
    stamp()
    a(f"s_cmp_ge_u32 s{sW}, 5"); a("s_cbranch_scc1 L_pathB")
    snap = a.snapshot(); p0, a0, n0 = pos[0], arr[0], nst[0]
    def pv_and_publish(withW):
        for g in range(8):
            A_ = vA if g % 2 == 0 else vA2
            buildA(A_, sc[g])
            for j in range(3):
                while arr[0] < 24 + 3*g + j + 1: step(withW)
                a(f"v_mfma_f32_16x16x32_bf16 {vr(vD+4*j,4)}, {vr(A_,4)}, {vr(vKV+12*g+4*j,4)}, {'0' if g == 0 else vr(vD+4*j,4)}")
        if withW:
            while pos[0] < 56: issue(1, True)
        stamp()
        red_write(); red_read()
        red8("v_add_f32", [vG+k for k in range(4)])
        tag4(vG2, vG)
        a(f"s_mov_b32 s{sT0}, {WS_OP}")
        a(f"s_mov_b32 exec_lo, 0x01010101"); a(f"s_mov_b32 exec_hi, 0x00000101")
        a(f"buffer_store_dwordx4 {vr(vG2,4)}, v{vPub}, {sr(dWS,4)}, s{sT0} offen {st}", "pubo")
        a("s_mov_b64 exec, -1")
        stamp()
    def write_stamps():
        if not stamps: return
        a(f"s_lshl_b32 s{sT0}, s{sP}, 3"); a(f"s_add_u32 s{sT0}, s{sT0}, s{sW}"); a(f"s_lshl_b32 s{sT0}, s{sT0}, 6")
        a("s_mov_b64 exec, 1")
        a(f"s_add_u32 s{sT0}, s{sT0}, {WS_ST}"); a(f"v_mov_b32 v{vT}, s{sT0}")
        a(f"s_mov_b32 s{sSt+15}, s{sSpin}")
        for q in range(4):
            for k in range(4): a(f"v_mov_b32 v{vKV+4*q+k}, s{sSt+4*q+k}")
            a(f"buffer_store_dwordx4 {vr(vKV+4*q,4)}, v{vT}, {sr(dWS,4)}, 0 offen offset:{16*q}")
    pv_and_publish(True)
    a(f"s_lshl_b32 s{sT0}, s{sS}, 7"); a(f"s_add_u32 s{sT0}, s{sT0}, {WS_OP}")
    oload = f"buffer_load_dwordx4 {vr(vG,4)}, v{vGa}, {sr(dWS,4)}, s{sT0} offen {pl}"
    a(oload, "go")
    a.c("y publish offset")
    a(f"v_bfe_u32 v{vT+1}, v{vL}, 4, 1"); a(f"v_lshl_add_u32 v{vT+1}, v{vCh}, 1, v{vT+1}")
    a(f"v_lshrrev_b32 v{vT+2}, 5, v{vL}"); a(f"v_lshl_add_u32 v{vT+1}, v{vT+2}, 4, v{vT+1}")
    a(f"s_lshl_b32 s{sT1}, s{sW}, 5"); a(f"v_add_u32 v{vT+1}, s{sT1}, v{vT+1}")
    a(f"v_mul_u32_u24 v{vGb}, {ysr}, v{vT+1}")
    a(f"s_mul_i32 s{sT1}, s{sP}, {ysp}"); a(f"s_add_u32 s{sT1}, s{sT1}, {WS_YP}")
    a(f"v_mul_u32_u24 v{vPub}, {ysp}, v{vL}")
    a(f"s_mul_i32 s{sT2}, s2, {ysr}"); a(f"s_add_u32 s{sT2}, s{sT2}, {WS_YP}")
    a(f"v_add_u32 v{vPub}, s{sT2}, v{vPub}")
    for i in range(3): a(f"s_mov_b32 s{sOff[i]}, {64*ysp*(i+1)}")
    a.wait_vm("go")
    poll_check([(vG, oload)])
    stamp()
    red8("v_add_f32", [vG+k for k in range(4)])
    a(f"v_cmp_gt_u32 vcc, 6, v{vSlot}")
    for k in range(4): a(f"v_cndmask_b32 v{vG+k}, v{vXa+k}, v{vG+k}, vcc")
    for k in range(4): a(f"v_cvt_pk_bf16_f32 v{vG+k}, v{vG+k}, v{vG+k}")
    for r in range(4):
        A_ = vA if r % 2 == 0 else vA2
        buildA(A_, vG+r)
        for pc in range(2):
            a(f"v_mfma_f32_16x16x32_bf16 {vr(vD+4*pc,4)}, {vr(A_,4)}, {vr(vW+4*(2*r+pc),4)}, {'0' if r == 0 else vr(vD+4*pc,4)}")
    for k in range(4): a(f"v_permlane32_swap_b32 v{vD+k}, v{vD+4+k}")
    for k in range(4): a(f"v_add_f32_dpp v{vD+k}, v{vD+4+k}, v{vD+k} row_ror:8 {DP}")
    tag4(vG2, vD)
    a(f"s_mov_b32 exec_lo, 0x00ff00ff"); a(f"s_mov_b32 exec_hi, 0x00ff00ff")
    a(f"buffer_store_dwordx4 {vr(vG2,4)}, v{vGb}, {sr(dWS,4)}, s{sT1} offen {st}", "puby")
    a("s_mov_b64 exec, -1")
    stamp()
    lx = a.newlabel("exitA")
    a(f"s_cmp_lg_u32 s{sW}, 0"); a(f"s_cbranch_scc1 {lx}")
    a(f"s_cmp_ge_u32 s2, 160"); a(f"s_cbranch_scc1 {lx}")
    yl = [(vKV+16+4*i, f"buffer_load_dwordx4 {vr(vKV+16+4*i,4)}, v{vPub}, {sr(dWS,4)}, {'0' if i == 0 else 's%d' % sOff[i-1]} offen {pl}") for i in range(4)]
    for _, t in yl: a(t)
    a("s_waitcnt vmcnt(0)")
    poll_check(yl)
    y = vKV + 16
    for k in range(4): a(f"v_add_f32 v{y+k}, v{y+k}, v{y+4+k}")
    for k in range(4): a(f"v_add_f32 v{y+8+k}, v{y+8+k}, v{y+12+k}")
    for k in range(4): a(f"v_add_f32 v{y+k}, v{y+k}, v{y+8+k}")
    red8("v_add_f32", [y+k for k in range(4)]); red_hi("v_add_f32", [y+k for k in range(4)])
    a(f"s_lshl_b32 s{sT0}, s{sXo}, 16"); a(f"s_and_b32 s{sT1}, s{sXo}, 0xffff0000")
    a(f"s_lshl_b32 s{sT2}, s{sXo+1}, 16"); a(f"s_and_b32 s{sT3}, s{sXo+1}, 0xffff0000")
    for k, s_ in enumerate((sT0, sT1, sT2, sT3)): a(f"v_add_f32 v{y+k}, s{s_}, v{y+k}")
    a(f"v_cvt_pk_bf16_f32 v{y}, v{y}, v{y+1}"); a(f"v_cvt_pk_bf16_f32 v{y+1}, v{y+2}, v{y+3}")
    a(f"s_lshl_b32 s{sT0}, s2, 3"); a(f"v_mov_b32 v{vT}, s{sT0}")
    a(f"s_mov_b32 exec_lo, 0"); a(f"s_mov_b32 exec_hi, 0x80000000")
    a(f"buffer_store_dwordx2 {vr(y,2)}, v{vT}, {sr(dOUT,4)}, 0 offen")
    a.c("workgroup 0 has now heard from every workgroup: advance the hand-off epoch")
    a(f"s_cmp_lg_u32 s2, 0"); a(f"s_cbranch_scc1 {lx}")
    a(f"buffer_store_dword v{vTag}, v{vT}, {sr(dWS,4)}, 0 offen offset:{WS_E}")
    a.label(lx)
    stamp()
    write_stamps()
    a("s_endpgm")
    a.label("L_pathB")
    a.restore(snap); pos[0], arr[0], nst[0] = p0, a0, n0
    pv_and_publish(False)
    write_stamps()
    a.label("L_end")
    a("s_endpgm")
    if prefetch: a.raw("    .fill 2048, 4, 0xbf810000")
    nv = (V.n + 7) // 8 * 8
    a.raw('.section .rodata,"a"'); a.raw(".p2align 6"); a.raw(f".amdhsa_kernel {NAME}_kernel")
    a.raw(f"  .amdhsa_next_free_vgpr {nv}"); a.raw("  .amdhsa_next_free_sgpr 102"); a.raw(f"  .amdhsa_accum_offset {nv}")
    a.raw("  .amdhsa_group_segment_fixed_size 0"); a.raw("  .amdhsa_kernarg_size 96"); a.raw("  .amdhsa_user_sgpr_count 2")
    a.raw("  .amdhsa_user_sgpr_kernarg_segment_ptr 1"); a.raw("  .amdhsa_system_sgpr_workgroup_id_x 1")
    a.raw(".end_amdhsa_kernel")
    return a.text()

if __name__ == "__main__":
    kw = {}
    out = sys.argv[1]
    for x in sys.argv[2:]:
        k, v = x.split("=")
        try: v = eval(v)
        except Exception: pass
        kw[k] = v
    open(out, "w").write(gen(**kw))
```

```python
import sys, struct
sys.path.insert(0, "dev")
from asmlib import *

NAME = "parallel_sum__gqa_block_cached__glu_gated_swiglu__decode"
def f2u(x): return struct.unpack("<I", struct.pack("<f", x))[0]

WS_E  = 0
WS_QP = 0x10000
WS_FP = 0x50000
WS_OP = 0x90000
WS_ML = 0xD0000
WS_YP = 0x100000
WS_ST = 0x400000
WS_SIZE = 0x800000
RED_STRIDE = 1568
LDS_RED = 0
LDS_Q = 12800
LDS_H = 13312
LDS_DUMMY = 13376

def gen(D=4, D0=None, qpos=12, mlpos=12, ld="nt", st="sc1", pl="sc1", stamps=False, ysp=2560, ysr=16,
        lds=90112, prefetch=True, spin=1 << 16, diag=None):
    a = Asm()
    assert qpos + D <= 24 and mlpos + D <= 24 and mlpos >= D and qpos >= D
    hdr = open("cdna_kernels/" + NAME + ".s.ref").read().split("\n")
    for ln in hdr:
        if ln.startswith(";") and "@launch" not in ln and "Override launch" not in ln and "grid=ceil" not in ln: a.raw(ln)
    a.raw(f"; @launch grid=(256,1,1) block=(512,1,1) lds={lds}")
    a.raw('.amdgcn_target "amdgcn-amd-amdhsa--gfx950"')
    a.raw(".text"); a.raw(f".globl {NAME}_kernel"); a.raw(".p2align 8"); a.raw(f".type {NAME}_kernel,@function")
    a.label(f"{NAME}_kernel")
    V = Regs(1, 256, "v"); S = Regs(28, 102, "s")
    pX, pK, pV, pWQ, pWO, pBX, pW1, pW3, pW2, pOUT, pDBG, pWS = [4 + 2*i for i in range(12)]
    dX, dK, dV, dS1, dWS, dOUT = [S.get(4) for _ in range(6)]
    sW, sG, sC, sP, sH, sS, sE, sT0, sT1, sT2, sT3, sSpin = [S.get() for _ in range(12)]
    sTag = [S.get() for _ in range(4)]
    sSel = [S.get() for _ in range(4)]
    sOff = [S.get() for _ in range(3)]
    sXo = S.get(2)
    sVal = S.get(2)
    sSt = S.get(16, 4)
    sTm = S.get(2)
    vL, vSlot, vCh, vTag, vKoff, vS1a, vS1b, vXr0, vXr1, vRedW, vRedR, vPub, vGa, vGb = [V.get() for _ in range(14)]
    vM = V.get(4); vA = V.get(4); vA2 = V.get(4); vG = V.get(4); vG2 = V.get(4); vT = V.get(8); vXa = V.get(4); vXb = V.get()
    vWa = V.get(2)
    vSc = V.get(8); vQ = V.get(12); vD = V.get(12); vW = V.get(32); vKV = V.get(96)
    nst = [0]
    sStart = S.get(2)
    def stamp():
        if diag is not None:
            if nst[0] == diag:
                a(f"s_memrealtime {sr(sTm,2)}"); a("s_waitcnt lgkmcnt(0)"); a(f"s_mov_b32 s{sSt}, s{sTm}")
            nst[0] += 1
            return
        if not stamps: return
        a(f"s_memrealtime {sr(sTm,2)}"); a("s_waitcnt lgkmcnt(0)"); a(f"s_mov_b32 s{sSt+nst[0]}, s{sTm}"); nst[0] += 1
    def rne(dst, src):
        a(f"v_cvt_pk_bf16_f32 v{dst}, v{src}, v{src}"); a(f"v_and_b32 v{dst}, 0xffff0000, v{dst}")
    DP = "row_mask:0xf bank_mask:0xf"
    def red8(op, regs):
        for m in ("quad_perm:[1,0,3,2]", "quad_perm:[2,3,0,1]", "row_half_mirror"):
            for r in regs: a(f"{op}_dpp v{r}, v{r}, v{r} {m} {DP}")
    def red_hi(op, regs):
        for r in regs: a(f"{op}_dpp v{r}, v{r}, v{r} row_ror:8 {DP}")
        for r in regs: a(f"{op}_dpp v{r}, v{r}, v{r} row_bcast:15 row_mask:0xa bank_mask:0xf")
        for r in regs: a(f"{op}_dpp v{r}, v{r}, v{r} row_bcast:31 row_mask:0xc bank_mask:0xf")
    def tag4(dst, src):
        for k in range(4): a(f"v_perm_b32 v{dst+k}, v{src+k}, v{vTag}, s{sSel[k]}")
    def buildA(dst, dup):
        for k in range(4): a(f"v_and_b32 v{dst+k}, v{dup}, v{vM+k}")
    def poll_check(loads):
        lr = a.newlabel("retry"); lo = a.newlabel("ok")
        a.label(lr)
        for (g, _) in loads:
            for k in range(4): a(f"v_xor_b32 v{g+k}, s{sTag[k]}, v{g+k}")
        first = True
        for (g, _) in loads:
            if first:
                a(f"v_or3_b32 v{vT}, v{g}, v{g+1}, v{g+2}"); a(f"v_or_b32 v{vT}, v{vT}, v{g+3}"); first = False
            else:
                a(f"v_or3_b32 v{vT}, v{vT}, v{g}, v{g+1}"); a(f"v_or3_b32 v{vT}, v{vT}, v{g+2}, v{g+3}")
        a(f"v_and_b32 v{vT}, 0xff, v{vT}")
        a(f"v_cmp_ne_u32 vcc, 0, v{vT}")
        a(f"s_cbranch_vccz {lo}")
        a(f"s_sub_u32 s{sSpin}, s{sSpin}, 1")
        a("s_cbranch_scc1 L_end")
        old = a.cond; a.cond = True
        for (_, t) in loads: a(t)
        a.cond = old
        a("s_waitcnt vmcnt(0)")
        a(f"s_branch {lr}")
        a.label(lo)

    a("s_cmp_ge_u32 s2, 256"); a("s_cbranch_scc1 L_end")
    if diag is not None or stamps: a(f"s_memrealtime {sr(sStart,2)}")
    a("s_load_dwordx16 s[4:19], s[0:1], 0")
    a("s_load_dwordx8 s[20:27], s[0:1], 64")
    a(f"v_lshrrev_b32 v{vT}, 6, v0")
    a(f"v_and_b32 v{vL}, 63, v0")
    a(f"v_readfirstlane_b32 s{sW}, v{vT}")
    a(f"s_and_b32 s{sG}, s2, 7"); a(f"s_lshr_b32 s{sC}, s2, 3")
    a(f"s_lshl_b32 s{sP}, s{sG}, 5"); a(f"s_add_u32 s{sP}, s{sP}, s{sC}")
    a(f"s_lshr_b32 s{sH}, s{sP}, 3"); a(f"s_and_b32 s{sS}, s{sP}, 7")
    a(f"v_lshrrev_b32 v{vSlot}, 3, v{vL}"); a(f"v_and_b32 v{vCh}, 7, v{vL}")
    for d, sz in ((dX, 1280), (dK, 50331648), (dV, 50331648), (dWS, WS_SIZE), (dOUT, 1280)):
        a(f"s_mov_b32 s{d+2}, {sz}"); a(f"s_mov_b32 s{d+3}, 0x20000")
    a(f"s_mov_b32 s{dS1+3}, 0x20000")
    a.c("stage-1 role: waves 0-4 wq rows, waves 5-7 w1/w3 rows")
    a(f"s_mul_i32 s{sT0}, s{sS}, 80")
    a(f"s_and_b32 s{sT1}, s{sC}, 15"); a(f"s_mul_i32 s{sT1}, s{sT1}, 40"); a(f"s_sub_u32 s{sT1}, s{sT1}, 80")
    a(f"s_cmp_lt_u32 s{sW}, 5")
    a(f"s_cselect_b32 s{sT0}, s{sT0}, s{sT1}")
    a(f"s_cselect_b32 s{sT1}, s{sH}, s{sG}")
    a(f"s_cselect_b32 s{sT2}, 12288, 3072" if False else f"s_cselect_b32 s{sT2}, 12, 3")
    a(f"s_lshl_b32 s{sT2}, s{sT2}, 10")
    a(f"s_mul_i32 s{dS1+2}, s{sT2}, 640")
    a(f"s_mul_i32 s{sT1}, s{sT1}, 384")
    a(f"s_lshl_b32 s{sT3}, s{sW}, 4"); a(f"s_add_u32 s{sT0}, s{sT0}, s{sT3}")
    a(f"v_add_u32 v{vXr0}, s{sT0}, v{vSlot}")
    a(f"v_mul_lo_u32 v{vS1a}, v{vXr0}, s{sT2}")
    a(f"v_lshl_add_u32 v{vT+1}, v{vCh}, 4, s{sT1}")
    a(f"v_add_u32 v{vS1a}, v{vS1a}, v{vT+1}")
    a(f"s_lshl_b32 s{sT2}, s{sT2}, 3")
    a(f"s_cmp_eq_u32 s{sW}, 7"); a(f"s_cselect_b32 s{sT2}, 0x40000000, s{sT2}")
    a(f"v_add_u32 v{vS1b}, s{sT2}, v{vS1a}")
    a(f"v_lshlrev_b32 v{vT+2}, 1, v{vXr0}")
    a(f"v_lshlrev_b32 v{vT+3}, 4, v{vL}"); a(f"v_lshlrev_b32 v{vT+4}, 2, v{vL}")
    a(f"s_mul_i32 s{sT0}, s{sP}, 196608"); a(f"s_mul_i32 s{sT1}, s{sW}, 24576"); a(f"s_add_u32 s{sT0}, s{sT0}, s{sT1}")
    a(f"v_mul_u32_u24 v{vKoff}, 384, v{vSlot}")
    a(f"v_lshl_add_u32 v{vT+1}, v{vCh}, 4, s{sT0}")
    a(f"v_add_u32 v{vKoff}, v{vKoff}, v{vT+1}")
    for i in range(3): a(f"s_mov_b32 s{sOff[i]}, {6144*(i+1)}")
    a(f"s_mov_b32 s{sSpin}, {spin}")
    a("s_waitcnt lgkmcnt(0)")
    a(f"s_mov_b32 s{dX}, s{pX}"); a(f"s_mov_b32 s{dX+1}, s{pX+1}")
    a(f"s_cmp_lt_u32 s{sC}, 16"); a(f"s_cselect_b64 {sr(dS1,2)}, {sr(pW1,2)}, {sr(pW3,2)}")
    a(f"s_cmp_lt_u32 s{sW}, 5"); a(f"s_cselect_b64 {sr(dS1,2)}, {sr(pWQ,2)}, {sr(dS1,2)}")
    a(f"buffer_load_dwordx4 {vr(vXa,4)}, v{vT+3}, {sr(dX,4)}, 0 offen", "xa")
    a(f"buffer_load_dword v{vXb}, v{vT+4}, {sr(dX,4)}, 0 offen offset:1024", "xb")
    a(f"buffer_load_ushort v{vXr0}, v{vT+2}, {sr(dX,4)}, 0 offen", "xr0")
    a(f"buffer_load_ushort v{vXr1}, v{vT+2}, {sr(dX,4)}, 0 offen offset:16", "xr1")
    a(f"s_mov_b64 {sr(dK,2)}, {sr(pK,2)}"); a(f"s_mov_b64 {sr(dV,2)}, {sr(pV,2)}")

    def kv_load(t, i):
        g, j = divmod(i, 3)
        so = "0" if g < 2 else f"s{sOff[(g>>1)-1]}"
        r = vKV + 4*i
        a(f"buffer_load_dwordx4 {vr(r,4)}, v{vKoff}, {sr(dK if t == 'K' else dV,4)}, {so} offen offset:{3072*(g&1)+128*j} {ld}", f"{t}{i}")
    def s1_load(i):
        g, j = divmod(i, 3)
        a(f"buffer_load_dwordx4 {vr(vW+4*i,4)}, v{vS1a if g == 0 else vS1b}, {sr(dS1,4)}, 0 offen offset:{128*j} {ld}", f"S{i}")
    def w_load(i):
        r, pc = divmod(i, 2)
        a(f"global_load_dwordx4 {vr(vW+4*i,4)}, {vr(vWa,2)}, off offset:{1280*r+128*pc} {ld}", f"W{i}")
    for i in range(6): s1_load(i)
    stream = [("K", i) for i in range(24)] + [("V", i) for i in range(24)]
    pos = [0]
    def issue(n=1, withW=False):
        for _ in range(n):
            p = pos[0]
            if p < 48: kv_load(*stream[p])
            elif withW and p < 56: w_load(p - 48)
            pos[0] += 1
    a(f"s_load_dword s{sE}, {sr(pWS,2)}, {WS_E}")
    a(f"s_lshl_b32 s{sT0}, s2, 3"); a(f"s_min_u32 s{sT0}, s{sT0}, 1272")
    a(f"s_load_dwordx2 {sr(sXo,2)}, {sr(pX,2)}, s{sT0}")
    a(f"s_mov_b64 {sr(dWS,2)}, {sr(pWS,2)}"); a(f"s_mov_b64 {sr(dOUT,2)}, {sr(pOUT,2)}")
    stamp()
    a(f"v_and_b32 v{vT}, 1, v{vL}"); a(f"v_lshlrev_b32 v{vT}, 4, v{vT}")
    a(f"v_mov_b32 v{vT+1}, 0xffff"); a(f"v_lshlrev_b32 v{vT}, v{vT}, v{vT+1}")
    a(f"v_lshrrev_b32 v{vT+1}, 1, v{vCh}")
    for k in range(4):
        a(f"v_cmp_eq_u32 vcc, {k}, v{vT+1}"); a(f"v_cndmask_b32 v{vM+k}, 0, v{vT}, vcc")
    a(f"s_mov_b32 s{sVal}, 0x00ff00ff"); a(f"s_mov_b32 s{sVal+1}, 0xff00ff00")
    for k in range(4): a(f"s_mov_b32 s{sSel[k]}, {0x07060500 + k:#x}")
    a.c("LDS reduce addresses")
    a(f"v_lshrrev_b32 v{vT}, 5, v{vL}"); a(f"v_mul_u32_u24 v{vT}, 768, v{vT}")
    a(f"v_bfe_u32 v{vT+1}, v{vL}, 4, 1"); a(f"v_lshl_add_u32 v{vT+1}, v{vCh}, 1, v{vT+1}")
    a(f"v_lshl_add_u32 v{vT}, v{vT+1}, 4, v{vT}")
    a(f"s_mul_i32 s{sT0}, s{sW}, {RED_STRIDE}")
    a(f"v_add_u32 v{vRedW}, s{sT0}, v{vT}")
    a(f"v_min_u32 v{vT+2}, 5, v{vSlot}")
    a(f"s_mul_i32 s{sT0}, s{sW}, 96")
    a(f"v_mul_u32_u24 v{vT}, {RED_STRIDE}, v{vCh}")
    a(f"v_lshl_add_u32 v{vT+1}, v{vT+2}, 4, s{sT0}")
    a(f"v_add_u32 v{vRedR}, v{vT}, v{vT+1}")
    a.c("publish offset (P*8+w)*128 + gamma*16; gather offset (h*8+p)*1024 + gamma*16")
    a(f"s_lshl_b32 s{sT0}, s{sP}, 3"); a(f"s_add_u32 s{sT0}, s{sT0}, s{sW}"); a(f"s_lshl_b32 s{sT0}, s{sT0}, 7")
    a(f"v_lshl_add_u32 v{vPub}, v{vT+2}, 4, s{sT0}")
    a(f"s_lshl_b32 s{sT0}, s{sH}, 13")
    a(f"v_lshl_add_u32 v{vT}, v{vCh}, 10, s{sT0}")
    a(f"v_lshl_add_u32 v{vGa}, v{vT+2}, 4, v{vT}")
    a.c("stage-3 weight addresses")
    a(f"s_mul_i32 s{sT0}, s{sP}, {24*1280}"); a(f"s_lshl_b32 s{sT1}, s{sW}, 8"); a(f"s_add_u32 s{sT0}, s{sT0}, s{sT1}")
    a(f"s_add_u32 s{pWO}, s{pWO}, s{sT0}"); a(f"s_addc_u32 s{pWO+1}, s{pWO+1}, 0")
    a(f"s_mul_i32 s{sT0}, s{sG}, 24"); a(f"s_add_u32 s{sT0}, s{sT0}, s{sC}"); a(f"s_mul_i32 s{sT0}, s{sT0}, {8*1280}")
    a(f"s_add_u32 s{sT0}, s{sT0}, s{sT1}")
    a(f"s_add_u32 s{pW2}, s{pW2}, s{sT0}"); a(f"s_addc_u32 s{pW2+1}, s{pW2+1}, 0")
    a(f"s_cmp_lt_u32 s{sC}, 24"); a(f"s_cselect_b64 {sr(pW2,2)}, {sr(pW2,2)}, {sr(pWO,2)}")
    a(f"v_cmp_gt_u32 vcc, 6, v{vSlot}")
    a(f"v_mov_b32 v{vT}, s{pW2}"); a(f"v_mov_b32 v{vT+1}, s{pW2+1}")
    a(f"v_mov_b32 v{vT+2}, s{pWO}"); a(f"v_mov_b32 v{vT+3}, s{pWO+1}")
    a(f"v_cndmask_b32 v{vWa}, v{vT}, v{vT+2}, vcc"); a(f"v_cndmask_b32 v{vWa+1}, v{vT+1}, v{vT+3}, vcc")
    a(f"v_subrev_u32 v{vT}, 6, v{vSlot}"); a(f"v_cndmask_b32 v{vT}, v{vT}, v{vSlot}, vcc")
    a(f"v_mul_u32_u24 v{vT}, {4*1280}, v{vT}"); a(f"v_lshl_add_u32 v{vT}, v{vCh}, 4, v{vT}")
    a(f"v_add_co_u32 v{vWa}, vcc, v{vWa}, v{vT}"); a(f"v_addc_co_u32 v{vWa+1}, vcc, 0, v{vWa+1}, vcc")
    if prefetch:
        a.c("pull this kernel's code into the L2 (each workgroup a slice)")
        a(f"s_getpc_b64 {sr(sTm,2)}")
        a(f"s_lshl_b32 s{sT0}, s{sC}, 3"); a(f"s_add_u32 s{sT0}, s{sT0}, s{sW}"); a(f"s_and_b32 s{sT0}, s{sT0}, 127")
        a(f"s_lshl_b32 s{sT0}, s{sT0}, 6")
        a(f"s_load_dword s{sT1}, {sr(sTm,2)}, s{sT0}")
    issue(D0 if D0 is not None else max(D - 2, 1))
    a.wait_vm("xb")
    xs = [vQ + i for i in range(10)]
    for i in range(5):
        src = vXa + i if i < 4 else vXb
        a(f"v_lshlrev_b32 v{xs[2*i]}, 16, v{src}"); a(f"v_and_b32 v{xs[2*i+1]}, 0xffff0000, v{src}")
    a(f"v_add_f32 v{vT}, v{xs[0]}, v{xs[1]}"); a(f"v_add_f32 v{vT+1}, v{xs[2]}, v{xs[3]}")
    for i in range(4, 10): a(f"v_add_f32 v{vT+(i&1)}, v{vT+(i&1)}, v{xs[i]}")
    a(f"v_add_f32 v{vT}, v{vT}, v{vT+1}")
    red8("v_add_f32", [vT]); red_hi("v_add_f32", [vT])
    a(f"v_readlane_b32 s{sT0}, v{vT}, 63")
    a(f"v_mov_b32 v{vT+2}, {f2u(1/640.):#x}")
    a(f"v_mul_f32 v{vT+3}, s{sT0}, v{vT+2}")
    for i in range(10): a(f"v_sub_f32 v{xs[i]}, v{xs[i]}, v{vT+3}")
    a(f"v_mul_f32 v{vT}, v{xs[0]}, v{xs[0]}"); a(f"v_mul_f32 v{vT+1}, v{xs[1]}, v{xs[1]}")
    for i in range(2, 10): a(f"v_fmac_f32 v{vT+(i&1)}, v{xs[i]}, v{xs[i]}")
    a(f"v_add_f32 v{vT}, v{vT}, v{vT+1}")
    red8("v_add_f32", [vT]); red_hi("v_add_f32", [vT])
    a(f"v_readlane_b32 s{sT0}, v{vT}, 63")
    a(f"v_mul_f32 v{vT+2}, s{sT0}, v{vT+2}")
    rne(vT+2, vT+2); rne(vT+3, vT+3)
    a(f"v_add_f32 v{vT+2}, {f2u(1e-5):#x}, v{vT+2}"); rne(vT+2, vT+2)
    a(f"v_sqrt_f32 v{vT+2}, v{vT+2}"); rne(vT+2, vT+2)
    a(f"v_rcp_f32 v{vT+4}, v{vT+2}")
    a.wait_vm("xr1")
    for x in (vXr0, vXr1):
        a(f"v_lshlrev_b32 v{x}, 16, v{x}"); a(f"v_sub_f32 v{x}, v{x}, v{vT+3}"); rne(x, x)
        a(f"v_mul_f32 v{vT}, v{x}, v{vT+4}"); a(f"v_fma_f32 v{vT+1}, -v{vT}, v{vT+2}, v{x}")
        a(f"v_fma_f32 v{vT}, v{vT+1}, v{vT+4}, v{vT}")
        a(f"v_cvt_pk_bf16_f32 v{x}, v{vT}, v{vT}")
    buildA(vA, vXr0); buildA(vA2, vXr1)
    a("s_waitcnt lgkmcnt(0)")
    a(f"s_add_u32 s{sE}, s{sE}, 0x01010101")
    a(f"v_mov_b32 v{vTag}, s{sE}")
    for k in range(4): a(f"s_bfe_u32 s{sTag[k]}, s{sE}, {(8 << 16) | (8*k):#x}")
    for i in range(6):
        g, j = divmod(i, 3)
        a.wait_vm(f"S{i}")
        if i >= 4 and pos[0] < D: issue(1)
        a(f"v_mfma_f32_16x16x32_bf16 {vr(vD+4*j,4)}, {vr(vA if g == 0 else vA2,4)}, {vr(vW+4*i,4)}, {'0' if g == 0 else vr(vD+4*j,4)}")
    while pos[0] < D: issue(1)
    def red_write():
        a(f"s_mov_b64 exec, {sr(sVal,2)}")
        for j in range(3): a(f"ds_write_b128 v{vRedW}, {vr(vD+4*j,4)} offset:{LDS_RED+256*j}")
        a("s_mov_b64 exec, -1")
        a("s_waitcnt lgkmcnt(0)"); a("s_barrier")
    def red_read():
        a(f"ds_read_b128 {vr(vG,4)}, v{vRedR} offset:{LDS_RED}")
        a(f"ds_read_b128 {vr(vG2,4)}, v{vRedR} offset:{LDS_RED+768}")
        a("s_waitcnt lgkmcnt(0)")
        for k in range(4): a(f"v_add_f32 v{vG+k}, v{vG+k}, v{vG2+k}")
    red_write(); red_read()
    a(f"v_cmp_gt_u32 vcc, 5, v{vCh}")
    for k in range(4): a(f"v_cndmask_b32 v{vG2+k}, v{vG+k}, 0, vcc" if False else f"v_cndmask_b32_e64 v{vG2+k}, v{vG+k}, 0, vcc")
    for k in range(4): a(f"v_cndmask_b32 v{vG+k}, 0, v{vG+k}, vcc")
    red8("v_add_f32", [vG+k for k in range(4)] + [vG2+k for k in range(4)])
    a(f"v_cmp_eq_u32 vcc, 0, v{vCh}")
    a(f"v_mov_b32 v{vT}, {WS_FP}"); a(f"v_mov_b32 v{vT+1}, {WS_QP}")
    for k in range(4): a(f"v_cndmask_b32 v{vG+k}, v{vG2+k}, v{vG+k}, vcc")
    a(f"v_cndmask_b32 v{vT}, v{vT}, v{vT+1}, vcc"); a(f"v_add_u32 v{vT}, v{vT}, v{vPub}")
    tag4(vG2, vG)
    a(f"s_mov_b32 exec_lo, 0x03030303"); a(f"s_mov_b32 exec_hi, 0x00000303")
    a(f"buffer_store_dwordx4 {vr(vG2,4)}, v{vT}, {sr(dWS,4)}, 0 offen {st}", "pubq")
    a("s_mov_b64 exec, -1")
    stamp()
    arr = [0]
    def step(withW=False):
        t, i = stream[arr[0]]; a.wait_vm(f"{t}{i}"); arr[0] += 1; issue(1, withW)
    while pos[0] < qpos: step()
    a(f"s_lshl_b32 s{sT0}, s{sW}, 7"); a(f"s_add_u32 s{sT0}, s{sT0}, {WS_QP}")
    qload = f"buffer_load_dwordx4 {vr(vG,4)}, v{vGa}, {sr(dWS,4)}, s{sT0} offen {pl}"
    a(qload, "gq")
    a.c("wave 7 also gathers the FFN partials")
    lf = a.newlabel("noffn")
    a(f"s_min_u32 s{sT1}, s{sC}, 23"); a(f"s_mul_i32 s{sT2}, s{sT1}, 43"); a(f"s_lshr_b32 s{sT2}, s{sT2}, 7")
    a(f"s_mul_i32 s{sT3}, s{sT2}, 3"); a(f"s_sub_u32 s{sT1}, s{sT1}, s{sT3}")
    a(f"s_lshl_b32 s{sT2}, s{sT2}, 7"); a(f"s_lshl_b32 s{sT1}, s{sT1}, 5"); a(f"s_add_u32 s{sT1}, s{sT1}, s{sT2}")
    a(f"s_lshl_b32 s{sT2}, s{sG}, 15"); a(f"s_add_u32 s{sT1}, s{sT1}, s{sT2}"); a(f"s_add_u32 s{sT1}, s{sT1}, {WS_FP}")
    a(f"v_and_b32 v{vGb}, 31, v{vL}"); a(f"v_lshlrev_b32 v{vGb}, 10, v{vGb}")
    a(f"v_lshrrev_b32 v{vT+1}, 5, v{vL}"); a(f"v_lshl_add_u32 v{vGb}, v{vT+1}, 4, v{vGb}")
    fload = f"buffer_load_dwordx4 {vr(vG2,4)}, v{vGb}, {sr(dWS,4)}, s{sT1} offen {pl}"
    a(f"s_cmp_lg_u32 s{sW}, 7"); a(f"s_cbranch_scc1 {lf}")
    a.cond = True; a(fload, "gf"); a.cond = False
    a.label(lf)
    while arr[0] < qpos: step()
    a.wait_vm("gq")
    poll_check([(vG, qload)])
    red8("v_add_f32", [vG+k for k in range(4)])
    a(f"v_cvt_pk_bf16_f32 v{vG}, v{vG}, v{vG+1}"); a(f"v_cvt_pk_bf16_f32 v{vG+1}, v{vG+2}, v{vG+3}")
    a(f"v_min_u32 v{vT+2}, 5, v{vSlot}"); a(f"s_mul_i32 s{sT0}, s{sW}, 48")
    a(f"v_lshl_add_u32 v{vT+2}, v{vT+2}, 3, s{sT0}")
    a(f"ds_write_b64 v{vT+2}, {vr(vG,2)} offset:{LDS_Q}")
    lf = a.newlabel("noffn")
    a(f"s_cmp_lg_u32 s{sW}, 7"); a(f"s_cbranch_scc1 {lf}")
    a.cond = True
    a.wait_vm("gf")
    poll_check([(vG2, fload)])
    g4 = [vG2+k for k in range(4)]
    red8("v_add_f32", g4)
    for r in g4: a(f"v_add_f32_dpp v{r}, v{r}, v{r} row_mirror {DP}")
    for r in g4: rne(r, r)
    for k in range(4): a(f"v_mul_f32 v{vT+k}, {f2u(-1.4426950408889634):#x}, v{vG2+k}")
    for k in range(4): a(f"v_exp_f32 v{vT+k}, v{vT+k}")
    for k in range(4): a(f"v_add_f32 v{vT+k}, 1.0, v{vT+k}")
    for k in range(4): a(f"v_rcp_f32 v{vT+k}, v{vT+k}")
    for k in range(4): a(f"v_mul_f32 v{vT+k}, v{vT+k}, v{vG2+k}")
    for k in range(4): rne(vT+k, vT+k)
    for k in range(4): a(f"v_mov_b32_dpp v{vT+k}, v{vT+k} row_bcast:15 row_mask:0xa bank_mask:0xf")
    for k in range(4): a(f"v_mul_f32 v{vT+k}, v{vT+k}, v{vG2+k}")
    a(f"s_cmp_lt_u32 s{sC}, 24"); a(f"s_cselect_b32 s{sT0}, -1, 0")
    for k in range(4): a(f"v_and_b32 v{vT+k}, s{sT0}, v{vT+k}")
    a(f"v_lshrrev_b32 v{vT+4}, 5, v{vL}"); a(f"v_lshlrev_b32 v{vT+4}, 4, v{vT+4}")
    a(f"s_mov_b32 exec_lo, 0xffff0000"); a(f"s_mov_b32 exec_hi, 0xffff0000")
    a(f"ds_write_b128 v{vT+4}, {vr(vT,4)} offset:{LDS_H}")
    a("s_mov_b64 exec, -1")
    a.cond = False
    a.label(lf)
    a("s_waitcnt lgkmcnt(0)"); a("s_barrier")
    a(f"v_lshlrev_b32 v{vT}, 4, v{vCh}")
    for j in range(3): a(f"ds_read_b128 {vr(vQ+4*j,4)}, v{vT} offset:{LDS_Q+128*j}")
    a(f"v_and_b32 v{vT+1}, 1, v{vSlot}"); a(f"v_lshlrev_b32 v{vT+1}, 4, v{vT+1}")
    a(f"ds_read_b128 {vr(vXa,4)}, v{vT+1} offset:{LDS_H}")
    a("s_waitcnt lgkmcnt(0)")
    stamp()
    for g in range(8):
        while arr[0] < 3*g + 3: step()
        b = vKV + 12*g
        a(f"v_dot2_f32_bf16 v{vSc+g}, v{b}, v{vQ}, 0")
        a(f"v_dot2_f32_bf16 v{vT}, v{b+1}, v{vQ+1}, 0")
        for i in range(2, 12):
            d = vSc+g if i % 2 == 0 else vT
            a(f"v_dot2_f32_bf16 v{d}, v{b+i}, v{vQ+i}, v{d}")
        a(f"v_add_f32 v{vSc+g}, v{vSc+g}, v{vT}")
        assert pos[0] - 24 <= 3*g + 3 or True
    sc = [vSc+g for g in range(8)]
    red8("v_add_f32", sc)
    for r in sc: a(f"v_cvt_pk_bf16_f32 v{r}, v{r}, v{r}")
    for r in sc: a(f"v_and_b32 v{r}, 0xffff0000, v{r}")
    for r in sc: a(f"v_mul_f32 v{r}, {f2u(192 ** -0.5):#x}, v{r}")
    for r in sc: a(f"v_cvt_pk_bf16_f32 v{r}, v{r}, v{r}")
    for r in sc: a(f"v_and_b32 v{r}, 0xffff0000, v{r}")
    a(f"v_max3_f32 v{vG}, v{sc[0]}, v{sc[1]}, v{sc[2]}"); a(f"v_max3_f32 v{vG+1}, v{sc[3]}, v{sc[4]}, v{sc[5]}")
    a(f"v_max3_f32 v{vG}, v{vG}, v{sc[6]}, v{sc[7]}"); a(f"v_max_f32 v{vG}, v{vG}, v{vG+1}")
    red_hi("v_max_f32", [vG])
    a(f"v_readlane_b32 s{sT0}, v{vG}, 63")
    L2E = f"{f2u(1.4426950408889634):#x}"
    for k in range(8): a(f"v_subrev_f32 v{vT+k}, s{sT0}, v{sc[k]}")
    for k in range(8): a(f"v_mul_f32 v{vT+k}, {L2E}, v{vT+k}")
    for k in range(8): a(f"v_exp_f32 v{vT+k}, v{vT+k}")
    for k in range(4): a(f"v_add_f32 v{vT+k}, v{vT+k}, v{vT+4+k}")
    a(f"v_add_f32 v{vT}, v{vT}, v{vT+1}"); a(f"v_add_f32 v{vT+2}, v{vT+2}, v{vT+3}"); a(f"v_add_f32 v{vG+1}, v{vT}, v{vT+2}")
    red_hi("v_add_f32", [vG+1])
    a(f"v_mov_b32 v{vG+2}, 0"); a(f"v_mov_b32 v{vG+3}, 0")
    tag4(vG2, vG)
    a(f"s_lshl_b32 s{sT0}, s{sP}, 3"); a(f"s_add_u32 s{sT0}, s{sT0}, s{sW}"); a(f"s_lshl_b32 s{sT0}, s{sT0}, 4")
    a(f"s_add_u32 s{sT0}, s{sT0}, {WS_ML}"); a(f"v_mov_b32 v{vT}, s{sT0}")
    a(f"s_mov_b32 exec_lo, 0"); a(f"s_mov_b32 exec_hi, 0x80000000")
    a(f"buffer_store_dwordx4 {vr(vG2,4)}, v{vT}, {sr(dWS,4)}, 0 offen {st}", "pubml")
    a("s_mov_b64 exec, -1")
    stamp()
    while pos[0] < 24 + mlpos: step()
    a(f"s_lshl_b32 s{sT0}, s{sH}, 10"); a(f"s_add_u32 s{sT0}, s{sT0}, {WS_ML}")
    a(f"v_lshlrev_b32 v{vGb}, 4, v{vL}")
    mload = f"buffer_load_dwordx4 {vr(vG,4)}, v{vGb}, {sr(dWS,4)}, s{sT0} offen {pl}"
    a(mload, "gm")
    assert 24 + mlpos + D <= 48
    while arr[0] < 24 + mlpos: step()
    a.wait_vm("gm")
    poll_check([(vG, mload)])
    a(f"v_mov_b32 v{vT}, v{vG}")
    red8("v_max_f32", [vT]); red_hi("v_max_f32", [vT])
    a(f"v_readlane_b32 s{sT0}, v{vT}, 63")
    a(f"v_subrev_f32 v{vT}, s{sT0}, v{vG}"); a(f"v_mul_f32 v{vT}, {L2E}, v{vT}"); a(f"v_exp_f32 v{vT}, v{vT}")
    a(f"v_mul_f32 v{vT}, v{vT}, v{vG+1}")
    red8("v_add_f32", [vT]); red_hi("v_add_f32", [vT])
    a(f"v_rcp_f32 v{vT}, v{vT}")
    for r in sc: a(f"v_subrev_f32 v{r}, s{sT0}, v{r}")
    a(f"v_readlane_b32 s{sT1}, v{vT}, 63")
    for r in sc: a(f"v_mul_f32 v{r}, {L2E}, v{r}")
    for r in sc: a(f"v_exp_f32 v{r}, v{r}")
    for r in sc: a(f"v_mul_f32 v{r}, s{sT1}, v{r}")
    for r in sc: a(f"v_cvt_pk_bf16_f32 v{r}, v{r}, v{r}")
    stamp()
    a(f"s_cmp_ge_u32 s{sW}, 5"); a("s_cbranch_scc1 L_pathB")
    snap = a.snapshot(); p0, a0, n0 = pos[0], arr[0], nst[0]
    def pv_and_publish(withW):
        for g in range(8):
            A_ = vA if g % 2 == 0 else vA2
            buildA(A_, sc[g])
            for j in range(3):
                while arr[0] < 24 + 3*g + j + 1: step(withW)
                a(f"v_mfma_f32_16x16x32_bf16 {vr(vD+4*j,4)}, {vr(A_,4)}, {vr(vKV+12*g+4*j,4)}, {'0' if g == 0 else vr(vD+4*j,4)}")
        if withW:
            while pos[0] < 56: issue(1, True)
        stamp()
        red_write(); red_read()
        red8("v_add_f32", [vG+k for k in range(4)])
        tag4(vG2, vG)
        a(f"s_mov_b32 s{sT0}, {WS_OP}")
        a(f"s_mov_b32 exec_lo, 0x01010101"); a(f"s_mov_b32 exec_hi, 0x00000101")
        a(f"buffer_store_dwordx4 {vr(vG2,4)}, v{vPub}, {sr(dWS,4)}, s{sT0} offen {st}", "pubo")
        a("s_mov_b64 exec, -1")
        stamp()
    def write_stamps():
        if diag is not None:
            if nst[0] <= diag or diag < 0: a(f"s_mov_b32 s{sSt}, s{sStart}")
            lp = a.newlabel("pad")
            a.label(lp)
            a(f"s_memrealtime {sr(sTm,2)}"); a("s_waitcnt lgkmcnt(0)")
            a(f"s_sub_u32 s{sTm}, s{sTm}, s{sSt}"); a(f"s_cmp_lt_u32 s{sTm}, 5000"); a(f"s_cbranch_scc1 {lp}")
            return
        if not stamps: return
        a(f"s_mov_b32 s{sSt+14}, s{sStart}")
        a(f"s_lshl_b32 s{sT0}, s{sP}, 3"); a(f"s_add_u32 s{sT0}, s{sT0}, s{sW}"); a(f"s_lshl_b32 s{sT0}, s{sT0}, 6")
        a("s_mov_b64 exec, 1")
        a(f"s_add_u32 s{sT0}, s{sT0}, {WS_ST}"); a(f"v_mov_b32 v{vT}, s{sT0}")
        a(f"s_mov_b32 s{sSt+15}, s{sSpin}")
        for q in range(4):
            for k in range(4): a(f"v_mov_b32 v{vKV+4*q+k}, s{sSt+4*q+k}")
            a(f"buffer_store_dwordx4 {vr(vKV+4*q,4)}, v{vT}, {sr(dWS,4)}, 0 offen offset:{16*q}")
    pv_and_publish(True)
    a(f"s_lshl_b32 s{sT0}, s{sS}, 7"); a(f"s_add_u32 s{sT0}, s{sT0}, {WS_OP}")
    oload = f"buffer_load_dwordx4 {vr(vG,4)}, v{vGa}, {sr(dWS,4)}, s{sT0} offen {pl}"
    a(oload, "go")
    a.c("y publish offset")
    a(f"v_bfe_u32 v{vT+1}, v{vL}, 4, 1"); a(f"v_lshl_add_u32 v{vT+1}, v{vCh}, 1, v{vT+1}")
    a(f"v_lshrrev_b32 v{vT+2}, 5, v{vL}"); a(f"v_lshl_add_u32 v{vT+1}, v{vT+2}, 4, v{vT+1}")
    a(f"s_lshl_b32 s{sT1}, s{sW}, 5"); a(f"v_add_u32 v{vT+1}, s{sT1}, v{vT+1}")
    a(f"v_mul_u32_u24 v{vGb}, {ysr}, v{vT+1}")
    a(f"s_mul_i32 s{sT1}, s{sP}, {ysp}"); a(f"s_add_u32 s{sT1}, s{sT1}, {WS_YP}")
    a(f"v_mul_u32_u24 v{vPub}, {ysp}, v{vL}")
    a(f"s_mul_i32 s{sT2}, s2, {ysr}"); a(f"s_add_u32 s{sT2}, s{sT2}, {WS_YP}")
    a(f"v_add_u32 v{vPub}, s{sT2}, v{vPub}")
    for i in range(3): a(f"s_mov_b32 s{sOff[i]}, {64*ysp*(i+1)}")
    a.wait_vm("go")
    poll_check([(vG, oload)])
    stamp()
    red8("v_add_f32", [vG+k for k in range(4)])
    a(f"v_cmp_gt_u32 vcc, 6, v{vSlot}")
    for k in range(4): a(f"v_cndmask_b32 v{vG+k}, v{vXa+k}, v{vG+k}, vcc")
    for k in range(4): a(f"v_cvt_pk_bf16_f32 v{vG+k}, v{vG+k}, v{vG+k}")
    for r in range(4):
        A_ = vA if r % 2 == 0 else vA2
        buildA(A_, vG+r)
        for pc in range(2):
            a(f"v_mfma_f32_16x16x32_bf16 {vr(vD+4*pc,4)}, {vr(A_,4)}, {vr(vW+4*(2*r+pc),4)}, {'0' if r == 0 else vr(vD+4*pc,4)}")
    for k in range(4): a(f"v_permlane32_swap_b32 v{vD+k}, v{vD+4+k}")
    for k in range(4): a(f"v_add_f32_dpp v{vD+k}, v{vD+4+k}, v{vD+k} row_ror:8 {DP}")
    tag4(vG2, vD)
    a(f"s_mov_b32 exec_lo, 0x00ff00ff"); a(f"s_mov_b32 exec_hi, 0x00ff00ff")
    a(f"buffer_store_dwordx4 {vr(vG2,4)}, v{vGb}, {sr(dWS,4)}, s{sT1} offen {st}", "puby")
    a("s_mov_b64 exec, -1")
    stamp()
    lx = a.newlabel("exitA")
    a(f"s_cmp_lg_u32 s{sW}, 0"); a(f"s_cbranch_scc1 {lx}")
    a(f"s_cmp_ge_u32 s2, 160"); a(f"s_cbranch_scc1 {lx}")
    yl = [(vKV+16+4*i, f"buffer_load_dwordx4 {vr(vKV+16+4*i,4)}, v{vPub}, {sr(dWS,4)}, {'0' if i == 0 else 's%d' % sOff[i-1]} offen {pl}") for i in range(4)]
    for _, t in yl: a(t)
    a("s_waitcnt vmcnt(0)")
    poll_check(yl)
    y = vKV + 16
    for k in range(4): a(f"v_add_f32 v{y+k}, v{y+k}, v{y+4+k}")
    for k in range(4): a(f"v_add_f32 v{y+8+k}, v{y+8+k}, v{y+12+k}")
    for k in range(4): a(f"v_add_f32 v{y+k}, v{y+k}, v{y+8+k}")
    red8("v_add_f32", [y+k for k in range(4)]); red_hi("v_add_f32", [y+k for k in range(4)])
    a(f"s_lshl_b32 s{sT0}, s{sXo}, 16"); a(f"s_and_b32 s{sT1}, s{sXo}, 0xffff0000")
    a(f"s_lshl_b32 s{sT2}, s{sXo+1}, 16"); a(f"s_and_b32 s{sT3}, s{sXo+1}, 0xffff0000")
    for k, s_ in enumerate((sT0, sT1, sT2, sT3)): a(f"v_add_f32 v{y+k}, s{s_}, v{y+k}")
    a(f"v_cvt_pk_bf16_f32 v{y}, v{y}, v{y+1}"); a(f"v_cvt_pk_bf16_f32 v{y+1}, v{y+2}, v{y+3}")
    a(f"s_lshl_b32 s{sT0}, s2, 3"); a(f"v_mov_b32 v{vT}, s{sT0}")
    a(f"s_mov_b32 exec_lo, 0"); a(f"s_mov_b32 exec_hi, 0x80000000")
    a(f"buffer_store_dwordx2 {vr(y,2)}, v{vT}, {sr(dOUT,4)}, 0 offen")
    a.c("workgroup 0 has now heard from every workgroup: advance the hand-off epoch")
    a(f"s_cmp_lg_u32 s2, 0"); a(f"s_cbranch_scc1 {lx}")
    a(f"buffer_store_dword v{vTag}, v{vT}, {sr(dWS,4)}, 0 offen offset:{WS_E}")
    a.label(lx)
    stamp()
    write_stamps()
    a("s_endpgm")
    a.label("L_pathB")
    a.restore(snap); pos[0], arr[0], nst[0] = p0, a0, n0
    pv_and_publish(False)
    write_stamps()
    a.label("L_end")
    a("s_endpgm")
    if prefetch: a.raw("    .fill 2048, 4, 0xbf810000")
    nv = (V.n + 7) // 8 * 8
    a.raw('.section .rodata,"a"'); a.raw(".p2align 6"); a.raw(f".amdhsa_kernel {NAME}_kernel")
    a.raw(f"  .amdhsa_next_free_vgpr {nv}"); a.raw("  .amdhsa_next_free_sgpr 102"); a.raw(f"  .amdhsa_accum_offset {nv}")
    a.raw("  .amdhsa_group_segment_fixed_size 0"); a.raw("  .amdhsa_kernarg_size 96"); a.raw("  .amdhsa_user_sgpr_count 2")
    a.raw("  .amdhsa_user_sgpr_kernarg_segment_ptr 1"); a.raw("  .amdhsa_system_sgpr_workgroup_id_x 1")
    a.raw(".end_amdhsa_kernel")
    return a.text()

if __name__ == "__main__":
    kw = {}
    out = sys.argv[1]
    for x in sys.argv[2:]:
        k, v = x.split("=")
        try: v = eval(v)
        except Exception: pass
        kw[k] = v
    open(out, "w").write(gen(**kw))
```

```python
import sys, struct
sys.path.insert(0, "dev")
from asmlib import *

NAME = "parallel_sum__gqa_block_cached__glu_gated_swiglu__decode"
def f2u(x): return struct.unpack("<I", struct.pack("<f", x))[0]

WS_E  = 0
WS_QP = 0x10000
WS_FP = 0x40000
WS_ML = 0x70000
SLOW  = 0x70000
WS_YP = 0x100000
WS_ST = 0x400000
WS_SIZE = 0x800000
OOB = 0x40000000
LDS_RED = 0
LDS_RED2 = 12288
LDS_Q = 24576

def gen(D=3, qpos=17, mlpos=16, nafter=2, wpos=0, ld="nt", stamps=False, lds=90112, prefetch=True, spin=1 << 16,
        diag=None, timeout=24, forceslow=False, extra=1, ypipe=1):
    a = Asm()
    hdr = open("cdna_kernels/" + NAME + ".s.ref").read().split("\n")
    for ln in hdr:
        if ln.startswith(";") and "@launch" not in ln and "Override launch" not in ln and "grid=ceil" not in ln: a.raw(ln)
    a.raw(f"; @launch grid=(256,1,1) block=(512,1,1) lds={lds}")
    a.raw('.amdgcn_target "amdgcn-amd-amdhsa--gfx950"')
    a.raw(".text"); a.raw(f".globl {NAME}_kernel"); a.raw(".p2align 8"); a.raw(f".type {NAME}_kernel,@function")
    a.label(f"{NAME}_kernel")
    V = Regs(1, 256, "v"); S = Regs(28, 102, "s")
    pX, pK, pV, pWQ, pWO, pBX, pW1, pW3, pW2, pOUT, pDBG, pWS = [4 + 2*i for i in range(12)]
    dK, dV, dS1, dWS, dX = [S.get(4) for _ in range(5)]
    dWO, dW2, dOUT = 12, 20, S.get(4)
    sW, sG, sC, sP, sH, sS, sE, sT0, sT1, sT2, sT3, sSpin, sReg, sPhi, sK, sCnt, sQo, sFo = [S.get() for _ in range(18)]
    sTag = [S.get() for _ in range(4)]
    sTagF = S.get()
    sOff = [S.get() for _ in range(3)]
    sVal = S.get(2); sTm = S.get(2); sStart = S.get(2)
    sSt = S.get(16) if (stamps or diag is not None) else None
    (vL, vSlot, vCh, vKoff, vS1a, vS1b, vXr0, vXr1, vRedW, vRedR, vL16, vPubA, vPubD, vTg1, vTg2, vWo, vW2o, vH, vXo, vYo) = [V.get() for _ in range(20)]
    vM = V.get(4); vA = V.get(4); vA2 = V.get(4); vG = V.get(4); vG2 = V.get(4); vT = V.get(8); vXa = V.get(4); vXb = V.get()
    vY = V.get(4); vSc = V.get(8); vQ = V.get(12); vD = V.get(12); vW = V.get(24); vKV = V.get(96)
    cold = []
    nst = [0]
    def stamp():
        if diag is not None:
            if nst[0] == diag:
                a(f"s_memrealtime {sr(sTm,2)}"); a("s_waitcnt lgkmcnt(0)"); a(f"s_mov_b32 s{sSt}, s{sTm}")
        elif stamps:
            a(f"s_memrealtime {sr(sTm,2)}"); a("s_waitcnt lgkmcnt(0)"); a(f"s_mov_b32 s{sSt+nst[0]}, s{sTm}")
        nst[0] += 1
    def finish():
        if diag is not None:
            lp = a.newlabel("pad"); a.label(lp)
            a(f"s_memrealtime {sr(sTm,2)}"); a("s_waitcnt lgkmcnt(0)")
            a(f"s_sub_u32 s{sTm}, s{sTm}, s{sSt}"); a(f"s_cmp_lt_u32 s{sTm}, 5000"); a(f"s_cbranch_scc1 {lp}")
        elif stamps:
            lp = a.newlabel("pad"); a.label(lp)
            a(f"s_memrealtime {sr(sTm,2)}"); a("s_waitcnt lgkmcnt(0)")
            a(f"s_sub_u32 s{sTm}, s{sTm}, s{sStart}"); a(f"s_cmp_lt_u32 s{sTm}, 3000"); a(f"s_cbranch_scc1 {lp}")
            a(f"s_mov_b32 s{sSt+13}, s{sReg}"); a(f"s_mov_b32 s{sSt+14}, s{sStart}"); a(f"s_mov_b32 s{sSt+15}, s{sSpin}")
            a(f"s_lshl_b32 s{sT0}, s{sP}, 3"); a(f"s_add_u32 s{sT0}, s{sT0}, s{sW}"); a(f"s_lshl_b32 s{sT0}, s{sT0}, 6")
            a("s_mov_b64 exec, 1")
            a(f"s_add_u32 s{sT0}, s{sT0}, {WS_ST}"); a(f"v_mov_b32 v{vT}, s{sT0}")
            for q in range(4):
                for k in range(4): a(f"v_mov_b32 v{vKV+4*q+k}, s{sSt+4*q+k}")
                a(f"buffer_store_dwordx4 {vr(vKV+4*q,4)}, v{vT}, {sr(dWS,4)}, 0 offen offset:{16*q}")
        a("s_endpgm")
    def rne(dst, src):
        a(f"v_cvt_pk_bf16_f32 v{dst}, v{src}, v{src}"); a(f"v_and_b32 v{dst}, 0xffff0000, v{dst}")
    DP = "row_mask:0xf bank_mask:0xf"
    def red8(op, regs):
        for m in ("quad_perm:[1,0,3,2]", "quad_perm:[2,3,0,1]", "row_half_mirror"):
            for r in regs: a(f"{op}_dpp v{r}, v{r}, v{r} {m} {DP}")
    def red_hi(op, regs):
        for r in regs: a(f"{op}_dpp v{r}, v{r}, v{r} row_ror:8 {DP}")
        for r in regs: a(f"{op}_dpp v{r}, v{r}, v{r} row_bcast:15 row_mask:0xa bank_mask:0xf")
        for r in regs: a(f"{op}_dpp v{r}, v{r}, v{r} row_bcast:31 row_mask:0xc bank_mask:0xf")
    def buildA(dst, dup):
        for k in range(4): a(f"v_and_b32 v{dst+k}, v{dup}, v{vM+k}")
    def untag(sets):
        for g, tg in sets:
            for k in range(4): a(f"v_xor_b32 v{g+k}, s{tg[k]}, v{g+k}")
        rs = [g+k for g, _ in sets for k in range(4)]
        a(f"v_or3_b32 v{vT}, v{rs[0]}, v{rs[1]}, v{rs[2]}"); rs = rs[3:]
        while rs:
            if len(rs) >= 2: a(f"v_or3_b32 v{vT}, v{vT}, v{rs[0]}, v{rs[1]}"); rs = rs[2:]
            else: a(f"v_or_b32 v{vT}, v{vT}, v{rs[0]}"); rs = rs[1:]
        a(f"v_and_b32 v{vT}, 0xff, v{vT}")
        a(f"v_cmp_ne_u32 vcc, 0, v{vT}")
    def poll_check(loads, tg):
        lr = a.newlabel("retry"); lo = a.newlabel("ok")
        a.label(lr)
        untag([(g, tg) for g, _ in loads])
        a(f"s_cbranch_vccz {lo}")
        a(f"s_sub_u32 s{sSpin}, s{sSpin}, 1"); a("s_cbranch_scc1 L_end")
        old = a.cond; a.cond = True
        for (_, t) in loads: a(t)
        a.cond = old
        a("s_waitcnt vmcnt(0)"); a(f"s_branch {lr}")
        a.label(lo)
    def pub(text, name):
        ls = a.newlabel("pubslow"); lb = a.newlabel("pubback")
        a(f"s_cmp_lg_u32 s{sReg}, 0"); a(f"s_cbranch_scc1 {ls}")
        a(text, name)
        a.label(lb)
        cold.append([ls + ":", "    " + text + " sc1", f"    s_branch {lb}"])

    stream = [("K", i) for i in range(3)] + [("S", i) for i in range(6)] + [("K", i) for i in range(3, 24)]
    vs = [("V", i) for i in range(24)]
    early = [("W", 4)] + [("W", i) for i in range(4 - nafter)]
    stream += vs[:wpos] + early + vs[wpos:] + [("W", i) for i in range(4 - nafter, 4)]
    idx = {f"{t}{i}": n for n, (t, i) in enumerate(stream)}
    kdone = [0]
    pos = [0]
    def load(t, i):
        if t in "KV":
            g, j = divmod(i, 3)
            if t == "V": assert g < kdone[0], "V load overwrites unconsumed K"
            so = "0" if g < 2 else f"s{sOff[(g>>1)-1]}"
            a(f"buffer_load_dwordx4 {vr(vKV+4*i,4)}, v{vKoff}, {sr(dK if t == 'K' else dV,4)}, {so} offen offset:{3072*(g&1)+128*j} {ld}", f"{t}{i}")
        elif t == "S":
            g, j = divmod(i, 3)
            a(f"buffer_load_dwordx4 {vr(vW+4*i,4)}, v{vS1a if g == 0 else vS1b}, {sr(dS1,4)}, 0 offen offset:{128*j} {ld}", f"S{i}")
        elif i < 4:
            a(f"buffer_load_dwordx4 {vr(vW+4*i,4)}, v{vWo}, {sr(dWO,4)}, 0 offen offset:{1280*i} {ld}", f"W{i}")
        else:
            a(f"buffer_load_dwordx4 {vr(vW+16,4)}, v{vW2o}, {sr(dW2,4)}, 0 offen {ld}", "W4")
    arrived = [-1]
    def wait_idx(n):
        if n > arrived[0]:
            t, i = stream[n]; a.wait_vm(f"{t}{i}"); arrived[0] = n
    def step(n=1, d=None):
        for _ in range(n):
            p = pos[0]
            if p >= len(stream): return
            if p - (d or D) >= 0: wait_idx(p - (d or D))
            load(*stream[p]); pos[0] += 1
    def need(name):
        n = idx[name]
        while arrived[0] < n and pos[0] < len(stream): step()
        wait_idx(n)
    def issue_to(name):
        while pos[0] <= idx[name]: step()

    a("s_cmp_ge_u32 s2, 256"); a("s_cbranch_scc1 L_end")
    if diag is not None or stamps: a(f"s_memrealtime {sr(sStart,2)}")
    a("s_load_dwordx16 s[4:19], s[0:1], 0")
    a("s_load_dwordx8 s[20:27], s[0:1], 64")
    a(f"v_lshrrev_b32 v{vT}, 6, v0")
    a(f"v_and_b32 v{vL}, 63, v0")
    a(f"v_readfirstlane_b32 s{sW}, v{vT}")
    a(f"s_and_b32 s{sG}, s2, 7"); a(f"s_lshr_b32 s{sC}, s2, 3")
    a(f"s_lshl_b32 s{sP}, s{sG}, 5"); a(f"s_add_u32 s{sP}, s{sP}, s{sC}")
    a(f"v_lshrrev_b32 v{vSlot}, 3, v{vL}"); a(f"v_and_b32 v{vCh}, 7, v{vL}")
    a(f"s_lshl_b32 s{sT0}, s{sP}, 3"); a(f"s_add_u32 s{sT0}, s{sT0}, s{sW}"); a(f"s_mul_i32 s{sT0}, s{sT0}, 24576")
    a(f"v_mul_u32_u24 v{vKoff}, 384, v{vSlot}")
    a(f"v_lshl_add_u32 v{vT+1}, v{vCh}, 4, s{sT0}")
    a(f"v_add_u32 v{vKoff}, v{vKoff}, v{vT+1}")
    a(f"s_mov_b32 s{dK+2}, 50331648"); a(f"s_mov_b32 s{dK+3}, 0x20000")
    a(f"s_lshr_b32 s{sH}, s{sP}, 3"); a(f"s_and_b32 s{sS}, s{sP}, 7")
    a(f"v_lshlrev_b32 v{vL16}, 4, v{vL}")
    a("s_waitcnt lgkmcnt(0)")
    a(f"s_mov_b64 {sr(dK,2)}, {sr(pK,2)}")
    step(3)
    if diag is not None: a(f"s_mov_b32 s{sSt}, s{sStart}")
    if stamps:
        for i in range(13): a(f"s_mov_b32 s{sSt+i}, 0")
    a(f"s_load_dword s{sE}, {sr(pWS,2)}, {WS_E}")
    a.c("stage-1 role: waves 0-4 wq rows, waves 5-7 w1/w3 rows")
    a(f"s_mov_b64 {sr(dX,2)}, {sr(pX,2)}"); a(f"s_mov_b32 s{dX+2}, 1280"); a(f"s_mov_b32 s{dX+3}, 0x20000")
    a(f"v_lshlrev_b32 v{vT+4}, 2, v{vL}")
    a(f"buffer_load_dwordx4 {vr(vXa,4)}, v{vL16}, {sr(dX,4)}, 0 offen", "xa")
    a(f"buffer_load_dword v{vXb}, v{vT+4}, {sr(dX,4)}, 0 offen offset:1024", "xb")
    a(f"s_mul_i32 s{sT0}, s{sS}, 80")
    a(f"s_and_b32 s{sT1}, s{sC}, 15"); a(f"s_mul_i32 s{sT1}, s{sT1}, 40"); a(f"s_sub_u32 s{sT1}, s{sT1}, 80")
    a(f"s_cmp_lt_u32 s{sC}, 16"); a(f"s_cselect_b64 {sr(dS1,2)}, {sr(pW1,2)}, {sr(pW3,2)}")
    a(f"s_cmp_lt_u32 s{sW}, 5")
    a(f"s_cselect_b64 {sr(dS1,2)}, {sr(pWQ,2)}, {sr(dS1,2)}")
    a(f"s_cselect_b32 s{sT0}, s{sT0}, s{sT1}")
    a(f"s_cselect_b32 s{sT1}, s{sH}, s{sG}")
    a(f"s_cselect_b32 s{sT2}, 12, 3")
    a(f"s_lshl_b32 s{sT2}, s{sT2}, 10")
    a(f"s_mul_i32 s{dS1+2}, s{sT2}, 640"); a(f"s_mov_b32 s{dS1+3}, 0x20000")
    a(f"s_mul_i32 s{sT1}, s{sT1}, 384")
    a(f"s_lshl_b32 s{sT3}, s{sW}, 4"); a(f"s_add_u32 s{sT0}, s{sT0}, s{sT3}")
    a(f"v_add_u32 v{vXr0}, s{sT0}, v{vSlot}")
    a(f"v_mul_lo_u32 v{vS1a}, v{vXr0}, s{sT2}")
    a(f"v_lshlrev_b32 v{vT+2}, 1, v{vXr0}")
    a(f"buffer_load_ushort v{vXr0}, v{vT+2}, {sr(dX,4)}, 0 offen", "xr0")
    a(f"buffer_load_ushort v{vXr1}, v{vT+2}, {sr(dX,4)}, 0 offen offset:16", "xr1")
    a(f"v_lshl_add_u32 v{vT+1}, v{vCh}, 4, s{sT1}")
    a(f"v_add_u32 v{vS1a}, v{vS1a}, v{vT+1}")
    a(f"s_lshl_b32 s{sT2}, s{sT2}, 3")
    a(f"s_cmp_eq_u32 s{sW}, 7"); a(f"s_cselect_b32 s{sT2}, {OOB}, s{sT2}")
    a(f"v_add_u32 v{vS1b}, s{sT2}, v{vS1a}")
    step(extra, D + extra)
    if prefetch:
        a.c("pull this kernel's code into the L2 (each wave one line)")
        a(f"s_getpc_b64 {sr(sTm,2)}")
        a(f"s_lshl_b32 s{sT0}, s{sC}, 3"); a(f"s_add_u32 s{sT0}, s{sT0}, s{sW}"); a(f"s_and_b32 s{sT0}, s{sT0}, 63")
        a(f"s_lshl_b32 s{sT0}, s{sT0}, 7")
        a(f"s_load_dword s{sCnt}, {sr(sTm,2)}, s{sT0}")
    a(f"s_mov_b64 {sr(dV,2)}, {sr(pV,2)}"); a(f"s_mov_b32 s{dV+2}, 50331648"); a(f"s_mov_b32 s{dV+3}, 0x20000")
    a(f"s_mov_b64 {sr(dWS,2)}, {sr(pWS,2)}"); a(f"s_mov_b32 s{dWS+2}, {WS_SIZE}"); a(f"s_mov_b32 s{dWS+3}, 0x20000")
    a(f"s_mov_b64 {sr(dOUT,2)}, {sr(pOUT,2)}"); a(f"s_mov_b32 s{dOUT+2}, 1280"); a(f"s_mov_b32 s{dOUT+3}, 0x20000")
    a(f"s_mov_b32 s{dWO+2}, 7864320"); a(f"s_mov_b32 s{dWO+3}, 0x20000")
    a(f"s_mov_b32 s{dW2+2}, 1966080"); a(f"s_mov_b32 s{dW2+3}, 0x20000")
    for i in range(3): a(f"s_mov_b32 s{sOff[i]}, {6144*(i+1)}")
    a(f"s_mov_b32 s{sSpin}, {spin}"); a(f"s_mov_b32 s{sReg}, 0")
    a(f"s_mov_b32 s{sVal}, 0x00ff00ff"); a(f"s_mov_b32 s{sVal+1}, 0xff00ff00")
    a.c("MFMA A-operand masks")
    a(f"v_and_b32 v{vT}, 1, v{vL}"); a(f"v_lshlrev_b32 v{vT}, 4, v{vT}")
    a(f"v_mov_b32 v{vT+1}, 0xffff"); a(f"v_lshlrev_b32 v{vT}, v{vT}, v{vT+1}")
    a(f"v_lshrrev_b32 v{vT+1}, 1, v{vCh}")
    for k in range(4):
        a(f"v_cmp_eq_u32 vcc, {k}, v{vT+1}"); a(f"v_cndmask_b32 v{vM+k}, 0, v{vT}, vcc")
    a.c("LDS reduce addresses")
    a(f"v_lshrrev_b32 v{vT+2}, 5, v{vL}"); a(f"v_mul_u32_u24 v{vT}, 768, v{vT+2}")
    a(f"v_bfe_u32 v{vT+1}, v{vL}, 4, 1"); a(f"v_lshl_add_u32 v{vT+1}, v{vCh}, 1, v{vT+1}")
    a(f"v_lshl_add_u32 v{vT+1}, v{vT+1}, 4, v{vT}")
    a(f"s_mul_i32 s{sT0}, s{sW}, 1536")
    a(f"v_add_u32 v{vRedW}, s{sT0}, v{vT+1}")
    a(f"v_and_b32 v{vT+3}, 31, v{vL}")
    a(f"s_lshl_b32 s{sT0}, s{sW}, 7")
    a(f"v_lshl_add_u32 v{vT+1}, v{vT+3}, 2, s{sT0}")
    a(f"v_add_u32 v{vRedR}, v{vT}, v{vT+1}")
    step(1)
    a.c("publish offsets: lanes 0-31 q/o slot, lanes 32-63 ffn slot")
    a(f"s_mul_i32 s{sT0}, s{sH}, 6"); a(f"s_add_u32 s{sT0}, s{sT0}, s{sW}"); a(f"s_lshl_b32 s{sT0}, s{sT0}, 10")
    a(f"s_lshl_b32 s{sT1}, s{sS}, 4"); a(f"s_add_u32 s{sT0}, s{sT0}, s{sT1}"); a(f"s_add_u32 s{sT0}, s{sT0}, {WS_QP}")
    a(f"s_mul_i32 s{sT1}, s{sG}, 6"); a(f"s_add_u32 s{sT1}, s{sT1}, s{sW}"); a(f"s_lshl_b32 s{sT1}, s{sT1}, 12")
    a(f"s_lshl_b32 s{sT2}, s{sC}, 4"); a(f"s_add_u32 s{sT1}, s{sT1}, s{sT2}"); a(f"s_add_u32 s{sT1}, s{sT1}, {WS_FP}")
    a(f"s_cmp_lt_u32 s{sW}, 6"); a(f"s_cselect_b32 s{sT0}, s{sT0}, {OOB}"); a(f"s_cselect_b32 s{sT1}, s{sT1}, {OOB}")
    a(f"v_lshrrev_b32 v{vT}, 2, v{vT+3}")
    a(f"v_lshl_add_u32 v{vT+1}, v{vT}, 7, s{sT0}"); a(f"v_lshl_add_u32 v{vT+4}, v{vT}, 9, s{sT1}")
    a(f"v_cmp_gt_u32 vcc, 32, v{vL}")
    a(f"v_and_b32 v{vT+5}, 3, v{vL}")
    a(f"v_cndmask_b32 v{vT+1}, v{vT+4}, v{vT+1}, vcc")
    a(f"v_lshl_add_u32 v{vPubA}, v{vT+5}, 2, v{vT+1}")
    a.c("stage-3 task: range rho = c/10, slab k = c%10 (c >= 30: reducers, slab (c-30)*8+G)")
    a(f"s_mul_i32 s{sT0}, s{sC}, 26"); a(f"s_lshr_b32 s{sT0}, s{sT0}, 8")
    a(f"s_mul_i32 s{sT1}, s{sT0}, 10"); a(f"s_sub_u32 s{sK}, s{sC}, s{sT1}")
    a(f"s_min_u32 s{sT2}, s{sT0}, 2"); a(f"s_lshl_b32 s{sT2}, s{sT2}, 3"); a(f"s_add_u32 s{sPhi}, s{sT2}, s{sW}")
    a(f"s_mul_i32 s{sT2}, s{sG}, 24"); a(f"s_add_u32 s{sPhi}, s{sPhi}, s{sT2}")
    a(f"s_lshl_b32 s{sT2}, s{sK}, 7")
    a(f"s_cmp_lt_u32 s{sC}, 30"); a(f"s_cselect_b32 s{sT2}, s{sT2}, {OOB}")
    a(f"v_lshl_add_u32 v{vT}, v{vCh}, 4, s{sT2}")
    a(f"s_mul_i32 s{sT2}, s{sPhi}, {8*1280}")
    a(f"v_mul_u32_u24 v{vT+1}, 1280, v{vSlot}"); a(f"v_add_u32 v{vT+1}, s{sT2}, v{vT+1}")
    a(f"v_add_u32 v{vW2o}, v{vT}, v{vT+1}")
    a(f"v_lshl_add_u32 v{vWo}, v{vT+1}, 2, v{vT}")
    a.c("y publish offset ((k*2+w)*24 + 3G + rho)*128 + i*4")
    a(f"s_lshl_b32 s{sT1}, s{sK}, 1"); a(f"s_add_u32 s{sT1}, s{sT1}, s{sW}"); a(f"s_mul_i32 s{sT1}, s{sT1}, 24")
    a(f"s_mul_i32 s{sT2}, s{sG}, 3"); a(f"s_add_u32 s{sT1}, s{sT1}, s{sT2}"); a(f"s_add_u32 s{sT1}, s{sT1}, s{sT0}")
    a(f"s_lshl_b32 s{sT1}, s{sT1}, 7"); a(f"s_add_u32 s{sT1}, s{sT1}, {WS_YP}")
    a(f"v_lshl_add_u32 v{vYo}, v{vT+3}, 2, s{sT1}")
    a.c("gather offsets")
    a(f"s_min_u32 s{sT0}, s{sW}, 5"); a(f"s_mul_i32 s{sT1}, s{sH}, 6"); a(f"s_add_u32 s{sT0}, s{sT0}, s{sT1}")
    a(f"s_lshl_b32 s{sT0}, s{sT0}, 10"); a(f"s_add_u32 s{sQo}, s{sT0}, {WS_QP}")
    a(f"s_lshl_b32 s{sT0}, s{sPhi}, 10"); a(f"s_add_u32 s{sFo}, s{sT0}, {WS_FP}")
    step(1)
    a.wait_vm("xb")
    xs = [vQ + i for i in range(10)]
    for i in range(5):
        src = vXa + i if i < 4 else vXb
        a(f"v_lshlrev_b32 v{xs[2*i]}, 16, v{src}"); a(f"v_and_b32 v{xs[2*i+1]}, 0xffff0000, v{src}")
    a(f"v_add_f32 v{vT}, v{xs[0]}, v{xs[1]}"); a(f"v_add_f32 v{vT+1}, v{xs[2]}, v{xs[3]}")
    for i in range(4, 10): a(f"v_add_f32 v{vT+(i&1)}, v{vT+(i&1)}, v{xs[i]}")
    a(f"v_add_f32 v{vT}, v{vT}, v{vT+1}")
    red8("v_add_f32", [vT]); red_hi("v_add_f32", [vT])
    a(f"v_readlane_b32 s{sT0}, v{vT}, 63")
    a(f"v_mov_b32 v{vT+2}, {f2u(1/640.):#x}")
    step(1)
    a(f"v_mul_f32 v{vT+3}, s{sT0}, v{vT+2}")
    for i in range(10): a(f"v_sub_f32 v{xs[i]}, v{xs[i]}, v{vT+3}")
    a(f"v_mul_f32 v{vT}, v{xs[0]}, v{xs[0]}"); a(f"v_mul_f32 v{vT+1}, v{xs[1]}, v{xs[1]}")
    for i in range(2, 10): a(f"v_fmac_f32 v{vT+(i&1)}, v{xs[i]}, v{xs[i]}")
    a(f"v_add_f32 v{vT}, v{vT}, v{vT+1}")
    red8("v_add_f32", [vT]); red_hi("v_add_f32", [vT])
    a(f"v_readlane_b32 s{sT0}, v{vT}, 63")
    step(1)
    a(f"v_mul_f32 v{vT+2}, s{sT0}, v{vT+2}")
    rne(vT+2, vT+2); rne(vT+3, vT+3)
    a(f"v_add_f32 v{vT+2}, {f2u(1e-5):#x}, v{vT+2}"); rne(vT+2, vT+2)
    a(f"v_sqrt_f32 v{vT+2}, v{vT+2}"); rne(vT+2, vT+2)
    a(f"v_rcp_f32 v{vT+4}, v{vT+2}")
    a.wait_vm("xr1")
    for x in (vXr0, vXr1):
        a(f"v_lshlrev_b32 v{x}, 16, v{x}"); a(f"v_sub_f32 v{x}, v{x}, v{vT+3}"); rne(x, x)
        a(f"v_mul_f32 v{vT}, v{x}, v{vT+4}"); a(f"v_fma_f32 v{vT+1}, -v{vT}, v{vT+2}, v{x}")
        a(f"v_fma_f32 v{vT}, v{vT+1}, v{vT+4}, v{vT}")
        a(f"v_cvt_pk_bf16_f32 v{x}, v{vT}, v{vT}")
    step(1)
    buildA(vA, vXr0); buildA(vA2, vXr1)
    a.c("hand-off tags of this launch")
    a("s_waitcnt lgkmcnt(0)")
    a(f"s_add_u32 s{sE}, s{sE}, 0x01010101")
    for k in range(4): a(f"s_bfe_u32 s{sTag[k]}, s{sE}, {(8 << 16) | (8*k):#x}")
    a(f"s_getreg_b32 s{sT0}, hwreg(HW_REG_XCC_ID, 0, 4)")
    if forceslow: a(f"s_and_b32 s{sT0}, s{sC}, 1")
    a(f"s_lshl_b32 s{sTagF}, s{sTag[3]}, 4"); a(f"s_and_b32 s{sTagF}, s{sTagF}, 0xf0"); a(f"s_or_b32 s{sTagF}, s{sTagF}, s{sT0}")
    a(f"v_and_b32 v{vT}, 3, v{vL}"); a(f"v_lshlrev_b32 v{vT}, 3, v{vT}")
    a(f"v_bfe_u32 v{vTg1}, s{sE}, v{vT}, 8")
    a(f"s_add_u32 s{sE}, s{sE}, 0x01010101")
    a(f"v_bfe_u32 v{vTg2}, s{sE}, v{vT}, 8")
    a(f"v_mov_b32 v{vPubD}, v{vTg1}")
    a(f"s_mov_b32 exec_lo, 0"); a(f"s_mov_b32 exec_hi, 0x88888888")
    a(f"v_mov_b32 v{vPubD}, s{sTagF}")
    a("s_mov_b64 exec, -1")
    a(f"s_mov_b32 s{sCnt}, {timeout}")
    for i in range(6):
        g, j = divmod(i, 3)
        need(f"S{i}")
        a(f"v_mfma_f32_16x16x32_bf16 {vr(vD+4*j,4)}, {vr(vA if g == 0 else vA2,4)}, {vr(vW+4*i,4)}, {'0' if g == 0 else vr(vD+4*j,4)}")
    step(extra, D + extra)
    def red_write(base, regs):
        a(f"s_mov_b64 exec, {sr(sVal,2)}")
        for j, r in enumerate(regs): a(f"ds_write_b128 v{vRedW}, {vr(r,4)} offset:{base+256*j}")
        a("s_mov_b64 exec, -1")
        a("s_waitcnt lgkmcnt(0)"); a("s_barrier")
    def red_read(base):
        b = base // 256
        for q in range(4): a(f"ds_read2st64_b32 {vr(vT+2*q,2)}, v{vRedR} offset0:{b+12*q} offset1:{b+12*q+6}")
    def red_sum8(dst, tag):
        a("s_waitcnt lgkmcnt(2)")
        a(f"v_add_f32 v{vT}, v{vT}, v{vT+1}"); a(f"v_add_f32 v{vT+2}, v{vT+2}, v{vT+3}")
        a("s_waitcnt lgkmcnt(0)")
        a(f"v_add_f32 v{vT+4}, v{vT+4}, v{vT+5}"); a(f"v_add_f32 v{vT+6}, v{vT+6}, v{vT+7}")
        a(f"v_add_f32 v{vT}, v{vT}, v{vT+2}"); a(f"v_add_f32 v{vT+4}, v{vT+4}, v{vT+6}")
        a(f"v_add_f32 v{vT+1}, v{vT}, v{vT+4}"); a(f"v_add_f32 v{vT}, v{vT}, v{vT+4}")
        a(f"v_permlane32_swap_b32 v{vT}, v{vT+1}")
        a(f"v_add_f32 v{vT}, v{vT}, v{vT+1}")
        a(f"v_and_or_b32 v{dst}, v{vT}, s{sT3}, v{tag}")
    a(f"s_mov_b32 s{sT3}, 0xffffff00")
    red_write(LDS_RED, [vD, vD+4, vD+8]); red_read(LDS_RED)
    a("s_waitcnt lgkmcnt(0)")
    a(f"v_add_f32 v{vT}, v{vT}, v{vT+1}"); a(f"v_add_f32 v{vT+2}, v{vT+2}, v{vT+3}"); a(f"v_add_f32 v{vT+5}, v{vT+5}, v{vT+6}")
    a(f"v_add_f32 v{vT}, v{vT}, v{vT+4}"); a(f"v_add_f32 v{vT+5}, v{vT+5}, v{vT+7}"); a(f"v_add_f32 v{vT}, v{vT}, v{vT+2}")
    a(f"v_permlane32_swap_b32 v{vT}, v{vT+5}")
    a(f"v_add_f32 v{vT}, v{vT}, v{vT+5}")
    a(f"v_and_or_b32 v{vPubD}, v{vT}, s{sT3}, v{vPubD}")
    a(f"buffer_store_dword v{vPubD}, v{vPubA}, {sr(dWS,4)}, 0 offen", "pubq")
    stamp()
    issue_to(f"K{qpos-1}")
    qload = f"buffer_load_dwordx4 {vr(vG,4)}, v{vL16}, {sr(dWS,4)}, s{sQo} offen sc1"
    fload = f"buffer_load_dwordx4 {vr(vG2,4)}, v{vL16}, {sr(dWS,4)}, s{sFo} offen sc1"
    a(qload, "gq"); a(fload, "gf")
    need(f"K{qpos-1}")
    step(extra, D + extra)
    a.wait_vm("gf")
    tgF = sTag[:3] + [sTagF]
    lchk = a.newlabel("x1chk"); lok = a.newlabel("x1ok"); lslow = a.newlabel("x1slow")
    a.label(lchk)
    untag([(vG, sTag), (vG2, tgF)])
    a(f"s_cbranch_vccnz {lslow}")
    a.label(lok)
    c = Asm(); c.nlabel = 1000
    c.label(lslow)
    c.c("not all there yet, or a producer sits on another die")
    c(f"v_or3_b32 v{vT}, v{vG}, v{vG+1}, v{vG+2}"); c(f"v_or3_b32 v{vT}, v{vT}, v{vG+3}, v{vG2}"); c(f"v_or3_b32 v{vT}, v{vT}, v{vG2+1}, v{vG2+2}")
    c(f"v_and_b32 v{vT}, 0xff, v{vT}"); c(f"v_and_b32 v{vT+1}, 0xf0, v{vG2+3}"); c(f"v_or_b32 v{vT}, v{vT}, v{vT+1}")
    c(f"v_cmp_ne_u32 vcc, 0, v{vT}")
    c("s_cbranch_vccnz L_x1wait")
    c(f"s_mov_b32 s{sReg}, {SLOW}")
    c(f"v_and_b32 v{vG2+3}, 0xffffff00, v{vG2+3}")
    c(f"buffer_store_dword v{vPubD}, v{vPubA}, {sr(dWS,4)}, s{sReg} offen sc1")
    c(f"s_branch {lok}")
    c.label("L_x1wait")
    c(f"s_sub_u32 s{sSpin}, s{sSpin}, 1"); c("s_cbranch_scc1 L_end")
    c(f"s_sub_u32 s{sCnt}, s{sCnt}, 1")
    c(f"s_cmp_lg_u32 s{sCnt}, 0"); c("s_cbranch_scc1 L_x1nopub")
    c(f"s_mov_b32 s{sT0}, {SLOW}")
    c(f"buffer_store_dword v{vPubD}, v{vPubA}, {sr(dWS,4)}, s{sT0} offen sc1")
    c.label("L_x1nopub")
    c.c("after the time-out look at the two areas in turn")
    c(f"s_and_b32 s{sT0}, s{sCnt}, 0x80000001"); c(f"s_cmp_eq_u32 s{sT0}, 0x80000001"); c(f"s_cselect_b32 s{sT0}, {SLOW}, 0")
    c(f"s_add_u32 s{sT1}, s{sT0}, s{sFo}"); c(f"s_add_u32 s{sT0}, s{sT0}, s{sQo}")
    c(qload.replace(f"s{sQo} offen", f"s{sT0} offen")); c(fload.replace(f"s{sFo} offen", f"s{sT1} offen"))
    c("s_waitcnt vmcnt(0)"); c(f"s_branch {lchk}")
    cold.append(c.out)
    red8("v_add_f32", [vG+k for k in range(4)] + [vG2+k for k in range(4)])
    a(f"v_cvt_pk_bf16_f32 v{vG}, v{vG}, v{vG+1}"); a(f"v_cvt_pk_bf16_f32 v{vG+1}, v{vG+2}, v{vG+3}")
    a(f"s_min_u32 s{sT0}, s{sW}, 5"); a(f"s_lshl_b32 s{sT0}, s{sT0}, 6")
    a(f"v_lshl_add_u32 v{vT+2}, v{vSlot}, 3, s{sT0}")
    a(f"ds_write_b64 v{vT+2}, {vr(vG,2)} offset:{LDS_Q}")
    a(f"v_lshlrev_b32 v{vT+3}, 4, v{vCh}")
    a("s_waitcnt lgkmcnt(0)"); a("s_barrier")
    for j in range(3): a(f"ds_read_b128 {vr(vQ+4*j,4)}, v{vT+3} offset:{LDS_Q+128*j}")
    step(1)
    a.c("SwiGLU for this wave's eight hidden units")
    for k in range(4): a(f"v_add_f32_dpp v{vG2+k}, v{vG2+k}, v{vG2+k} row_mirror {DP}")
    a(f"v_and_b32 v{vT}, 1, v{vSlot}"); a(f"v_cmp_eq_u32 vcc, 1, v{vT}")
    a(f"v_cndmask_b32 v{vG2}, v{vG2}, v{vG2+1}, vcc"); a(f"v_cndmask_b32 v{vG2+2}, v{vG2+2}, v{vG2+3}, vcc")
    rne(vG2, vG2); rne(vG2+2, vG2+2)
    a(f"v_permlane16_swap_b32 v{vG2}, v{vG2+2}")
    a(f"v_mul_f32 v{vT}, {f2u(-1.4426950408889634):#x}, v{vG2}")
    a(f"v_exp_f32 v{vT}, v{vT}"); a(f"v_add_f32 v{vT}, 1.0, v{vT}"); a(f"v_rcp_f32 v{vT}, v{vT}")
    a(f"v_mul_f32 v{vT}, v{vT}, v{vG2}"); rne(vT, vT)
    a(f"v_mul_f32 v{vT}, v{vT}, v{vG2+2}")
    a(f"v_cvt_pk_bf16_f32 v{vH}, v{vT}, v{vT}")
    a("s_waitcnt lgkmcnt(0)")
    stamp()
    for g in range(8):
        need(f"K{3*g+2}")
        b = vKV + 12*g
        a(f"v_dot2_f32_bf16 v{vSc+g}, v{b}, v{vQ}, 0")
        a(f"v_dot2_f32_bf16 v{vT}, v{b+1}, v{vQ+1}, 0")
        for i in range(2, 12):
            d = vSc+g if i % 2 == 0 else vT
            a(f"v_dot2_f32_bf16 v{d}, v{b+i}, v{vQ+i}, v{d}")
        kdone[0] = g + 1
        if g % 3 == 2: step(1)
        a(f"v_add_f32 v{vSc+g}, v{vSc+g}, v{vT}")
    sc = [vSc+g for g in range(8)]
    red8("v_add_f32", sc)
    for r in sc: a(f"v_cvt_pk_bf16_f32 v{r}, v{r}, v{r}")
    for r in sc: a(f"v_and_b32 v{r}, 0xffff0000, v{r}")
    step(1)
    for r in sc: a(f"v_mul_f32 v{r}, {f2u(192 ** -0.5):#x}, v{r}")
    for r in sc: a(f"v_cvt_pk_bf16_f32 v{r}, v{r}, v{r}")
    for r in sc: a(f"v_and_b32 v{r}, 0xffff0000, v{r}")
    a(f"v_max3_f32 v{vG}, v{sc[0]}, v{sc[1]}, v{sc[2]}"); a(f"v_max3_f32 v{vG+1}, v{sc[3]}, v{sc[4]}, v{sc[5]}")
    a(f"v_max3_f32 v{vG}, v{vG}, v{sc[6]}, v{sc[7]}"); a(f"v_max_f32 v{vG}, v{vG}, v{vG+1}")
    red_hi("v_max_f32", [vG])
    a(f"v_readlane_b32 s{sT0}, v{vG}, 63")
    L2E = f"{f2u(1.4426950408889634):#x}"
    step(1)
    for k in range(8): a(f"v_subrev_f32 v{vT+k}, s{sT0}, v{sc[k]}")
    for k in range(8): a(f"v_mul_f32 v{vT+k}, {L2E}, v{vT+k}")
    for k in range(8): a(f"v_exp_f32 v{vT+k}, v{vT+k}")
    for k in range(4): a(f"v_add_f32 v{vT+k}, v{vT+k}, v{vT+4+k}")
    a(f"v_add_f32 v{vT}, v{vT}, v{vT+1}"); a(f"v_add_f32 v{vT+2}, v{vT+2}, v{vT+3}"); a(f"v_add_f32 v{vG+1}, v{vT}, v{vT+2}")
    red_hi("v_add_f32", [vG+1])
    a(f"v_or_b32 v{vG}, s{sTag[0]}, v{vG}")
    a(f"v_and_b32 v{vG+1}, 0xffffff00, v{vG+1}"); a(f"v_or_b32 v{vG+1}, s{sTag[1]}, v{vG+1}")
    a(f"v_mov_b32 v{vG+2}, s{sTag[2]}"); a(f"v_mov_b32 v{vG+3}, s{sTag[3]}")
    a(f"s_lshl_b32 s{sT0}, s{sP}, 3"); a(f"s_add_u32 s{sT0}, s{sT0}, s{sW}"); a(f"s_lshl_b32 s{sT0}, s{sT0}, 4")
    a(f"s_add_u32 s{sT0}, s{sT0}, {WS_ML}"); a(f"v_mov_b32 v{vT}, s{sT0}")
    a(f"s_mov_b32 exec_lo, 0"); a(f"s_mov_b32 exec_hi, 0x80000000")
    pub(f"buffer_store_dwordx4 {vr(vG,4)}, v{vT}, {sr(dWS,4)}, s{sReg} offen", "pubml")
    a("s_mov_b64 exec, -1")
    stamp()
    a.c("down projection of the SwiGLU part")
    buildA(vA, vH)
    need("W4")
    a(f"v_mfma_f32_16x16x32_bf16 {vr(vY,4)}, {vr(vA,4)}, {vr(vW+16,4)}, 0")
    issue_to(f"V{mlpos-1}")
    a(f"s_lshl_b32 s{sT0}, s{sH}, 10"); a(f"s_add_u32 s{sT0}, s{sT0}, {WS_ML}"); a(f"s_add_u32 s{sT0}, s{sT0}, s{sReg}")
    mload = f"buffer_load_dwordx4 {vr(vG,4)}, v{vL16}, {sr(dWS,4)}, s{sT0} offen sc1"
    a(mload, "gm")
    need(f"V{mlpos-1}")
    a.wait_vm("gm")
    poll_check([(vG, mload)], sTag)
    a(f"v_mov_b32 v{vT}, v{vG}")
    red8("v_max_f32", [vT]); red_hi("v_max_f32", [vT])
    a(f"v_readlane_b32 s{sT0}, v{vT}, 63")
    a(f"v_subrev_f32 v{vT}, s{sT0}, v{vG}"); a(f"v_mul_f32 v{vT}, {L2E}, v{vT}"); a(f"v_exp_f32 v{vT}, v{vT}")
    a(f"v_mul_f32 v{vT}, v{vT}, v{vG+1}")
    red8("v_add_f32", [vT]); red_hi("v_add_f32", [vT])
    a(f"v_rcp_f32 v{vT}, v{vT}")
    step(1)
    for r in sc: a(f"v_subrev_f32 v{r}, s{sT0}, v{r}")
    a(f"v_readlane_b32 s{sT1}, v{vT}, 63")
    for r in sc: a(f"v_mul_f32 v{r}, {L2E}, v{r}")
    for r in sc: a(f"v_exp_f32 v{r}, v{r}")
    for r in sc: a(f"v_mul_f32 v{r}, s{sT1}, v{r}")
    for r in sc: a(f"v_cvt_pk_bf16_f32 v{r}, v{r}, v{r}")
    step(1)
    a.c("tags and offsets of the o exchange")
    for k in range(4): a(f"s_bfe_u32 s{sTag[k]}, s{sE}, {(8 << 16) | (8*k):#x}")
    a(f"s_lshl_b32 s{sQo}, s{sPhi}, 10"); a(f"s_add_u32 s{sQo}, s{sQo}, {WS_QP}"); a(f"s_add_u32 s{sQo}, s{sQo}, s{sReg}")
    stamp()
    for g in range(8):
        A_ = vA if g % 2 == 0 else vA2
        buildA(A_, sc[g])
        for j in range(3):
            need(f"V{3*g+j}")
            a(f"v_mfma_f32_16x16x32_bf16 {vr(vD+4*j,4)}, {vr(A_,4)}, {vr(vKV+12*g+4*j,4)}, {'0' if g == 0 else vr(vD+4*j,4)}")
        if g == 3: step(1)
    while pos[0] < len(stream): load(*stream[pos[0]]); pos[0] += 1
    stamp()
    red_write(LDS_RED, [vD, vD+4, vD+8]); red_read(LDS_RED)
    red_sum8(vPubD, vTg2)
    a(f"s_mov_b32 exec_hi, 0")
    pub(f"buffer_store_dword v{vPubD}, v{vPubA}, {sr(dWS,4)}, s{sReg} offen", "pubo")
    a("s_mov_b64 exec, -1")
    stamp()
    a(f"s_cmp_ge_u32 s{sC}, 30"); a("s_cbranch_scc1 L_reducer")
    snap = a.snapshot(); n0 = nst[0]
    oload = f"buffer_load_dwordx4 {vr(vG,4)}, v{vL16}, {sr(dWS,4)}, s{sQo} offen sc1"
    a(oload, "go")
    a.wait_vm("go")
    poll_check([(vG, oload)], sTag)
    stamp()
    red8("v_add_f32", [vG+k for k in range(4)])
    for k in range(4): a(f"v_cvt_pk_bf16_f32 v{vG+k}, v{vG+k}, v{vG+k}")
    for r in range(4):
        A_ = (vA, vA2, vG2, vT)[r]
        buildA(A_, vG+r)
        if r >= 1: a(f"v_mfma_f32_16x16x32_bf16 {vr(vY,4)}, {vr((vA, vA2, vG2, vT)[r-1],4)}, {vr(vW+4*(r-1),4)}, {vr(vY,4)}")
    a(f"v_mfma_f32_16x16x32_bf16 {vr(vY,4)}, {vr(vT,4)}, {vr(vW+12,4)}, {vr(vY,4)}")
    red_write(LDS_RED2, [vY])
    lx = a.newlabel("exit")
    a(f"s_cmp_ge_u32 s{sW}, 2"); a(f"s_cbranch_scc1 {lx}")
    red_read(LDS_RED2)
    red_sum8(vPubD, vTg2)
    a(f"s_mov_b32 exec_hi, 0")
    a(f"buffer_store_dword v{vPubD}, v{vYo}, {sr(dWS,4)}, 0 offen sc1", "puby")
    a.label(lx)
    stamp()
    finish()
    a.label("L_reducer")
    a.restore(snap); nst[0] = n0
    lx = a.newlabel("exit")
    a(f"s_lshl_b32 s{sK}, s{sK}, 3"); a(f"s_add_u32 s{sK}, s{sK}, s{sG}")
    a(f"s_cmp_ge_u32 s{sW}, 2"); a(f"s_cbranch_scc1 {lx}")
    a(f"s_cmp_ge_u32 s{sK}, 10"); a(f"s_cbranch_scc1 {lx}")
    a(f"s_lshl_b32 s{sK}, s{sK}, 1"); a(f"s_add_u32 s{sK}, s{sK}, s{sW}")
    a(f"s_mul_i32 s{sT0}, s{sK}, 3072"); a(f"s_add_u32 s{sT0}, s{sT0}, {WS_YP}")
    y = vKV
    yl = [(y+4*i, f"buffer_load_dwordx4 {vr(y+4*i,4)}, v{vL16}, {sr(dWS,4)}, s{sT0} offen offset:{1024*i} sc1") for i in range(3)]
    a.c("output column of this lane: 32*line + 4*(l&7) + (l>>4)")
    a(f"v_lshrrev_b32 v{vT+1}, 4, v{vL}"); a(f"v_lshl_add_u32 v{vT+1}, v{vCh}, 2, v{vT+1}")
    a(f"s_lshl_b32 s{sT1}, s{sK}, 6"); a(f"v_lshl_add_u32 v{vYo}, v{vT+1}, 1, s{sT1}")
    a(f"buffer_load_ushort v{vXo}, v{vYo}, {sr(dX,4)}, 0 offen")
    a(f"v_mov_b32 v{vT+4}, s{sE}"); a(f"v_mov_b32 v{vT+5}, 0")
    for _, t in yl: a(t)
    a("s_waitcnt vmcnt(0)")
    a(f"v_lshlrev_b32 v{vXo}, 16, v{vXo}")
    poll_check(yl, sTag)
    stamp()
    for k in range(4): a(f"v_add_f32 v{y+k}, v{y+k}, v{y+4+k}")
    for k in range(4): a(f"v_add_f32 v{y+k}, v{y+k}, v{y+8+k}")
    a(f"v_permlane32_swap_b32 v{y}, v{y+2}"); a(f"v_permlane32_swap_b32 v{y+1}, v{y+3}")
    a(f"v_add_f32 v{y}, v{y}, v{y+2}"); a(f"v_add_f32 v{y+1}, v{y+1}, v{y+3}")
    a(f"v_permlane16_swap_b32 v{y}, v{y+1}")
    a(f"v_add_f32 v{y}, v{y}, v{y+1}")
    a(f"v_add_f32_dpp v{y}, v{y}, v{y} row_ror:8 {DP}")
    a(f"v_add_f32 v{y}, v{y}, v{vXo}")
    a(f"v_cvt_pk_bf16_f32 v{y}, v{y}, v{y}")
    a(f"s_mov_b32 exec_lo, 0x00ff00ff"); a(f"s_mov_b32 exec_hi, 0x00ff00ff")
    a(f"buffer_store_short v{y}, v{vYo}, {sr(dOUT,4)}, 0 offen")
    a.c("line 0's reducer has heard (through its producers) from every workgroup: advance the hand-off epoch")
    a(f"s_cmp_lg_u32 s{sK}, 0"); a(f"s_cbranch_scc1 {lx}")
    a("s_mov_b64 exec, 1")
    a(f"buffer_store_dword v{vT+4}, v{vT+5}, {sr(dWS,4)}, 0 offen offset:{WS_E}")
    a.label(lx)
    nst[0] = 8
    stamp()
    finish()
    for blk in cold:
        for ln in blk: a.raw(ln)
    a.label("L_end")
    a("s_endpgm")
    if prefetch: a.raw("    .fill 2048, 4, 0xbf810000")
    nv = (V.n + 7) // 8 * 8
    a.raw('.section .rodata,"a"'); a.raw(".p2align 6"); a.raw(f".amdhsa_kernel {NAME}_kernel")
    a.raw(f"  .amdhsa_next_free_vgpr {nv}"); a.raw("  .amdhsa_next_free_sgpr 102"); a.raw(f"  .amdhsa_accum_offset {nv}")
    a.raw("  .amdhsa_group_segment_fixed_size 0"); a.raw("  .amdhsa_kernarg_size 96"); a.raw("  .amdhsa_user_sgpr_count 2")
    a.raw("  .amdhsa_user_sgpr_kernarg_segment_ptr 1"); a.raw("  .amdhsa_system_sgpr_workgroup_id_x 1")
    a.raw(".end_amdhsa_kernel")
    return a.text()

if __name__ == "__main__":
    kw = {}
    out = sys.argv[1]
    for x in sys.argv[2:]:
        k, v = x.split("=")
        try: v = eval(v)
        except Exception: pass
        kw[k] = v
    open(out, "w").write(gen(**kw))
```

```python
import sys, struct
sys.path.insert(0, "dev")
from asmlib import *

NAME = "parallel_sum__gqa_block_cached__glu_gated_swiglu__decode"
def f2u(x): return struct.unpack("<I", struct.pack("<f", x))[0]

WS_E  = 0
WS_QP = 0x10000
WS_FP = 0x50000
WS_OP = 0x90000
WS_ML = 0xD0000
WS_YP = 0x100000
WS_ST = 0x400000
WS_SIZE = 0x800000
RED_STRIDE = 1568
LDS_RED = 0
LDS_Q = 12800
LDS_H = 13312
LDS_DUMMY = 13376

def gen(D=4, D0=None, qpos=12, mlpos=12, ld="nt", st="sc1", pl="sc1", stamps=False, ysp=2560, ysr=16,
        lds=90112, prefetch=True, spin=1 << 16, diag=None, fine=False):
    a = Asm()
    assert qpos + D <= 24 and mlpos + D <= 24 and mlpos >= D and qpos >= D
    hdr = open("cdna_kernels/" + NAME + ".s.ref").read().split("\n")
    for ln in hdr:
        if ln.startswith(";") and "@launch" not in ln and "Override launch" not in ln and "grid=ceil" not in ln: a.raw(ln)
    a.raw(f"; @launch grid=(256,1,1) block=(512,1,1) lds={lds}")
    a.raw('.amdgcn_target "amdgcn-amd-amdhsa--gfx950"')
    a.raw(".text"); a.raw(f".globl {NAME}_kernel"); a.raw(".p2align 8"); a.raw(f".type {NAME}_kernel,@function")
    a.label(f"{NAME}_kernel")
    V = Regs(1, 256, "v"); S = Regs(28, 102, "s")
    pX, pK, pV, pWQ, pWO, pBX, pW1, pW3, pW2, pOUT, pDBG, pWS = [4 + 2*i for i in range(12)]
    dX, dK, dV, dS1, dWS, dOUT = [S.get(4) for _ in range(6)]
    sW, sG, sC, sP, sH, sS, sE, sT0, sT1, sT2, sT3, sSpin = [S.get() for _ in range(12)]
    sTag = [S.get() for _ in range(4)]
    sSel = [S.get() for _ in range(4)]
    sOff = [S.get() for _ in range(3)]
    sXo = S.get(2)
    sVal = S.get(2)
    sSt = S.get(16, 4)
    sTm = S.get(2)
    vL, vSlot, vCh, vTag, vKoff, vS1a, vS1b, vXr0, vXr1, vRedW, vRedR, vPub, vGa, vGb = [V.get() for _ in range(14)]
    vM = V.get(4); vA = V.get(4); vA2 = V.get(4); vG = V.get(4); vG2 = V.get(4); vT = V.get(8); vXa = V.get(4); vXb = V.get()
    vWa = V.get(2)
    vSc = V.get(8); vQ = V.get(12); vD = V.get(12); vW = V.get(32); vKV = V.get(96)
    nst = [0]
    sStart = S.get(2)
    def stamp():
        if diag is not None:
            if nst[0] == diag:
                a(f"s_memrealtime {sr(sTm,2)}"); a("s_waitcnt lgkmcnt(0)"); a(f"s_mov_b32 s{sSt}, s{sTm}")
            nst[0] += 1
            return
        if not stamps: return
        a(f"s_memrealtime {sr(sTm,2)}"); a("s_waitcnt lgkmcnt(0)"); a(f"s_mov_b32 s{sSt+nst[0]}, s{sTm}"); nst[0] += 1
    def fstamp(i):
        if fine:
            a(f"s_memrealtime {sr(sTm,2)}"); a("s_waitcnt lgkmcnt(0)"); a(f"s_mov_b32 s{sSt+10+i}, s{sTm}")
    def rne(dst, src):
        a(f"v_cvt_pk_bf16_f32 v{dst}, v{src}, v{src}"); a(f"v_and_b32 v{dst}, 0xffff0000, v{dst}")
    DP = "row_mask:0xf bank_mask:0xf"
    def red8(op, regs):
        for m in ("quad_perm:[1,0,3,2]", "quad_perm:[2,3,0,1]", "row_half_mirror"):
            for r in regs: a(f"{op}_dpp v{r}, v{r}, v{r} {m} {DP}")
    def red_hi(op, regs):
        for r in regs: a(f"{op}_dpp v{r}, v{r}, v{r} row_ror:8 {DP}")
        for r in regs: a(f"{op}_dpp v{r}, v{r}, v{r} row_bcast:15 row_mask:0xa bank_mask:0xf")
        for r in regs: a(f"{op}_dpp v{r}, v{r}, v{r} row_bcast:31 row_mask:0xc bank_mask:0xf")
    def tag4(dst, src):
        for k in range(4): a(f"v_perm_b32 v{dst+k}, v{src+k}, v{vTag}, s{sSel[k]}")
    def buildA(dst, dup):
        for k in range(4): a(f"v_and_b32 v{dst+k}, v{dup}, v{vM+k}")
    def poll_check(loads):
        lr = a.newlabel("retry"); lo = a.newlabel("ok")
        a.label(lr)
        for (g, _) in loads:
            for k in range(4): a(f"v_xor_b32 v{g+k}, s{sTag[k]}, v{g+k}")
        first = True
        for (g, _) in loads:
            if first:
                a(f"v_or3_b32 v{vT}, v{g}, v{g+1}, v{g+2}"); a(f"v_or_b32 v{vT}, v{vT}, v{g+3}"); first = False
            else:
                a(f"v_or3_b32 v{vT}, v{vT}, v{g}, v{g+1}"); a(f"v_or3_b32 v{vT}, v{vT}, v{g+2}, v{g+3}")
        a(f"v_and_b32 v{vT}, 0xff, v{vT}")
        a(f"v_cmp_ne_u32 vcc, 0, v{vT}")
        a(f"s_cbranch_vccz {lo}")
        a(f"s_sub_u32 s{sSpin}, s{sSpin}, 1")
        a("s_cbranch_scc1 L_end")
        old = a.cond; a.cond = True
        for (_, t) in loads: a(t)
        a.cond = old
        a("s_waitcnt vmcnt(0)")
        a(f"s_branch {lr}")
        a.label(lo)

    a("s_cmp_ge_u32 s2, 256"); a("s_cbranch_scc1 L_end")
    if diag is not None or stamps: a(f"s_memrealtime {sr(sStart,2)}")
    a("s_load_dwordx16 s[4:19], s[0:1], 0")
    a("s_load_dwordx8 s[20:27], s[0:1], 64")
    a(f"v_lshrrev_b32 v{vT}, 6, v0")
    a(f"v_and_b32 v{vL}, 63, v0")
    a(f"v_readfirstlane_b32 s{sW}, v{vT}")
    a(f"s_and_b32 s{sG}, s2, 7"); a(f"s_lshr_b32 s{sC}, s2, 3")
    a(f"s_lshl_b32 s{sP}, s{sG}, 5"); a(f"s_add_u32 s{sP}, s{sP}, s{sC}")
    a(f"s_lshr_b32 s{sH}, s{sP}, 3"); a(f"s_and_b32 s{sS}, s{sP}, 7")
    a(f"v_lshrrev_b32 v{vSlot}, 3, v{vL}"); a(f"v_and_b32 v{vCh}, 7, v{vL}")
    for d, sz in ((dX, 1280), (dK, 50331648), (dV, 50331648), (dWS, WS_SIZE), (dOUT, 1280)):
        a(f"s_mov_b32 s{d+2}, {sz}"); a(f"s_mov_b32 s{d+3}, 0x20000")
    a(f"s_mov_b32 s{dS1+3}, 0x20000")
    a.c("stage-1 role: waves 0-4 wq rows, waves 5-7 w1/w3 rows")
    a(f"s_mul_i32 s{sT0}, s{sS}, 80")
    a(f"s_and_b32 s{sT1}, s{sC}, 15"); a(f"s_mul_i32 s{sT1}, s{sT1}, 40"); a(f"s_sub_u32 s{sT1}, s{sT1}, 80")
    a(f"s_cmp_lt_u32 s{sW}, 5")
    a(f"s_cselect_b32 s{sT0}, s{sT0}, s{sT1}")
    a(f"s_cselect_b32 s{sT1}, s{sH}, s{sG}")
    a(f"s_cselect_b32 s{sT2}, 12288, 3072" if False else f"s_cselect_b32 s{sT2}, 12, 3")
    a(f"s_lshl_b32 s{sT2}, s{sT2}, 10")
    a(f"s_mul_i32 s{dS1+2}, s{sT2}, 640")
    a(f"s_mul_i32 s{sT1}, s{sT1}, 384")
    a(f"s_lshl_b32 s{sT3}, s{sW}, 4"); a(f"s_add_u32 s{sT0}, s{sT0}, s{sT3}")
    a(f"v_add_u32 v{vXr0}, s{sT0}, v{vSlot}")
    a(f"v_mul_lo_u32 v{vS1a}, v{vXr0}, s{sT2}")
    a(f"v_lshl_add_u32 v{vT+1}, v{vCh}, 4, s{sT1}")
    a(f"v_add_u32 v{vS1a}, v{vS1a}, v{vT+1}")
    a(f"s_lshl_b32 s{sT2}, s{sT2}, 3")
    a(f"s_cmp_eq_u32 s{sW}, 7"); a(f"s_cselect_b32 s{sT2}, 0x40000000, s{sT2}")
    a(f"v_add_u32 v{vS1b}, s{sT2}, v{vS1a}")
    a(f"v_lshlrev_b32 v{vT+2}, 1, v{vXr0}")
    a(f"v_lshlrev_b32 v{vT+3}, 4, v{vL}"); a(f"v_lshlrev_b32 v{vT+4}, 2, v{vL}")
    a(f"s_mul_i32 s{sT0}, s{sP}, 196608"); a(f"s_mul_i32 s{sT1}, s{sW}, 24576"); a(f"s_add_u32 s{sT0}, s{sT0}, s{sT1}")
    a(f"v_mul_u32_u24 v{vKoff}, 384, v{vSlot}")
    a(f"v_lshl_add_u32 v{vT+1}, v{vCh}, 4, s{sT0}")
    a(f"v_add_u32 v{vKoff}, v{vKoff}, v{vT+1}")
    for i in range(3): a(f"s_mov_b32 s{sOff[i]}, {6144*(i+1)}")
    a(f"s_mov_b32 s{sSpin}, {spin}")
    a("s_waitcnt lgkmcnt(0)")
    fstamp(0)
    a(f"s_mov_b32 s{dX}, s{pX}"); a(f"s_mov_b32 s{dX+1}, s{pX+1}")
    a(f"s_cmp_lt_u32 s{sC}, 16"); a(f"s_cselect_b64 {sr(dS1,2)}, {sr(pW1,2)}, {sr(pW3,2)}")
    a(f"s_cmp_lt_u32 s{sW}, 5"); a(f"s_cselect_b64 {sr(dS1,2)}, {sr(pWQ,2)}, {sr(dS1,2)}")
    a(f"buffer_load_dwordx4 {vr(vXa,4)}, v{vT+3}, {sr(dX,4)}, 0 offen", "xa")
    a(f"buffer_load_dword v{vXb}, v{vT+4}, {sr(dX,4)}, 0 offen offset:1024", "xb")
    a(f"buffer_load_ushort v{vXr0}, v{vT+2}, {sr(dX,4)}, 0 offen", "xr0")
    a(f"buffer_load_ushort v{vXr1}, v{vT+2}, {sr(dX,4)}, 0 offen offset:16", "xr1")
    a(f"s_mov_b64 {sr(dK,2)}, {sr(pK,2)}"); a(f"s_mov_b64 {sr(dV,2)}, {sr(pV,2)}")

    def kv_load(t, i):
        g, j = divmod(i, 3)
        so = "0" if g < 2 else f"s{sOff[(g>>1)-1]}"
        r = vKV + 4*i
        a(f"buffer_load_dwordx4 {vr(r,4)}, v{vKoff}, {sr(dK if t == 'K' else dV,4)}, {so} offen offset:{3072*(g&1)+128*j} {ld}", f"{t}{i}")
    def s1_load(i):
        g, j = divmod(i, 3)
        a(f"buffer_load_dwordx4 {vr(vW+4*i,4)}, v{vS1a if g == 0 else vS1b}, {sr(dS1,4)}, 0 offen offset:{128*j} {ld}", f"S{i}")
    def w_load(i):
        r, pc = divmod(i, 2)
        a(f"global_load_dwordx4 {vr(vW+4*i,4)}, {vr(vWa,2)}, off offset:{1280*r+128*pc} {ld}", f"W{i}")
    for i in range(6): s1_load(i)
    stream = [("K", i) for i in range(24)] + [("V", i) for i in range(24)]
    pos = [0]
    def issue(n=1, withW=False):
        for _ in range(n):
            p = pos[0]
            if p < 48: kv_load(*stream[p])
            elif withW and p < 56: w_load(p - 48)
            pos[0] += 1
    a(f"s_load_dword s{sE}, {sr(pWS,2)}, {WS_E}")
    a(f"s_lshl_b32 s{sT0}, s2, 3"); a(f"s_min_u32 s{sT0}, s{sT0}, 1272")
    a(f"s_load_dwordx2 {sr(sXo,2)}, {sr(pX,2)}, s{sT0}")
    a(f"s_mov_b64 {sr(dWS,2)}, {sr(pWS,2)}"); a(f"s_mov_b64 {sr(dOUT,2)}, {sr(pOUT,2)}")
    stamp()
    a(f"v_and_b32 v{vT}, 1, v{vL}"); a(f"v_lshlrev_b32 v{vT}, 4, v{vT}")
    a(f"v_mov_b32 v{vT+1}, 0xffff"); a(f"v_lshlrev_b32 v{vT}, v{vT}, v{vT+1}")
    a(f"v_lshrrev_b32 v{vT+1}, 1, v{vCh}")
    for k in range(4):
        a(f"v_cmp_eq_u32 vcc, {k}, v{vT+1}"); a(f"v_cndmask_b32 v{vM+k}, 0, v{vT}, vcc")
    a(f"s_mov_b32 s{sVal}, 0x00ff00ff"); a(f"s_mov_b32 s{sVal+1}, 0xff00ff00")
    for k in range(4): a(f"s_mov_b32 s{sSel[k]}, {0x07060500 + k:#x}")
    a.c("LDS reduce addresses")
    a(f"v_lshrrev_b32 v{vT}, 5, v{vL}"); a(f"v_mul_u32_u24 v{vT}, 768, v{vT}")
    a(f"v_bfe_u32 v{vT+1}, v{vL}, 4, 1"); a(f"v_lshl_add_u32 v{vT+1}, v{vCh}, 1, v{vT+1}")
    a(f"v_lshl_add_u32 v{vT}, v{vT+1}, 4, v{vT}")
    a(f"s_mul_i32 s{sT0}, s{sW}, {RED_STRIDE}")
    a(f"v_add_u32 v{vRedW}, s{sT0}, v{vT}")
    a(f"v_min_u32 v{vT+2}, 5, v{vSlot}")
    a(f"s_mul_i32 s{sT0}, s{sW}, 96")
    a(f"v_mul_u32_u24 v{vT}, {RED_STRIDE}, v{vCh}")
    a(f"v_lshl_add_u32 v{vT+1}, v{vT+2}, 4, s{sT0}")
    a(f"v_add_u32 v{vRedR}, v{vT}, v{vT+1}")
    a.c("publish offset (P*8+w)*128 + gamma*16; gather offset (h*8+p)*1024 + gamma*16")
    a(f"s_lshl_b32 s{sT0}, s{sP}, 3"); a(f"s_add_u32 s{sT0}, s{sT0}, s{sW}"); a(f"s_lshl_b32 s{sT0}, s{sT0}, 7")
    a(f"v_lshl_add_u32 v{vPub}, v{vT+2}, 4, s{sT0}")
    a(f"s_lshl_b32 s{sT0}, s{sH}, 13")
    a(f"v_lshl_add_u32 v{vT}, v{vCh}, 10, s{sT0}")
    a(f"v_lshl_add_u32 v{vGa}, v{vT+2}, 4, v{vT}")
    a.c("stage-3 weight addresses")
    a(f"s_mul_i32 s{sT0}, s{sP}, {24*1280}"); a(f"s_lshl_b32 s{sT1}, s{sW}, 8"); a(f"s_add_u32 s{sT0}, s{sT0}, s{sT1}")
    a(f"s_add_u32 s{pWO}, s{pWO}, s{sT0}"); a(f"s_addc_u32 s{pWO+1}, s{pWO+1}, 0")
    a(f"s_mul_i32 s{sT0}, s{sG}, 24"); a(f"s_add_u32 s{sT0}, s{sT0}, s{sC}"); a(f"s_mul_i32 s{sT0}, s{sT0}, {8*1280}")
    a(f"s_add_u32 s{sT0}, s{sT0}, s{sT1}")
    a(f"s_add_u32 s{pW2}, s{pW2}, s{sT0}"); a(f"s_addc_u32 s{pW2+1}, s{pW2+1}, 0")
    a(f"s_cmp_lt_u32 s{sC}, 24"); a(f"s_cselect_b64 {sr(pW2,2)}, {sr(pW2,2)}, {sr(pWO,2)}")
    a(f"v_cmp_gt_u32 vcc, 6, v{vSlot}")
    a(f"v_mov_b32 v{vT}, s{pW2}"); a(f"v_mov_b32 v{vT+1}, s{pW2+1}")
    a(f"v_mov_b32 v{vT+2}, s{pWO}"); a(f"v_mov_b32 v{vT+3}, s{pWO+1}")
    a(f"v_cndmask_b32 v{vWa}, v{vT}, v{vT+2}, vcc"); a(f"v_cndmask_b32 v{vWa+1}, v{vT+1}, v{vT+3}, vcc")
    a(f"v_subrev_u32 v{vT}, 6, v{vSlot}"); a(f"v_cndmask_b32 v{vT}, v{vT}, v{vSlot}, vcc")
    a(f"v_mul_u32_u24 v{vT}, {4*1280}, v{vT}"); a(f"v_lshl_add_u32 v{vT}, v{vCh}, 4, v{vT}")
    a(f"v_add_co_u32 v{vWa}, vcc, v{vWa}, v{vT}"); a(f"v_addc_co_u32 v{vWa+1}, vcc, 0, v{vWa+1}, vcc")
    if prefetch:
        a.c("pull this kernel's code into the L2 (each workgroup a slice)")
        a(f"s_getpc_b64 {sr(sTm,2)}")
        a(f"s_lshl_b32 s{sT0}, s{sC}, 3"); a(f"s_add_u32 s{sT0}, s{sT0}, s{sW}"); a(f"s_and_b32 s{sT0}, s{sT0}, 127")
        a(f"s_lshl_b32 s{sT0}, s{sT0}, 6")
        a(f"s_load_dword s{sT1}, {sr(sTm,2)}, s{sT0}")
    issue(D0 if D0 is not None else max(D - 2, 1))
    a.wait_vm("xb")
    fstamp(1)
    xs = [vQ + i for i in range(10)]
    for i in range(5):
        src = vXa + i if i < 4 else vXb
        a(f"v_lshlrev_b32 v{xs[2*i]}, 16, v{src}"); a(f"v_and_b32 v{xs[2*i+1]}, 0xffff0000, v{src}")
    a(f"v_add_f32 v{vT}, v{xs[0]}, v{xs[1]}"); a(f"v_add_f32 v{vT+1}, v{xs[2]}, v{xs[3]}")
    for i in range(4, 10): a(f"v_add_f32 v{vT+(i&1)}, v{vT+(i&1)}, v{xs[i]}")
    a(f"v_add_f32 v{vT}, v{vT}, v{vT+1}")
    red8("v_add_f32", [vT]); red_hi("v_add_f32", [vT])
    a(f"v_readlane_b32 s{sT0}, v{vT}, 63")
    a(f"v_mov_b32 v{vT+2}, {f2u(1/640.):#x}")
    a(f"v_mul_f32 v{vT+3}, s{sT0}, v{vT+2}")
    for i in range(10): a(f"v_sub_f32 v{xs[i]}, v{xs[i]}, v{vT+3}")
    a(f"v_mul_f32 v{vT}, v{xs[0]}, v{xs[0]}"); a(f"v_mul_f32 v{vT+1}, v{xs[1]}, v{xs[1]}")
    for i in range(2, 10): a(f"v_fmac_f32 v{vT+(i&1)}, v{xs[i]}, v{xs[i]}")
    a(f"v_add_f32 v{vT}, v{vT}, v{vT+1}")
    red8("v_add_f32", [vT]); red_hi("v_add_f32", [vT])
    a(f"v_readlane_b32 s{sT0}, v{vT}, 63")
    a(f"v_mul_f32 v{vT+2}, s{sT0}, v{vT+2}")
    rne(vT+2, vT+2); rne(vT+3, vT+3)
    a(f"v_add_f32 v{vT+2}, {f2u(1e-5):#x}, v{vT+2}"); rne(vT+2, vT+2)
    a(f"v_sqrt_f32 v{vT+2}, v{vT+2}"); rne(vT+2, vT+2)
    a(f"v_rcp_f32 v{vT+4}, v{vT+2}")
    a.wait_vm("xr1")
    for x in (vXr0, vXr1):
        a(f"v_lshlrev_b32 v{x}, 16, v{x}"); a(f"v_sub_f32 v{x}, v{x}, v{vT+3}"); rne(x, x)
        a(f"v_mul_f32 v{vT}, v{x}, v{vT+4}"); a(f"v_fma_f32 v{vT+1}, -v{vT}, v{vT+2}, v{x}")
        a(f"v_fma_f32 v{vT}, v{vT+1}, v{vT+4}, v{vT}")
        a(f"v_cvt_pk_bf16_f32 v{x}, v{vT}, v{vT}")
    buildA(vA, vXr0); buildA(vA2, vXr1)
    a("s_waitcnt lgkmcnt(0)")
    a(f"s_add_u32 s{sE}, s{sE}, 0x01010101")
    a(f"v_mov_b32 v{vTag}, s{sE}")
    for k in range(4): a(f"s_bfe_u32 s{sTag[k]}, s{sE}, {(8 << 16) | (8*k):#x}")
    fstamp(2)
    for i in range(6):
        g, j = divmod(i, 3)
        a.wait_vm(f"S{i}")
        if i >= 4 and pos[0] < D: issue(1)
        a(f"v_mfma_f32_16x16x32_bf16 {vr(vD+4*j,4)}, {vr(vA if g == 0 else vA2,4)}, {vr(vW+4*i,4)}, {'0' if g == 0 else vr(vD+4*j,4)}")
    while pos[0] < D: issue(1)
    fstamp(3)
    def red_write():
        a(f"s_mov_b64 exec, {sr(sVal,2)}")
        for j in range(3): a(f"ds_write_b128 v{vRedW}, {vr(vD+4*j,4)} offset:{LDS_RED+256*j}")
        a("s_mov_b64 exec, -1")
        a("s_waitcnt lgkmcnt(0)"); a("s_barrier")
    def red_read():
        a(f"ds_read_b128 {vr(vG,4)}, v{vRedR} offset:{LDS_RED}")
        a(f"ds_read_b128 {vr(vG2,4)}, v{vRedR} offset:{LDS_RED+768}")
        a("s_waitcnt lgkmcnt(0)")
        for k in range(4): a(f"v_add_f32 v{vG+k}, v{vG+k}, v{vG2+k}")
    red_write(); red_read()
    a(f"v_cmp_gt_u32 vcc, 5, v{vCh}")
    for k in range(4): a(f"v_cndmask_b32 v{vG2+k}, v{vG+k}, 0, vcc" if False else f"v_cndmask_b32_e64 v{vG2+k}, v{vG+k}, 0, vcc")
    for k in range(4): a(f"v_cndmask_b32 v{vG+k}, 0, v{vG+k}, vcc")
    red8("v_add_f32", [vG+k for k in range(4)] + [vG2+k for k in range(4)])
    a(f"v_cmp_eq_u32 vcc, 0, v{vCh}")
    a(f"v_mov_b32 v{vT}, {WS_FP}"); a(f"v_mov_b32 v{vT+1}, {WS_QP}")
    for k in range(4): a(f"v_cndmask_b32 v{vG+k}, v{vG2+k}, v{vG+k}, vcc")
    a(f"v_cndmask_b32 v{vT}, v{vT}, v{vT+1}, vcc"); a(f"v_add_u32 v{vT}, v{vT}, v{vPub}")
    tag4(vG2, vG)
    a(f"s_mov_b32 exec_lo, 0x03030303"); a(f"s_mov_b32 exec_hi, 0x00000303")
    a(f"buffer_store_dwordx4 {vr(vG2,4)}, v{vT}, {sr(dWS,4)}, 0 offen {st}", "pubq")
    a("s_mov_b64 exec, -1")
    stamp()
    arr = [0]
    def step(withW=False):
        t, i = stream[arr[0]]; a.wait_vm(f"{t}{i}"); arr[0] += 1; issue(1, withW)
    while pos[0] < qpos: step()
    a(f"s_lshl_b32 s{sT0}, s{sW}, 7"); a(f"s_add_u32 s{sT0}, s{sT0}, {WS_QP}")
    qload = f"buffer_load_dwordx4 {vr(vG,4)}, v{vGa}, {sr(dWS,4)}, s{sT0} offen {pl}"
    a(qload, "gq")
    a.c("wave 7 also gathers the FFN partials")
    lf = a.newlabel("noffn")
    a(f"s_min_u32 s{sT1}, s{sC}, 23"); a(f"s_mul_i32 s{sT2}, s{sT1}, 43"); a(f"s_lshr_b32 s{sT2}, s{sT2}, 7")
    a(f"s_mul_i32 s{sT3}, s{sT2}, 3"); a(f"s_sub_u32 s{sT1}, s{sT1}, s{sT3}")
    a(f"s_lshl_b32 s{sT2}, s{sT2}, 7"); a(f"s_lshl_b32 s{sT1}, s{sT1}, 5"); a(f"s_add_u32 s{sT1}, s{sT1}, s{sT2}")
    a(f"s_lshl_b32 s{sT2}, s{sG}, 15"); a(f"s_add_u32 s{sT1}, s{sT1}, s{sT2}"); a(f"s_add_u32 s{sT1}, s{sT1}, {WS_FP}")
    a(f"v_and_b32 v{vGb}, 31, v{vL}"); a(f"v_lshlrev_b32 v{vGb}, 10, v{vGb}")
    a(f"v_lshrrev_b32 v{vT+1}, 5, v{vL}"); a(f"v_lshl_add_u32 v{vGb}, v{vT+1}, 4, v{vGb}")
    fload = f"buffer_load_dwordx4 {vr(vG2,4)}, v{vGb}, {sr(dWS,4)}, s{sT1} offen {pl}"
    a(f"s_cmp_lg_u32 s{sW}, 7"); a(f"s_cbranch_scc1 {lf}")
    a.cond = True; a(fload, "gf"); a.cond = False
    a.label(lf)
    while arr[0] < qpos: step()
    a.wait_vm("gq")
    poll_check([(vG, qload)])
    red8("v_add_f32", [vG+k for k in range(4)])
    a(f"v_cvt_pk_bf16_f32 v{vG}, v{vG}, v{vG+1}"); a(f"v_cvt_pk_bf16_f32 v{vG+1}, v{vG+2}, v{vG+3}")
    a(f"v_min_u32 v{vT+2}, 5, v{vSlot}"); a(f"s_mul_i32 s{sT0}, s{sW}, 48")
    a(f"v_lshl_add_u32 v{vT+2}, v{vT+2}, 3, s{sT0}")
    a(f"ds_write_b64 v{vT+2}, {vr(vG,2)} offset:{LDS_Q}")
    lf = a.newlabel("noffn")
    a(f"s_cmp_lg_u32 s{sW}, 7"); a(f"s_cbranch_scc1 {lf}")
    a.cond = True
    a.wait_vm("gf")
    poll_check([(vG2, fload)])
    g4 = [vG2+k for k in range(4)]
    red8("v_add_f32", g4)
    for r in g4: a(f"v_add_f32_dpp v{r}, v{r}, v{r} row_mirror {DP}")
    for r in g4: rne(r, r)
    for k in range(4): a(f"v_mul_f32 v{vT+k}, {f2u(-1.4426950408889634):#x}, v{vG2+k}")
    for k in range(4): a(f"v_exp_f32 v{vT+k}, v{vT+k}")
    for k in range(4): a(f"v_add_f32 v{vT+k}, 1.0, v{vT+k}")
    for k in range(4): a(f"v_rcp_f32 v{vT+k}, v{vT+k}")
    for k in range(4): a(f"v_mul_f32 v{vT+k}, v{vT+k}, v{vG2+k}")
    for k in range(4): rne(vT+k, vT+k)
    for k in range(4): a(f"v_mov_b32_dpp v{vT+k}, v{vT+k} row_bcast:15 row_mask:0xa bank_mask:0xf")
    for k in range(4): a(f"v_mul_f32 v{vT+k}, v{vT+k}, v{vG2+k}")
    a(f"s_cmp_lt_u32 s{sC}, 24"); a(f"s_cselect_b32 s{sT0}, -1, 0")
    for k in range(4): a(f"v_and_b32 v{vT+k}, s{sT0}, v{vT+k}")
    a(f"v_lshrrev_b32 v{vT+4}, 5, v{vL}"); a(f"v_lshlrev_b32 v{vT+4}, 4, v{vT+4}")
    a(f"s_mov_b32 exec_lo, 0xffff0000"); a(f"s_mov_b32 exec_hi, 0xffff0000")
    a(f"ds_write_b128 v{vT+4}, {vr(vT,4)} offset:{LDS_H}")
    a("s_mov_b64 exec, -1")
    a.cond = False
    a.label(lf)
    a("s_waitcnt lgkmcnt(0)"); a("s_barrier")
    a(f"v_lshlrev_b32 v{vT}, 4, v{vCh}")
    for j in range(3): a(f"ds_read_b128 {vr(vQ+4*j,4)}, v{vT} offset:{LDS_Q+128*j}")
    a(f"v_and_b32 v{vT+1}, 1, v{vSlot}"); a(f"v_lshlrev_b32 v{vT+1}, 4, v{vT+1}")
    a(f"ds_read_b128 {vr(vXa,4)}, v{vT+1} offset:{LDS_H}")
    a("s_waitcnt lgkmcnt(0)")
    stamp()
    for g in range(8):
        while arr[0] < 3*g + 3: step()
        b = vKV + 12*g
        a(f"v_dot2_f32_bf16 v{vSc+g}, v{b}, v{vQ}, 0")
        a(f"v_dot2_f32_bf16 v{vT}, v{b+1}, v{vQ+1}, 0")
        for i in range(2, 12):
            d = vSc+g if i % 2 == 0 else vT
            a(f"v_dot2_f32_bf16 v{d}, v{b+i}, v{vQ+i}, v{d}")
        a(f"v_add_f32 v{vSc+g}, v{vSc+g}, v{vT}")
        assert pos[0] - 24 <= 3*g + 3 or True
    sc = [vSc+g for g in range(8)]
    red8("v_add_f32", sc)
    for r in sc: a(f"v_cvt_pk_bf16_f32 v{r}, v{r}, v{r}")
    for r in sc: a(f"v_and_b32 v{r}, 0xffff0000, v{r}")
    for r in sc: a(f"v_mul_f32 v{r}, {f2u(192 ** -0.5):#x}, v{r}")
    for r in sc: a(f"v_cvt_pk_bf16_f32 v{r}, v{r}, v{r}")
    for r in sc: a(f"v_and_b32 v{r}, 0xffff0000, v{r}")
    a(f"v_max3_f32 v{vG}, v{sc[0]}, v{sc[1]}, v{sc[2]}"); a(f"v_max3_f32 v{vG+1}, v{sc[3]}, v{sc[4]}, v{sc[5]}")
    a(f"v_max3_f32 v{vG}, v{vG}, v{sc[6]}, v{sc[7]}"); a(f"v_max_f32 v{vG}, v{vG}, v{vG+1}")
    red_hi("v_max_f32", [vG])
    a(f"v_readlane_b32 s{sT0}, v{vG}, 63")
    L2E = f"{f2u(1.4426950408889634):#x}"
    for k in range(8): a(f"v_subrev_f32 v{vT+k}, s{sT0}, v{sc[k]}")
    for k in range(8): a(f"v_mul_f32 v{vT+k}, {L2E}, v{vT+k}")
    for k in range(8): a(f"v_exp_f32 v{vT+k}, v{vT+k}")
    for k in range(4): a(f"v_add_f32 v{vT+k}, v{vT+k}, v{vT+4+k}")
    a(f"v_add_f32 v{vT}, v{vT}, v{vT+1}"); a(f"v_add_f32 v{vT+2}, v{vT+2}, v{vT+3}"); a(f"v_add_f32 v{vG+1}, v{vT}, v{vT+2}")
    red_hi("v_add_f32", [vG+1])
    a(f"v_mov_b32 v{vG+2}, 0"); a(f"v_mov_b32 v{vG+3}, 0")
    tag4(vG2, vG)
    a(f"s_lshl_b32 s{sT0}, s{sP}, 3"); a(f"s_add_u32 s{sT0}, s{sT0}, s{sW}"); a(f"s_lshl_b32 s{sT0}, s{sT0}, 4")
    a(f"s_add_u32 s{sT0}, s{sT0}, {WS_ML}"); a(f"v_mov_b32 v{vT}, s{sT0}")
    a(f"s_mov_b32 exec_lo, 0"); a(f"s_mov_b32 exec_hi, 0x80000000")
    a(f"buffer_store_dwordx4 {vr(vG2,4)}, v{vT}, {sr(dWS,4)}, 0 offen {st}", "pubml")
    a("s_mov_b64 exec, -1")
    stamp()
    while pos[0] < 24 + mlpos: step()
    a(f"s_lshl_b32 s{sT0}, s{sH}, 10"); a(f"s_add_u32 s{sT0}, s{sT0}, {WS_ML}")
    a(f"v_lshlrev_b32 v{vGb}, 4, v{vL}")
    mload = f"buffer_load_dwordx4 {vr(vG,4)}, v{vGb}, {sr(dWS,4)}, s{sT0} offen {pl}"
    a(mload, "gm")
    assert 24 + mlpos + D <= 48
    while arr[0] < 24 + mlpos: step()
    a.wait_vm("gm")
    poll_check([(vG, mload)])
    a(f"v_mov_b32 v{vT}, v{vG}")
    red8("v_max_f32", [vT]); red_hi("v_max_f32", [vT])
    a(f"v_readlane_b32 s{sT0}, v{vT}, 63")
    a(f"v_subrev_f32 v{vT}, s{sT0}, v{vG}"); a(f"v_mul_f32 v{vT}, {L2E}, v{vT}"); a(f"v_exp_f32 v{vT}, v{vT}")
    a(f"v_mul_f32 v{vT}, v{vT}, v{vG+1}")
    red8("v_add_f32", [vT]); red_hi("v_add_f32", [vT])
    a(f"v_rcp_f32 v{vT}, v{vT}")
    for r in sc: a(f"v_subrev_f32 v{r}, s{sT0}, v{r}")
    a(f"v_readlane_b32 s{sT1}, v{vT}, 63")
    for r in sc: a(f"v_mul_f32 v{r}, {L2E}, v{r}")
    for r in sc: a(f"v_exp_f32 v{r}, v{r}")
    for r in sc: a(f"v_mul_f32 v{r}, s{sT1}, v{r}")
    for r in sc: a(f"v_cvt_pk_bf16_f32 v{r}, v{r}, v{r}")
    stamp()
    a(f"s_cmp_ge_u32 s{sW}, 5"); a("s_cbranch_scc1 L_pathB")
    snap = a.snapshot(); p0, a0, n0 = pos[0], arr[0], nst[0]
    def pv_and_publish(withW):
        for g in range(8):
            A_ = vA if g % 2 == 0 else vA2
            buildA(A_, sc[g])
            for j in range(3):
                while arr[0] < 24 + 3*g + j + 1: step(withW)
                a(f"v_mfma_f32_16x16x32_bf16 {vr(vD+4*j,4)}, {vr(A_,4)}, {vr(vKV+12*g+4*j,4)}, {'0' if g == 0 else vr(vD+4*j,4)}")
        if withW:
            while pos[0] < 56: issue(1, True)
        stamp()
        red_write(); red_read()
        red8("v_add_f32", [vG+k for k in range(4)])
        tag4(vG2, vG)
        a(f"s_mov_b32 s{sT0}, {WS_OP}")
        a(f"s_mov_b32 exec_lo, 0x01010101"); a(f"s_mov_b32 exec_hi, 0x00000101")
        a(f"buffer_store_dwordx4 {vr(vG2,4)}, v{vPub}, {sr(dWS,4)}, s{sT0} offen {st}", "pubo")
        a("s_mov_b64 exec, -1")
        stamp()
    def write_stamps():
        if diag is not None:
            if nst[0] <= diag or diag < 0: a(f"s_mov_b32 s{sSt}, s{sStart}")
            lp = a.newlabel("pad")
            a.label(lp)
            a(f"s_memrealtime {sr(sTm,2)}"); a("s_waitcnt lgkmcnt(0)")
            a(f"s_sub_u32 s{sTm}, s{sTm}, s{sSt}"); a(f"s_cmp_lt_u32 s{sTm}, 5000"); a(f"s_cbranch_scc1 {lp}")
            return
        if not stamps: return
        a(f"s_mov_b32 s{sSt+14}, s{sStart}")
        a(f"s_lshl_b32 s{sT0}, s{sP}, 3"); a(f"s_add_u32 s{sT0}, s{sT0}, s{sW}"); a(f"s_lshl_b32 s{sT0}, s{sT0}, 6")
        a("s_mov_b64 exec, 1")
        a(f"s_add_u32 s{sT0}, s{sT0}, {WS_ST}"); a(f"v_mov_b32 v{vT}, s{sT0}")
        a(f"s_mov_b32 s{sSt+15}, s{sSpin}")
        for q in range(4):
            for k in range(4): a(f"v_mov_b32 v{vKV+4*q+k}, s{sSt+4*q+k}")
            a(f"buffer_store_dwordx4 {vr(vKV+4*q,4)}, v{vT}, {sr(dWS,4)}, 0 offen offset:{16*q}")
    pv_and_publish(True)
    a(f"s_lshl_b32 s{sT0}, s{sS}, 7"); a(f"s_add_u32 s{sT0}, s{sT0}, {WS_OP}")
    oload = f"buffer_load_dwordx4 {vr(vG,4)}, v{vGa}, {sr(dWS,4)}, s{sT0} offen {pl}"
    a(oload, "go")
    a.c("y publish offset")
    a(f"v_bfe_u32 v{vT+1}, v{vL}, 4, 1"); a(f"v_lshl_add_u32 v{vT+1}, v{vCh}, 1, v{vT+1}")
    a(f"v_lshrrev_b32 v{vT+2}, 5, v{vL}"); a(f"v_lshl_add_u32 v{vT+1}, v{vT+2}, 4, v{vT+1}")
    a(f"s_lshl_b32 s{sT1}, s{sW}, 5"); a(f"v_add_u32 v{vT+1}, s{sT1}, v{vT+1}")
    a(f"v_mul_u32_u24 v{vGb}, {ysr}, v{vT+1}")
    a(f"s_mul_i32 s{sT1}, s{sP}, {ysp}"); a(f"s_add_u32 s{sT1}, s{sT1}, {WS_YP}")
    a(f"v_mul_u32_u24 v{vPub}, {ysp}, v{vL}")
    a(f"s_mul_i32 s{sT2}, s2, {ysr}"); a(f"s_add_u32 s{sT2}, s{sT2}, {WS_YP}")
    a(f"v_add_u32 v{vPub}, s{sT2}, v{vPub}")
    for i in range(3): a(f"s_mov_b32 s{sOff[i]}, {64*ysp*(i+1)}")
    a.wait_vm("go")
    poll_check([(vG, oload)])
    stamp()
    red8("v_add_f32", [vG+k for k in range(4)])
    a(f"v_cmp_gt_u32 vcc, 6, v{vSlot}")
    for k in range(4): a(f"v_cndmask_b32 v{vG+k}, v{vXa+k}, v{vG+k}, vcc")
    for k in range(4): a(f"v_cvt_pk_bf16_f32 v{vG+k}, v{vG+k}, v{vG+k}")
    for r in range(4):
        A_ = vA if r % 2 == 0 else vA2
        buildA(A_, vG+r)
        for pc in range(2):
            a(f"v_mfma_f32_16x16x32_bf16 {vr(vD+4*pc,4)}, {vr(A_,4)}, {vr(vW+4*(2*r+pc),4)}, {'0' if r == 0 else vr(vD+4*pc,4)}")
    for k in range(4): a(f"v_permlane32_swap_b32 v{vD+k}, v{vD+4+k}")
    for k in range(4): a(f"v_add_f32_dpp v{vD+k}, v{vD+4+k}, v{vD+k} row_ror:8 {DP}")
    tag4(vG2, vD)
    a(f"s_mov_b32 exec_lo, 0x00ff00ff"); a(f"s_mov_b32 exec_hi, 0x00ff00ff")
    a(f"buffer_store_dwordx4 {vr(vG2,4)}, v{vGb}, {sr(dWS,4)}, s{sT1} offen {st}", "puby")
    a("s_mov_b64 exec, -1")
    stamp()
    lx = a.newlabel("exitA")
    a(f"s_cmp_lg_u32 s{sW}, 0"); a(f"s_cbranch_scc1 {lx}")
    a(f"s_cmp_ge_u32 s2, 160"); a(f"s_cbranch_scc1 {lx}")
    yl = [(vKV+16+4*i, f"buffer_load_dwordx4 {vr(vKV+16+4*i,4)}, v{vPub}, {sr(dWS,4)}, {'0' if i == 0 else 's%d' % sOff[i-1]} offen {pl}") for i in range(4)]
    for _, t in yl: a(t)
    a("s_waitcnt vmcnt(0)")
    poll_check(yl)
    y = vKV + 16
    for k in range(4): a(f"v_add_f32 v{y+k}, v{y+k}, v{y+4+k}")
    for k in range(4): a(f"v_add_f32 v{y+8+k}, v{y+8+k}, v{y+12+k}")
    for k in range(4): a(f"v_add_f32 v{y+k}, v{y+k}, v{y+8+k}")
    red8("v_add_f32", [y+k for k in range(4)]); red_hi("v_add_f32", [y+k for k in range(4)])
    a(f"s_lshl_b32 s{sT0}, s{sXo}, 16"); a(f"s_and_b32 s{sT1}, s{sXo}, 0xffff0000")
    a(f"s_lshl_b32 s{sT2}, s{sXo+1}, 16"); a(f"s_and_b32 s{sT3}, s{sXo+1}, 0xffff0000")
    for k, s_ in enumerate((sT0, sT1, sT2, sT3)): a(f"v_add_f32 v{y+k}, s{s_}, v{y+k}")
    a(f"v_cvt_pk_bf16_f32 v{y}, v{y}, v{y+1}"); a(f"v_cvt_pk_bf16_f32 v{y+1}, v{y+2}, v{y+3}")
    a(f"s_lshl_b32 s{sT0}, s2, 3"); a(f"v_mov_b32 v{vT}, s{sT0}")
    a(f"s_mov_b32 exec_lo, 0"); a(f"s_mov_b32 exec_hi, 0x80000000")
    a(f"buffer_store_dwordx2 {vr(y,2)}, v{vT}, {sr(dOUT,4)}, 0 offen")
    a.c("workgroup 0 has now heard from every workgroup: advance the hand-off epoch")
    a(f"s_cmp_lg_u32 s2, 0"); a(f"s_cbranch_scc1 {lx}")
    a(f"buffer_store_dword v{vTag}, v{vT}, {sr(dWS,4)}, 0 offen offset:{WS_E}")
    a.label(lx)
    stamp()
    write_stamps()
    a("s_endpgm")
    a.label("L_pathB")
    a.restore(snap); pos[0], arr[0], nst[0] = p0, a0, n0
    pv_and_publish(False)
    write_stamps()
    a.label("L_end")
    a("s_endpgm")
    if prefetch: a.raw("    .fill 2048, 4, 0xbf810000")
    nv = (V.n + 7) // 8 * 8
    a.raw('.section .rodata,"a"'); a.raw(".p2align 6"); a.raw(f".amdhsa_kernel {NAME}_kernel")
    a.raw(f"  .amdhsa_next_free_vgpr {nv}"); a.raw("  .amdhsa_next_free_sgpr 102"); a.raw(f"  .amdhsa_accum_offset {nv}")
    a.raw("  .amdhsa_group_segment_fixed_size 0"); a.raw("  .amdhsa_kernarg_size 96"); a.raw("  .amdhsa_user_sgpr_count 2")
    a.raw("  .amdhsa_user_sgpr_kernarg_segment_ptr 1"); a.raw("  .amdhsa_system_sgpr_workgroup_id_x 1")
    a.raw(".end_amdhsa_kernel")
    return a.text()

if __name__ == "__main__":
    kw = {}
    out = sys.argv[1]
    for x in sys.argv[2:]:
        k, v = x.split("=")
        try: v = eval(v)
        except Exception: pass
        kw[k] = v
    open(out, "w").write(gen(**kw))
```

```python
import sys, struct
sys.path.insert(0, "dev")
from asmlib import *

NAME = "parallel_sum__gqa_block_cached__glu_gated_swiglu__decode"
def f2u(x): return struct.unpack("<I", struct.pack("<f", x))[0]

WS_E  = 0
WS_QP = 0x10000
WS_FP = 0x40000
WS_ML = 0x70000
SLOW  = 0x70000
WS_YP = 0x100000
WS_ST = 0x400000
WS_SIZE = 0x800000
OOB = 0x40000000
LDS_RED = 0
LDS_RED2 = 12288
LDS_Q = 24576

def gen(D=3, qpos=17, mlpos=16, nafter=2, wpos=0, ld="nt", stamps=False, lds=90112, prefetch=True, spin=1 << 16,
        diag=None, timeout=24, forceslow=False, extra=1, ypipe=1, skel=0, ydry=False, amp=0, selx=None):
    a = Asm()
    hdr = open("cdna_kernels/" + NAME + ".s.ref").read().split("\n")
    for ln in hdr:
        if ln.startswith(";") and "@launch" not in ln and "Override launch" not in ln and "grid=ceil" not in ln: a.raw(ln)
    a.raw(f"; @launch grid=(256,1,1) block=(512,1,1) lds={lds}")
    a.raw('.amdgcn_target "amdgcn-amd-amdhsa--gfx950"')
    a.raw(".text"); a.raw(f".globl {NAME}_kernel"); a.raw(".p2align 8"); a.raw(f".type {NAME}_kernel,@function")
    a.label(f"{NAME}_kernel")
    V = Regs(1, 256, "v"); S = Regs(28, 102, "s")
    pX, pK, pV, pWQ, pWO, pBX, pW1, pW3, pW2, pOUT, pDBG, pWS = [4 + 2*i for i in range(12)]
    dK, dV, dS1, dWS, dX = [S.get(4) for _ in range(5)]
    dWO, dW2, dOUT = 12, 20, S.get(4)
    sW, sG, sC, sP, sH, sS, sE, sT0, sT1, sT2, sT3, sSpin, sReg, sPhi, sK, sCnt, sQo, sFo = [S.get() for _ in range(18)]
    sTag = [S.get() for _ in range(4)]
    sTagF = S.get()
    sOff = [S.get() for _ in range(3)]
    sVal = S.get(2); sTm = S.get(2); sStart = S.get(2)
    sSt = S.get(16) if (stamps or diag is not None) else None
    (vL, vSlot, vCh, vKoff, vS1a, vS1b, vXr0, vXr1, vRedW, vRedR, vL16, vPubA, vPubD, vTg1, vTg2, vWo, vW2o, vH, vXo, vYo) = [V.get() for _ in range(20)]
    vM = V.get(4); vA = V.get(4); vA2 = V.get(4); vG = V.get(4); vG2 = V.get(4); vT = V.get(8); vXa = V.get(4); vXb = V.get()
    vY = V.get(4); vSc = V.get(8); vQ = V.get(12); vD = V.get(12); vW = V.get(24); vKV = V.get(96)
    cold = []
    nst = [0]
    def stamp():
        if diag is not None:
            if nst[0] == diag:
                a(f"s_memrealtime {sr(sTm,2)}"); a("s_waitcnt lgkmcnt(0)"); a(f"s_mov_b32 s{sSt}, s{sTm}")
        elif stamps:
            a(f"s_memrealtime {sr(sTm,2)}"); a("s_waitcnt lgkmcnt(0)"); a(f"s_mov_b32 s{sSt+nst[0]}, s{sTm}")
        nst[0] += 1
    def finish():
        if diag is not None:
            if selx is not None:
                a(f"s_getreg_b32 s{sT0}, hwreg(HW_REG_XCC_ID, 0, 4)"); a(f"s_cmp_lg_u32 s{sT0}, {selx}"); a("s_cbranch_scc1 L_end")
            a(f"s_sub_u32 s{sSt}, s{sSt}, s{sStart}"); a(f"s_mul_i32 s{sSt}, s{sSt}, {amp or 1}"); a(f"s_add_u32 s{sSt}, s{sSt}, 5000")
            lp = a.newlabel("pad"); a.label(lp)
            a(f"s_memrealtime {sr(sTm,2)}"); a("s_waitcnt lgkmcnt(0)")
            a(f"s_sub_u32 s{sTm}, s{sTm}, s{sStart}"); a(f"s_cmp_lt_u32 s{sTm}, s{sSt}"); a(f"s_cbranch_scc1 {lp}")
        elif stamps:
            lp = a.newlabel("pad"); a.label(lp)
            a(f"s_memrealtime {sr(sTm,2)}"); a("s_waitcnt lgkmcnt(0)")
            a(f"s_sub_u32 s{sTm}, s{sTm}, s{sStart}"); a(f"s_cmp_lt_u32 s{sTm}, 3000"); a(f"s_cbranch_scc1 {lp}")
            a(f"s_mov_b32 s{sSt+13}, s{sReg}"); a(f"s_mov_b32 s{sSt+14}, s{sStart}"); a(f"s_mov_b32 s{sSt+15}, s{sSpin}")
            a(f"s_lshl_b32 s{sT0}, s{sP}, 3"); a(f"s_add_u32 s{sT0}, s{sT0}, s{sW}"); a(f"s_lshl_b32 s{sT0}, s{sT0}, 6")
            a("s_mov_b64 exec, 1")
            a(f"s_add_u32 s{sT0}, s{sT0}, {WS_ST}"); a(f"v_mov_b32 v{vT}, s{sT0}")
            for q in range(4):
                for k in range(4): a(f"v_mov_b32 v{vKV+4*q+k}, s{sSt+4*q+k}")
                a(f"buffer_store_dwordx4 {vr(vKV+4*q,4)}, v{vT}, {sr(dWS,4)}, 0 offen offset:{16*q}")
        a("s_endpgm")
    def rne(dst, src):
        a(f"v_cvt_pk_bf16_f32 v{dst}, v{src}, v{src}"); a(f"v_and_b32 v{dst}, 0xffff0000, v{dst}")
    DP = "row_mask:0xf bank_mask:0xf"
    def red8(op, regs):
        for m in ("quad_perm:[1,0,3,2]", "quad_perm:[2,3,0,1]", "row_half_mirror"):
            for r in regs: a(f"{op}_dpp v{r}, v{r}, v{r} {m} {DP}")
    def red_hi(op, regs):
        for r in regs: a(f"{op}_dpp v{r}, v{r}, v{r} row_ror:8 {DP}")
        for r in regs: a(f"{op}_dpp v{r}, v{r}, v{r} row_bcast:15 row_mask:0xa bank_mask:0xf")
        for r in regs: a(f"{op}_dpp v{r}, v{r}, v{r} row_bcast:31 row_mask:0xc bank_mask:0xf")
    def buildA(dst, dup):
        for k in range(4): a(f"v_and_b32 v{dst+k}, v{dup}, v{vM+k}")
    def untag(sets):
        for g, tg in sets:
            for k in range(4): a(f"v_xor_b32 v{g+k}, s{tg[k]}, v{g+k}")
        rs = [g+k for g, _ in sets for k in range(4)]
        a(f"v_or3_b32 v{vT}, v{rs[0]}, v{rs[1]}, v{rs[2]}"); rs = rs[3:]
        while rs:
            if len(rs) >= 2: a(f"v_or3_b32 v{vT}, v{vT}, v{rs[0]}, v{rs[1]}"); rs = rs[2:]
            else: a(f"v_or_b32 v{vT}, v{vT}, v{rs[0]}"); rs = rs[1:]
        a(f"v_and_b32 v{vT}, 0xff, v{vT}")
        a(f"v_cmp_ne_u32 vcc, 0, v{vT}")
    def poll_check(loads, tg):
        lr = a.newlabel("retry"); lo = a.newlabel("ok")
        a.label(lr)
        untag([(g, tg) for g, _ in loads])
        a(f"s_cbranch_vccz {lo}")
        a(f"s_sub_u32 s{sSpin}, s{sSpin}, 1"); a("s_cbranch_scc1 L_end")
        old = a.cond; a.cond = True
        for (_, t) in loads: a(t)
        a.cond = old
        a("s_waitcnt vmcnt(0)"); a(f"s_branch {lr}")
        a.label(lo)
    def pub(text, name):
        ls = a.newlabel("pubslow"); lb = a.newlabel("pubback")
        a(f"s_cmp_lg_u32 s{sReg}, 0"); a(f"s_cbranch_scc1 {ls}")
        a(text, name)
        a.label(lb)
        cold.append([ls + ":", "    " + text + " sc1", f"    s_branch {lb}"])

    stream = [("K", i) for i in range(3)] + [("S", i) for i in range(6)] + [("K", i) for i in range(3, 24)]
    vs = [("V", i) for i in range(24)]
    early = [("W", 4)] + [("W", i) for i in range(4 - nafter)]
    stream += vs[:wpos] + early + vs[wpos:] + [("W", i) for i in range(4 - nafter, 4)]
    idx = {f"{t}{i}": n for n, (t, i) in enumerate(stream)}
    kdone = [0]
    pos = [0]
    def load(t, i):
        if t in "KV":
            g, j = divmod(i, 3)
            if t == "V": assert g < kdone[0], "V load overwrites unconsumed K"
            so = "0" if g < 2 else f"s{sOff[(g>>1)-1]}"
            a(f"buffer_load_dwordx4 {vr(vKV+4*i,4)}, v{vKoff}, {sr(dK if t == 'K' else dV,4)}, {so} offen offset:{3072*(g&1)+128*j} {ld}", f"{t}{i}")
        elif t == "S":
            g, j = divmod(i, 3)
            a(f"buffer_load_dwordx4 {vr(vW+4*i,4)}, v{vS1a if g == 0 else vS1b}, {sr(dS1,4)}, 0 offen offset:{128*j} {ld}", f"S{i}")
        elif i < 4:
            a(f"buffer_load_dwordx4 {vr(vW+4*i,4)}, v{vWo}, {sr(dWO,4)}, 0 offen offset:{1280*i} {ld}", f"W{i}")
        else:
            a(f"buffer_load_dwordx4 {vr(vW+16,4)}, v{vW2o}, {sr(dW2,4)}, 0 offen {ld}", "W4")
    arrived = [-1]
    def wait_idx(n):
        if n > arrived[0]:
            t, i = stream[n]; a.wait_vm(f"{t}{i}"); arrived[0] = n
    def step(n=1, d=None):
        for _ in range(n):
            p = pos[0]
            if p >= len(stream): return
            if p - (d or D) >= 0: wait_idx(p - (d or D))
            load(*stream[p]); pos[0] += 1
    def need(name):
        n = idx[name]
        while arrived[0] < n and pos[0] < len(stream): step()
        wait_idx(n)
    def issue_to(name):
        while pos[0] <= idx[name]: step()

    a("s_cmp_ge_u32 s2, 256"); a("s_cbranch_scc1 L_end")
    if diag is not None or stamps: a(f"s_memrealtime {sr(sStart,2)}")
    a("s_load_dwordx16 s[4:19], s[0:1], 0")
    a("s_load_dwordx8 s[20:27], s[0:1], 64")
    a(f"v_lshrrev_b32 v{vT}, 6, v0")
    a(f"v_and_b32 v{vL}, 63, v0")
    a(f"v_readfirstlane_b32 s{sW}, v{vT}")
    a(f"s_and_b32 s{sG}, s2, 7"); a(f"s_lshr_b32 s{sC}, s2, 3")
    a(f"s_lshl_b32 s{sP}, s{sG}, 5"); a(f"s_add_u32 s{sP}, s{sP}, s{sC}")
    a(f"v_lshrrev_b32 v{vSlot}, 3, v{vL}"); a(f"v_and_b32 v{vCh}, 7, v{vL}")
    a(f"s_lshl_b32 s{sT0}, s{sP}, 3"); a(f"s_add_u32 s{sT0}, s{sT0}, s{sW}"); a(f"s_mul_i32 s{sT0}, s{sT0}, 24576")
    a(f"v_mul_u32_u24 v{vKoff}, 384, v{vSlot}")
    a(f"v_lshl_add_u32 v{vT+1}, v{vCh}, 4, s{sT0}")
    a(f"v_add_u32 v{vKoff}, v{vKoff}, v{vT+1}")
    a(f"s_mov_b32 s{dK+2}, 50331648"); a(f"s_mov_b32 s{dK+3}, 0x20000")
    a(f"s_lshr_b32 s{sH}, s{sP}, 3"); a(f"s_and_b32 s{sS}, s{sP}, 7")
    a(f"v_lshlrev_b32 v{vL16}, 4, v{vL}")
    a("s_waitcnt lgkmcnt(0)")
    a(f"s_mov_b64 {sr(dK,2)}, {sr(pK,2)}")
    step(3)
    if diag is not None: a(f"s_mov_b32 s{sSt}, s{sStart}")
    if diag == 100:
        a(f"s_memrealtime {sr(sTm,2)}"); a("s_waitcnt lgkmcnt(0)"); a(f"s_mov_b32 s{sSt}, s{sTm}")
    if diag == 101:
        a("s_waitcnt vmcnt(2)"); a(f"s_memrealtime {sr(sTm,2)}"); a("s_waitcnt lgkmcnt(0)"); a(f"s_mov_b32 s{sSt}, s{sTm}")
    if stamps:
        for i in range(13): a(f"s_mov_b32 s{sSt+i}, 0")
    a(f"s_load_dword s{sE}, {sr(pWS,2)}, {WS_E}")
    a.c("stage-1 role: waves 0-4 wq rows, waves 5-7 w1/w3 rows")
    a(f"s_mov_b64 {sr(dX,2)}, {sr(pX,2)}"); a(f"s_mov_b32 s{dX+2}, 1280"); a(f"s_mov_b32 s{dX+3}, 0x20000")
    a(f"v_lshlrev_b32 v{vT+4}, 2, v{vL}")
    a(f"buffer_load_dwordx4 {vr(vXa,4)}, v{vL16}, {sr(dX,4)}, 0 offen", "xa")
    a(f"buffer_load_dword v{vXb}, v{vT+4}, {sr(dX,4)}, 0 offen offset:1024", "xb")
    a(f"s_mul_i32 s{sT0}, s{sS}, 80")
    a(f"s_and_b32 s{sT1}, s{sC}, 15"); a(f"s_mul_i32 s{sT1}, s{sT1}, 40"); a(f"s_sub_u32 s{sT1}, s{sT1}, 80")
    a(f"s_cmp_lt_u32 s{sC}, 16"); a(f"s_cselect_b64 {sr(dS1,2)}, {sr(pW1,2)}, {sr(pW3,2)}")
    a(f"s_cmp_lt_u32 s{sW}, 5")
    a(f"s_cselect_b64 {sr(dS1,2)}, {sr(pWQ,2)}, {sr(dS1,2)}")
    a(f"s_cselect_b32 s{sT0}, s{sT0}, s{sT1}")
    a(f"s_cselect_b32 s{sT1}, s{sH}, s{sG}")
    a(f"s_cselect_b32 s{sT2}, 12, 3")
    a(f"s_lshl_b32 s{sT2}, s{sT2}, 10")
    a(f"s_mul_i32 s{dS1+2}, s{sT2}, 640"); a(f"s_mov_b32 s{dS1+3}, 0x20000")
    a(f"s_mul_i32 s{sT1}, s{sT1}, 384")
    a(f"s_lshl_b32 s{sT3}, s{sW}, 4"); a(f"s_add_u32 s{sT0}, s{sT0}, s{sT3}")
    a(f"v_add_u32 v{vXr0}, s{sT0}, v{vSlot}")
    a(f"v_mul_lo_u32 v{vS1a}, v{vXr0}, s{sT2}")
    a(f"v_lshlrev_b32 v{vT+2}, 1, v{vXr0}")
    a(f"buffer_load_ushort v{vXr0}, v{vT+2}, {sr(dX,4)}, 0 offen", "xr0")
    a(f"buffer_load_ushort v{vXr1}, v{vT+2}, {sr(dX,4)}, 0 offen offset:16", "xr1")
    a(f"v_lshl_add_u32 v{vT+1}, v{vCh}, 4, s{sT1}")
    a(f"v_add_u32 v{vS1a}, v{vS1a}, v{vT+1}")
    a(f"s_lshl_b32 s{sT2}, s{sT2}, 3")
    a(f"s_cmp_eq_u32 s{sW}, 7"); a(f"s_cselect_b32 s{sT2}, {OOB}, s{sT2}")
    a(f"v_add_u32 v{vS1b}, s{sT2}, v{vS1a}")
    step(extra, D + extra)
    if prefetch:
        a.c("pull this kernel's code into the L2 (each wave one line)")
        a(f"s_getpc_b64 {sr(sTm,2)}")
        a(f"s_lshl_b32 s{sT0}, s{sC}, 3"); a(f"s_add_u32 s{sT0}, s{sT0}, s{sW}"); a(f"s_and_b32 s{sT0}, s{sT0}, 63")
        a(f"s_lshl_b32 s{sT0}, s{sT0}, 7")
        a(f"s_load_dword s{sCnt}, {sr(sTm,2)}, s{sT0}")
    a(f"s_mov_b64 {sr(dV,2)}, {sr(pV,2)}"); a(f"s_mov_b32 s{dV+2}, 50331648"); a(f"s_mov_b32 s{dV+3}, 0x20000")
    a(f"s_mov_b64 {sr(dWS,2)}, {sr(pWS,2)}"); a(f"s_mov_b32 s{dWS+2}, {WS_SIZE}"); a(f"s_mov_b32 s{dWS+3}, 0x20000")
    a(f"s_mov_b64 {sr(dOUT,2)}, {sr(pOUT,2)}"); a(f"s_mov_b32 s{dOUT+2}, 1280"); a(f"s_mov_b32 s{dOUT+3}, 0x20000")
    a(f"s_mov_b32 s{dWO+2}, 7864320"); a(f"s_mov_b32 s{dWO+3}, 0x20000")
    a(f"s_mov_b32 s{dW2+2}, 1966080"); a(f"s_mov_b32 s{dW2+3}, 0x20000")
    for i in range(3): a(f"s_mov_b32 s{sOff[i]}, {6144*(i+1)}")
    a(f"s_mov_b32 s{sSpin}, {spin}"); a(f"s_mov_b32 s{sReg}, 0")
    a(f"s_mov_b32 s{sVal}, 0x00ff00ff"); a(f"s_mov_b32 s{sVal+1}, 0xff00ff00")
    a.c("MFMA A-operand masks")
    a(f"v_and_b32 v{vT}, 1, v{vL}"); a(f"v_lshlrev_b32 v{vT}, 4, v{vT}")
    a(f"v_mov_b32 v{vT+1}, 0xffff"); a(f"v_lshlrev_b32 v{vT}, v{vT}, v{vT+1}")
    a(f"v_lshrrev_b32 v{vT+1}, 1, v{vCh}")
    for k in range(4):
        a(f"v_cmp_eq_u32 vcc, {k}, v{vT+1}"); a(f"v_cndmask_b32 v{vM+k}, 0, v{vT}, vcc")
    a.c("LDS reduce addresses")
    a(f"v_lshrrev_b32 v{vT+2}, 5, v{vL}"); a(f"v_mul_u32_u24 v{vT}, 768, v{vT+2}")
    a(f"v_bfe_u32 v{vT+1}, v{vL}, 4, 1"); a(f"v_lshl_add_u32 v{vT+1}, v{vCh}, 1, v{vT+1}")
    a(f"v_lshl_add_u32 v{vT+1}, v{vT+1}, 4, v{vT}")
    a(f"s_mul_i32 s{sT0}, s{sW}, 1536")
    a(f"v_add_u32 v{vRedW}, s{sT0}, v{vT+1}")
    a(f"v_and_b32 v{vT+3}, 31, v{vL}")
    a(f"s_lshl_b32 s{sT0}, s{sW}, 7")
    a(f"v_lshl_add_u32 v{vT+1}, v{vT+3}, 2, s{sT0}")
    a(f"v_add_u32 v{vRedR}, v{vT}, v{vT+1}")
    step(1)
    a.c("publish offsets: lanes 0-31 q/o slot, lanes 32-63 ffn slot")
    a(f"s_mul_i32 s{sT0}, s{sH}, 6"); a(f"s_add_u32 s{sT0}, s{sT0}, s{sW}"); a(f"s_lshl_b32 s{sT0}, s{sT0}, 10")
    a(f"s_lshl_b32 s{sT1}, s{sS}, 4"); a(f"s_add_u32 s{sT0}, s{sT0}, s{sT1}"); a(f"s_add_u32 s{sT0}, s{sT0}, {WS_QP}")
    a(f"s_mul_i32 s{sT1}, s{sG}, 6"); a(f"s_add_u32 s{sT1}, s{sT1}, s{sW}"); a(f"s_lshl_b32 s{sT1}, s{sT1}, 12")
    a(f"s_lshl_b32 s{sT2}, s{sC}, 4"); a(f"s_add_u32 s{sT1}, s{sT1}, s{sT2}"); a(f"s_add_u32 s{sT1}, s{sT1}, {WS_FP}")
    a(f"s_cmp_lt_u32 s{sW}, 6"); a(f"s_cselect_b32 s{sT0}, s{sT0}, {OOB}"); a(f"s_cselect_b32 s{sT1}, s{sT1}, {OOB}")
    a(f"v_lshrrev_b32 v{vT}, 2, v{vT+3}")
    a(f"v_lshl_add_u32 v{vT+1}, v{vT}, 7, s{sT0}"); a(f"v_lshl_add_u32 v{vT+4}, v{vT}, 9, s{sT1}")
    a(f"v_cmp_gt_u32 vcc, 32, v{vL}")
    a(f"v_and_b32 v{vT+5}, 3, v{vL}")
    a(f"v_cndmask_b32 v{vT+1}, v{vT+4}, v{vT+1}, vcc")
    a(f"v_lshl_add_u32 v{vPubA}, v{vT+5}, 2, v{vT+1}")
    a.c("stage-3 task: range rho = c/10, slab k = c%10 (c >= 30: reducers, slab (c-30)*8+G)")
    a(f"s_mul_i32 s{sT0}, s{sC}, 26"); a(f"s_lshr_b32 s{sT0}, s{sT0}, 8")
    a(f"s_mul_i32 s{sT1}, s{sT0}, 10"); a(f"s_sub_u32 s{sK}, s{sC}, s{sT1}")
    a(f"s_min_u32 s{sT2}, s{sT0}, 2"); a(f"s_lshl_b32 s{sT2}, s{sT2}, 3"); a(f"s_add_u32 s{sPhi}, s{sT2}, s{sW}")
    a(f"s_mul_i32 s{sT2}, s{sG}, 24"); a(f"s_add_u32 s{sPhi}, s{sPhi}, s{sT2}")
    a(f"s_lshl_b32 s{sT2}, s{sK}, 7")
    a(f"s_cmp_lt_u32 s{sC}, 30"); a(f"s_cselect_b32 s{sT2}, s{sT2}, {OOB}")
    a(f"v_lshl_add_u32 v{vT}, v{vCh}, 4, s{sT2}")
    a(f"s_mul_i32 s{sT2}, s{sPhi}, {8*1280}")
    a(f"v_mul_u32_u24 v{vT+1}, 1280, v{vSlot}"); a(f"v_add_u32 v{vT+1}, s{sT2}, v{vT+1}")
    a(f"v_add_u32 v{vW2o}, v{vT}, v{vT+1}")
    a(f"v_lshl_add_u32 v{vWo}, v{vT+1}, 2, v{vT}")
    a.c("y publish offset ((k*2+w)*24 + 3G + rho)*128 + i*4")
    a(f"s_lshl_b32 s{sT1}, s{sK}, 1"); a(f"s_add_u32 s{sT1}, s{sT1}, s{sW}"); a(f"s_mul_i32 s{sT1}, s{sT1}, 24")
    a(f"s_mul_i32 s{sT2}, s{sG}, 3"); a(f"s_add_u32 s{sT1}, s{sT1}, s{sT2}"); a(f"s_add_u32 s{sT1}, s{sT1}, s{sT0}")
    a(f"s_lshl_b32 s{sT1}, s{sT1}, 7"); a(f"s_add_u32 s{sT1}, s{sT1}, {WS_YP}")
    a(f"v_lshl_add_u32 v{vYo}, v{vT+3}, 2, s{sT1}")
    a.c("gather offsets")
    a(f"s_min_u32 s{sT0}, s{sW}, 5"); a(f"s_mul_i32 s{sT1}, s{sH}, 6"); a(f"s_add_u32 s{sT0}, s{sT0}, s{sT1}")
    a(f"s_lshl_b32 s{sT0}, s{sT0}, 10"); a(f"s_add_u32 s{sQo}, s{sT0}, {WS_QP}")
    a(f"s_lshl_b32 s{sT0}, s{sPhi}, 10"); a(f"s_add_u32 s{sFo}, s{sT0}, {WS_FP}")
    step(1)
    if skel == 1:
        kdone[0] = 8
        a(f"buffer_store_dword v{vPubD}, v{vPubA}, {sr(dWS,4)}, 0 offen")
        while pos[0] < len(stream): step()
        a("s_waitcnt vmcnt(0)"); a("s_endpgm")
        pos[0] = 6; arrived[0] = 2; kdone[0] = 0
    a.wait_vm("xb")
    xs = [vQ + i for i in range(10)]
    for i in range(5):
        src = vXa + i if i < 4 else vXb
        a(f"v_lshlrev_b32 v{xs[2*i]}, 16, v{src}"); a(f"v_and_b32 v{xs[2*i+1]}, 0xffff0000, v{src}")
    a(f"v_add_f32 v{vT}, v{xs[0]}, v{xs[1]}"); a(f"v_add_f32 v{vT+1}, v{xs[2]}, v{xs[3]}")
    for i in range(4, 10): a(f"v_add_f32 v{vT+(i&1)}, v{vT+(i&1)}, v{xs[i]}")
    a(f"v_add_f32 v{vT}, v{vT}, v{vT+1}")
    red8("v_add_f32", [vT]); red_hi("v_add_f32", [vT])
    a(f"v_readlane_b32 s{sT0}, v{vT}, 63")
    a(f"v_mov_b32 v{vT+2}, {f2u(1/640.):#x}")
    step(1)
    a(f"v_mul_f32 v{vT+3}, s{sT0}, v{vT+2}")
    for i in range(10): a(f"v_sub_f32 v{xs[i]}, v{xs[i]}, v{vT+3}")
    a(f"v_mul_f32 v{vT}, v{xs[0]}, v{xs[0]}"); a(f"v_mul_f32 v{vT+1}, v{xs[1]}, v{xs[1]}")
    for i in range(2, 10): a(f"v_fmac_f32 v{vT+(i&1)}, v{xs[i]}, v{xs[i]}")
    a(f"v_add_f32 v{vT}, v{vT}, v{vT+1}")
    red8("v_add_f32", [vT]); red_hi("v_add_f32", [vT])
    a(f"v_readlane_b32 s{sT0}, v{vT}, 63")
    step(1)
    a(f"v_mul_f32 v{vT+2}, s{sT0}, v{vT+2}")
    rne(vT+2, vT+2); rne(vT+3, vT+3)
    a(f"v_add_f32 v{vT+2}, {f2u(1e-5):#x}, v{vT+2}"); rne(vT+2, vT+2)
    a(f"v_sqrt_f32 v{vT+2}, v{vT+2}"); rne(vT+2, vT+2)
    a(f"v_rcp_f32 v{vT+4}, v{vT+2}")
    a.wait_vm("xr1")
    for x in (vXr0, vXr1):
        a(f"v_lshlrev_b32 v{x}, 16, v{x}"); a(f"v_sub_f32 v{x}, v{x}, v{vT+3}"); rne(x, x)
        a(f"v_mul_f32 v{vT}, v{x}, v{vT+4}"); a(f"v_fma_f32 v{vT+1}, -v{vT}, v{vT+2}, v{x}")
        a(f"v_fma_f32 v{vT}, v{vT+1}, v{vT+4}, v{vT}")
        a(f"v_cvt_pk_bf16_f32 v{x}, v{vT}, v{vT}")
    step(1)
    buildA(vA, vXr0); buildA(vA2, vXr1)
    a.c("hand-off tags of this launch")
    a("s_waitcnt lgkmcnt(0)")
    a(f"s_add_u32 s{sE}, s{sE}, 0x01010101")
    for k in range(4): a(f"s_bfe_u32 s{sTag[k]}, s{sE}, {(8 << 16) | (8*k):#x}")
    a(f"s_getreg_b32 s{sT0}, hwreg(HW_REG_XCC_ID, 0, 4)")
    if forceslow: a(f"s_and_b32 s{sT0}, s{sC}, 1")
    a(f"s_lshl_b32 s{sTagF}, s{sTag[3]}, 4"); a(f"s_and_b32 s{sTagF}, s{sTagF}, 0xf0"); a(f"s_or_b32 s{sTagF}, s{sTagF}, s{sT0}")
    a(f"v_and_b32 v{vT}, 3, v{vL}"); a(f"v_lshlrev_b32 v{vT}, 3, v{vT}")
    a(f"v_bfe_u32 v{vTg1}, s{sE}, v{vT}, 8")
    a(f"s_add_u32 s{sE}, s{sE}, 0x01010101")
    a(f"v_bfe_u32 v{vTg2}, s{sE}, v{vT}, 8")
    a(f"v_mov_b32 v{vPubD}, v{vTg1}")
    a(f"s_mov_b32 exec_lo, 0"); a(f"s_mov_b32 exec_hi, 0x88888888")
    a(f"v_mov_b32 v{vPubD}, s{sTagF}")
    a("s_mov_b64 exec, -1")
    a(f"s_mov_b32 s{sCnt}, {timeout}")
    for i in range(6):
        g, j = divmod(i, 3)
        need(f"S{i}")
        a(f"v_mfma_f32_16x16x32_bf16 {vr(vD+4*j,4)}, {vr(vA if g == 0 else vA2,4)}, {vr(vW+4*i,4)}, {'0' if g == 0 else vr(vD+4*j,4)}")
    step(extra, D + extra)
    def red_write(base, regs):
        a(f"s_mov_b64 exec, {sr(sVal,2)}")
        for j, r in enumerate(regs): a(f"ds_write_b128 v{vRedW}, {vr(r,4)} offset:{base+256*j}")
        a("s_mov_b64 exec, -1")
        a("s_waitcnt lgkmcnt(0)"); a("s_barrier")
    def red_read(base):
        b = base // 256
        for q in range(4): a(f"ds_read2st64_b32 {vr(vT+2*q,2)}, v{vRedR} offset0:{b+12*q} offset1:{b+12*q+6}")
    def red_sum8(dst, tag):
        a("s_waitcnt lgkmcnt(2)")
        a(f"v_add_f32 v{vT}, v{vT}, v{vT+1}"); a(f"v_add_f32 v{vT+2}, v{vT+2}, v{vT+3}")
        a("s_waitcnt lgkmcnt(0)")
        a(f"v_add_f32 v{vT+4}, v{vT+4}, v{vT+5}"); a(f"v_add_f32 v{vT+6}, v{vT+6}, v{vT+7}")
        a(f"v_add_f32 v{vT}, v{vT}, v{vT+2}"); a(f"v_add_f32 v{vT+4}, v{vT+4}, v{vT+6}")
        a(f"v_add_f32 v{vT+1}, v{vT}, v{vT+4}"); a(f"v_add_f32 v{vT}, v{vT}, v{vT+4}")
        a(f"v_permlane32_swap_b32 v{vT}, v{vT+1}")
        a(f"v_add_f32 v{vT}, v{vT}, v{vT+1}")
        a(f"v_and_or_b32 v{dst}, v{vT}, s{sT3}, v{tag}")
    a(f"s_mov_b32 s{sT3}, 0xffffff00")
    red_write(LDS_RED, [vD, vD+4, vD+8]); red_read(LDS_RED)
    a("s_waitcnt lgkmcnt(0)")
    a(f"v_add_f32 v{vT}, v{vT}, v{vT+1}"); a(f"v_add_f32 v{vT+2}, v{vT+2}, v{vT+3}"); a(f"v_add_f32 v{vT+5}, v{vT+5}, v{vT+6}")
    a(f"v_add_f32 v{vT}, v{vT}, v{vT+4}"); a(f"v_add_f32 v{vT+5}, v{vT+5}, v{vT+7}"); a(f"v_add_f32 v{vT}, v{vT}, v{vT+2}")
    a(f"v_permlane32_swap_b32 v{vT}, v{vT+5}")
    a(f"v_add_f32 v{vT}, v{vT}, v{vT+5}")
    a(f"v_and_or_b32 v{vPubD}, v{vT}, s{sT3}, v{vPubD}")
    a(f"buffer_store_dword v{vPubD}, v{vPubA}, {sr(dWS,4)}, 0 offen", "pubq")
    stamp()
    issue_to(f"K{qpos-1}")
    qload = f"buffer_load_dwordx4 {vr(vG,4)}, v{vL16}, {sr(dWS,4)}, s{sQo} offen sc1"
    fload = f"buffer_load_dwordx4 {vr(vG2,4)}, v{vL16}, {sr(dWS,4)}, s{sFo} offen sc1"
    a(qload, "gq"); a(fload, "gf")
    need(f"K{qpos-1}")
    step(extra, D + extra)
    a.wait_vm("gf")
    tgF = sTag[:3] + [sTagF]
    lchk = a.newlabel("x1chk"); lok = a.newlabel("x1ok"); lslow = a.newlabel("x1slow")
    a.label(lchk)
    untag([(vG, sTag), (vG2, tgF)])
    a(f"s_cbranch_vccnz {lslow}")
    a.label(lok)
    c = Asm(); c.nlabel = 1000
    c.label(lslow)
    c.c("not all there yet, or a producer sits on another die")
    c(f"v_or3_b32 v{vT}, v{vG}, v{vG+1}, v{vG+2}"); c(f"v_or3_b32 v{vT}, v{vT}, v{vG+3}, v{vG2}"); c(f"v_or3_b32 v{vT}, v{vT}, v{vG2+1}, v{vG2+2}")
    c(f"v_and_b32 v{vT}, 0xff, v{vT}"); c(f"v_and_b32 v{vT+1}, 0xf0, v{vG2+3}"); c(f"v_or_b32 v{vT}, v{vT}, v{vT+1}")
    c(f"v_cmp_ne_u32 vcc, 0, v{vT}")
    c("s_cbranch_vccnz L_x1wait")
    c(f"s_mov_b32 s{sReg}, {SLOW}")
    c(f"v_and_b32 v{vG2+3}, 0xffffff00, v{vG2+3}")
    c(f"buffer_store_dword v{vPubD}, v{vPubA}, {sr(dWS,4)}, s{sReg} offen sc1")
    c(f"s_branch {lok}")
    c.label("L_x1wait")
    c(f"s_sub_u32 s{sSpin}, s{sSpin}, 1"); c("s_cbranch_scc1 L_end")
    c(f"s_sub_u32 s{sCnt}, s{sCnt}, 1")
    c(f"s_cmp_lg_u32 s{sCnt}, 0"); c("s_cbranch_scc1 L_x1nopub")
    c(f"s_mov_b32 s{sT0}, {SLOW}")
    c(f"buffer_store_dword v{vPubD}, v{vPubA}, {sr(dWS,4)}, s{sT0} offen sc1")
    c.label("L_x1nopub")
    c.c("after the time-out look at the two areas in turn")
    c(f"s_and_b32 s{sT0}, s{sCnt}, 0x80000001"); c(f"s_cmp_eq_u32 s{sT0}, 0x80000001"); c(f"s_cselect_b32 s{sT0}, {SLOW}, 0")
    c(f"s_add_u32 s{sT1}, s{sT0}, s{sFo}"); c(f"s_add_u32 s{sT0}, s{sT0}, s{sQo}")
    c(qload.replace(f"s{sQo} offen", f"s{sT0} offen")); c(fload.replace(f"s{sFo} offen", f"s{sT1} offen"))
    c("s_waitcnt vmcnt(0)"); c(f"s_branch {lchk}")
    cold.append(c.out)
    red8("v_add_f32", [vG+k for k in range(4)] + [vG2+k for k in range(4)])
    a(f"v_cvt_pk_bf16_f32 v{vG}, v{vG}, v{vG+1}"); a(f"v_cvt_pk_bf16_f32 v{vG+1}, v{vG+2}, v{vG+3}")
    a(f"s_min_u32 s{sT0}, s{sW}, 5"); a(f"s_lshl_b32 s{sT0}, s{sT0}, 6")
    a(f"v_lshl_add_u32 v{vT+2}, v{vSlot}, 3, s{sT0}")
    a(f"ds_write_b64 v{vT+2}, {vr(vG,2)} offset:{LDS_Q}")
    a(f"v_lshlrev_b32 v{vT+3}, 4, v{vCh}")
    a("s_waitcnt lgkmcnt(0)"); a("s_barrier")
    for j in range(3): a(f"ds_read_b128 {vr(vQ+4*j,4)}, v{vT+3} offset:{LDS_Q+128*j}")
    step(1)
    a.c("SwiGLU for this wave's eight hidden units")
    for k in range(4): a(f"v_add_f32_dpp v{vG2+k}, v{vG2+k}, v{vG2+k} row_mirror {DP}")
    a(f"v_and_b32 v{vT}, 1, v{vSlot}"); a(f"v_cmp_eq_u32 vcc, 1, v{vT}")
    a(f"v_cndmask_b32 v{vG2}, v{vG2}, v{vG2+1}, vcc"); a(f"v_cndmask_b32 v{vG2+2}, v{vG2+2}, v{vG2+3}, vcc")
    rne(vG2, vG2); rne(vG2+2, vG2+2)
    a(f"v_permlane16_swap_b32 v{vG2}, v{vG2+2}")
    a(f"v_mul_f32 v{vT}, {f2u(-1.4426950408889634):#x}, v{vG2}")
    a(f"v_exp_f32 v{vT}, v{vT}"); a(f"v_add_f32 v{vT}, 1.0, v{vT}"); a(f"v_rcp_f32 v{vT}, v{vT}")
    a(f"v_mul_f32 v{vT}, v{vT}, v{vG2}"); rne(vT, vT)
    a(f"v_mul_f32 v{vT}, v{vT}, v{vG2+2}")
    a(f"v_cvt_pk_bf16_f32 v{vH}, v{vT}, v{vT}")
    a("s_waitcnt lgkmcnt(0)")
    stamp()
    for g in range(8):
        need(f"K{3*g+2}")
        b = vKV + 12*g
        a(f"v_dot2_f32_bf16 v{vSc+g}, v{b}, v{vQ}, 0")
        a(f"v_dot2_f32_bf16 v{vT}, v{b+1}, v{vQ+1}, 0")
        for i in range(2, 12):
            d = vSc+g if i % 2 == 0 else vT
            a(f"v_dot2_f32_bf16 v{d}, v{b+i}, v{vQ+i}, v{d}")
        kdone[0] = g + 1
        if g % 3 == 2: step(1)
        a(f"v_add_f32 v{vSc+g}, v{vSc+g}, v{vT}")
    sc = [vSc+g for g in range(8)]
    red8("v_add_f32", sc)
    for r in sc: a(f"v_cvt_pk_bf16_f32 v{r}, v{r}, v{r}")
    for r in sc: a(f"v_and_b32 v{r}, 0xffff0000, v{r}")
    step(1)
    for r in sc: a(f"v_mul_f32 v{r}, {f2u(192 ** -0.5):#x}, v{r}")
    for r in sc: a(f"v_cvt_pk_bf16_f32 v{r}, v{r}, v{r}")
    for r in sc: a(f"v_and_b32 v{r}, 0xffff0000, v{r}")
    a(f"v_max3_f32 v{vG}, v{sc[0]}, v{sc[1]}, v{sc[2]}"); a(f"v_max3_f32 v{vG+1}, v{sc[3]}, v{sc[4]}, v{sc[5]}")
    a(f"v_max3_f32 v{vG}, v{vG}, v{sc[6]}, v{sc[7]}"); a(f"v_max_f32 v{vG}, v{vG}, v{vG+1}")
    red_hi("v_max_f32", [vG])
    a(f"v_readlane_b32 s{sT0}, v{vG}, 63")
    L2E = f"{f2u(1.4426950408889634):#x}"
    step(1)
    for k in range(8): a(f"v_subrev_f32 v{vT+k}, s{sT0}, v{sc[k]}")
    for k in range(8): a(f"v_mul_f32 v{vT+k}, {L2E}, v{vT+k}")
    for k in range(8): a(f"v_exp_f32 v{vT+k}, v{vT+k}")
    for k in range(4): a(f"v_add_f32 v{vT+k}, v{vT+k}, v{vT+4+k}")
    a(f"v_add_f32 v{vT}, v{vT}, v{vT+1}"); a(f"v_add_f32 v{vT+2}, v{vT+2}, v{vT+3}"); a(f"v_add_f32 v{vG+1}, v{vT}, v{vT+2}")
    red_hi("v_add_f32", [vG+1])
    a(f"v_or_b32 v{vG}, s{sTag[0]}, v{vG}")
    a(f"v_and_b32 v{vG+1}, 0xffffff00, v{vG+1}"); a(f"v_or_b32 v{vG+1}, s{sTag[1]}, v{vG+1}")
    a(f"v_mov_b32 v{vG+2}, s{sTag[2]}"); a(f"v_mov_b32 v{vG+3}, s{sTag[3]}")
    a(f"s_lshl_b32 s{sT0}, s{sP}, 3"); a(f"s_add_u32 s{sT0}, s{sT0}, s{sW}"); a(f"s_lshl_b32 s{sT0}, s{sT0}, 4")
    a(f"s_add_u32 s{sT0}, s{sT0}, {WS_ML}"); a(f"v_mov_b32 v{vT}, s{sT0}")
    a(f"s_mov_b32 exec_lo, 0"); a(f"s_mov_b32 exec_hi, 0x80000000")
    pub(f"buffer_store_dwordx4 {vr(vG,4)}, v{vT}, {sr(dWS,4)}, s{sReg} offen", "pubml")
    a("s_mov_b64 exec, -1")
    stamp()
    a.c("down projection of the SwiGLU part")
    buildA(vA, vH)
    need("W4")
    a(f"v_mfma_f32_16x16x32_bf16 {vr(vY,4)}, {vr(vA,4)}, {vr(vW+16,4)}, 0")
    issue_to(f"V{mlpos-1}")
    a(f"s_lshl_b32 s{sT0}, s{sH}, 10"); a(f"s_add_u32 s{sT0}, s{sT0}, {WS_ML}"); a(f"s_add_u32 s{sT0}, s{sT0}, s{sReg}")
    mload = f"buffer_load_dwordx4 {vr(vG,4)}, v{vL16}, {sr(dWS,4)}, s{sT0} offen sc1"
    a(mload, "gm")
    need(f"V{mlpos-1}")
    a.wait_vm("gm")
    poll_check([(vG, mload)], sTag)
    a(f"v_mov_b32 v{vT}, v{vG}")
    red8("v_max_f32", [vT]); red_hi("v_max_f32", [vT])
    a(f"v_readlane_b32 s{sT0}, v{vT}, 63")
    a(f"v_subrev_f32 v{vT}, s{sT0}, v{vG}"); a(f"v_mul_f32 v{vT}, {L2E}, v{vT}"); a(f"v_exp_f32 v{vT}, v{vT}")
    a(f"v_mul_f32 v{vT}, v{vT}, v{vG+1}")
    red8("v_add_f32", [vT]); red_hi("v_add_f32", [vT])
    a(f"v_rcp_f32 v{vT}, v{vT}")
    step(1)
    for r in sc: a(f"v_subrev_f32 v{r}, s{sT0}, v{r}")
    a(f"v_readlane_b32 s{sT1}, v{vT}, 63")
    for r in sc: a(f"v_mul_f32 v{r}, {L2E}, v{r}")
    for r in sc: a(f"v_exp_f32 v{r}, v{r}")
    for r in sc: a(f"v_mul_f32 v{r}, s{sT1}, v{r}")
    for r in sc: a(f"v_cvt_pk_bf16_f32 v{r}, v{r}, v{r}")
    step(1)
    a.c("tags and offsets of the o exchange")
    for k in range(4): a(f"s_bfe_u32 s{sTag[k]}, s{sE}, {(8 << 16) | (8*k):#x}")
    a(f"s_lshl_b32 s{sQo}, s{sPhi}, 10"); a(f"s_add_u32 s{sQo}, s{sQo}, {WS_QP}"); a(f"s_add_u32 s{sQo}, s{sQo}, s{sReg}")
    stamp()
    for g in range(8):
        A_ = vA if g % 2 == 0 else vA2
        buildA(A_, sc[g])
        for j in range(3):
            need(f"V{3*g+j}")
            a(f"v_mfma_f32_16x16x32_bf16 {vr(vD+4*j,4)}, {vr(A_,4)}, {vr(vKV+12*g+4*j,4)}, {'0' if g == 0 else vr(vD+4*j,4)}")
        if g == 3: step(1)
    while pos[0] < len(stream): load(*stream[pos[0]]); pos[0] += 1
    if skel == 2:
        a("s_waitcnt vmcnt(0)"); a("s_endpgm")
    stamp()
    red_write(LDS_RED, [vD, vD+4, vD+8]); red_read(LDS_RED)
    red_sum8(vPubD, vTg2)
    a(f"s_mov_b32 exec_hi, 0")
    pub(f"buffer_store_dword v{vPubD}, v{vPubA}, {sr(dWS,4)}, s{sReg} offen", "pubo")
    a("s_mov_b64 exec, -1")
    stamp()
    a(f"s_cmp_ge_u32 s{sC}, 30"); a("s_cbranch_scc1 L_reducer")
    snap = a.snapshot(); n0 = nst[0]
    oload = f"buffer_load_dwordx4 {vr(vG,4)}, v{vL16}, {sr(dWS,4)}, s{sQo} offen sc1"
    a(oload, "go")
    a.wait_vm("go")
    poll_check([(vG, oload)], sTag)
    if skel == 3: a("s_endpgm")
    stamp()
    red8("v_add_f32", [vG+k for k in range(4)])
    for k in range(4): a(f"v_cvt_pk_bf16_f32 v{vG+k}, v{vG+k}, v{vG+k}")
    for r in range(4):
        A_ = (vA, vA2, vG2, vT)[r]
        buildA(A_, vG+r)
        if r >= 1: a(f"v_mfma_f32_16x16x32_bf16 {vr(vY,4)}, {vr((vA, vA2, vG2, vT)[r-1],4)}, {vr(vW+4*(r-1),4)}, {vr(vY,4)}")
    a(f"v_mfma_f32_16x16x32_bf16 {vr(vY,4)}, {vr(vT,4)}, {vr(vW+12,4)}, {vr(vY,4)}")
    red_write(LDS_RED2, [vY])
    lx = a.newlabel("exit")
    a(f"s_cmp_ge_u32 s{sW}, 2"); a(f"s_cbranch_scc1 {lx}")
    red_read(LDS_RED2)
    red_sum8(vPubD, vTg2)
    a(f"s_mov_b32 exec_hi, 0")
    a(f"buffer_store_dword v{vPubD}, v{vYo}, {sr(dWS,4)}, 0 offen sc1", "puby")
    a.label(lx)
    stamp()
    finish()
    a.label("L_reducer")
    a.restore(snap); nst[0] = n0
    if skel in (3, 4): a("s_endpgm")
    lx = a.newlabel("exit")
    a(f"s_lshl_b32 s{sK}, s{sK}, 3"); a(f"s_add_u32 s{sK}, s{sK}, s{sG}")
    a(f"s_cmp_ge_u32 s{sW}, 2"); a(f"s_cbranch_scc1 {lx}")
    a(f"s_cmp_ge_u32 s{sK}, 10"); a(f"s_cbranch_scc1 {lx}")
    a(f"s_lshl_b32 s{sK}, s{sK}, 1"); a(f"s_add_u32 s{sK}, s{sK}, s{sW}")
    a(f"s_mul_i32 s{sT0}, s{sK}, 3072"); a(f"s_add_u32 s{sT0}, s{sT0}, {WS_YP}")
    y = vD
    def yl(n): return [(vKV+12*n+4*i, f"buffer_load_dwordx4 {vr(vKV+12*n+4*i,4)}, v{vL16}, {sr(dWS,4)}, s{sT0} offen offset:{1024*i} sc1") for i in range(3)]
    a.c("output column of this lane: 32*line + 4*(l&7) + (l>>4)")
    a(f"v_lshrrev_b32 v{vT+1}, 4, v{vL}"); a(f"v_lshl_add_u32 v{vT+1}, v{vCh}, 2, v{vT+1}")
    a(f"s_lshl_b32 s{sT1}, s{sK}, 6"); a(f"v_lshl_add_u32 v{vYo}, v{vT+1}, 1, s{sT1}")
    a(f"buffer_load_ushort v{vXo}, v{vYo}, {sr(dX,4)}, 0 offen")
    a.c("line 0's reducer hears (through its producers) from every workgroup: it advances the hand-off epoch")
    a(f"s_cmp_eq_u32 s{sK}, 0"); a(f"s_cselect_b32 s{sT2}, {WS_E}, {OOB}")
    a(f"v_mov_b32 v{vT+4}, s{sE}"); a(f"v_mov_b32 v{vT+5}, {OOB}"); a(f"v_mov_b32 v{vT+6}, {OOB}")
    a("s_waitcnt vmcnt(0)")
    a(f"v_lshlrev_b32 v{vXo}, 16, v{vXo}")
    if ydry:
        a.c("one pass through the last lines with every store out of range: they are in the instruction cache afterwards")
        a(f"s_mov_b32 s{sT1}, 1"); a("s_branch L_yfin")
        a.label("L_ystart")
        a("s_mov_b64 exec, -1")
    a(f"s_mov_b32 s{sT1}, 0")
    a(f"v_mov_b32 v{vT+5}, s{sT2}"); a(f"v_mov_b32 v{vT+6}, v{vYo}")
    for n in range(ypipe):
        for _, t in yl(n): a(t)
    a.label("L_ypoll")
    for n in range(ypipe):
        a(f"s_waitcnt vmcnt({3*(ypipe-1)})")
        untag([(g, sTag) for g, _ in yl(n)])
        b = vKV + 12*n
        for k in range(4): a(f"v_add_f32 v{y+k}, v{b+k}, v{b+4+k}")
        for k in range(4): a(f"v_add_f32 v{y+k}, v{y+k}, v{b+8+k}")
        a("s_cbranch_vccz L_yfin")
        for _, t in yl(n): a(t)
    a(f"s_sub_u32 s{sSpin}, s{sSpin}, 1"); a("s_cbranch_scc0 L_ypoll")
    a("s_endpgm")
    a.label("L_yfin")
    a("s_nop 0")
    stamp()
    a(f"v_permlane32_swap_b32 v{y}, v{y+2}"); a(f"v_permlane32_swap_b32 v{y+1}, v{y+3}")
    a(f"v_add_f32 v{y}, v{y}, v{y+2}"); a(f"v_add_f32 v{y+1}, v{y+1}, v{y+3}")
    a(f"v_permlane16_swap_b32 v{y}, v{y+1}")
    a(f"v_add_f32 v{y}, v{y}, v{y+1}")
    a(f"v_add_f32_dpp v{y}, v{y}, v{y} row_ror:8 {DP}")
    a(f"v_add_f32 v{y}, v{y}, v{vXo}")
    a(f"v_cvt_pk_bf16_f32 v{y}, v{y}, v{y}")
    a(f"s_mov_b32 exec_lo, 0x00ff00ff"); a(f"s_mov_b32 exec_hi, 0x00ff00ff")
    a(f"buffer_store_short v{y}, v{vT+6}, {sr(dOUT,4)}, 0 offen")
    a("s_mov_b64 exec, 1")
    a(f"buffer_store_dword v{vT+4}, v{vT+5}, {sr(dWS,4)}, 0 offen")
    if ydry:
        a(f"s_cmp_lg_u32 s{sT1}, 0"); a("s_cbranch_scc1 L_ystart")
    a.label(lx)
    nst[0] = 8
    stamp()
    finish()
    for blk in cold:
        for ln in blk: a.raw(ln)
    a.label("L_end")
    a("s_endpgm")
    if prefetch: a.raw("    .fill 2048, 4, 0xbf810000")
    nv = (V.n + 7) // 8 * 8
    a.raw('.section .rodata,"a"'); a.raw(".p2align 6"); a.raw(f".amdhsa_kernel {NAME}_kernel")
    a.raw(f"  .amdhsa_next_free_vgpr {nv}"); a.raw("  .amdhsa_next_free_sgpr 102"); a.raw(f"  .amdhsa_accum_offset {nv}")
    a.raw("  .amdhsa_group_segment_fixed_size 0"); a.raw("  .amdhsa_kernarg_size 96"); a.raw("  .amdhsa_user_sgpr_count 2")
    a.raw("  .amdhsa_user_sgpr_kernarg_segment_ptr 1"); a.raw("  .amdhsa_system_sgpr_workgroup_id_x 1")
    a.raw(".end_amdhsa_kernel")
    return a.text()

if __name__ == "__main__":
    kw = {}
    out = sys.argv[1]
    for x in sys.argv[2:]:
        k, v = x.split("=")
        try: v = eval(v)
        except Exception: pass
        kw[k] = v
    open(out, "w").write(gen(**kw))
```

```python
import sys, struct
sys.path.insert(0, "dev")
from asmlib import *

NAME = "parallel_sum__gqa_block_cached__glu_gated_swiglu__decode"
def f2u(x): return struct.unpack("<I", struct.pack("<f", x))[0]

WS_E  = 0
WS_QP = 0x10000
WS_FP = 0x40000
WS_ML = 0x70000
SLOW  = 0x70000
WS_YP = 0x100000
WS_ST = 0x400000
WS_SIZE = 0x800000
OOB = 0x40000000
LDS_RED = 0
LDS_RED2 = 12288
LDS_Q = 24576

def gen(D=3, qpos=17, mlpos=16, nafter=2, wpos=0, ld="nt", stamps=False, lds=90112, prefetch=True, spin=1 << 16,
        diag=None, timeout=24, forceslow=False, extra=1, ypipe=1, skel=0, ydry=False, amp=0, selx=None, hold=0, holdbar=True, opipe=1, enddeep=0, earlyw=True, pdelay=True, yhome=None, ytab=None):
    a = Asm()
    hdr = open("cdna_kernels/" + NAME + ".s.ref").read().split("\n")
    for ln in hdr:
        if ln.startswith(";") and "@launch" not in ln and "Override launch" not in ln and "grid=ceil" not in ln: a.raw(ln)
    a.raw(f"; @launch grid=(256,1,1) block=(512,1,1) lds={lds}")
    a.raw('.amdgcn_target "amdgcn-amd-amdhsa--gfx950"')
    a.raw(".text"); a.raw(f".globl {NAME}_kernel"); a.raw(".p2align 8"); a.raw(f".type {NAME}_kernel,@function")
    a.label(f"{NAME}_kernel")
    V = Regs(1, 256, "v"); S = Regs(28, 102, "s")
    pX, pK, pV, pWQ, pWO, pBX, pW1, pW3, pW2, pOUT, pDBG, pWS = [4 + 2*i for i in range(12)]
    dK, dV, dS1, dWS, dX = [S.get(4) for _ in range(5)]
    dWO, dW2, dOUT = 12, 20, S.get(4)
    sW, sG, sC, sP, sH, sS, sE, sT0, sT1, sT2, sT3, sSpin, sReg, sPhi, sK, sCnt, sQo, sFo = [S.get() for _ in range(18)]
    sTag = [S.get() for _ in range(4)]
    sTagF = S.get()
    sOff = [S.get() for _ in range(3)]
    sVal = S.get(2); sTm = S.get(2); sStart = S.get(2)
    sSt = S.get(16) if (stamps or diag is not None) else None
    (vL, vSlot, vCh, vKoff, vS1a, vS1b, vXr0, vXr1, vRedW, vRedR, vL16, vPubA, vPubD, vTg1, vTg2, vWo, vW2o, vH, vXo, vYo) = [V.get() for _ in range(20)]
    vM = V.get(4); vA = V.get(4); vA2 = V.get(4); vG = V.get(4); vG2 = V.get(4); vT = V.get(8); vXa = V.get(4); vXb = V.get()
    vY = V.get(4); vSc = V.get(8); vQ = V.get(12); vD = V.get(12); vW = V.get(24); vKV = V.get(96)
    cold = []
    nst = [0]
    def stamp():
        if diag is not None:
            if nst[0] == diag:
                a(f"s_memrealtime {sr(sTm,2)}"); a("s_waitcnt lgkmcnt(0)"); a(f"s_mov_b32 s{sSt}, s{sTm}")
        elif stamps:
            a(f"s_memrealtime {sr(sTm,2)}"); a("s_waitcnt lgkmcnt(0)"); a(f"s_mov_b32 s{sSt+nst[0]}, s{sTm}")
        nst[0] += 1
    def finish():
        if diag is not None:
            if selx is not None:
                a(f"s_getreg_b32 s{sT0}, hwreg(HW_REG_XCC_ID, 0, 4)"); a(f"s_cmp_lg_u32 s{sT0}, {selx}"); a("s_cbranch_scc1 L_end")
            a(f"s_sub_u32 s{sSt}, s{sSt}, s{sStart}"); a(f"s_mul_i32 s{sSt}, s{sSt}, {amp or 1}"); a(f"s_add_u32 s{sSt}, s{sSt}, 5000")
            lp = a.newlabel("pad"); a.label(lp)
            a(f"s_memrealtime {sr(sTm,2)}"); a("s_waitcnt lgkmcnt(0)")
            a(f"s_sub_u32 s{sTm}, s{sTm}, s{sStart}"); a(f"s_cmp_lt_u32 s{sTm}, s{sSt}"); a(f"s_cbranch_scc1 {lp}")
        elif stamps:
            lp = a.newlabel("pad"); a.label(lp)
            a(f"s_memrealtime {sr(sTm,2)}"); a("s_waitcnt lgkmcnt(0)")
            a(f"s_sub_u32 s{sTm}, s{sTm}, s{sStart}"); a(f"s_cmp_lt_u32 s{sTm}, 3000"); a(f"s_cbranch_scc1 {lp}")
            a(f"s_mov_b32 s{sSt+13}, s{sReg}"); a(f"s_mov_b32 s{sSt+14}, s{sStart}"); a(f"s_mov_b32 s{sSt+15}, s{sSpin}")
            a(f"s_lshl_b32 s{sT0}, s{sP}, 3"); a(f"s_add_u32 s{sT0}, s{sT0}, s{sW}"); a(f"s_lshl_b32 s{sT0}, s{sT0}, 6")
            a("s_mov_b64 exec, 1")
            a(f"s_add_u32 s{sT0}, s{sT0}, {WS_ST}"); a(f"v_mov_b32 v{vT}, s{sT0}")
            for q in range(4):
                for k in range(4): a(f"v_mov_b32 v{vKV+4*q+k}, s{sSt+4*q+k}")
                a(f"buffer_store_dwordx4 {vr(vKV+4*q,4)}, v{vT}, {sr(dWS,4)}, 0 offen offset:{16*q}")
        a("s_endpgm")
    def rne(dst, src):
        a(f"v_cvt_pk_bf16_f32 v{dst}, v{src}, v{src}"); a(f"v_and_b32 v{dst}, 0xffff0000, v{dst}")
    DP = "row_mask:0xf bank_mask:0xf"
    def red8(op, regs):
        for m in ("quad_perm:[1,0,3,2]", "quad_perm:[2,3,0,1]", "row_half_mirror"):
            for r in regs: a(f"{op}_dpp v{r}, v{r}, v{r} {m} {DP}")
    def red_hi(op, regs):
        for r in regs: a(f"{op}_dpp v{r}, v{r}, v{r} row_ror:8 {DP}")
        for r in regs: a(f"{op}_dpp v{r}, v{r}, v{r} row_bcast:15 row_mask:0xa bank_mask:0xf")
        for r in regs: a(f"{op}_dpp v{r}, v{r}, v{r} row_bcast:31 row_mask:0xc bank_mask:0xf")
    def buildA(dst, dup):
        for k in range(4): a(f"v_and_b32 v{dst+k}, v{dup}, v{vM+k}")
    def untag(sets):
        for g, tg in sets:
            for k in range(4): a(f"v_xor_b32 v{g+k}, s{tg[k]}, v{g+k}")
        rs = [g+k for g, _ in sets for k in range(4)]
        a(f"v_or3_b32 v{vT}, v{rs[0]}, v{rs[1]}, v{rs[2]}"); rs = rs[3:]
        while rs:
            if len(rs) >= 2: a(f"v_or3_b32 v{vT}, v{vT}, v{rs[0]}, v{rs[1]}"); rs = rs[2:]
            else: a(f"v_or_b32 v{vT}, v{vT}, v{rs[0]}"); rs = rs[1:]
        a(f"v_and_b32 v{vT}, 0xff, v{vT}")
        a(f"v_cmp_ne_u32 vcc, 0, v{vT}")
    def poll_check(loads, tg):
        lr = a.newlabel("retry"); lo = a.newlabel("ok")
        a.label(lr)
        untag([(g, tg) for g, _ in loads])
        a(f"s_cbranch_vccz {lo}")
        a(f"s_sub_u32 s{sSpin}, s{sSpin}, 1"); a("s_cbranch_scc1 L_end")
        old = a.cond; a.cond = True
        for (_, t) in loads: a(t)
        a.cond = old
        a("s_waitcnt vmcnt(0)"); a(f"s_branch {lr}")
        a.label(lo)
    def pub(text, name):
        ls = a.newlabel("pubslow"); lb = a.newlabel("pubback")
        a(f"s_cmp_lg_u32 s{sReg}, 0"); a(f"s_cbranch_scc1 {ls}")
        a(text, name)
        a.label(lb)
        cold.append([ls + ":", "    " + text + " sc1", f"    s_branch {lb}"])

    stream = [("K", i) for i in range(3)] + [("S", i) for i in range(6)] + [("K", i) for i in range(3, 24)]
    vs = [("V", i) for i in range(24)]
    late4 = nafter == 5
    worder = [0, 1, 2, 3, 4] if late4 else [4, 0, 1, 2, 3]
    stream += vs[:wpos] + [("W", i) for i in worder[:5 - nafter]] + vs[wpos:] + [("W", i) for i in worder[5 - nafter:]]
    limit = [len(stream) - hold]
    idx = {f"{t}{i}": n for n, (t, i) in enumerate(stream)}
    kdone = [0]
    pos = [0]
    def load(t, i):
        if t in "KV":
            g, j = divmod(i, 3)
            if t == "V": assert g < kdone[0], "V load overwrites unconsumed K"
            so = "0" if g < 2 else f"s{sOff[(g>>1)-1]}"
            a(f"buffer_load_dwordx4 {vr(vKV+4*i,4)}, v{vKoff}, {sr(dK if t == 'K' else dV,4)}, {so} offen offset:{3072*(g&1)+128*j} {ld}", f"{t}{i}")
        elif t == "S":
            g, j = divmod(i, 3)
            a(f"buffer_load_dwordx4 {vr(vW+4*i,4)}, v{vS1a if g == 0 else vS1b}, {sr(dS1,4)}, 0 offen offset:{128*j} {ld}", f"S{i}")
        elif i < 4:
            a(f"buffer_load_dwordx4 {vr(vW+4*i,4)}, v{vWo}, {sr(dWO,4)}, 0 offen offset:{1280*i} {ld}", f"W{i}")
        else:
            a(f"buffer_load_dwordx4 {vr(vW+16,4)}, v{vW2o}, {sr(dW2,4)}, 0 offen {ld}", "W4")
    arrived = [-1]
    def wait_idx(n):
        if n > arrived[0]:
            t, i = stream[n]; a.wait_vm(f"{t}{i}"); arrived[0] = n
    def step(n=1, d=None):
        for _ in range(n):
            p = pos[0]
            if p >= limit[0]: return
            if p - (d or D) >= 0: wait_idx(p - (d or D))
            load(*stream[p]); pos[0] += 1
    def need(name):
        n = idx[name]
        while arrived[0] < n and pos[0] < limit[0]: step(1, D + 1 if pos[0] >= len(stream) - enddeep else None)
        wait_idx(n)
    def issue_to(name):
        while pos[0] <= idx[name]: step()

    a("s_cmp_ge_u32 s2, 256"); a("s_cbranch_scc1 L_end")
    if diag is not None or stamps: a(f"s_memrealtime {sr(sStart,2)}")
    a("s_load_dwordx16 s[4:19], s[0:1], 0")
    a("s_load_dwordx8 s[20:27], s[0:1], 64")
    a(f"v_lshrrev_b32 v{vT}, 6, v0")
    a(f"v_and_b32 v{vL}, 63, v0")
    a(f"v_readfirstlane_b32 s{sW}, v{vT}")
    a(f"s_and_b32 s{sG}, s2, 7"); a(f"s_lshr_b32 s{sC}, s2, 3")
    a(f"s_lshl_b32 s{sP}, s{sG}, 5"); a(f"s_add_u32 s{sP}, s{sP}, s{sC}")
    a(f"v_lshrrev_b32 v{vSlot}, 3, v{vL}"); a(f"v_and_b32 v{vCh}, 7, v{vL}")
    a(f"s_lshl_b32 s{sT0}, s{sP}, 3"); a(f"s_add_u32 s{sT0}, s{sT0}, s{sW}"); a(f"s_mul_i32 s{sT0}, s{sT0}, 24576")
    a(f"v_mul_u32_u24 v{vKoff}, 384, v{vSlot}")
    a(f"v_lshl_add_u32 v{vT+1}, v{vCh}, 4, s{sT0}")
    a(f"v_add_u32 v{vKoff}, v{vKoff}, v{vT+1}")
    a(f"s_mov_b32 s{dK+2}, 50331648"); a(f"s_mov_b32 s{dK+3}, 0x20000")
    a(f"s_lshr_b32 s{sH}, s{sP}, 3"); a(f"s_and_b32 s{sS}, s{sP}, 7")
    a(f"v_lshlrev_b32 v{vL16}, 4, v{vL}")
    a("s_waitcnt lgkmcnt(0)")
    a(f"s_mov_b64 {sr(dK,2)}, {sr(pK,2)}")
    step(3)
    if diag is not None: a(f"s_mov_b32 s{sSt}, s{sStart}")
    if diag == 100:
        a(f"s_memrealtime {sr(sTm,2)}"); a("s_waitcnt lgkmcnt(0)"); a(f"s_mov_b32 s{sSt}, s{sTm}")
    if diag == 101:
        a("s_waitcnt vmcnt(2)"); a(f"s_memrealtime {sr(sTm,2)}"); a("s_waitcnt lgkmcnt(0)"); a(f"s_mov_b32 s{sSt}, s{sTm}")
    if stamps:
        for i in range(13): a(f"s_mov_b32 s{sSt+i}, 0")
    a(f"s_load_dword s{sE}, {sr(pWS,2)}, {WS_E}")
    a.c("stage-1 role: waves 0-4 wq rows, waves 5-7 w1/w3 rows")
    a(f"s_mov_b64 {sr(dX,2)}, {sr(pX,2)}"); a(f"s_mov_b32 s{dX+2}, 1280"); a(f"s_mov_b32 s{dX+3}, 0x20000")
    a(f"v_lshlrev_b32 v{vT+4}, 2, v{vL}")
    a(f"buffer_load_dwordx4 {vr(vXa,4)}, v{vL16}, {sr(dX,4)}, 0 offen", "xa")
    a(f"buffer_load_dword v{vXb}, v{vT+4}, {sr(dX,4)}, 0 offen offset:1024", "xb")
    a(f"s_mul_i32 s{sT0}, s{sS}, 80")
    a(f"s_and_b32 s{sT1}, s{sC}, 15"); a(f"s_mul_i32 s{sT1}, s{sT1}, 40"); a(f"s_sub_u32 s{sT1}, s{sT1}, 80")
    a(f"s_cmp_lt_u32 s{sC}, 16"); a(f"s_cselect_b64 {sr(dS1,2)}, {sr(pW1,2)}, {sr(pW3,2)}")
    a(f"s_cmp_lt_u32 s{sW}, 5")
    a(f"s_cselect_b64 {sr(dS1,2)}, {sr(pWQ,2)}, {sr(dS1,2)}")
    a(f"s_cselect_b32 s{sT0}, s{sT0}, s{sT1}")
    a(f"s_cselect_b32 s{sT1}, s{sH}, s{sG}")
    a(f"s_cselect_b32 s{sT2}, 12, 3")
    a(f"s_lshl_b32 s{sT2}, s{sT2}, 10")
    a(f"s_mul_i32 s{dS1+2}, s{sT2}, 640"); a(f"s_mov_b32 s{dS1+3}, 0x20000")
    a(f"s_mul_i32 s{sT1}, s{sT1}, 384")
    a(f"s_lshl_b32 s{sT3}, s{sW}, 4"); a(f"s_add_u32 s{sT0}, s{sT0}, s{sT3}")
    a(f"v_add_u32 v{vXr0}, s{sT0}, v{vSlot}")
    a(f"v_mul_lo_u32 v{vS1a}, v{vXr0}, s{sT2}")
    a(f"v_lshlrev_b32 v{vT+2}, 1, v{vXr0}")
    a(f"buffer_load_ushort v{vXr0}, v{vT+2}, {sr(dX,4)}, 0 offen", "xr0")
    a(f"buffer_load_ushort v{vXr1}, v{vT+2}, {sr(dX,4)}, 0 offen offset:16", "xr1")
    a(f"v_lshl_add_u32 v{vT+1}, v{vCh}, 4, s{sT1}")
    a(f"v_add_u32 v{vS1a}, v{vS1a}, v{vT+1}")
    a(f"s_lshl_b32 s{sT2}, s{sT2}, 3")
    a(f"s_cmp_eq_u32 s{sW}, 7"); a(f"s_cselect_b32 s{sT2}, {OOB}, s{sT2}")
    a(f"v_add_u32 v{vS1b}, s{sT2}, v{vS1a}")
    step(extra, D + extra)
    if prefetch:
        a.c("pull this kernel's code into the L2 (each wave one line)")
        a(f"s_getpc_b64 {sr(sTm,2)}")
        a(f"s_lshl_b32 s{sT0}, s{sC}, 3"); a(f"s_add_u32 s{sT0}, s{sT0}, s{sW}"); a(f"s_and_b32 s{sT0}, s{sT0}, 63")
        a(f"s_lshl_b32 s{sT0}, s{sT0}, 7")
        a(f"s_load_dword s{sCnt}, {sr(sTm,2)}, s{sT0}")
    a(f"s_mov_b64 {sr(dV,2)}, {sr(pV,2)}"); a(f"s_mov_b32 s{dV+2}, 50331648"); a(f"s_mov_b32 s{dV+3}, 0x20000")
    a(f"s_mov_b64 {sr(dWS,2)}, {sr(pWS,2)}"); a(f"s_mov_b32 s{dWS+2}, {WS_SIZE}"); a(f"s_mov_b32 s{dWS+3}, 0x20000")
    a(f"s_mov_b64 {sr(dOUT,2)}, {sr(pOUT,2)}"); a(f"s_mov_b32 s{dOUT+2}, 1280"); a(f"s_mov_b32 s{dOUT+3}, 0x20000")
    a(f"s_mov_b32 s{dWO+2}, 7864320"); a(f"s_mov_b32 s{dWO+3}, 0x20000")
    a(f"s_mov_b32 s{dW2+2}, 1966080"); a(f"s_mov_b32 s{dW2+3}, 0x20000")
    for i in range(3): a(f"s_mov_b32 s{sOff[i]}, {6144*(i+1)}")
    a(f"s_mov_b32 s{sSpin}, {spin}"); a(f"s_mov_b32 s{sReg}, 0")
    a(f"s_mov_b32 s{sVal}, 0x00ff00ff"); a(f"s_mov_b32 s{sVal+1}, 0xff00ff00")
    a.c("MFMA A-operand masks")
    a(f"v_and_b32 v{vT}, 1, v{vL}"); a(f"v_lshlrev_b32 v{vT}, 4, v{vT}")
    a(f"v_mov_b32 v{vT+1}, 0xffff"); a(f"v_lshlrev_b32 v{vT}, v{vT}, v{vT+1}")
    a(f"v_lshrrev_b32 v{vT+1}, 1, v{vCh}")
    for k in range(4):
        a(f"v_cmp_eq_u32 vcc, {k}, v{vT+1}"); a(f"v_cndmask_b32 v{vM+k}, 0, v{vT}, vcc")
    a.c("LDS reduce addresses")
    a(f"v_lshrrev_b32 v{vT+2}, 5, v{vL}"); a(f"v_mul_u32_u24 v{vT}, 768, v{vT+2}")
    a(f"v_bfe_u32 v{vT+1}, v{vL}, 4, 1"); a(f"v_lshl_add_u32 v{vT+1}, v{vCh}, 1, v{vT+1}")
    a(f"v_lshl_add_u32 v{vT+1}, v{vT+1}, 4, v{vT}")
    a(f"s_mul_i32 s{sT0}, s{sW}, 1536")
    a(f"v_add_u32 v{vRedW}, s{sT0}, v{vT+1}")
    a(f"v_and_b32 v{vT+3}, 31, v{vL}")
    a(f"s_lshl_b32 s{sT0}, s{sW}, 7")
    a(f"v_lshl_add_u32 v{vT+1}, v{vT+3}, 2, s{sT0}")
    a(f"v_add_u32 v{vRedR}, v{vT}, v{vT+1}")
    step(1)
    a.c("publish offsets: lanes 0-31 q/o slot, lanes 32-63 ffn slot")
    a(f"s_mul_i32 s{sT0}, s{sH}, 6"); a(f"s_add_u32 s{sT0}, s{sT0}, s{sW}"); a(f"s_lshl_b32 s{sT0}, s{sT0}, 10")
    a(f"s_lshl_b32 s{sT1}, s{sS}, 4"); a(f"s_add_u32 s{sT0}, s{sT0}, s{sT1}"); a(f"s_add_u32 s{sT0}, s{sT0}, {WS_QP}")
    a(f"s_mul_i32 s{sT1}, s{sG}, 6"); a(f"s_add_u32 s{sT1}, s{sT1}, s{sW}"); a(f"s_lshl_b32 s{sT1}, s{sT1}, 12")
    a(f"s_lshl_b32 s{sT2}, s{sC}, 4"); a(f"s_add_u32 s{sT1}, s{sT1}, s{sT2}"); a(f"s_add_u32 s{sT1}, s{sT1}, {WS_FP}")
    a(f"s_cmp_lt_u32 s{sW}, 6"); a(f"s_cselect_b32 s{sT0}, s{sT0}, {OOB}"); a(f"s_cselect_b32 s{sT1}, s{sT1}, {OOB}")
    a(f"v_lshrrev_b32 v{vT}, 2, v{vT+3}")
    a(f"v_lshl_add_u32 v{vT+1}, v{vT}, 7, s{sT0}"); a(f"v_lshl_add_u32 v{vT+4}, v{vT}, 9, s{sT1}")
    a(f"v_cmp_gt_u32 vcc, 32, v{vL}")
    a(f"v_and_b32 v{vT+5}, 3, v{vL}")
    a(f"v_cndmask_b32 v{vT+1}, v{vT+4}, v{vT+1}, vcc")
    a(f"v_lshl_add_u32 v{vPubA}, v{vT+5}, 2, v{vT+1}")
    a.c("stage-3 task: range rho = c/10, slab k = c%10 (c >= 30: reducers, slab (c-30)*8+G)")
    a(f"s_mul_i32 s{sT0}, s{sC}, 26"); a(f"s_lshr_b32 s{sT0}, s{sT0}, 8")
    a(f"s_mul_i32 s{sT1}, s{sT0}, 10"); a(f"s_sub_u32 s{sK}, s{sC}, s{sT1}")
    a(f"s_min_u32 s{sT2}, s{sT0}, 2"); a(f"s_lshl_b32 s{sT2}, s{sT2}, 3"); a(f"s_add_u32 s{sPhi}, s{sT2}, s{sW}")
    a(f"s_mul_i32 s{sT2}, s{sG}, 24"); a(f"s_add_u32 s{sPhi}, s{sPhi}, s{sT2}")
    a(f"s_lshl_b32 s{sT2}, s{sK}, 7")
    a(f"s_cmp_lt_u32 s{sC}, 30"); a(f"s_cselect_b32 s{sT2}, s{sT2}, {OOB}")
    a(f"v_lshl_add_u32 v{vT}, v{vCh}, 4, s{sT2}")
    a(f"s_mul_i32 s{sT2}, s{sPhi}, {8*1280}")
    a(f"v_mul_u32_u24 v{vT+1}, 1280, v{vSlot}"); a(f"v_add_u32 v{vT+1}, s{sT2}, v{vT+1}")
    a(f"v_add_u32 v{vW2o}, v{vT}, v{vT+1}")
    a(f"v_lshl_add_u32 v{vWo}, v{vT+1}, 2, v{vT}")
    a.c("y publish offset: block of (slab, line) + (3G + rho)*128 + i*4")
    def yblock(dst, k, w, tmp):
        if yhome is None:
            a(f"s_lshl_b32 s{dst}, s{k}, 1"); a(f"s_add_u32 s{dst}, s{dst}, s{w}"); a(f"s_mul_i32 s{dst}, s{dst}, 3072")
        else:
            tab = sum(((ytab[i] ^ yhome) & 7) << (3*i) for i in range(10))
            a(f"s_mul_i32 s{tmp}, s{k}, 3"); a(f"s_lshr_b32 s{tmp}, {tab:#x}, s{tmp}"); a(f"s_and_b32 s{tmp}, s{tmp}, 7")
            a(f"s_lshl_b32 s{dst}, s{k}, 1"); a(f"s_add_u32 s{dst}, s{dst}, s{w}")
            a(f"s_cmp_ge_u32 s{dst}, 16"); a(f"s_cselect_b32 s{sSpin}, 4, 0"); a(f"s_xor_b32 s{tmp}, s{tmp}, s{sSpin}"); a(f"s_mov_b32 s{sSpin}, {spin}")
            a(f"s_lshl_b32 s{dst}, s{dst}, 3"); a(f"s_add_u32 s{dst}, s{dst}, s{tmp}"); a(f"s_lshl_b32 s{dst}, s{dst}, 12")
        a(f"s_add_u32 s{dst}, s{dst}, {WS_YP}")
    yblock(sT1, sK, sW, sT2)
    a(f"s_mul_i32 s{sT2}, s{sG}, 3"); a(f"s_add_u32 s{sT2}, s{sT2}, s{sT0}")
    a(f"s_lshl_b32 s{sT2}, s{sT2}, 7"); a(f"s_add_u32 s{sT1}, s{sT1}, s{sT2}")
    a(f"v_lshl_add_u32 v{vYo}, v{vT+3}, 2, s{sT1}")
    a.c("gather offsets")
    a(f"s_min_u32 s{sT0}, s{sW}, 5"); a(f"s_mul_i32 s{sT1}, s{sH}, 6"); a(f"s_add_u32 s{sT0}, s{sT0}, s{sT1}")
    a(f"s_lshl_b32 s{sT0}, s{sT0}, 10"); a(f"s_add_u32 s{sQo}, s{sT0}, {WS_QP}")
    a(f"s_lshl_b32 s{sT0}, s{sPhi}, 10"); a(f"s_add_u32 s{sFo}, s{sT0}, {WS_FP}")
    step(1)
    if skel == 1:
        kdone[0] = 8
        a(f"buffer_store_dword v{vPubD}, v{vPubA}, {sr(dWS,4)}, 0 offen")
        limit[0] = len(stream)
        while pos[0] < len(stream): step()
        a("s_waitcnt vmcnt(0)"); a("s_endpgm")
        pos[0] = 6; arrived[0] = 2; kdone[0] = 0
    a.wait_vm("xb")
    xs = [vQ + i for i in range(10)]
    for i in range(5):
        src = vXa + i if i < 4 else vXb
        a(f"v_lshlrev_b32 v{xs[2*i]}, 16, v{src}"); a(f"v_and_b32 v{xs[2*i+1]}, 0xffff0000, v{src}")
    a(f"v_add_f32 v{vT}, v{xs[0]}, v{xs[1]}"); a(f"v_add_f32 v{vT+1}, v{xs[2]}, v{xs[3]}")
    for i in range(4, 10): a(f"v_add_f32 v{vT+(i&1)}, v{vT+(i&1)}, v{xs[i]}")
    a(f"v_add_f32 v{vT}, v{vT}, v{vT+1}")
    red8("v_add_f32", [vT]); red_hi("v_add_f32", [vT])
    a(f"v_readlane_b32 s{sT0}, v{vT}, 63")
    a(f"v_mov_b32 v{vT+2}, {f2u(1/640.):#x}")
    step(1)
    a(f"v_mul_f32 v{vT+3}, s{sT0}, v{vT+2}")
    for i in range(10): a(f"v_sub_f32 v{xs[i]}, v{xs[i]}, v{vT+3}")
    a(f"v_mul_f32 v{vT}, v{xs[0]}, v{xs[0]}"); a(f"v_mul_f32 v{vT+1}, v{xs[1]}, v{xs[1]}")
    for i in range(2, 10): a(f"v_fmac_f32 v{vT+(i&1)}, v{xs[i]}, v{xs[i]}")
    a(f"v_add_f32 v{vT}, v{vT}, v{vT+1}")
    red8("v_add_f32", [vT]); red_hi("v_add_f32", [vT])
    a(f"v_readlane_b32 s{sT0}, v{vT}, 63")
    step(1)
    a(f"v_mul_f32 v{vT+2}, s{sT0}, v{vT+2}")
    rne(vT+2, vT+2); rne(vT+3, vT+3)
    a(f"v_add_f32 v{vT+2}, {f2u(1e-5):#x}, v{vT+2}"); rne(vT+2, vT+2)
    a(f"v_sqrt_f32 v{vT+2}, v{vT+2}"); rne(vT+2, vT+2)
    a(f"v_rcp_f32 v{vT+4}, v{vT+2}")
    a.wait_vm("xr1")
    for x in (vXr0, vXr1):
        a(f"v_lshlrev_b32 v{x}, 16, v{x}"); a(f"v_sub_f32 v{x}, v{x}, v{vT+3}"); rne(x, x)
        a(f"v_mul_f32 v{vT}, v{x}, v{vT+4}"); a(f"v_fma_f32 v{vT+1}, -v{vT}, v{vT+2}, v{x}")
        a(f"v_fma_f32 v{vT}, v{vT+1}, v{vT+4}, v{vT}")
        a(f"v_cvt_pk_bf16_f32 v{x}, v{vT}, v{vT}")
    step(1)
    buildA(vA, vXr0); buildA(vA2, vXr1)
    a.c("hand-off tags of this launch")
    a("s_waitcnt lgkmcnt(0)")
    a(f"s_add_u32 s{sE}, s{sE}, 0x01010101")
    for k in range(4): a(f"s_bfe_u32 s{sTag[k]}, s{sE}, {(8 << 16) | (8*k):#x}")
    a(f"s_getreg_b32 s{sT0}, hwreg(HW_REG_XCC_ID, 0, 4)")
    if forceslow: a(f"s_and_b32 s{sT0}, s{sC}, 1")
    a(f"s_lshl_b32 s{sTagF}, s{sTag[3]}, 4"); a(f"s_and_b32 s{sTagF}, s{sTagF}, 0xf0"); a(f"s_or_b32 s{sTagF}, s{sTagF}, s{sT0}")
    a(f"v_and_b32 v{vT}, 3, v{vL}"); a(f"v_lshlrev_b32 v{vT}, 3, v{vT}")
    a(f"v_bfe_u32 v{vTg1}, s{sE}, v{vT}, 8")
    a(f"s_add_u32 s{sE}, s{sE}, 0x01010101")
    a(f"v_bfe_u32 v{vTg2}, s{sE}, v{vT}, 8")
    a(f"v_mov_b32 v{vPubD}, v{vTg1}")
    a(f"s_mov_b32 exec_lo, 0"); a(f"s_mov_b32 exec_hi, 0x88888888")
    a(f"v_mov_b32 v{vPubD}, s{sTagF}")
    a("s_mov_b64 exec, -1")
    a(f"s_mov_b32 s{sCnt}, {timeout}")
    for i in range(6):
        g, j = divmod(i, 3)
        need(f"S{i}")
        a(f"v_mfma_f32_16x16x32_bf16 {vr(vD+4*j,4)}, {vr(vA if g == 0 else vA2,4)}, {vr(vW+4*i,4)}, {'0' if g == 0 else vr(vD+4*j,4)}")
    step(extra, D + extra)
    def red_write(base, regs):
        a(f"s_mov_b64 exec, {sr(sVal,2)}")
        for j, r in enumerate(regs): a(f"ds_write_b128 v{vRedW}, {vr(r,4)} offset:{base+256*j}")
        a("s_mov_b64 exec, -1")
        a("s_waitcnt lgkmcnt(0)"); a("s_barrier")
    def red_read(base):
        b = base // 256
        for q in range(4): a(f"ds_read2st64_b32 {vr(vT+2*q,2)}, v{vRedR} offset0:{b+12*q} offset1:{b+12*q+6}")
    def red_sum8(dst, tag):
        a("s_waitcnt lgkmcnt(2)")
        a(f"v_add_f32 v{vT}, v{vT}, v{vT+1}"); a(f"v_add_f32 v{vT+2}, v{vT+2}, v{vT+3}")
        a("s_waitcnt lgkmcnt(0)")
        a(f"v_add_f32 v{vT+4}, v{vT+4}, v{vT+5}"); a(f"v_add_f32 v{vT+6}, v{vT+6}, v{vT+7}")
        a(f"v_add_f32 v{vT}, v{vT}, v{vT+2}"); a(f"v_add_f32 v{vT+4}, v{vT+4}, v{vT+6}")
        a(f"v_add_f32 v{vT+1}, v{vT}, v{vT+4}"); a(f"v_add_f32 v{vT}, v{vT}, v{vT+4}")
        a(f"v_permlane32_swap_b32 v{vT}, v{vT+1}")
        a(f"v_add_f32 v{vT}, v{vT}, v{vT+1}")
        a(f"v_and_or_b32 v{dst}, v{vT}, s{sT3}, v{tag}")
    a(f"s_mov_b32 s{sT3}, 0xffffff00")
    red_write(LDS_RED, [vD, vD+4, vD+8]); red_read(LDS_RED)
    a("s_waitcnt lgkmcnt(0)")
    a(f"v_add_f32 v{vT}, v{vT}, v{vT+1}"); a(f"v_add_f32 v{vT+2}, v{vT+2}, v{vT+3}"); a(f"v_add_f32 v{vT+5}, v{vT+5}, v{vT+6}")
    a(f"v_add_f32 v{vT}, v{vT}, v{vT+4}"); a(f"v_add_f32 v{vT+5}, v{vT+5}, v{vT+7}"); a(f"v_add_f32 v{vT}, v{vT}, v{vT+2}")
    a(f"v_permlane32_swap_b32 v{vT}, v{vT+5}")
    a(f"v_add_f32 v{vT}, v{vT}, v{vT+5}")
    a(f"v_and_or_b32 v{vPubD}, v{vT}, s{sT3}, v{vPubD}")
    a(f"buffer_store_dword v{vPubD}, v{vPubA}, {sr(dWS,4)}, 0 offen", "pubq")
    stamp()
    issue_to(f"K{qpos-1}")
    qload = f"buffer_load_dwordx4 {vr(vG,4)}, v{vL16}, {sr(dWS,4)}, s{sQo} offen sc1"
    fload = f"buffer_load_dwordx4 {vr(vG2,4)}, v{vL16}, {sr(dWS,4)}, s{sFo} offen sc1"
    a(qload, "gq"); a(fload, "gf")
    need(f"K{qpos-1}")
    step(extra, D + extra)
    a.wait_vm("gf")
    tgF = sTag[:3] + [sTagF]
    lchk = a.newlabel("x1chk"); lok = a.newlabel("x1ok"); lslow = a.newlabel("x1slow")
    a.label(lchk)
    untag([(vG, sTag), (vG2, tgF)])
    a(f"s_cbranch_vccnz {lslow}")
    a.label(lok)
    c = Asm(); c.nlabel = 1000
    c.label(lslow)
    c.c("not all there yet, or a producer sits on another die")
    c(f"v_or3_b32 v{vT}, v{vG}, v{vG+1}, v{vG+2}"); c(f"v_or3_b32 v{vT}, v{vT}, v{vG+3}, v{vG2}"); c(f"v_or3_b32 v{vT}, v{vT}, v{vG2+1}, v{vG2+2}")
    c(f"v_and_b32 v{vT}, 0xff, v{vT}"); c(f"v_and_b32 v{vT+1}, 0xf0, v{vG2+3}"); c(f"v_or_b32 v{vT}, v{vT}, v{vT+1}")
    c(f"v_cmp_ne_u32 vcc, 0, v{vT}")
    c("s_cbranch_vccnz L_x1wait")
    c(f"s_mov_b32 s{sReg}, {SLOW}")
    c(f"v_and_b32 v{vG2+3}, 0xffffff00, v{vG2+3}")
    c(f"buffer_store_dword v{vPubD}, v{vPubA}, {sr(dWS,4)}, s{sReg} offen sc1")
    c(f"s_branch {lok}")
    c.label("L_x1wait")
    c(f"s_sub_u32 s{sSpin}, s{sSpin}, 1"); c("s_cbranch_scc1 L_end")
    c(f"s_sub_u32 s{sCnt}, s{sCnt}, 1")
    c(f"s_cmp_lg_u32 s{sCnt}, 0"); c("s_cbranch_scc1 L_x1nopub")
    c(f"s_mov_b32 s{sT0}, {SLOW}")
    c(f"buffer_store_dword v{vPubD}, v{vPubA}, {sr(dWS,4)}, s{sT0} offen sc1")
    c.label("L_x1nopub")
    c.c("after the time-out look at the two areas in turn")
    c(f"s_and_b32 s{sT0}, s{sCnt}, 0x80000001"); c(f"s_cmp_eq_u32 s{sT0}, 0x80000001"); c(f"s_cselect_b32 s{sT0}, {SLOW}, 0")
    c(f"s_add_u32 s{sT1}, s{sT0}, s{sFo}"); c(f"s_add_u32 s{sT0}, s{sT0}, s{sQo}")
    c(qload.replace(f"s{sQo} offen", f"s{sT0} offen")); c(fload.replace(f"s{sFo} offen", f"s{sT1} offen"))
    c("s_waitcnt vmcnt(0)"); c(f"s_branch {lchk}")
    cold.append(c.out)
    red8("v_add_f32", [vG+k for k in range(4)] + [vG2+k for k in range(4)])
    a(f"v_cvt_pk_bf16_f32 v{vG}, v{vG}, v{vG+1}"); a(f"v_cvt_pk_bf16_f32 v{vG+1}, v{vG+2}, v{vG+3}")
    a(f"s_min_u32 s{sT0}, s{sW}, 5"); a(f"s_lshl_b32 s{sT0}, s{sT0}, 6")
    a(f"v_lshl_add_u32 v{vT+2}, v{vSlot}, 3, s{sT0}")
    a(f"ds_write_b64 v{vT+2}, {vr(vG,2)} offset:{LDS_Q}")
    a(f"v_lshlrev_b32 v{vT+3}, 4, v{vCh}")
    a("s_waitcnt lgkmcnt(0)"); a("s_barrier")
    for j in range(3): a(f"ds_read_b128 {vr(vQ+4*j,4)}, v{vT+3} offset:{LDS_Q+128*j}")
    step(1)
    a.c("SwiGLU for this wave's eight hidden units")
    for k in range(4): a(f"v_add_f32_dpp v{vG2+k}, v{vG2+k}, v{vG2+k} row_mirror {DP}")
    a(f"v_and_b32 v{vT}, 1, v{vSlot}"); a(f"v_cmp_eq_u32 vcc, 1, v{vT}")
    a(f"v_cndmask_b32 v{vG2}, v{vG2}, v{vG2+1}, vcc"); a(f"v_cndmask_b32 v{vG2+2}, v{vG2+2}, v{vG2+3}, vcc")
    rne(vG2, vG2); rne(vG2+2, vG2+2)
    a(f"v_permlane16_swap_b32 v{vG2}, v{vG2+2}")
    a(f"v_mul_f32 v{vT}, {f2u(-1.4426950408889634):#x}, v{vG2}")
    a(f"v_exp_f32 v{vT}, v{vT}"); a(f"v_add_f32 v{vT}, 1.0, v{vT}"); a(f"v_rcp_f32 v{vT}, v{vT}")
    a(f"v_mul_f32 v{vT}, v{vT}, v{vG2}"); rne(vT, vT)
    a(f"v_mul_f32 v{vT}, v{vT}, v{vG2+2}")
    a(f"v_cvt_pk_bf16_f32 v{vH}, v{vT}, v{vT}")
    a("s_waitcnt lgkmcnt(0)")
    stamp()
    for g in range(8):
        need(f"K{3*g+2}")
        b = vKV + 12*g
        a(f"v_dot2_f32_bf16 v{vSc+g}, v{b}, v{vQ}, 0")
        a(f"v_dot2_f32_bf16 v{vT}, v{b+1}, v{vQ+1}, 0")
        for i in range(2, 12):
            d = vSc+g if i % 2 == 0 else vT
            a(f"v_dot2_f32_bf16 v{d}, v{b+i}, v{vQ+i}, v{d}")
        kdone[0] = g + 1
        if g % 3 == 2: step(1)
        a(f"v_add_f32 v{vSc+g}, v{vSc+g}, v{vT}")
    sc = [vSc+g for g in range(8)]
    red8("v_add_f32", sc)
    for r in sc: a(f"v_cvt_pk_bf16_f32 v{r}, v{r}, v{r}")
    for r in sc: a(f"v_and_b32 v{r}, 0xffff0000, v{r}")
    step(1)
    for r in sc: a(f"v_mul_f32 v{r}, {f2u(192 ** -0.5):#x}, v{r}")
    for r in sc: a(f"v_cvt_pk_bf16_f32 v{r}, v{r}, v{r}")
    for r in sc: a(f"v_and_b32 v{r}, 0xffff0000, v{r}")
    a(f"v_max3_f32 v{vG}, v{sc[0]}, v{sc[1]}, v{sc[2]}"); a(f"v_max3_f32 v{vG+1}, v{sc[3]}, v{sc[4]}, v{sc[5]}")
    a(f"v_max3_f32 v{vG}, v{vG}, v{sc[6]}, v{sc[7]}"); a(f"v_max_f32 v{vG}, v{vG}, v{vG+1}")
    red_hi("v_max_f32", [vG])
    a(f"v_readlane_b32 s{sT0}, v{vG}, 63")
    L2E = f"{f2u(1.4426950408889634):#x}"
    step(1)
    for k in range(8): a(f"v_subrev_f32 v{vT+k}, s{sT0}, v{sc[k]}")
    for k in range(8): a(f"v_mul_f32 v{vT+k}, {L2E}, v{vT+k}")
    for k in range(8): a(f"v_exp_f32 v{vT+k}, v{vT+k}")
    for k in range(4): a(f"v_add_f32 v{vT+k}, v{vT+k}, v{vT+4+k}")
    a(f"v_add_f32 v{vT}, v{vT}, v{vT+1}"); a(f"v_add_f32 v{vT+2}, v{vT+2}, v{vT+3}"); a(f"v_add_f32 v{vG+1}, v{vT}, v{vT+2}")
    red_hi("v_add_f32", [vG+1])
    a(f"v_or_b32 v{vG}, s{sTag[0]}, v{vG}")
    a(f"v_and_b32 v{vG+1}, 0xffffff00, v{vG+1}"); a(f"v_or_b32 v{vG+1}, s{sTag[1]}, v{vG+1}")
    a(f"v_mov_b32 v{vG+2}, s{sTag[2]}"); a(f"v_mov_b32 v{vG+3}, s{sTag[3]}")
    a(f"s_lshl_b32 s{sT0}, s{sP}, 3"); a(f"s_add_u32 s{sT0}, s{sT0}, s{sW}"); a(f"s_lshl_b32 s{sT0}, s{sT0}, 4")
    a(f"s_add_u32 s{sT0}, s{sT0}, {WS_ML}"); a(f"v_mov_b32 v{vT}, s{sT0}")
    a(f"s_mov_b32 exec_lo, 0"); a(f"s_mov_b32 exec_hi, 0x80000000")
    pub(f"buffer_store_dwordx4 {vr(vG,4)}, v{vT}, {sr(dWS,4)}, s{sReg} offen", "pubml")
    a("s_mov_b64 exec, -1")
    stamp()
    a.c("down projection of the SwiGLU part")
    buildA(vXa, vH)
    if not late4:
        need("W4")
        a(f"v_mfma_f32_16x16x32_bf16 {vr(vY,4)}, {vr(vXa,4)}, {vr(vW+16,4)}, 0")
    issue_to(f"V{mlpos-1}")
    a(f"s_lshl_b32 s{sT0}, s{sH}, 10"); a(f"s_add_u32 s{sT0}, s{sT0}, {WS_ML}"); a(f"s_add_u32 s{sT0}, s{sT0}, s{sReg}")
    mload = f"buffer_load_dwordx4 {vr(vG,4)}, v{vL16}, {sr(dWS,4)}, s{sT0} offen sc1"
    a(mload, "gm")
    need(f"V{mlpos-1}")
    a.wait_vm("gm")
    poll_check([(vG, mload)], sTag)
    a(f"v_mov_b32 v{vT}, v{vG}")
    red8("v_max_f32", [vT]); red_hi("v_max_f32", [vT])
    a(f"v_readlane_b32 s{sT0}, v{vT}, 63")
    a(f"v_subrev_f32 v{vT}, s{sT0}, v{vG}"); a(f"v_mul_f32 v{vT}, {L2E}, v{vT}"); a(f"v_exp_f32 v{vT}, v{vT}")
    a(f"v_mul_f32 v{vT}, v{vT}, v{vG+1}")
    red8("v_add_f32", [vT]); red_hi("v_add_f32", [vT])
    a(f"v_rcp_f32 v{vT}, v{vT}")
    step(1)
    for r in sc: a(f"v_subrev_f32 v{r}, s{sT0}, v{r}")
    a(f"v_readlane_b32 s{sT1}, v{vT}, 63")
    for r in sc: a(f"v_mul_f32 v{r}, {L2E}, v{r}")
    for r in sc: a(f"v_exp_f32 v{r}, v{r}")
    for r in sc: a(f"v_mul_f32 v{r}, s{sT1}, v{r}")
    for r in sc: a(f"v_cvt_pk_bf16_f32 v{r}, v{r}, v{r}")
    step(1)
    a.c("tags and offsets of the o exchange")
    for k in range(4): a(f"s_bfe_u32 s{sTag[k]}, s{sE}, {(8 << 16) | (8*k):#x}")
    a(f"s_lshl_b32 s{sQo}, s{sPhi}, 10"); a(f"s_add_u32 s{sQo}, s{sQo}, {WS_QP}"); a(f"s_add_u32 s{sQo}, s{sQo}, s{sReg}")
    stamp()
    for g in range(8):
        A_ = vA if g % 2 == 0 else vA2
        buildA(A_, sc[g])
        for j in range(3):
            need(f"V{3*g+j}")
            a(f"v_mfma_f32_16x16x32_bf16 {vr(vD+4*j,4)}, {vr(A_,4)}, {vr(vKV+12*g+4*j,4)}, {'0' if g == 0 else vr(vD+4*j,4)}")
            if earlyw and g == 7 and j < 2:
                a(f"s_mov_b64 exec, {sr(sVal,2)}")
                a(f"ds_write_b128 v{vRedW}, {vr(vD+4*j,4)} offset:{LDS_RED+256*j}")
                a("s_mov_b64 exec, -1")
        if g == 3: step(1)
    while pos[0] < limit[0]: load(*stream[pos[0]]); pos[0] += 1
    if skel == 2:
        a("s_waitcnt vmcnt(0)"); a("s_endpgm")
    stamp()
    if earlyw: red_write(LDS_RED + 512, [vD+8])
    else: red_write(LDS_RED, [vD, vD+4, vD+8])
    red_read(LDS_RED)
    red_sum8(vPubD, vTg2)
    a(f"s_mov_b32 exec_hi, 0")
    pub(f"buffer_store_dword v{vPubD}, v{vPubA}, {sr(dWS,4)}, s{sReg} offen", "pubo")
    a("s_mov_b64 exec, -1")
    stamp()
    a(f"s_cmp_ge_u32 s{sC}, 30"); a("s_cbranch_scc1 L_reducer")
    snap = a.snapshot(); n0 = nst[0]
    if hold:
        if holdbar: a("s_barrier")
        while pos[0] < len(stream): load(*stream[pos[0]]); pos[0] += 1
    osets = [vKV + 4*n for n in range(opipe)]
    def oload(n): return f"buffer_load_dwordx4 {vr(osets[n],4)}, v{vL16}, {sr(dWS,4)}, s{sQo} offen sc1"
    for n in range(opipe):
        if hold and pdelay:
            if n == 0: a.wait_vm("pubo")
            elif n < hold: t, i = stream[len(stream) - hold + n - 1]; a.wait_vm(f"{t}{i}")
        a(oload(n))
    if late4:
        a.wait_vm("W4")
        a(f"v_mfma_f32_16x16x32_bf16 {vr(vY,4)}, {vr(vXa,4)}, {vr(vW+16,4)}, 0")
    a.label("L_opoll")
    for n in range(opipe):
        a(f"s_waitcnt vmcnt({opipe-1})")
        untag([(osets[n], sTag)])
        for k in range(4): a(f"v_add_f32_dpp v{vG+k}, v{osets[n]+k}, v{osets[n]+k} quad_perm:[1,0,3,2] {DP}")
        a("s_cbranch_vccz L_ogot")
        a(oload(n))
    a(f"s_sub_u32 s{sSpin}, s{sSpin}, 1"); a("s_cbranch_scc0 L_opoll")
    a("s_endpgm")
    a.label("L_ogot")
    if skel == 3: a("s_endpgm")
    stamp()
    for m in ("quad_perm:[2,3,0,1]", "row_half_mirror"):
        for k in range(4): a(f"v_add_f32_dpp v{vG+k}, v{vG+k}, v{vG+k} {m} {DP}")
    for k in range(4): a(f"v_cvt_pk_bf16_f32 v{vG+k}, v{vG+k}, v{vG+k}")
    for r in range(4):
        A_ = (vA, vA2, vG2, vT)[r]
        buildA(A_, vG+r)
        if r >= 1: a(f"v_mfma_f32_16x16x32_bf16 {vr(vY,4)}, {vr((vA, vA2, vG2, vT)[r-1],4)}, {vr(vW+4*(r-1),4)}, {vr(vY,4)}")
    a(f"v_mfma_f32_16x16x32_bf16 {vr(vY,4)}, {vr(vT,4)}, {vr(vW+12,4)}, {vr(vY,4)}")
    red_write(LDS_RED2, [vY])
    lx = a.newlabel("exit")
    a(f"s_cmp_ge_u32 s{sW}, 2"); a(f"s_cbranch_scc1 {lx}")
    red_read(LDS_RED2)
    red_sum8(vPubD, vTg2)
    a(f"s_mov_b32 exec_hi, 0")
    a(f"buffer_store_dword v{vPubD}, v{vYo}, {sr(dWS,4)}, 0 offen sc1", "puby")
    a.label(lx)
    stamp()
    finish()
    a.label("L_reducer")
    a.restore(snap); nst[0] = n0
    if skel in (3, 4): a("s_endpgm")
    lx = a.newlabel("exit")
    a(f"s_lshl_b32 s{sK}, s{sK}, 3"); a(f"s_add_u32 s{sK}, s{sK}, s{sG}")
    a(f"s_cmp_ge_u32 s{sW}, 2"); a(f"s_cbranch_scc1 {lx}")
    a(f"s_cmp_ge_u32 s{sK}, 10"); a(f"s_cbranch_scc1 {lx}")
    yblock(sT0, sK, sW, sT1)
    a(f"s_lshl_b32 s{sK}, s{sK}, 1"); a(f"s_add_u32 s{sK}, s{sK}, s{sW}")
    y = vD
    def yl(n): return [(vKV+12*n+4*i, f"buffer_load_dwordx4 {vr(vKV+12*n+4*i,4)}, v{vL16}, {sr(dWS,4)}, s{sT0} offen offset:{1024*i} sc1") for i in range(3)]
    a.c("output column of this lane: 32*line + 4*(l&7) + (l>>4)")
    a(f"v_lshrrev_b32 v{vT+1}, 4, v{vL}"); a(f"v_lshl_add_u32 v{vT+1}, v{vCh}, 2, v{vT+1}")
    a(f"s_lshl_b32 s{sT1}, s{sK}, 6"); a(f"v_lshl_add_u32 v{vYo}, v{vT+1}, 1, s{sT1}")
    a(f"buffer_load_ushort v{vXo}, v{vYo}, {sr(dX,4)}, 0 offen")
    a.c("line 0's reducer hears (through its producers) from every workgroup: it advances the hand-off epoch")
    a(f"s_cmp_eq_u32 s{sK}, 0"); a(f"s_cselect_b32 s{sT2}, {WS_E}, {OOB}")
    a(f"v_mov_b32 v{vT+4}, s{sE}"); a(f"v_mov_b32 v{vT+5}, {OOB}"); a(f"v_mov_b32 v{vT+6}, {OOB}")
    a("s_waitcnt vmcnt(0)")
    a(f"v_lshlrev_b32 v{vXo}, 16, v{vXo}")
    if ydry:
        a.c("one pass through the last lines with every store out of range: they are in the instruction cache afterwards")
        a(f"s_mov_b32 s{sT1}, 1"); a("s_branch L_yfin")
        a.label("L_ystart")
        a("s_mov_b64 exec, -1")
    a(f"s_mov_b32 s{sT1}, 0")
    a(f"v_mov_b32 v{vT+5}, s{sT2}"); a(f"v_mov_b32 v{vT+6}, v{vYo}")
    for n in range(ypipe):
        for _, t in yl(n): a(t)
    a.label("L_ypoll")
    for n in range(ypipe):
        a(f"s_waitcnt vmcnt({3*(ypipe-1)})")
        untag([(g, sTag) for g, _ in yl(n)])
        b = vKV + 12*n
        for k in range(4): a(f"v_add_f32 v{y+k}, v{b+k}, v{b+4+k}")
        for k in range(4): a(f"v_add_f32 v{y+k}, v{y+k}, v{b+8+k}")
        a("s_cbranch_vccz L_yfin")
        for _, t in yl(n): a(t)
    a(f"s_sub_u32 s{sSpin}, s{sSpin}, 1"); a("s_cbranch_scc0 L_ypoll")
    a("s_endpgm")
    a.label("L_yfin")
    a("s_nop 0")
    nst[0] = 9
    stamp()
    a(f"v_permlane32_swap_b32 v{y}, v{y+2}"); a(f"v_permlane32_swap_b32 v{y+1}, v{y+3}")
    a(f"v_add_f32 v{y}, v{y}, v{y+2}"); a(f"v_add_f32 v{y+1}, v{y+1}, v{y+3}")
    a(f"v_permlane16_swap_b32 v{y}, v{y+1}")
    a(f"v_add_f32 v{y}, v{y}, v{y+1}")
    a(f"v_add_f32_dpp v{y}, v{y}, v{y} row_ror:8 {DP}")
    a(f"v_add_f32 v{y}, v{y}, v{vXo}")
    a(f"v_cvt_pk_bf16_f32 v{y}, v{y}, v{y}")
    a(f"s_mov_b32 exec_lo, 0x00ff00ff"); a(f"s_mov_b32 exec_hi, 0x00ff00ff")
    a(f"buffer_store_short v{y}, v{vT+6}, {sr(dOUT,4)}, 0 offen")
    a("s_mov_b64 exec, 1")
    a(f"buffer_store_dword v{vT+4}, v{vT+5}, {sr(dWS,4)}, 0 offen")
    if ydry:
        a(f"s_cmp_lg_u32 s{sT1}, 0"); a("s_cbranch_scc1 L_ystart")
    a.label(lx)
    nst[0] = 8
    stamp()
    finish()
    for blk in cold:
        for ln in blk: a.raw(ln)
    a.label("L_end")
    a("s_endpgm")
    if prefetch: a.raw("    .fill 2048, 4, 0xbf810000")
    nv = (V.n + 7) // 8 * 8
    a.raw('.section .rodata,"a"'); a.raw(".p2align 6"); a.raw(f".amdhsa_kernel {NAME}_kernel")
    a.raw(f"  .amdhsa_next_free_vgpr {nv}"); a.raw("  .amdhsa_next_free_sgpr 102"); a.raw(f"  .amdhsa_accum_offset {nv}")
    a.raw("  .amdhsa_group_segment_fixed_size 0"); a.raw("  .amdhsa_kernarg_size 96"); a.raw("  .amdhsa_user_sgpr_count 2")
    a.raw("  .amdhsa_user_sgpr_kernarg_segment_ptr 1"); a.raw("  .amdhsa_system_sgpr_workgroup_id_x 1")
    a.raw(".end_amdhsa_kernel")
    return a.text()

if __name__ == "__main__":
    kw = {}
    out = sys.argv[1]
    for x in sys.argv[2:]:
        k, v = x.split("=")
        try: v = eval(v)
        except Exception: pass
        kw[k] = v
    open(out, "w").write(gen(**kw))
```

```python
import sys, struct
sys.path.insert(0, "dev")
from asmlib import *

NAME = "parallel_sum__gqa_block_cached__glu_gated_swiglu__decode"
def f2u(x): return struct.unpack("<I", struct.pack("<f", x))[0]

WS_E  = 0
WS_QP = 0x10000
WS_FP = 0x40000
WS_ML = 0x70000
SLOW  = 0x70000
WS_YP = 0x100000
WS_ST = 0x400000
WS_SIZE = 0x800000
OOB = 0x40000000
LDS_RED = 0
LDS_RED2 = 12288
LDS_Q = 24576

def gen(D=3, qpos=17, mlpos=16, nafter=5, wpos=0, ld="nt", stamps=False, lds=90112, prefetch=True, spin=1 << 20,
        diag=None, timeout=24, forceslow=False, extra=1, ypipe=3, skel=0, ydry=True, amp=0, selx=None, hold=2, holdbar=True, opipe=1, enddeep=0, earlyw=True, pdelay=True, yhome=None, ytab=None, ydual=True, yforce=None, drop=(), dsched=None, osc1=False, owait=None, osleep=0, olight=False, omask=False):
    a = Asm()
    hdr = open("cdna_kernels/" + NAME + ".s.ref").read().split("\n")
    for ln in hdr:
        if ln.startswith(";") and "@launch" not in ln and "Override launch" not in ln and "grid=ceil" not in ln: a.raw(ln)
    a.raw(f"; @launch grid=(256,1,1) block=(512,1,1) lds={lds}")
    a.raw('.amdgcn_target "amdgcn-amd-amdhsa--gfx950"')
    a.raw(".text"); a.raw(f".globl {NAME}_kernel"); a.raw(".p2align 8"); a.raw(f".type {NAME}_kernel,@function")
    a.label(f"{NAME}_kernel")
    V = Regs(1, 256, "v"); S = Regs(28, 102, "s")
    pX, pK, pV, pWQ, pWO, pBX, pW1, pW3, pW2, pOUT, pDBG, pWS = [4 + 2*i for i in range(12)]
    dK, dV, dS1, dWS, dX = [S.get(4) for _ in range(5)]
    dWO, dW2, dOUT = 12, 20, S.get(4)
    sW, sG, sC, sP, sH, sS, sE, sT0, sT1, sT2, sT3, sSpin, sReg, sPhi, sK, sCnt, sQo, sFo = [S.get() for _ in range(18)]
    sTag = [S.get() for _ in range(4)]
    sTagF = S.get()
    sOff = [S.get() for _ in range(3)]
    sVal = S.get(2); sTm = S.get(2); sStart = S.get(2)
    sSt = S.get(16) if (stamps or diag is not None) else None
    (vL, vSlot, vCh, vKoff, vS1a, vS1b, vXr0, vXr1, vRedW, vRedR, vL16, vPubA, vPubD, vTg1, vTg2, vWo, vW2o, vH, vXo, vYo) = [V.get() for _ in range(20)]
    vM = V.get(4); vA = V.get(4); vA2 = V.get(4); vG = V.get(4); vG2 = V.get(4); vT = V.get(8); vXa = V.get(4); vXb = V.get()
    vY = V.get(4); vSc = V.get(8); vQ = V.get(12); vD = V.get(12); vW = V.get(24); vKV = V.get(96)
    cold = []
    nst = [0]
    def stamp():
        if diag is not None:
            if nst[0] == diag:
                a(f"s_memrealtime {sr(sTm,2)}"); a("s_waitcnt lgkmcnt(0)"); a(f"s_mov_b32 s{sSt}, s{sTm}")
        elif stamps:
            a(f"s_memrealtime {sr(sTm,2)}"); a("s_waitcnt lgkmcnt(0)"); a(f"s_mov_b32 s{sSt+nst[0]}, s{sTm}")
        nst[0] += 1
    def finish():
        if diag is not None:
            if selx is not None:
                a(f"s_getreg_b32 s{sT0}, hwreg(HW_REG_XCC_ID, 0, 4)"); a(f"s_cmp_lg_u32 s{sT0}, {selx}"); a("s_cbranch_scc1 L_end")
            a(f"s_sub_u32 s{sSt}, s{sSt}, s{sStart}"); a(f"s_mul_i32 s{sSt}, s{sSt}, {amp or 1}"); a(f"s_add_u32 s{sSt}, s{sSt}, 5000")
            lp = a.newlabel("pad"); a.label(lp)
            a(f"s_memrealtime {sr(sTm,2)}"); a("s_waitcnt lgkmcnt(0)")
            a(f"s_sub_u32 s{sTm}, s{sTm}, s{sStart}"); a(f"s_cmp_lt_u32 s{sTm}, s{sSt}"); a(f"s_cbranch_scc1 {lp}")
        elif stamps:
            lp = a.newlabel("pad"); a.label(lp)
            a(f"s_memrealtime {sr(sTm,2)}"); a("s_waitcnt lgkmcnt(0)")
            a(f"s_sub_u32 s{sTm}, s{sTm}, s{sStart}"); a(f"s_cmp_lt_u32 s{sTm}, 3000"); a(f"s_cbranch_scc1 {lp}")
            a(f"s_mov_b32 s{sSt+13}, s{sReg}"); a(f"s_mov_b32 s{sSt+14}, s{sStart}"); a(f"s_mov_b32 s{sSt+15}, s{sSpin}")
            a(f"s_lshl_b32 s{sT0}, s{sP}, 3"); a(f"s_add_u32 s{sT0}, s{sT0}, s{sW}"); a(f"s_lshl_b32 s{sT0}, s{sT0}, 6")
            a("s_mov_b64 exec, 1")
            a(f"s_add_u32 s{sT0}, s{sT0}, {WS_ST}"); a(f"v_mov_b32 v{vT}, s{sT0}")
            for q in range(4):
                for k in range(4): a(f"v_mov_b32 v{vKV+4*q+k}, s{sSt+4*q+k}")
                a(f"buffer_store_dwordx4 {vr(vKV+4*q,4)}, v{vT}, {sr(dWS,4)}, 0 offen offset:{16*q}")
        a("s_endpgm")
    def rne(dst, src):
        a(f"v_cvt_pk_bf16_f32 v{dst}, v{src}, v{src}"); a(f"v_and_b32 v{dst}, 0xffff0000, v{dst}")
    DP = "row_mask:0xf bank_mask:0xf"
    def red8(op, regs):
        for m in ("quad_perm:[1,0,3,2]", "quad_perm:[2,3,0,1]", "row_half_mirror"):
            for r in regs: a(f"{op}_dpp v{r}, v{r}, v{r} {m} {DP}")
    def red_hi(op, regs):
        for r in regs: a(f"{op}_dpp v{r}, v{r}, v{r} row_ror:8 {DP}")
        for r in regs: a(f"{op}_dpp v{r}, v{r}, v{r} row_bcast:15 row_mask:0xa bank_mask:0xf")
        for r in regs: a(f"{op}_dpp v{r}, v{r}, v{r} row_bcast:31 row_mask:0xc bank_mask:0xf")
    def buildA(dst, dup):
        for k in range(4): a(f"v_and_b32 v{dst+k}, v{dup}, v{vM+k}")
    def untag(sets):
        for g, tg in sets:
            for k in range(4): a(f"v_xor_b32 v{g+k}, s{tg[k]}, v{g+k}")
        rs = [g+k for g, _ in sets for k in range(4)]
        a(f"v_or3_b32 v{vT}, v{rs[0]}, v{rs[1]}, v{rs[2]}"); rs = rs[3:]
        while rs:
            if len(rs) >= 2: a(f"v_or3_b32 v{vT}, v{vT}, v{rs[0]}, v{rs[1]}"); rs = rs[2:]
            else: a(f"v_or_b32 v{vT}, v{vT}, v{rs[0]}"); rs = rs[1:]
        a(f"v_and_b32 v{vT}, 0xff, v{vT}")
        a(f"v_cmp_ne_u32 vcc, 0, v{vT}")
    def poll_check(loads, tg):
        lr = a.newlabel("retry"); lo = a.newlabel("ok")
        a.label(lr)
        untag([(g, tg) for g, _ in loads])
        a(f"s_cbranch_vccz {lo}")
        a(f"s_sub_u32 s{sSpin}, s{sSpin}, 1"); a("s_cbranch_scc1 L_end")
        old = a.cond; a.cond = True
        for (_, t) in loads: a(t)
        a.cond = old
        a("s_waitcnt vmcnt(0)"); a(f"s_branch {lr}")
        a.label(lo)
    def pub(text, name):
        ls = a.newlabel("pubslow"); lb = a.newlabel("pubback")
        a(f"s_cmp_lg_u32 s{sReg}, 0"); a(f"s_cbranch_scc1 {ls}")
        a(text, name)
        a.label(lb)
        cold.append([ls + ":", "    " + text + " sc1", f"    s_branch {lb}"])

    stream = [("K", i) for i in range(3)] + [("S", i) for i in range(6)] + [("K", i) for i in range(3, 24)]
    vs = [("V", i) for i in range(24)]
    late4 = nafter == 5
    worder = [0, 1, 2, 3, 4] if late4 else [4, 0, 1, 2, 3]
    stream += vs[:wpos] + [("W", i) for i in worder[:5 - nafter]] + vs[wpos:] + [("W", i) for i in worder[5 - nafter:]]
    limit = [len(stream) - hold]
    idx = {f"{t}{i}": n for n, (t, i) in enumerate(stream)}
    kdone = [0]
    pos = [0]
    def load(t, i):
        if t in "KV":
            g, j = divmod(i, 3)
            if t == "V": assert g < kdone[0], "V load overwrites unconsumed K"
            so = "0" if g < 2 else f"s{sOff[(g>>1)-1]}"
            a(f"buffer_load_dwordx4 {vr(vKV+4*i,4)}, v{vKoff}, {sr(dK if t == 'K' else dV,4)}, {so} offen offset:{3072*(g&1)+128*j} {ld}", f"{t}{i}")
        elif t == "S":
            g, j = divmod(i, 3)
            a(f"buffer_load_dwordx4 {vr(vW+4*i,4)}, v{vS1a if g == 0 else vS1b}, {sr(dS1,4)}, 0 offen offset:{128*j} {ld}", f"S{i}")
        elif i < 4:
            a(f"buffer_load_dwordx4 {vr(vW+4*i,4)}, v{vWo}, {sr(dWO,4)}, 0 offen offset:{1280*i} {ld}", f"W{i}")
        else:
            a(f"buffer_load_dwordx4 {vr(vW+16,4)}, v{vW2o}, {sr(dW2,4)}, 0 offen {ld}", "W4")
    arrived = [-1]
    def wait_idx(n):
        if n > arrived[0]:
            t, i = stream[n]; a.wait_vm(f"{t}{i}"); arrived[0] = n
    def step(n=1, d=None):
        for _ in range(n):
            p = pos[0]
            if p >= limit[0]: return
            dd = d or D
            if dsched:
                for (back, dep) in dsched:
                    if p >= len(stream) - back: dd = max(dd, dep)
            if p - dd >= 0: wait_idx(p - dd)
            load(*stream[p]); pos[0] += 1
    def need(name):
        n = idx[name]
        while arrived[0] < n and pos[0] < limit[0]: step(1, D + 1 if pos[0] >= len(stream) - enddeep else None)
        wait_idx(n)
    def issue_to(name):
        while pos[0] <= idx[name]: step()

    a("s_cmp_ge_u32 s2, 256"); a("s_cbranch_scc1 L_end")
    if diag is not None or stamps: a(f"s_memrealtime {sr(sStart,2)}")
    a("s_load_dwordx16 s[4:19], s[0:1], 0")
    a("s_load_dwordx8 s[20:27], s[0:1], 64")
    a(f"v_lshrrev_b32 v{vT}, 6, v0")
    a(f"v_and_b32 v{vL}, 63, v0")
    a(f"v_readfirstlane_b32 s{sW}, v{vT}")
    a(f"s_and_b32 s{sG}, s2, 7"); a(f"s_lshr_b32 s{sC}, s2, 3")
    a(f"s_lshl_b32 s{sP}, s{sG}, 5"); a(f"s_add_u32 s{sP}, s{sP}, s{sC}")
    a(f"v_lshrrev_b32 v{vSlot}, 3, v{vL}"); a(f"v_and_b32 v{vCh}, 7, v{vL}")
    a(f"s_lshl_b32 s{sT0}, s{sP}, 3"); a(f"s_add_u32 s{sT0}, s{sT0}, s{sW}"); a(f"s_mul_i32 s{sT0}, s{sT0}, 24576")
    a(f"v_mul_u32_u24 v{vKoff}, 384, v{vSlot}")
    a(f"v_lshl_add_u32 v{vT+1}, v{vCh}, 4, s{sT0}")
    a(f"v_add_u32 v{vKoff}, v{vKoff}, v{vT+1}")
    a(f"s_mov_b32 s{dK+2}, 50331648"); a(f"s_mov_b32 s{dK+3}, 0x20000")
    a(f"s_lshr_b32 s{sH}, s{sP}, 3"); a(f"s_and_b32 s{sS}, s{sP}, 7")
    a(f"v_lshlrev_b32 v{vL16}, 4, v{vL}")
    a("s_waitcnt lgkmcnt(0)")
    a(f"s_mov_b64 {sr(dK,2)}, {sr(pK,2)}")
    step(3)
    if diag is not None: a(f"s_mov_b32 s{sSt}, s{sStart}")
    if diag == 100:
        a(f"s_memrealtime {sr(sTm,2)}"); a("s_waitcnt lgkmcnt(0)"); a(f"s_mov_b32 s{sSt}, s{sTm}")
    if diag == 101:
        a("s_waitcnt vmcnt(2)"); a(f"s_memrealtime {sr(sTm,2)}"); a("s_waitcnt lgkmcnt(0)"); a(f"s_mov_b32 s{sSt}, s{sTm}")
    if stamps:
        for i in range(13): a(f"s_mov_b32 s{sSt+i}, 0")
    a(f"s_load_dword s{sE}, {sr(pWS,2)}, {WS_E}")
    a.c("stage-1 role: waves 0-4 wq rows, waves 5-7 w1/w3 rows")
    a(f"s_mov_b64 {sr(dX,2)}, {sr(pX,2)}"); a(f"s_mov_b32 s{dX+2}, 1280"); a(f"s_mov_b32 s{dX+3}, 0x20000")
    a(f"v_lshlrev_b32 v{vT+4}, 2, v{vL}")
    a(f"buffer_load_dwordx4 {vr(vXa,4)}, v{vL16}, {sr(dX,4)}, 0 offen", "xa")
    a(f"buffer_load_dword v{vXb}, v{vT+4}, {sr(dX,4)}, 0 offen offset:1024", "xb")
    a(f"s_mul_i32 s{sT0}, s{sS}, 80")
    a(f"s_and_b32 s{sT1}, s{sC}, 15"); a(f"s_mul_i32 s{sT1}, s{sT1}, 40"); a(f"s_sub_u32 s{sT1}, s{sT1}, 80")
    a(f"s_cmp_lt_u32 s{sC}, 16"); a(f"s_cselect_b64 {sr(dS1,2)}, {sr(pW1,2)}, {sr(pW3,2)}")
    a(f"s_cmp_lt_u32 s{sW}, 5")
    a(f"s_cselect_b64 {sr(dS1,2)}, {sr(pWQ,2)}, {sr(dS1,2)}")
    a(f"s_cselect_b32 s{sT0}, s{sT0}, s{sT1}")
    a(f"s_cselect_b32 s{sT1}, s{sH}, s{sG}")
    a(f"s_cselect_b32 s{sT2}, 12, 3")
    a(f"s_lshl_b32 s{sT2}, s{sT2}, 10")
    a(f"s_mul_i32 s{dS1+2}, s{sT2}, 640"); a(f"s_mov_b32 s{dS1+3}, 0x20000")
    a(f"s_mul_i32 s{sT1}, s{sT1}, 384")
    a(f"s_lshl_b32 s{sT3}, s{sW}, 4"); a(f"s_add_u32 s{sT0}, s{sT0}, s{sT3}")
    a(f"v_add_u32 v{vXr0}, s{sT0}, v{vSlot}")
    a(f"v_mul_lo_u32 v{vS1a}, v{vXr0}, s{sT2}")
    a(f"v_lshlrev_b32 v{vT+2}, 1, v{vXr0}")
    a(f"buffer_load_ushort v{vXr0}, v{vT+2}, {sr(dX,4)}, 0 offen", "xr0")
    a(f"buffer_load_ushort v{vXr1}, v{vT+2}, {sr(dX,4)}, 0 offen offset:16", "xr1")
    a(f"v_lshl_add_u32 v{vT+1}, v{vCh}, 4, s{sT1}")
    a(f"v_add_u32 v{vS1a}, v{vS1a}, v{vT+1}")
    a(f"s_lshl_b32 s{sT2}, s{sT2}, 3")
    a(f"s_cmp_eq_u32 s{sW}, 7"); a(f"s_cselect_b32 s{sT2}, {OOB}, s{sT2}")
    a(f"v_add_u32 v{vS1b}, s{sT2}, v{vS1a}")
    step(extra, D + extra)
    if prefetch:
        a.c("pull this kernel's code into the L2 (each wave one line)")
        a(f"s_getpc_b64 {sr(sTm,2)}")
        a(f"s_lshl_b32 s{sT0}, s{sC}, 3"); a(f"s_add_u32 s{sT0}, s{sT0}, s{sW}"); a(f"s_and_b32 s{sT0}, s{sT0}, 63")
        a(f"s_lshl_b32 s{sT0}, s{sT0}, 7")
        a(f"s_load_dword s{sCnt}, {sr(sTm,2)}, s{sT0}")
    a(f"s_mov_b64 {sr(dV,2)}, {sr(pV,2)}"); a(f"s_mov_b32 s{dV+2}, 50331648"); a(f"s_mov_b32 s{dV+3}, 0x20000")
    a(f"s_mov_b64 {sr(dWS,2)}, {sr(pWS,2)}"); a(f"s_mov_b32 s{dWS+2}, {WS_SIZE}"); a(f"s_mov_b32 s{dWS+3}, 0x20000")
    a(f"s_mov_b64 {sr(dOUT,2)}, {sr(pOUT,2)}"); a(f"s_mov_b32 s{dOUT+2}, 1280"); a(f"s_mov_b32 s{dOUT+3}, 0x20000")
    a(f"s_mov_b32 s{dWO+2}, 7864320"); a(f"s_mov_b32 s{dWO+3}, 0x20000")
    a(f"s_mov_b32 s{dW2+2}, 1966080"); a(f"s_mov_b32 s{dW2+3}, 0x20000")
    for i in range(3): a(f"s_mov_b32 s{sOff[i]}, {6144*(i+1)}")
    a(f"s_mov_b32 s{sSpin}, {spin}"); a(f"s_mov_b32 s{sReg}, 0")
    a(f"s_mov_b32 s{sVal}, 0x00ff00ff"); a(f"s_mov_b32 s{sVal+1}, 0xff00ff00")
    a.c("MFMA A-operand masks")
    a(f"v_and_b32 v{vT}, 1, v{vL}"); a(f"v_lshlrev_b32 v{vT}, 4, v{vT}")
    a(f"v_mov_b32 v{vT+1}, 0xffff"); a(f"v_lshlrev_b32 v{vT}, v{vT}, v{vT+1}")
    a(f"v_lshrrev_b32 v{vT+1}, 1, v{vCh}")
    for k in range(4):
        a(f"v_cmp_eq_u32 vcc, {k}, v{vT+1}"); a(f"v_cndmask_b32 v{vM+k}, 0, v{vT}, vcc")
    a.c("LDS reduce addresses")
    a(f"v_lshrrev_b32 v{vT+2}, 5, v{vL}"); a(f"v_mul_u32_u24 v{vT}, 768, v{vT+2}")
    a(f"v_bfe_u32 v{vT+1}, v{vL}, 4, 1"); a(f"v_lshl_add_u32 v{vT+1}, v{vCh}, 1, v{vT+1}")
    a(f"v_lshl_add_u32 v{vT+1}, v{vT+1}, 4, v{vT}")
    a(f"s_mul_i32 s{sT0}, s{sW}, 1536")
    a(f"v_add_u32 v{vRedW}, s{sT0}, v{vT+1}")
    a(f"v_and_b32 v{vT+3}, 31, v{vL}")
    a(f"s_lshl_b32 s{sT0}, s{sW}, 7")
    a(f"v_lshl_add_u32 v{vT+1}, v{vT+3}, 2, s{sT0}")
    a(f"v_add_u32 v{vRedR}, v{vT}, v{vT+1}")
    step(1)
    a.c("publish offsets: lanes 0-31 q/o slot, lanes 32-63 ffn slot")
    a(f"s_mul_i32 s{sT0}, s{sH}, 6"); a(f"s_add_u32 s{sT0}, s{sT0}, s{sW}"); a(f"s_lshl_b32 s{sT0}, s{sT0}, 10")
    a(f"s_lshl_b32 s{sT1}, s{sS}, 4"); a(f"s_add_u32 s{sT0}, s{sT0}, s{sT1}"); a(f"s_add_u32 s{sT0}, s{sT0}, {WS_QP}")
    a(f"s_mul_i32 s{sT1}, s{sG}, 6"); a(f"s_add_u32 s{sT1}, s{sT1}, s{sW}"); a(f"s_lshl_b32 s{sT1}, s{sT1}, 12")
    a(f"s_lshl_b32 s{sT2}, s{sC}, 4"); a(f"s_add_u32 s{sT1}, s{sT1}, s{sT2}"); a(f"s_add_u32 s{sT1}, s{sT1}, {WS_FP}")
    a(f"s_cmp_lt_u32 s{sW}, 6"); a(f"s_cselect_b32 s{sT0}, s{sT0}, {OOB}"); a(f"s_cselect_b32 s{sT1}, s{sT1}, {OOB}")
    a(f"v_lshrrev_b32 v{vT}, 2, v{vT+3}")
    a(f"v_lshl_add_u32 v{vT+1}, v{vT}, 7, s{sT0}"); a(f"v_lshl_add_u32 v{vT+4}, v{vT}, 9, s{sT1}")
    a(f"v_cmp_gt_u32 vcc, 32, v{vL}")
    a(f"v_and_b32 v{vT+5}, 3, v{vL}")
    a(f"v_cndmask_b32 v{vT+1}, v{vT+4}, v{vT+1}, vcc")
    a(f"v_lshl_add_u32 v{vPubA}, v{vT+5}, 2, v{vT+1}")
    a.c("stage-3 task: range rho = c/10, slab k = c%10 (c >= 30: reducers, slab (c-30)*8+G)")
    a(f"s_mul_i32 s{sT0}, s{sC}, 26"); a(f"s_lshr_b32 s{sT0}, s{sT0}, 8")
    a(f"s_mul_i32 s{sT1}, s{sT0}, 10"); a(f"s_sub_u32 s{sK}, s{sC}, s{sT1}")
    a(f"s_min_u32 s{sT2}, s{sT0}, 2"); a(f"s_lshl_b32 s{sT2}, s{sT2}, 3"); a(f"s_add_u32 s{sPhi}, s{sT2}, s{sW}")
    a(f"s_mul_i32 s{sT2}, s{sG}, 24"); a(f"s_add_u32 s{sPhi}, s{sPhi}, s{sT2}")
    a(f"s_lshl_b32 s{sT2}, s{sK}, 7")
    a(f"s_cmp_lt_u32 s{sC}, 30"); a(f"s_cselect_b32 s{sT2}, s{sT2}, {OOB}")
    a(f"v_lshl_add_u32 v{vT}, v{vCh}, 4, s{sT2}")
    a(f"s_mul_i32 s{sT2}, s{sPhi}, {8*1280}")
    a(f"v_mul_u32_u24 v{vT+1}, 1280, v{vSlot}"); a(f"v_add_u32 v{vT+1}, s{sT2}, v{vT+1}")
    a(f"v_add_u32 v{vW2o}, v{vT}, v{vT+1}")
    a(f"v_lshl_add_u32 v{vWo}, v{vT+1}, 2, v{vT}")
    a.c("y publish offset: block of (slab, line) + (3G + rho)*128 + i*4")
    def yblock(dst, k, w, tmp):
        if ydual:
            a(f"s_lshl_b32 s{dst}, s{k}, 2"); a(f"s_add_u32 s{dst}, s{dst}, s{w}"); a(f"s_lshl_b32 s{dst}, s{dst}, 12")
        elif yhome is None:
            a(f"s_lshl_b32 s{dst}, s{k}, 1"); a(f"s_add_u32 s{dst}, s{dst}, s{w}"); a(f"s_mul_i32 s{dst}, s{dst}, 3072")
        else:
            tab = sum(((ytab[i] ^ yhome) & 7) << (3*i) for i in range(10))
            a(f"s_mul_i32 s{tmp}, s{k}, 3"); a(f"s_lshr_b32 s{tmp}, {tab:#x}, s{tmp}"); a(f"s_and_b32 s{tmp}, s{tmp}, 7")
            a(f"s_lshl_b32 s{dst}, s{k}, 1"); a(f"s_add_u32 s{dst}, s{dst}, s{w}")
            a(f"s_cmp_ge_u32 s{dst}, 16"); a(f"s_cselect_b32 s{sSpin}, 4, 0"); a(f"s_xor_b32 s{tmp}, s{tmp}, s{sSpin}"); a(f"s_mov_b32 s{sSpin}, {spin}")
            a(f"s_lshl_b32 s{dst}, s{dst}, 3"); a(f"s_add_u32 s{dst}, s{dst}, s{tmp}"); a(f"s_lshl_b32 s{dst}, s{dst}, 12")
        a(f"s_add_u32 s{dst}, s{dst}, {WS_YP}")
    yblock(sT1, sK, sW, sT2)
    a(f"s_mul_i32 s{sT2}, s{sG}, 3"); a(f"s_add_u32 s{sT2}, s{sT2}, s{sT0}")
    a(f"s_lshl_b32 s{sT2}, s{sT2}, 7"); a(f"s_add_u32 s{sT1}, s{sT1}, s{sT2}")
    a(f"v_lshl_add_u32 v{vYo}, v{vT+3}, 2, s{sT1}")
    if ydual:
        a(f"v_lshrrev_b32 v{vT}, 5, v{vL}"); a(f"v_lshl_add_u32 v{vYo}, v{vT}, 13, v{vYo}")
    a.c("gather offsets")
    a(f"s_min_u32 s{sT0}, s{sW}, 5"); a(f"s_mul_i32 s{sT1}, s{sH}, 6"); a(f"s_add_u32 s{sT0}, s{sT0}, s{sT1}")
    a(f"s_lshl_b32 s{sT0}, s{sT0}, 10"); a(f"s_add_u32 s{sQo}, s{sT0}, {WS_QP}")
    a(f"s_lshl_b32 s{sT0}, s{sPhi}, 10"); a(f"s_add_u32 s{sFo}, s{sT0}, {WS_FP}")
    step(1)
    if skel == 1:
        kdone[0] = 8
        a(f"buffer_store_dword v{vPubD}, v{vPubA}, {sr(dWS,4)}, 0 offen")
        limit[0] = len(stream)
        while pos[0] < len(stream): step()
        a("s_waitcnt vmcnt(0)"); a("s_endpgm")
        pos[0] = 6; arrived[0] = 2; kdone[0] = 0
    a.wait_vm("xb")
    xs = [vQ + i for i in range(10)]
    for i in range(5):
        src = vXa + i if i < 4 else vXb
        a(f"v_lshlrev_b32 v{xs[2*i]}, 16, v{src}"); a(f"v_and_b32 v{xs[2*i+1]}, 0xffff0000, v{src}")
    a(f"v_add_f32 v{vT}, v{xs[0]}, v{xs[1]}"); a(f"v_add_f32 v{vT+1}, v{xs[2]}, v{xs[3]}")
    for i in range(4, 10): a(f"v_add_f32 v{vT+(i&1)}, v{vT+(i&1)}, v{xs[i]}")
    a(f"v_add_f32 v{vT}, v{vT}, v{vT+1}")
    red8("v_add_f32", [vT]); red_hi("v_add_f32", [vT])
    a(f"v_readlane_b32 s{sT0}, v{vT}, 63")
    a(f"v_mov_b32 v{vT+2}, {f2u(1/640.):#x}")
    step(1)
    a(f"v_mul_f32 v{vT+3}, s{sT0}, v{vT+2}")
    for i in range(10): a(f"v_sub_f32 v{xs[i]}, v{xs[i]}, v{vT+3}")
    a(f"v_mul_f32 v{vT}, v{xs[0]}, v{xs[0]}"); a(f"v_mul_f32 v{vT+1}, v{xs[1]}, v{xs[1]}")
    for i in range(2, 10): a(f"v_fmac_f32 v{vT+(i&1)}, v{xs[i]}, v{xs[i]}")
    a(f"v_add_f32 v{vT}, v{vT}, v{vT+1}")
    red8("v_add_f32", [vT]); red_hi("v_add_f32", [vT])
    a(f"v_readlane_b32 s{sT0}, v{vT}, 63")
    step(1)
    a(f"v_mul_f32 v{vT+2}, s{sT0}, v{vT+2}")
    rne(vT+2, vT+2); rne(vT+3, vT+3)
    a(f"v_add_f32 v{vT+2}, {f2u(1e-5):#x}, v{vT+2}"); rne(vT+2, vT+2)
    a(f"v_sqrt_f32 v{vT+2}, v{vT+2}"); rne(vT+2, vT+2)
    a(f"v_rcp_f32 v{vT+4}, v{vT+2}")
    a.wait_vm("xr1")
    for x in (vXr0, vXr1):
        a(f"v_lshlrev_b32 v{x}, 16, v{x}"); a(f"v_sub_f32 v{x}, v{x}, v{vT+3}"); rne(x, x)
        a(f"v_mul_f32 v{vT}, v{x}, v{vT+4}"); a(f"v_fma_f32 v{vT+1}, -v{vT}, v{vT+2}, v{x}")
        a(f"v_fma_f32 v{vT}, v{vT+1}, v{vT+4}, v{vT}")
        a(f"v_cvt_pk_bf16_f32 v{x}, v{vT}, v{vT}")
    step(1)
    buildA(vA, vXr0); buildA(vA2, vXr1)
    a.c("hand-off tags of this launch")
    a("s_waitcnt lgkmcnt(0)")
    a(f"s_add_u32 s{sE}, s{sE}, 0x01010101")
    for k in range(4): a(f"s_bfe_u32 s{sTag[k]}, s{sE}, {(8 << 16) | (8*k):#x}")
    a(f"s_getreg_b32 s{sT0}, hwreg(HW_REG_XCC_ID, 0, 4)")
    if forceslow: a(f"s_and_b32 s{sT0}, s{sC}, 1")
    a(f"s_lshl_b32 s{sTagF}, s{sTag[3]}, 4"); a(f"s_and_b32 s{sTagF}, s{sTagF}, 0xf0"); a(f"s_or_b32 s{sTagF}, s{sTagF}, s{sT0}")
    a(f"v_and_b32 v{vT}, 3, v{vL}"); a(f"v_lshlrev_b32 v{vT}, 3, v{vT}")
    a(f"v_bfe_u32 v{vTg1}, s{sE}, v{vT}, 8")
    a(f"s_add_u32 s{sE}, s{sE}, 0x01010101")
    a(f"v_bfe_u32 v{vTg2}, s{sE}, v{vT}, 8")
    a(f"v_mov_b32 v{vPubD}, v{vTg1}")
    a(f"s_mov_b32 exec_lo, 0"); a(f"s_mov_b32 exec_hi, 0x88888888")
    a(f"v_mov_b32 v{vPubD}, s{sTagF}")
    a("s_mov_b64 exec, -1")
    a(f"s_mov_b32 s{sCnt}, {timeout}")
    for i in range(6):
        g, j = divmod(i, 3)
        need(f"S{i}")
        a(f"v_mfma_f32_16x16x32_bf16 {vr(vD+4*j,4)}, {vr(vA if g == 0 else vA2,4)}, {vr(vW+4*i,4)}, {'0' if g == 0 else vr(vD+4*j,4)}")
    step(extra, D + extra)
    def red_write(base, regs):
        a(f"s_mov_b64 exec, {sr(sVal,2)}")
        for j, r in enumerate(regs): a(f"ds_write_b128 v{vRedW}, {vr(r,4)} offset:{base+256*j}")
        a("s_mov_b64 exec, -1")
        a("s_waitcnt lgkmcnt(0)"); a("s_barrier")
    def red_read(base):
        b = base // 256
        for q in range(4): a(f"ds_read2st64_b32 {vr(vT+2*q,2)}, v{vRedR} offset0:{b+12*q} offset1:{b+12*q+6}")
    def red_sum8(dst, tag):
        a("s_waitcnt lgkmcnt(2)")
        a(f"v_add_f32 v{vT}, v{vT}, v{vT+1}"); a(f"v_add_f32 v{vT+2}, v{vT+2}, v{vT+3}")
        a("s_waitcnt lgkmcnt(0)")
        a(f"v_add_f32 v{vT+4}, v{vT+4}, v{vT+5}"); a(f"v_add_f32 v{vT+6}, v{vT+6}, v{vT+7}")
        a(f"v_add_f32 v{vT}, v{vT}, v{vT+2}"); a(f"v_add_f32 v{vT+4}, v{vT+4}, v{vT+6}")
        a(f"v_add_f32 v{vT+1}, v{vT}, v{vT+4}"); a(f"v_add_f32 v{vT}, v{vT}, v{vT+4}")
        a(f"v_permlane32_swap_b32 v{vT}, v{vT+1}")
        a(f"v_add_f32 v{vT}, v{vT}, v{vT+1}")
        a(f"v_and_or_b32 v{dst}, v{vT}, s{sT3}, v{tag}")
    a(f"s_mov_b32 s{sT3}, 0xffffff00")
    red_write(LDS_RED, [vD, vD+4, vD+8]); red_read(LDS_RED)
    a("s_waitcnt lgkmcnt(0)")
    a(f"v_add_f32 v{vT}, v{vT}, v{vT+1}"); a(f"v_add_f32 v{vT+2}, v{vT+2}, v{vT+3}"); a(f"v_add_f32 v{vT+5}, v{vT+5}, v{vT+6}")
    a(f"v_add_f32 v{vT}, v{vT}, v{vT+4}"); a(f"v_add_f32 v{vT+5}, v{vT+5}, v{vT+7}"); a(f"v_add_f32 v{vT}, v{vT}, v{vT+2}")
    a(f"v_permlane32_swap_b32 v{vT}, v{vT+5}")
    a(f"v_add_f32 v{vT}, v{vT}, v{vT+5}")
    a(f"v_and_or_b32 v{vPubD}, v{vT}, s{sT3}, v{vPubD}")
    a(f"buffer_store_dword v{vPubD}, v{vPubA}, {sr(dWS,4)}, 0 offen", "pubq")
    stamp()
    issue_to(f"K{qpos-1}")
    qload = f"buffer_load_dwordx4 {vr(vG,4)}, v{vL16}, {sr(dWS,4)}, s{sQo} offen sc1"
    fload = f"buffer_load_dwordx4 {vr(vG2,4)}, v{vL16}, {sr(dWS,4)}, s{sFo} offen sc1"
    a(qload, "gq"); a(fload, "gf")
    need(f"K{qpos-1}")
    step(extra, D + extra)
    a.wait_vm("gf")
    tgF = sTag[:3] + [sTagF]
    lchk = a.newlabel("x1chk"); lok = a.newlabel("x1ok"); lslow = a.newlabel("x1slow")
    a.label(lchk)
    untag([(vG, sTag), (vG2, tgF)])
    a(f"s_cbranch_vccnz {lslow}")
    a.label(lok)
    c = Asm(); c.nlabel = 1000
    c.label(lslow)
    c.c("not all there yet, or a producer sits on another die")
    c(f"v_or3_b32 v{vT}, v{vG}, v{vG+1}, v{vG+2}"); c(f"v_or3_b32 v{vT}, v{vT}, v{vG+3}, v{vG2}"); c(f"v_or3_b32 v{vT}, v{vT}, v{vG2+1}, v{vG2+2}")
    c(f"v_and_b32 v{vT}, 0xff, v{vT}"); c(f"v_and_b32 v{vT+1}, 0xf0, v{vG2+3}"); c(f"v_or_b32 v{vT}, v{vT}, v{vT+1}")
    c(f"v_cmp_ne_u32 vcc, 0, v{vT}")
    c("s_cbranch_vccnz L_x1wait")
    c(f"s_mov_b32 s{sReg}, {SLOW}")
    c(f"v_and_b32 v{vG2+3}, 0xffffff00, v{vG2+3}")
    c(f"buffer_store_dword v{vPubD}, v{vPubA}, {sr(dWS,4)}, s{sReg} offen sc1")
    c(f"s_branch {lok}")
    c.label("L_x1wait")
    c(f"s_sub_u32 s{sSpin}, s{sSpin}, 1"); c("s_cbranch_scc1 L_end")
    c(f"s_sub_u32 s{sCnt}, s{sCnt}, 1")
    c(f"s_cmp_lg_u32 s{sCnt}, 0"); c("s_cbranch_scc1 L_x1nopub")
    c(f"s_mov_b32 s{sT0}, {SLOW}")
    c(f"buffer_store_dword v{vPubD}, v{vPubA}, {sr(dWS,4)}, s{sT0} offen sc1")
    c.label("L_x1nopub")
    c.c("after the time-out look at the two areas in turn")
    c(f"s_and_b32 s{sT0}, s{sCnt}, 0x80000001"); c(f"s_cmp_eq_u32 s{sT0}, 0x80000001"); c(f"s_cselect_b32 s{sT0}, {SLOW}, 0")
    c(f"s_add_u32 s{sT1}, s{sT0}, s{sFo}"); c(f"s_add_u32 s{sT0}, s{sT0}, s{sQo}")
    c(qload.replace(f"s{sQo} offen", f"s{sT0} offen")); c(fload.replace(f"s{sFo} offen", f"s{sT1} offen"))
    c("s_waitcnt vmcnt(0)"); c(f"s_branch {lchk}")
    cold.append(c.out)
    red8("v_add_f32", [vG+k for k in range(4)] + [vG2+k for k in range(4)])
    a(f"v_cvt_pk_bf16_f32 v{vG}, v{vG}, v{vG+1}"); a(f"v_cvt_pk_bf16_f32 v{vG+1}, v{vG+2}, v{vG+3}")
    a(f"s_min_u32 s{sT0}, s{sW}, 5"); a(f"s_lshl_b32 s{sT0}, s{sT0}, 6")
    a(f"v_lshl_add_u32 v{vT+2}, v{vSlot}, 3, s{sT0}")
    a(f"ds_write_b64 v{vT+2}, {vr(vG,2)} offset:{LDS_Q}")
    a(f"v_lshlrev_b32 v{vT+3}, 4, v{vCh}")
    a("s_waitcnt lgkmcnt(0)"); a("s_barrier")
    for j in range(3): a(f"ds_read_b128 {vr(vQ+4*j,4)}, v{vT+3} offset:{LDS_Q+128*j}")
    step(1)
    a.c("SwiGLU for this wave's eight hidden units")
    for k in range(4): a(f"v_add_f32_dpp v{vG2+k}, v{vG2+k}, v{vG2+k} row_mirror {DP}")
    a(f"v_and_b32 v{vT}, 1, v{vSlot}"); a(f"v_cmp_eq_u32 vcc, 1, v{vT}")
    a(f"v_cndmask_b32 v{vG2}, v{vG2}, v{vG2+1}, vcc"); a(f"v_cndmask_b32 v{vG2+2}, v{vG2+2}, v{vG2+3}, vcc")
    rne(vG2, vG2); rne(vG2+2, vG2+2)
    a(f"v_permlane16_swap_b32 v{vG2}, v{vG2+2}")
    a(f"v_mul_f32 v{vT}, {f2u(-1.4426950408889634):#x}, v{vG2}")
    a(f"v_exp_f32 v{vT}, v{vT}"); a(f"v_add_f32 v{vT}, 1.0, v{vT}"); a(f"v_rcp_f32 v{vT}, v{vT}")
    a(f"v_mul_f32 v{vT}, v{vT}, v{vG2}"); rne(vT, vT)
    a(f"v_mul_f32 v{vT}, v{vT}, v{vG2+2}")
    a(f"v_cvt_pk_bf16_f32 v{vH}, v{vT}, v{vT}")
    a("s_waitcnt lgkmcnt(0)")
    stamp()
    for g in range(8):
        need(f"K{3*g+2}")
        b = vKV + 12*g
        a(f"v_dot2_f32_bf16 v{vSc+g}, v{b}, v{vQ}, 0")
        a(f"v_dot2_f32_bf16 v{vT}, v{b+1}, v{vQ+1}, 0")
        for i in range(2, 12):
            d = vSc+g if i % 2 == 0 else vT
            a(f"v_dot2_f32_bf16 v{d}, v{b+i}, v{vQ+i}, v{d}")
        kdone[0] = g + 1
        if g % 3 == 2: step(1)
        a(f"v_add_f32 v{vSc+g}, v{vSc+g}, v{vT}")
    sc = [vSc+g for g in range(8)]
    red8("v_add_f32", sc)
    for r in sc: a(f"v_cvt_pk_bf16_f32 v{r}, v{r}, v{r}")
    for r in sc: a(f"v_and_b32 v{r}, 0xffff0000, v{r}")
    step(1)
    for r in sc: a(f"v_mul_f32 v{r}, {f2u(192 ** -0.5):#x}, v{r}")
    for r in sc: a(f"v_cvt_pk_bf16_f32 v{r}, v{r}, v{r}")
    for r in sc: a(f"v_and_b32 v{r}, 0xffff0000, v{r}")
    a(f"v_max3_f32 v{vG}, v{sc[0]}, v{sc[1]}, v{sc[2]}"); a(f"v_max3_f32 v{vG+1}, v{sc[3]}, v{sc[4]}, v{sc[5]}")
    a(f"v_max3_f32 v{vG}, v{vG}, v{sc[6]}, v{sc[7]}"); a(f"v_max_f32 v{vG}, v{vG}, v{vG+1}")
    red_hi("v_max_f32", [vG])
    a(f"v_readlane_b32 s{sT0}, v{vG}, 63")
    L2E = f"{f2u(1.4426950408889634):#x}"
    step(1)
    for k in range(8): a(f"v_subrev_f32 v{vT+k}, s{sT0}, v{sc[k]}")
    for k in range(8): a(f"v_mul_f32 v{vT+k}, {L2E}, v{vT+k}")
    for k in range(8): a(f"v_exp_f32 v{vT+k}, v{vT+k}")
    for k in range(4): a(f"v_add_f32 v{vT+k}, v{vT+k}, v{vT+4+k}")
    a(f"v_add_f32 v{vT}, v{vT}, v{vT+1}"); a(f"v_add_f32 v{vT+2}, v{vT+2}, v{vT+3}"); a(f"v_add_f32 v{vG+1}, v{vT}, v{vT+2}")
    red_hi("v_add_f32", [vG+1])
    a(f"v_or_b32 v{vG}, s{sTag[0]}, v{vG}")
    a(f"v_and_b32 v{vG+1}, 0xffffff00, v{vG+1}"); a(f"v_or_b32 v{vG+1}, s{sTag[1]}, v{vG+1}")
    a(f"v_mov_b32 v{vG+2}, s{sTag[2]}"); a(f"v_mov_b32 v{vG+3}, s{sTag[3]}")
    a(f"s_lshl_b32 s{sT0}, s{sP}, 3"); a(f"s_add_u32 s{sT0}, s{sT0}, s{sW}"); a(f"s_lshl_b32 s{sT0}, s{sT0}, 4")
    a(f"s_add_u32 s{sT0}, s{sT0}, {WS_ML}"); a(f"v_mov_b32 v{vT}, s{sT0}")
    a(f"s_mov_b32 exec_lo, 0"); a(f"s_mov_b32 exec_hi, 0x80000000")
    pub(f"buffer_store_dwordx4 {vr(vG,4)}, v{vT}, {sr(dWS,4)}, s{sReg} offen", "pubml")
    a("s_mov_b64 exec, -1")
    if ydual:
        a(f"s_lshl_b32 s{sT0}, s{sC}, 3"); a(f"s_add_u32 s{sT0}, s{sT0}, s{sG}"); a(f"s_sub_u32 s{sT0}, s{sT0}, 240")
        a(f"s_lshl_b32 s{sT1}, s{sW}, 8"); a(f"s_or_b32 s{sT1}, s{sT1}, s{sT0}")
        a(f"s_cmp_lt_u32 s{sT1}, 10"); a("s_cbranch_scc1 L_prst")
        a.label("L_prback")
        c = Asm()
        c.label("L_prst")
        c.c("wave 0 of a reducer: park two probe lines per copy in the memory-side cache")
        c(f"s_lshl_b32 s{sT0}, s{sT0}, 14"); c(f"s_add_u32 s{sT0}, s{sT0}, {WS_YP + 3072}")
        c(f"v_and_b32 v{vT}, 0xff, v{vL16}"); c(f"v_bfe_u32 v{vT+1}, v{vL}, 4, 1"); c(f"v_lshl_add_u32 v{vT}, v{vT+1}, 13, v{vT}")
        c("s_mov_b32 exec_hi, 0")
        c(f"buffer_store_dwordx4 {vr(vM,4)}, v{vT}, {sr(dWS,4)}, s{sT0} offen sc1")
        c("s_mov_b64 exec, -1")
        c("s_branch L_prback")
        cold.append(c.out)
    stamp()
    a.c("down projection of the SwiGLU part")
    buildA(vXa, vH)
    if not late4:
        need("W4")
        a(f"v_mfma_f32_16x16x32_bf16 {vr(vY,4)}, {vr(vXa,4)}, {vr(vW+16,4)}, 0")
    issue_to(f"V{mlpos-1}")
    a(f"s_lshl_b32 s{sT0}, s{sH}, 10"); a(f"s_add_u32 s{sT0}, s{sT0}, {WS_ML}"); a(f"s_add_u32 s{sT0}, s{sT0}, s{sReg}")
    mload = f"buffer_load_dwordx4 {vr(vG,4)}, v{vL16}, {sr(dWS,4)}, s{sT0} offen sc1"
    a(mload, "gm")
    need(f"V{mlpos-1}")
    a.wait_vm("gm")
    poll_check([(vG, mload)], sTag)
    a(f"v_mov_b32 v{vT}, v{vG}")
    red8("v_max_f32", [vT]); red_hi("v_max_f32", [vT])
    a(f"v_readlane_b32 s{sT0}, v{vT}, 63")
    a(f"v_subrev_f32 v{vT}, s{sT0}, v{vG}"); a(f"v_mul_f32 v{vT}, {L2E}, v{vT}"); a(f"v_exp_f32 v{vT}, v{vT}")
    a(f"v_mul_f32 v{vT}, v{vT}, v{vG+1}")
    red8("v_add_f32", [vT]); red_hi("v_add_f32", [vT])
    a(f"v_rcp_f32 v{vT}, v{vT}")
    step(1)
    for r in sc: a(f"v_subrev_f32 v{r}, s{sT0}, v{r}")
    a(f"v_readlane_b32 s{sT1}, v{vT}, 63")
    for r in sc: a(f"v_mul_f32 v{r}, {L2E}, v{r}")
    for r in sc: a(f"v_exp_f32 v{r}, v{r}")
    for r in sc: a(f"v_mul_f32 v{r}, s{sT1}, v{r}")
    for r in sc: a(f"v_cvt_pk_bf16_f32 v{r}, v{r}, v{r}")
    step(1)
    a.c("tags and offsets of the o exchange")
    for k in range(4): a(f"s_bfe_u32 s{sTag[k]}, s{sE}, {(8 << 16) | (8*k):#x}")
    a(f"s_lshl_b32 s{sQo}, s{sPhi}, 10"); a(f"s_add_u32 s{sQo}, s{sQo}, {WS_QP}"); a(f"s_add_u32 s{sQo}, s{sQo}, s{sReg}")
    if osc1:
        a(f"s_mul_i32 s{sT0}, s{sH}, 6"); a(f"s_add_u32 s{sT0}, s{sT0}, s{sW}"); a(f"s_lshl_b32 s{sT0}, s{sT0}, 3")
        a(f"s_add_u32 s{sT0}, s{sT0}, s{sS}"); a(f"s_lshl_b32 s{sT0}, s{sT0}, 7"); a(f"s_add_u32 s{sT0}, s{sT0}, {WS_QP}")
        a(f"s_cmp_lt_u32 s{sW}, 6"); a(f"s_cselect_b32 s{sT0}, s{sT0}, {OOB}")
        a(f"v_lshl_add_u32 v{vPubA}, v{vL}, 2, s{sT0}")
        a(f"v_lshlrev_b32 v{vS1a}, 7, v{vCh}"); a(f"v_lshl_add_u32 v{vS1a}, v{vSlot}, 4, v{vS1a}")
    stamp()
    for g in range(8):
        A_ = vA if g % 2 == 0 else vA2
        buildA(A_, sc[g])
        for j in range(3):
            need(f"V{3*g+j}")
            a(f"v_mfma_f32_16x16x32_bf16 {vr(vD+4*j,4)}, {vr(A_,4)}, {vr(vKV+12*g+4*j,4)}, {'0' if g == 0 else vr(vD+4*j,4)}")
            if earlyw and g == 7 and j < 2:
                a(f"s_mov_b64 exec, {sr(sVal,2)}")
                a(f"ds_write_b128 v{vRedW}, {vr(vD+4*j,4)} offset:{LDS_RED+256*j}")
                a("s_mov_b64 exec, -1")
        if g == 3: step(1)
    while pos[0] < limit[0]: load(*stream[pos[0]]); pos[0] += 1
    if skel == 2:
        a("s_waitcnt vmcnt(0)"); a("s_endpgm")
    stamp()
    if earlyw: red_write(LDS_RED + 512, [vD+8])
    else: red_write(LDS_RED, [vD, vD+4, vD+8])
    red_read(LDS_RED)
    red_sum8(vPubD, vTg2)
    a(f"s_mov_b32 exec_hi, 0")
    if osc1 is True: a(f"buffer_store_dword v{vPubD}, v{vPubA}, {sr(dWS,4)}, s{sReg} offen sc1", "pubo")
    else: pub(f"buffer_store_dword v{vPubD}, v{vPubA}, {sr(dWS,4)}, s{sReg} offen", "pubo")
    a("s_mov_b64 exec, -1")
    stamp()
    a(f"s_cmp_ge_u32 s{sC}, 30"); a("s_cbranch_scc1 L_reducer")
    snap = a.snapshot(); n0 = nst[0]
    if hold:
        if holdbar: a("s_barrier")
        while pos[0] < len(stream): load(*stream[pos[0]]); pos[0] += 1
    osets = [vKV + 4*n for n in range(opipe)]
    def oload(n): return f"buffer_load_dwordx4 {vr(osets[n],4)}, v{vS1a if osc1 else vL16}, {sr(dWS,4)}, s{sQo} offen sc1"
    for n in range(opipe):
        if owait is not None:
            t, i = stream[len(stream) - owait[n]]; a.wait_vm(f"{t}{i}")
        elif hold and pdelay:
            if n == 0: a.wait_vm("pubo")
            elif n < hold: t, i = stream[len(stream) - hold + n - 1]; a.wait_vm(f"{t}{i}")
        a(oload(n))
    if late4:
        a.wait_vm("W4")
        a(f"v_mfma_f32_16x16x32_bf16 {vr(vY,4)}, {vr(vXa,4)}, {vr(vW+16,4)}, 0")
    a.label("L_opoll")
    for n in range(opipe):
        a(f"s_waitcnt vmcnt({opipe-1})")
        untag([(osets[n], sTag)])
        for k in range(4): a(f"v_add_f32_dpp v{vG+k}, v{osets[n]+k}, v{osets[n]+k} quad_perm:[1,0,3,2] {DP}")
        a("s_cbranch_vccz L_ogot")
        if osleep: a(f"s_sleep {osleep}")
        if olight:
            a("s_mov_b32 exec_lo, 0"); a("s_mov_b32 exec_hi, 0xff000000")
            a.label("L_olight")
            a(f"buffer_load_dword v{vT+1}, v{vL16}, {sr(dWS,4)}, s{sQo} offen sc1")
            a(f"s_sub_u32 s{sSpin}, s{sSpin}, 1"); a("s_cbranch_scc1 L_end")
            a("s_waitcnt vmcnt(0)")
            a(f"v_and_b32 v{vT+1}, 0xff, v{vT+1}"); a(f"v_cmp_ne_u32 vcc, s{sTag[0]}, v{vT+1}")
            a("s_cbranch_vccnz L_olight")
            a("s_mov_b64 exec, -1")
        a(oload(n))
    a(f"s_sub_u32 s{sSpin}, s{sSpin}, 1"); a("s_cbranch_scc0 L_opoll")
    a("s_endpgm")
    a.label("L_ogot")
    if skel == 3: a("s_endpgm")
    stamp()
    for m in ("quad_perm:[2,3,0,1]", "row_half_mirror"):
        for k in range(4): a(f"v_add_f32_dpp v{vG+k}, v{vG+k}, v{vG+k} {m} {DP}")
    for k in range(4): a(f"v_cvt_pk_bf16_f32 v{vG+k}, v{vG+k}, v{vG+k}")
    for r in range(4):
        A_ = (vA, vA2, vG2, vT)[r]
        buildA(A_, vG+r)
        if r >= 1: a(f"v_mfma_f32_16x16x32_bf16 {vr(vY,4)}, {vr((vA, vA2, vG2, vT)[r-1],4)}, {vr(vW+4*(r-1),4)}, {vr(vY,4)}")
    a(f"v_mfma_f32_16x16x32_bf16 {vr(vY,4)}, {vr(vT,4)}, {vr(vW+12,4)}, {vr(vY,4)}")
    red_write(LDS_RED2, [vY])
    lx = a.newlabel("exit")
    a(f"s_cmp_ge_u32 s{sW}, 2"); a(f"s_cbranch_scc1 {lx}")
    red_read(LDS_RED2)
    red_sum8(vPubD, vTg2)
    if not ydual: a(f"s_mov_b32 exec_hi, 0")
    a(f"buffer_store_dword v{vPubD}, v{vYo}, {sr(dWS,4)}, 0 offen sc1", "puby")
    a.label(lx)
    stamp()
    finish()
    a.label("L_reducer")
    a.restore(snap); nst[0] = n0
    if skel in (3, 4): a("s_endpgm")
    lx = a.newlabel("exit")
    a(f"s_lshl_b32 s{sK}, s{sK}, 3"); a(f"s_add_u32 s{sK}, s{sK}, s{sG}")
    a(f"s_cmp_ge_u32 s{sK}, 10"); a(f"s_cbranch_scc1 {lx}")
    if ydual and (stamps or diag is not None):
        a(f"s_cmp_ge_u32 s{sW}, 2"); a(f"s_cbranch_scc1 L_barx")
        cold.append(["L_barx:", "    s_barrier", f"    s_branch {lx}"])
    else:
        a(f"s_cmp_ge_u32 s{sW}, 2"); a(f"s_cbranch_scc1 {lx}")
    yblock(sT0, sK, sW, sT1)
    a(f"s_lshl_b32 s{sK}, s{sK}, 1"); a(f"s_add_u32 s{sK}, s{sK}, s{sW}")
    y = vD
    def yl(n): return [(vKV+12*n+4*i, f"buffer_load_dwordx4 {vr(vKV+12*n+4*i,4)}, v{vL16}, {sr(dWS,4)}, s{sT0} offen offset:{1024*i} sc1") for i in range(3)]
    a.c("output column of this lane: 32*line + 4*(l&7) + (l>>4)")
    a(f"v_lshrrev_b32 v{vT+1}, 4, v{vL}"); a(f"v_lshl_add_u32 v{vT+1}, v{vCh}, 2, v{vT+1}")
    a(f"s_lshl_b32 s{sT1}, s{sK}, 6"); a(f"v_lshl_add_u32 v{vYo}, v{vT+1}, 1, s{sT1}")
    a(f"buffer_load_ushort v{vXo}, v{vYo}, {sr(dX,4)}, 0 offen")
    a.c("line 0's reducer hears (through its producers) from every workgroup: it advances the hand-off epoch")
    a(f"s_cmp_eq_u32 s{sK}, 0"); a(f"s_cselect_b32 s{sT2}, {WS_E}, {OOB}")
    a(f"v_mov_b32 v{vT+4}, s{sE}"); a(f"v_mov_b32 v{vT+5}, {OOB}"); a(f"v_mov_b32 v{vT+6}, {OOB}")
    a("s_waitcnt vmcnt(0)")
    a(f"v_lshlrev_b32 v{vXo}, 16, v{vXo}")
    if ydual:
        a.c("which copy is nearer? loads return in order, so the gap behind the first of a pair is long only if the second goes further")
        a(f"v_mov_b32 v{vT+1}, 0"); a(f"v_mov_b32 v{vT+2}, 8192")
        a(f"s_cmp_lg_u32 s{sW}, 0"); a("s_cbranch_scc1 L_prdone")
        a("s_mov_b64 exec, 1")
        for n, (x, y_) in enumerate(((vT+1, vT+2), (vT+2, vT+1))):
            a(f"buffer_load_dword v{vT+3}, v{x}, {sr(dWS,4)}, s{sT0} offen offset:{3072+128*n} sc1")
            a(f"buffer_load_dword v{vT+7}, v{y_}, {sr(dWS,4)}, s{sT0} offen offset:{3072+128*n} sc1")
            a("s_waitcnt vmcnt(1)"); a(f"s_memtime {sr(4+4*n,2)}")
            a("s_waitcnt vmcnt(0)"); a(f"s_memtime {sr(6+4*n,2)}")
        a("s_waitcnt lgkmcnt(0)")
        a("s_sub_u32 s4, s6, s4"); a("s_sub_u32 s8, s10, s8")
        if stamps: a(f"s_mov_b32 s{sSt+11}, s4"); a(f"s_mov_b32 s{sSt+12}, s8")
        a("s_cmp_gt_u32 s4, s8"); a("s_cselect_b32 s4, 0, 8192")
        if yforce is not None: a(f"s_xor_b32 s4, s4, {yforce}")
        a(f"v_mov_b32 v{vT+3}, s4")
        a(f"ds_write_b32 v{vT+1}, v{vT+3} offset:{LDS_Q}")
        a("s_mov_b64 exec, -1")
        a("s_waitcnt lgkmcnt(0)")
        a.label("L_prdone")
        a("s_barrier")
        a(f"ds_read_b32 v{vT+3}, v{vT+1} offset:{LDS_Q}")
        a("s_waitcnt lgkmcnt(0)")
        a(f"v_add_u32 v{vL16}, v{vL16}, v{vT+3}")
    if ydry:
        a.c("one pass through the last lines with every store out of range: they are in the instruction cache afterwards")
        a(f"s_mov_b32 s{sT1}, 1"); a("s_branch L_yfin")
        a.label("L_ystart")
        a("s_mov_b64 exec, -1")
    a(f"s_mov_b32 s{sT1}, 0")
    a(f"v_mov_b32 v{vT+5}, s{sT2}"); a(f"v_mov_b32 v{vT+6}, v{vYo}")
    for n in range(ypipe):
        for _, t in yl(n): a(t)
    a.label("L_ypoll")
    for n in range(ypipe):
        a(f"s_waitcnt vmcnt({3*(ypipe-1)})")
        untag([(g, sTag) for g, _ in yl(n)])
        b = vKV + 12*n
        for k in range(4): a(f"v_add_f32 v{y+k}, v{b+k}, v{b+4+k}")
        for k in range(4): a(f"v_add_f32 v{y+k}, v{y+k}, v{b+8+k}")
        a("s_cbranch_vccz L_yfin")
        for _, t in yl(n): a(t)
    a(f"s_sub_u32 s{sSpin}, s{sSpin}, 1"); a("s_cbranch_scc0 L_ypoll")
    a("s_endpgm")
    a.label("L_yfin")
    a("s_nop 0")
    nst[0] = 9
    stamp()
    a(f"v_permlane32_swap_b32 v{y}, v{y+2}"); a(f"v_permlane32_swap_b32 v{y+1}, v{y+3}")
    a(f"v_add_f32 v{y}, v{y}, v{y+2}"); a(f"v_add_f32 v{y+1}, v{y+1}, v{y+3}")
    a(f"v_permlane16_swap_b32 v{y}, v{y+1}")
    a(f"v_add_f32 v{y}, v{y}, v{y+1}")
    a(f"v_add_f32_dpp v{y}, v{y}, v{y} row_ror:8 {DP}")
    a(f"v_add_f32 v{y}, v{y}, v{vXo}")
    a(f"v_cvt_pk_bf16_f32 v{y}, v{y}, v{y}")
    a(f"s_mov_b32 exec_lo, 0x00ff00ff"); a(f"s_mov_b32 exec_hi, 0x00ff00ff")
    a(f"buffer_store_short v{y}, v{vT+6}, {sr(dOUT,4)}, 0 offen")
    a("s_mov_b64 exec, 1")
    a(f"buffer_store_dword v{vT+4}, v{vT+5}, {sr(dWS,4)}, 0 offen")
    if ydry:
        a(f"s_cmp_lg_u32 s{sT1}, 0"); a("s_cbranch_scc1 L_ystart")
    a.label(lx)
    nst[0] = 8
    stamp()
    finish()
    for blk in cold:
        for ln in blk: a.raw(ln)
    a.label("L_end")
    a("s_endpgm")
    if prefetch: a.raw("    .fill 2048, 4, 0xbf810000")
    if drop:
        out = []
        for ln in a.out:
            t = ln.strip()
            if "bar" in drop and t == "s_barrier": continue
            if "valu" in drop and (t.startswith(("v_dot2", "v_exp", "v_mfma", "v_cvt_pk", "v_subrev_f32", "v_mul_f32", "v_max", "v_fma", "v_sub_f32")) or "_dpp" in t): continue
            if "chk" in drop and t.startswith("v_cmp_ne_u32 vcc, 0"): ln = "    s_mov_b64 vcc, 0"
            if "gather" in drop and t.startswith("buffer_load") and t.endswith("sc1"): ln = ln.replace(f"v{vL16},", f"v{vM},").replace("dwordx4", "dwordx4").replace(f"{sr(dWS,4)}", f"{sr(dX,4)}")
            out.append(ln)
        a.out = out
    nv = (V.n + 7) // 8 * 8
    a.raw('.section .rodata,"a"'); a.raw(".p2align 6"); a.raw(f".amdhsa_kernel {NAME}_kernel")
    a.raw(f"  .amdhsa_next_free_vgpr {nv}"); a.raw("  .amdhsa_next_free_sgpr 102"); a.raw(f"  .amdhsa_accum_offset {nv}")
    a.raw("  .amdhsa_group_segment_fixed_size 0"); a.raw("  .amdhsa_kernarg_size 96"); a.raw("  .amdhsa_user_sgpr_count 2")
    a.raw("  .amdhsa_user_sgpr_kernarg_segment_ptr 1"); a.raw("  .amdhsa_system_sgpr_workgroup_id_x 1")
    a.raw(".end_amdhsa_kernel")
    return a.text()

if __name__ == "__main__":
    kw = {}
    out = sys.argv[1]
    for x in sys.argv[2:]:
        k, v = x.split("=")
        try: v = eval(v)
        except Exception: pass
        kw[k] = v
    open(out, "w").write(gen(**kw))
```

```python
import sys, struct, re
sys.path.insert(0, "dev")
from asmlib import *

NAME = "parallel_sum__gqa_block_cached__glu_gated_swiglu__decode"
def f2u(x): return struct.unpack("<I", struct.pack("<f", x))[0]

WS_E  = 0
WS_QP = 0x10000
WS_FP = 0x40000
WS_ML = 0x50000
SLOW  = 0x50000
WS_YP = 0x100000
WS_ST = 0x400000
WS_SIZE = 0x800000
OOB = 0x40000000
LDS_RED = 0
LDS_RED2 = 12288
LDS_Q = 24576
LDS_CNT = 25088

DOC = """;
; three, and a reducer polls the nearer of two mailbox copies. Nothing ever waits for the clock."""

def gen(qpos=14, mlpos=14, hold=2, nb=3, pace=(50, 27.6), pfrom=7, hi=(), ypipe=3, voff=2, kfirst=0, tpost=True, anchors=(), aoff=25, atau=None, lastdeep=1, lo2=None, relax=0, selw=None,
        ld="nt", lds=90112, spin=1 << 20, timeout=24, prefetch=True,
        stamps=False, diag=None, amp=0, trace=False, forceslow=False, skel=0):
    D, DH = 3, 4
    a = Asm()
    hdr = open("cdna_kernels/" + NAME + ".s.ref").read().split("\n")
    for ln in hdr:
        if ln.startswith(";") and "@launch" not in ln and "Override launch" not in ln and "grid=ceil" not in ln: a.raw(ln)
    a.raw(f"; @launch grid=(256,1,1) block=(512,1,1) lds={lds}")
    for ln in DOC.split("\n"): a.raw(ln)
    a.raw('.amdgcn_target "amdgcn-amd-amdhsa--gfx950"')
    a.raw(".text"); a.raw(f".globl {NAME}_kernel"); a.raw(".p2align 8"); a.raw(f".type {NAME}_kernel,@function")
    a.label(f"{NAME}_kernel")
    V = Regs(1, 256, "v"); S = Regs(28, 102, "s")
    pX, pK, pV, pWQ, pWO, pBX, pW1, pW3, pW2, pOUT, pDBG, pWS = [4 + 2*i for i in range(12)]
    dK, dV, dS1, dWS, dX = [S.get(4) for _ in range(5)]
    dWO, dW2, dOUT = 12, 20, S.get(4)
    sW, sG, sC, sP, sH, sS, sE, sT0, sT1, sT2, sT3, sSpin, sReg, sPhi, sK, sCnt, sQo, sFo, sId, sMask = [S.get() for _ in range(20)]
    sTag = [S.get() for _ in range(4)]
    sOff = [16, 17, 18]
    sS1, sS2 = S.get(), S.get(); sMw = sS1
    sBase, sAn, sSmp = 19, 8, 9
    dDBG = 24
    sVal = S.get(2); sTm = S.get(2); sStart = S.get(2)
    sSt = S.get(16) if (stamps or diag is not None) else None
    (vL, vSlot, vCh, vKoff, vS1a, vS1b, vS1c, vXr, vRedW, vRedR, vL16, vPubA, vPubD, vTg2, vWo, vW2o, vYo, vFo, vCn, vTr) = [V.get() for _ in range(20)]
    vZ = V.get(2)
    vM = V.get(4); vA = V.get(4); vA2 = V.get(4); vAh = V.get(4); vG = V.get(4); vG2 = V.get(4); vT = V.get(8)
    vY = V.get(4); vSc = V.get(8); vQ = V.get(12); vD = V.get(12); vW = V.get(24); vKV = V.get(96 + 12*voff)
    vXa, vXb, vXo = vY, vSc, vXr
    kreg = lambda i: vKV + 12*voff + 4*i
    vreg = lambda i: vKV + 4*i
    cold = []
    def stamp(n):
        if diag == n or stamps is True or (stamps == 'min' and n == 8):
            a(f"s_memrealtime {sr(10,2)}"); a("s_waitcnt lgkmcnt(0)"); a(f"s_mov_b32 s{sSt + (n if stamps else 0)}, s10")
    def finish():
        if diag is not None:
            if selw: a(f"s_cmpk_lg_u32 s2, {selw[0]}"); a("s_cbranch_scc1 L_end"); a(f"s_cmp_lg_u32 s{sW}, {selw[1]}"); a("s_cbranch_scc1 L_end")
            a(f"s_sub_u32 s{sSt}, s{sSt}, s{sStart}"); a(f"s_mul_i32 s{sSt}, s{sSt}, {amp or 1}"); a(f"s_add_u32 s{sSt}, s{sSt}, 5000")
            lp = a.newlabel("pad"); a.label(lp)
            a(f"s_memrealtime {sr(sTm,2)}"); a("s_waitcnt lgkmcnt(0)")
            a(f"s_sub_u32 s{sTm}, s{sTm}, s{sStart}"); a(f"s_cmp_lt_u32 s{sTm}, s{sSt}"); a(f"s_cbranch_scc1 {lp}")
        elif stamps:
            lp = a.newlabel("pad"); a.label(lp)
            a(f"s_memrealtime {sr(sTm,2)}"); a("s_waitcnt lgkmcnt(0)")
            a(f"s_sub_u32 s{sTm}, s{sTm}, s{sStart}"); a(f"s_cmp_lt_u32 s{sTm}, 3000"); a(f"s_cbranch_scc1 {lp}")
            a(f"s_mov_b32 s{sSt+13}, s{sReg}"); a(f"s_mov_b32 s{sSt+14}, s{sStart}"); a(f"s_mov_b32 s{sSt+15}, s{sSpin}")
            a(f"s_lshl_b32 s{sT0}, s{sP}, 3"); a(f"s_add_u32 s{sT0}, s{sT0}, s{sW}"); a(f"s_lshl_b32 s{sT0}, s{sT0}, 6")
            if trace:
                a("s_mov_b64 exec, -1")
                a(f"s_lshl_b32 s{sT1}, s{sT0}, 2"); a(f"s_add_u32 s{sT1}, s{sT1}, {WS_ST + 0x100000}")
                a(f"v_lshl_add_u32 v{vT}, v{vL}, 2, s{sT1}")
                a(f"buffer_store_dword v{vTr}, v{vT}, {sr(dWS,4)}, 0 offen")
            a("s_mov_b64 exec, 1")
            a(f"s_add_u32 s{sT0}, s{sT0}, {WS_ST}"); a(f"v_mov_b32 v{vT}, s{sT0}")
            for q in range(4):
                for k in range(4): a(f"v_mov_b32 v{vKV+80+4*q+k}, s{sSt+4*q+k}")
                a(f"buffer_store_dwordx4 {vr(vKV+80+4*q,4)}, v{vT}, {sr(dWS,4)}, 0 offen offset:{16*q}")
        a("s_endpgm")
    def rne(dst, src):
        a(f"v_cvt_pk_bf16_f32 v{dst}, v{src}, v{src}"); a(f"v_and_b32 v{dst}, 0xffff0000, v{dst}")
    def rne_pairs(regs):
        for x, y in zip(regs[0::2], regs[1::2]): a(f"v_cvt_pk_bf16_f32 v{y}, v{x}, v{y}")
        for x, y in zip(regs[0::2], regs[1::2]):
            a(f"v_lshlrev_b32 v{x}, 16, v{y}"); a(f"v_and_b32 v{y}, 0xffff0000, v{y}")
    DP = "row_mask:0xf bank_mask:0xf"
    R8 = ("quad_perm:[1,0,3,2]", "quad_perm:[2,3,0,1]", "row_half_mirror")
    def red8(op, regs, steps=R8):
        for m in steps:
            for r in regs: a(f"{op}_dpp v{r}, v{r}, v{r} {m} {DP}")
    def red_hi(op, regs):
        for r in regs: a(f"{op}_dpp v{r}, v{r}, v{r} row_ror:8 {DP}")
        for r in regs: a(f"{op}_dpp v{r}, v{r}, v{r} row_bcast:15 row_mask:0xa bank_mask:0xf")
        for r in regs: a(f"{op}_dpp v{r}, v{r}, v{r} row_bcast:31 row_mask:0xc bank_mask:0xf")
    def buildA(dst, dup, e=None):
        for k in range(4): (e or a)(f"v_and_b32 v{dst+k}, v{dup}, v{vM+k}")
    def mfma(d, A_, B_, c, e=None): (e or a)(f"v_mfma_f32_16x16x32_bf16 {vr(d,4)}, {vr(A_,4)}, {vr(B_,4)}, {'0' if c is None else vr(c,4)}")
    def or_all(dst, rs, e=None):
        e = e or a
        e(f"v_or3_b32 v{dst}, v{rs[0]}, v{rs[1]}, v{rs[2]}"); rs = rs[3:]
        while rs:
            if len(rs) >= 2: e(f"v_or3_b32 v{dst}, v{dst}, v{rs[0]}, v{rs[1]}"); rs = rs[2:]
            else: e(f"v_or_b32 v{dst}, v{dst}, v{rs[0]}"); rs = rs[1:]
    def untag(sets):
        for g in sets:
            for k in range(4): a(f"v_xor_b32 v{g+k}, s{sTag[k]}, v{g+k}")
        or_all(vT, [g+k for g in sets for k in range(4)])
        a(f"v_and_b32 v{vT}, 0xff, v{vT}")
        a(f"v_cmp_ne_u32 vcc, 0, v{vT}")
    def pub(text, name):
        ls = a.newlabel("pubslow"); lb = a.newlabel("pubback")
        a(f"s_cmp_lg_u32 s{sReg}, 0"); a(f"s_cbranch_scc1 {ls}")
        a(text, name)
        a.label(lb)
        cold.append([ls + ":", "    " + text + " sc1", f"    s_branch {lb}"])
    def retry(label, loads):
        lr = a.newlabel("retry")
        a(f"s_cbranch_vccnz {lr}")
        cold.append([lr + ":", f"    s_sub_u32 s{sSpin}, s{sSpin}, 1", "    s_cbranch_scc1 L_end"] + ["    " + t for t in loads] +
                    ["    s_waitcnt vmcnt(0)", f"    s_branch {label}"])
    def arrive(k):
        a("s_mov_b64 exec, 1"); a(f"ds_add_u32 v{vZ}, v{vZ+1} offset:{LDS_CNT+4*k}"); a("s_mov_b64 exec, -1")
    def await_all(k, reads):
        lb = a.newlabel("await"); a.label(lb)
        a(f"ds_read_b32 v{vCn}, v{vZ} offset:{LDS_CNT+4*k}")
        reads()
        a(f"s_sub_u32 s{sSpin}, s{sSpin}, 1"); a("s_cbranch_scc1 L_end")
        a("s_waitcnt lgkmcnt(0)")
        a(f"v_cmp_ne_u32 vcc, 8, v{vCn}"); a(f"s_cbranch_vccnz {lb}")
    def red_read(base):
        b = base // 256
        for q in range(4): a(f"ds_read2st64_b32 {vr(vT+2*q,2)}, v{vRedR} offset0:{b+12*q} offset1:{b+12*q+6}")
    def red_sum8(dst, tag):
        a("s_waitcnt lgkmcnt(2)")
        a(f"v_add_f32 v{vT}, v{vT}, v{vT+1}"); a(f"v_add_f32 v{vT+2}, v{vT+2}, v{vT+3}")
        a("s_waitcnt lgkmcnt(1)")
        a(f"v_add_f32 v{vT+4}, v{vT+4}, v{vT+5}"); a(f"v_add_f32 v{vT}, v{vT}, v{vT+2}")
        a("s_waitcnt lgkmcnt(0)")
        a(f"v_add_f32 v{vT+6}, v{vT+6}, v{vT+7}"); a(f"v_add_f32 v{vT}, v{vT}, v{vT+4}")
        a(f"v_add_f32 v{vT+1}, v{vT}, v{vT+6}"); a(f"v_add_f32 v{vT}, v{vT}, v{vT+6}")
        a(f"v_permlane32_swap_b32 v{vT}, v{vT+1}")
        a(f"v_add_f32 v{vT}, v{vT}, v{vT+1}")
        a(f"v_and_or_b32 v{dst}, v{vT}, s{sMask}, v{tag}")

    stream = [("K", i) for i in range(kfirst)] + [("S", i) for i in range(6)] + [("K", i) for i in range(kfirst, 24)]
    stream += [("V", i) for i in range(24)] + [("W", i) for i in range(5)]
    limit = [len(stream) - hold]
    idx = {f"{t}{i}": n for n, (t, i) in enumerate(stream)}
    kdone = [0]; pos = [0]; arrived = [-1]; deep = [False]
    def load(t, i):
        if t in "KV":
            g, j = divmod(i, 3)
            if t == "V": assert g - voff < kdone[0], "V load overwrites unconsumed K"
            so = "0" if g < 2 else f"s{sOff[(g>>1)-1]}"
            a(f"buffer_load_dwordx4 {vr(kreg(i) if t == 'K' else vreg(i),4)}, v{vKoff}, {sr(dK if t == 'K' else dV,4)}, {so} offen offset:{3072*(g&1)+128*j} {ld}", f"{t}{i}")
        elif t == "S":
            a(f"buffer_load_dwordx4 {vr(vW+4*i,4)}, v{(vS1a, vS1a, vS1a, vS1b, vS1b, vS1c)[i]}, {sr(dS1,4)}, {('0', f's{sS1}', f's{sS2}')[i % 3]} offen {ld}", f"S{i}")
        elif i < 4:
            a(f"buffer_load_dwordx4 {vr(vW+4*i,4)}, v{vWo}, {sr(dWO,4)}, 0 offen offset:{1280*i} {ld}", f"W{i}")
        else:
            a(f"buffer_load_dwordx4 {vr(vW+16,4)}, v{vW2o}, {sr(dW2,4)}, 0 offen {ld}", "W4")
    def wait_idx(n, extra=""):
        if n > arrived[0] or extra:
            t, i = stream[n]; a.wait_vm(f"{t}{i}", extra); arrived[0] = max(arrived[0], n)
    nchk = [0]
    def thr(p): return int(pace[0] + pace[1]*p) + relax*nchk[0]
    def step(n=1):
        for _ in range(n):
            p = pos[0]
            if p >= limit[0]: return
            if trace == 1 and p >= DH:
                a(f"s_memrealtime {sr(4,2)}"); a("s_waitcnt lgkmcnt(0)"); a(f"v_writelane_b32 v{vTr}, s4, {p}")
            if deep[0] or (pace and p >= limit[0] - lastdeep): wait_idx(p - DH)
            elif pace and p >= pfrom:
                if p - D > arrived[0] or tpost:
                    if not tpost: a(f"s_memrealtime {sr(sTm,2)}")
                    wait_idx(p - DH, "lgkmcnt(0)")
                    for k, (pp, pr) in enumerate(anchors):
                        if pp == p:
                            a(f"s_cmp_eq_u32 s{sSmp}, 0"); a(f"s_cbranch_scc1 L_post{k}")
                            a.label(f"L_postback{k}")
                            c = Asm(); c.label(f"L_post{k}")
                            c.c("32 sample waves add their clock (and a count) to a word of the zeroed debug buffer")
                            c(f"s_and_b32 s{sTm+1}, s{sTm}, 0xfffff"); c(f"s_bitset1_b32 s{sTm+1}, 26")
                            c("s_mov_b64 exec, 1"); c(f"v_mov_b32 v{vCn}, s{sTm+1}")
                            c(f"buffer_atomic_add v{vCn}, off, {sr(dDBG,4)}, 0 offset:{64*k}")
                            c("s_mov_b64 exec, -1"); c(f"s_branch L_postback{k}")
                            cold.append(c.out)
                        if pr == p:
                            a.c("measure 'behind' from the samples' mean once all 32 are in")
                            a(f"s_lshl_b32 s{sTm+1}, s{sTm}, 5"); a(f"s_sub_u32 s{sTm+1}, s{sAn}, s{sTm+1}")
                            a(f"s_bfe_i32 s{sTm+1}, s{sTm+1}, {(15 << 16) | 5:#x}")
                            a(f"s_add_u32 s{sTm+1}, s{sTm+1}, s{sTm}"); a(f"s_sub_u32 s{sTm+1}, s{sTm+1}, {thr(pp) - (aoff[k] if isinstance(aoff, tuple) else aoff)}")
                            a(f"s_bitcmp1_b32 s{sAn}, 31"); a(f"s_cselect_b32 s{sBase}, s{sTm+1}, s{sBase}")
                            if trace == 2: a(f"s_lshr_b32 s{sAn}, s{sAn}, 26"); a(f"v_writelane_b32 v{vTr}, s{sAn}, {60+k}")
                    a(f"s_sub_u32 s{sTm}, s{sTm}, s{sBase}")
                    if trace == 2: a(f"s_sub_u32 s{sTm+1}, s{sTm}, {thr(p) - 100000}"); a(f"v_writelane_b32 v{vTr}, s{sTm+1}, {p}")
                    if p - D > arrived[0]:
                        lb = a.newlabel("late")
                        a(f"s_cmpk_gt_i32 s{sTm}, {thr(p)}"); a(f"s_cbranch_scc1 {lb}")
                        if relax: a(f"s_sub_u32 s{sBase}, s{sBase}, {relax}"); a.hist[-1].states = 0; nchk[0] += 1
                        t, i = stream[p - D]; a.wait_vm(f"{t}{i}"); a.hist[-1].states = 0
                        if lo2:
                            a(f"s_cmpk_gt_i32 s{sTm}, {int(lo2[0] + lo2[1]*p)}"); a.hist[-1].states = 0
                            a(f"s_cbranch_scc1 {lb}"); a.hist[-1].states = 0
                            t, i = stream[p - D + 1]; a.wait_vm(f"{t}{i}"); a.hist[-1].states = 0
                        a.label(lb)
            elif p >= D: wait_idx(p - D)
            load(*stream[p]); pos[0] += 1
            if diag == 100 + p: stamp(diag)
            if pace and tpost and pfrom <= p + 1 < limit[0] - lastdeep:
                a(f"s_memrealtime {sr(sTm,2)}")
                for k, (pp, pr) in enumerate(anchors):
                    if pr == p + 1: a(f"s_buffer_load_dword s{sAn}, {sr(dDBG,4)}, {64*k}")
    def need(name):
        n = idx[name]
        while arrived[0] < n and pos[0] < limit[0]: step()
        wait_idx(n)
    def issue_to(name):
        while pos[0] <= idx[name]: step()
    def phase(name):
        deep[0] = name in hi

    a("s_cmpk_ge_u32 s2, 256"); a("s_cbranch_scc1 L_end")
    a(f"s_memrealtime {sr(sStart,2)}")
    a("s_load_dwordx16 s[4:19], s[0:1], 0")
    a("s_load_dwordx8 s[20:27], s[0:1], 64")
    a(f"v_lshrrev_b32 v{vT}, 6, v0")
    a(f"v_and_b32 v{vL}, 63, v0")
    a(f"v_readfirstlane_b32 s{sW}, v{vT}")
    a(f"s_and_b32 s{sG}, s2, 7"); a(f"s_lshr_b32 s{sC}, s2, 3")
    a(f"s_lshl_b32 s{sP}, s{sG}, 5"); a(f"s_add_u32 s{sP}, s{sP}, s{sC}")
    a(f"v_lshrrev_b32 v{vSlot}, 3, v{vL}"); a(f"v_and_b32 v{vCh}, 7, v{vL}")
    a(f"s_lshl_b32 s{sT0}, s{sP}, 3"); a(f"s_add_u32 s{sT0}, s{sT0}, s{sW}"); a(f"s_mul_i32 s{sT0}, s{sT0}, 24576")
    a(f"v_mul_u32_u24 v{vKoff}, 384, v{vSlot}")
    a(f"v_lshl_add_u32 v{vT+1}, v{vCh}, 4, s{sT0}")
    a(f"v_add_u32 v{vKoff}, v{vKoff}, v{vT+1}")
    a(f"s_mov_b32 s{dK+2}, 50331648"); a(f"s_mov_b32 s{dK+3}, 0x20000")
    a(f"s_lshr_b32 s{sH}, s{sP}, 3"); a(f"s_and_b32 s{sS}, s{sP}, 7")
    a(f"v_lshlrev_b32 v{vL16}, 4, v{vL}")
    a(f"v_mov_b32 v{vZ}, 0"); a(f"v_mov_b32 v{vZ+1}, 0")
    a(f"ds_write_b64 v{vZ}, {vr(vZ,2)} offset:{LDS_CNT}")
    a.c("stage-1 role: waves 0-4 take 16 rows x 192 columns of wq, waves 5-7 take 48/40/40 rows x 64 columns of w1 or w3")
    a(f"s_max_u32 s{sT0}, s{sC}, 2"); a(f"s_sub_u32 s{sT0}, s{sT0}, 2")
    a(f"s_mul_i32 s{sPhi}, s{sT0}, 52"); a(f"s_lshr_b32 s{sPhi}, s{sPhi}, 8")
    a(f"s_mul_i32 s{sT1}, s{sPhi}, 5"); a(f"s_sub_u32 s{sK}, s{sT0}, s{sT1}")
    a(f"s_lshl_b32 s{sT0}, s{sK}, 7"); a(f"s_mul_i32 s{sT1}, s{sW}, 40"); a(f"s_add_u32 s{sT0}, s{sT0}, s{sT1}")
    a(f"s_cmp_eq_u32 s{sW}, 5"); a(f"s_cselect_b32 s{sT1}, 8, 0"); a(f"s_sub_u32 s{sT0}, s{sT0}, s{sT1}"); a(f"s_sub_u32 s{sT0}, s{sT0}, 192")
    a(f"s_lshr_b32 s{sT1}, s{sPhi}, 1"); a(f"s_mul_i32 s{sT2}, s{sG}, 3"); a(f"s_add_u32 s{sT1}, s{sT1}, s{sT2}"); a(f"s_lshl_b32 s{sT1}, s{sT1}, 7")
    a(f"s_cmp_lt_u32 s{sC}, 2"); a(f"s_cselect_b32 s{sT1}, {OOB}, s{sT1}")
    a(f"s_mul_i32 s{sT2}, s{sS}, 80"); a(f"s_lshl_b32 s{sT3}, s{sW}, 4"); a(f"s_add_u32 s{sT2}, s{sT2}, s{sT3}")
    a(f"s_mul_i32 s{sT3}, s{sH}, 384")
    a(f"s_cmp_lt_u32 s{sW}, 5")
    a(f"s_cselect_b32 s{sT0}, s{sT2}, s{sT0}"); a(f"s_cselect_b32 s{sT1}, s{sT3}, s{sT1}")
    a(f"s_cselect_b32 s{sT2}, 12, 3"); a(f"s_cselect_b32 s{sT3}, 4, 3"); a(f"s_cselect_b32 s{sQo}, 1, 192")
    a(f"s_lshl_b32 s{sT2}, s{sT2}, 10")
    a(f"s_mul_i32 s{dS1+2}, s{sT2}, 640"); a(f"s_mov_b32 s{dS1+3}, 0x20000")
    a(f"v_add_u32 v{vT}, s{sT0}, v{vSlot}")
    a(f"v_mul_lo_u32 v{vS1a}, v{vT}, s{sT2}")
    a(f"v_lshl_add_u32 v{vT+1}, v{vCh}, 4, s{sT1}")
    a(f"v_add_u32 v{vS1a}, v{vS1a}, v{vT+1}")
    a(f"s_mul_i32 s{sT3}, s{sT3}, 24576")
    a(f"v_add_u32 v{vS1b}, s{sT3}, v{vS1a}")
    a(f"s_cmp_lt_u32 s{sW}, 6"); a(f"s_cselect_b32 s{sT3}, 0, {OOB}")
    a(f"v_or_b32 v{vS1c}, s{sT3}, v{vS1b}")
    a(f"v_add_lshl_u32 v{vT+2}, v{vL}, s{sT0}, 1")
    a(f"v_lshlrev_b32 v{vT+4}, 2, v{vL}")
    a(f"s_mov_b32 s{dX+2}, 1280"); a(f"s_mov_b32 s{dX+3}, 0x20000")
    a(f"s_lshl_b32 s{sS1}, s{sQo}, 7"); a(f"s_lshl_b32 s{sS2}, s{sQo}, 8")
    a("s_waitcnt lgkmcnt(0)")
    def s1desc():
        a(f"s_bitcmp1_b32 s{sPhi}, 0"); a(f"s_cselect_b64 {sr(dS1,2)}, {sr(pW3,2)}, {sr(pW1,2)}")
        a(f"s_cmp_lt_u32 s{sW}, 5"); a(f"s_cselect_b64 {sr(dS1,2)}, {sr(pWQ,2)}, {sr(dS1,2)}")
    if kfirst:
        a(f"s_mov_b64 {sr(dK,2)}, {sr(pK,2)}"); step(kfirst); s1desc(); step(3 - kfirst)
    else:
        s1desc(); step(3); a(f"s_mov_b64 {sr(dK,2)}, {sr(pK,2)}")
    a(f"s_load_dword s{sE}, {sr(pWS,2)}, {WS_E}")
    a(f"s_mov_b64 {sr(dX,2)}, {sr(pX,2)}")
    a(f"buffer_load_dwordx4 {vr(vXa,4)}, v{vL16}, {sr(dX,4)}, 0 offen", "xa")
    a(f"buffer_load_dword v{vXb}, v{vT+4}, {sr(dX,4)}, 0 offen offset:1024", "xb")
    a(f"buffer_load_ushort v{vXr}, v{vT+2}, {sr(dX,4)}, 0 offen", "xr")
    a("s_barrier"); a(f"v_mov_b32 v{vZ+1}, 1")
    if diag is not None: a(f"s_mov_b32 s{sSt}, s{sStart}")
    if trace: a(f"v_mov_b32 v{vTr}, 0")
    if stamps:
        for i in range(13): a(f"s_mov_b32 s{sSt+i}, 0")
    if prefetch:
        a.c("pull this kernel's code into the L2 (each wave one line)")
        a(f"s_getpc_b64 {sr(sTm,2)}")
        a(f"s_lshl_b32 s{sT0}, s{sC}, 3"); a(f"s_add_u32 s{sT0}, s{sT0}, s{sW}"); a(f"s_and_b32 s{sT0}, s{sT0}, 63")
        a(f"s_lshl_b32 s{sT0}, s{sT0}, 7")
        a(f"s_load_dword s{sCnt}, {sr(sTm,2)}, s{sT0}")
    a(f"s_mov_b64 {sr(dV,2)}, {sr(pV,2)}"); a(f"s_mov_b32 s{dV+2}, 50331648"); a(f"s_mov_b32 s{dV+3}, 0x20000")
    a(f"s_mov_b64 {sr(dWS,2)}, {sr(pWS,2)}"); a(f"s_mov_b32 s{dWS+2}, {WS_SIZE}"); a(f"s_mov_b32 s{dWS+3}, 0x20000")
    a(f"s_mov_b64 {sr(dOUT,2)}, {sr(pOUT,2)}"); a(f"s_mov_b32 s{dOUT+2}, 1280"); a(f"s_mov_b32 s{dOUT+3}, 0x20000")
    a(f"s_mov_b32 s{dWO+2}, 7864320"); a(f"s_mov_b32 s{dWO+3}, 0x20000")
    a(f"s_mov_b32 s{dW2+2}, 1966080"); a(f"s_mov_b32 s{dW2+3}, 0x20000")
    for i in range(3): a(f"s_mov_b32 s{sOff[i]}, {6144*(i+1)}")
    a(f"s_mov_b32 s{sBase}, s{sStart}")
    if anchors:
        a(f"s_mov_b32 s{dDBG+2}, 256"); a(f"s_mov_b32 s{dDBG+3}, 0x20000")
        a.c("sample waves: one per head, every wave number equally often")
        a(f"s_add_u32 s{sSmp}, s{sH}, s{sW}"); a(f"s_and_b32 s{sSmp}, s{sSmp}, 7"); a(f"s_xor_b32 s{sT0}, s{sS}, 3"); a(f"s_or_b32 s{sSmp}, s{sSmp}, s{sT0}")
    a(f"s_mov_b32 s{sSpin}, {spin}"); a(f"s_mov_b32 s{sReg}, 0"); a(f"s_mov_b32 s{sMask}, 0xffffff00")
    a(f"s_mov_b32 s{sVal}, 0x00ff00ff"); a(f"s_mov_b32 s{sVal+1}, 0xff00ff00")
    a.c("MFMA A-operand masks")
    a(f"v_and_b32 v{vT}, 1, v{vL}"); a(f"v_lshlrev_b32 v{vT}, 4, v{vT}")
    a(f"v_mov_b32 v{vT+1}, 0xffff"); a(f"v_lshlrev_b32 v{vT}, v{vT}, v{vT+1}")
    a(f"v_lshrrev_b32 v{vT+1}, 1, v{vCh}")
    for k in range(4):
        a(f"v_cmp_eq_u32 vcc, {k}, v{vT+1}"); a(f"v_cndmask_b32 v{vM+k}, 0, v{vT}, vcc")
    a.c("LDS reduce addresses")
    a(f"v_lshrrev_b32 v{vT+2}, 5, v{vL}"); a(f"v_mul_u32_u24 v{vT}, 768, v{vT+2}")
    a(f"v_bfe_u32 v{vT+1}, v{vL}, 4, 1"); a(f"v_lshl_add_u32 v{vT+1}, v{vCh}, 1, v{vT+1}")
    a(f"v_lshl_add_u32 v{vT+1}, v{vT+1}, 4, v{vT}")
    a(f"s_mul_i32 s{sT0}, s{sW}, 1536")
    a(f"v_add_u32 v{vRedW}, s{sT0}, v{vT+1}")
    a(f"v_and_b32 v{vT+3}, 31, v{vL}")
    a(f"s_sub_u32 s{sT3}, s{sW}, 6"); a(f"s_min_u32 s{sT3}, s{sT3}, s{sW}")
    a(f"s_lshl_b32 s{sT0}, s{sT3}, 7")
    a(f"v_lshl_add_u32 v{vT+1}, v{vT+3}, 2, s{sT0}")
    a(f"v_add_u32 v{vRedR}, v{vT}, v{vT+1}")
    a.c("publish offsets: waves 0-5 lanes 0-31 q/o slot, waves 6-7 lanes 32-63 ffn slot, wave 7 lane 0 die id")
    a(f"s_mul_i32 s{sT0}, s{sH}, 6"); a(f"s_add_u32 s{sT0}, s{sT0}, s{sW}"); a(f"s_lshl_b32 s{sT0}, s{sT0}, 10")
    a(f"s_lshl_b32 s{sT1}, s{sS}, 4"); a(f"s_add_u32 s{sT0}, s{sT0}, s{sT1}"); a(f"s_add_u32 s{sT0}, s{sT0}, {WS_QP}")
    a(f"s_lshl_b32 s{sFo}, s{sG}, 13"); a(f"s_add_u32 s{sFo}, s{sFo}, {WS_FP}")
    a(f"s_and_b32 s{sT1}, s{sPhi}, 6"); a(f"s_add_u32 s{sT1}, s{sT1}, s{sT3}"); a(f"s_mul_i32 s{sT1}, s{sT1}, 1280")
    a(f"s_and_b32 s{sT2}, s{sPhi}, 1"); a(f"s_mul_i32 s{sT2}, s{sT2}, 5"); a(f"s_add_u32 s{sT2}, s{sT2}, s{sK}"); a(f"s_lshl_b32 s{sT2}, s{sT2}, 4")
    a(f"s_add_u32 s{sT1}, s{sT1}, s{sT2}"); a(f"s_add_u32 s{sT1}, s{sT1}, s{sFo}")
    a(f"s_cmp_lt_u32 s{sC}, 2"); a(f"s_cselect_b32 s{sT1}, {OOB}, s{sT1}")
    a(f"s_cmp_lt_u32 s{sW}, 6"); a(f"s_cselect_b32 s{sT0}, s{sT0}, {OOB}"); a(f"s_cselect_b32 s{sT1}, {OOB}, s{sT1}")
    a(f"v_lshrrev_b32 v{vT}, 2, v{vT+3}")
    a(f"v_lshl_add_u32 v{vT+1}, v{vT}, 7, s{sT0}")
    a(f"v_mul_u32_u24 v{vT+4}, 160, v{vT}"); a(f"v_add_u32 v{vT+4}, s{sT1}, v{vT+4}")
    a(f"v_cmp_gt_u32 vcc, 32, v{vL}")
    a(f"v_and_b32 v{vT+5}, 3, v{vL}")
    a(f"v_cndmask_b32 v{vT+1}, v{vT+4}, v{vT+1}, vcc")
    a(f"v_lshl_add_u32 v{vPubA}, v{vT+5}, 2, v{vT+1}")
    step(3)
    if skel == 1:
        snap1 = a.snapshot()
    a.c("stage-3 task: range rho = c/10, slab k = c%10 (c >= 30: reducers, slab (c-30)*8+G)")
    a(f"s_mul_i32 s{sT0}, s{sC}, 26"); a(f"s_lshr_b32 s{sT0}, s{sT0}, 8")
    a(f"s_mul_i32 s{sT1}, s{sT0}, 10"); a(f"s_sub_u32 s{sK}, s{sC}, s{sT1}")
    a(f"s_min_u32 s{sT2}, s{sT0}, 2"); a(f"s_lshl_b32 s{sT2}, s{sT2}, 3"); a(f"s_add_u32 s{sT3}, s{sT2}, s{sW}")
    a(f"s_mul_i32 s{sT2}, s{sG}, 24"); a(f"s_add_u32 s{sPhi}, s{sT3}, s{sT2}")
    a(f"s_lshl_b32 s{sT2}, s{sK}, 7")
    a(f"s_cmp_lt_u32 s{sC}, 30"); a(f"s_cselect_b32 s{sT2}, s{sT2}, {OOB}")
    a(f"v_lshl_add_u32 v{vT}, v{vCh}, 4, s{sT2}")
    a(f"s_mul_i32 s{sT2}, s{sPhi}, {8*1280}")
    a(f"v_mul_u32_u24 v{vT+1}, 1280, v{vSlot}"); a(f"v_add_u32 v{vT+1}, s{sT2}, v{vT+1}")
    a(f"v_add_u32 v{vW2o}, v{vT}, v{vT+1}")
    a(f"v_lshl_add_u32 v{vWo}, v{vT+1}, 2, v{vT}")
    if skel == 1:
        kdone[0] = 8; limit[0] = len(stream)
        a(f"buffer_store_dword v{vPubD}, v{vPubA}, {sr(dWS,4)}, 0 offen")
        while pos[0] < len(stream): step()
        a("s_waitcnt vmcnt(0)"); finish()
        a.restore(snap1); pos[0] = 6; arrived[0] = 2; kdone[0] = 0
    a.c("y publish offset: both copies of (slab, line w), slot 3G + rho")
    a(f"s_lshl_b32 s{sT1}, s{sK}, 2"); a(f"s_add_u32 s{sT1}, s{sT1}, s{sW}"); a(f"s_lshl_b32 s{sT1}, s{sT1}, 12")
    a(f"s_mul_i32 s{sT2}, s{sG}, 3"); a(f"s_add_u32 s{sT2}, s{sT2}, s{sT0}"); a(f"s_lshl_b32 s{sT2}, s{sT2}, 7")
    a(f"s_add_u32 s{sT1}, s{sT1}, s{sT2}"); a(f"s_add_u32 s{sT1}, s{sT1}, {WS_YP}")
    a(f"v_lshl_add_u32 v{vYo}, v{vT+3}, 2, s{sT1}"); a(f"v_lshl_add_u32 v{vYo}, v{vT+2}, 13, v{vYo}")
    a.c("gather offsets")
    a(f"s_min_u32 s{sT0}, s{sW}, 5"); a(f"s_mul_i32 s{sT1}, s{sH}, 6"); a(f"s_add_u32 s{sT0}, s{sT0}, s{sT1}")
    a(f"s_lshl_b32 s{sT0}, s{sT0}, 10"); a(f"s_add_u32 s{sQo}, s{sT0}, {WS_QP}")
    a(f"s_mul_i32 s{sT3}, s{sT3}, 320")
    a(f"v_lshrrev_b32 v{vT}, 4, v{vL}"); a(f"v_mul_u32_u24 v{vT}, 80, v{vT}"); a(f"v_add_u32 v{vT}, s{sT3}, v{vT}")
    a(f"v_and_b32 v{vT+1}, 15, v{vL}"); a(f"v_cmp_gt_u32 vcc, 5, v{vT+1}")
    a(f"v_mov_b32 v{vT+1}, 7680")
    a(f"v_cndmask_b32 v{vT}, v{vT+1}, v{vT}, vcc"); a(f"v_lshl_add_u32 v{vFo}, v{vCh}, 4, v{vT}")
    phase("s1")
    step(1)
    a.wait_vm("xr")
    xs = [vQ + i for i in range(10)]
    for i in range(5):
        src = vXa + i if i < 4 else vXb
        a(f"v_lshlrev_b32 v{xs[2*i]}, 16, v{src}"); a(f"v_and_b32 v{xs[2*i+1]}, 0xffff0000, v{src}")
    a(f"v_add_f32 v{vT}, v{xs[0]}, v{xs[1]}"); a(f"v_add_f32 v{vT+1}, v{xs[2]}, v{xs[3]}")
    for i in range(4, 10): a(f"v_add_f32 v{vT+(i&1)}, v{vT+(i&1)}, v{xs[i]}")
    a(f"v_add_f32 v{vT}, v{vT}, v{vT+1}")
    red8("v_add_f32", [vT]); red_hi("v_add_f32", [vT])
    a(f"v_readlane_b32 s{sT0}, v{vT}, 63")
    a(f"v_mov_b32 v{vT+2}, {f2u(1/640.):#x}")
    step(1)
    a(f"v_mul_f32 v{vT+3}, s{sT0}, v{vT+2}")
    for i in range(10): a(f"v_sub_f32 v{xs[i]}, v{xs[i]}, v{vT+3}")
    a(f"v_mul_f32 v{vT}, v{xs[0]}, v{xs[0]}"); a(f"v_mul_f32 v{vT+1}, v{xs[1]}, v{xs[1]}")
    for i in range(2, 10): a(f"v_fmac_f32 v{vT+(i&1)}, v{xs[i]}, v{xs[i]}")
    a(f"v_add_f32 v{vT}, v{vT}, v{vT+1}")
    step(1)
    red8("v_add_f32", [vT]); red_hi("v_add_f32", [vT])
    a(f"v_readlane_b32 s{sT0}, v{vT}, 63")
    a(f"v_lshlrev_b32 v{vXr}, 16, v{vXr}")
    rne(vT+3, vT+3)
    a(f"v_mul_f32 v{vT+2}, s{sT0}, v{vT+2}")
    a(f"v_sub_f32 v{vXr}, v{vXr}, v{vT+3}")
    step(1)
    rne(vT+2, vT+2); rne(vXr, vXr)
    a(f"v_add_f32 v{vT+2}, {f2u(1e-5):#x}, v{vT+2}"); rne(vT+2, vT+2)
    a(f"v_sqrt_f32 v{vT+2}, v{vT+2}"); rne(vT+2, vT+2)
    a(f"v_rcp_f32 v{vT+4}, v{vT+2}")
    a(f"v_mul_f32 v{vT}, v{vXr}, v{vT+4}"); a(f"v_fma_f32 v{vT+1}, -v{vT}, v{vT+2}, v{vXr}")
    a(f"v_fma_f32 v{vT}, v{vT+1}, v{vT+4}, v{vT}")
    a(f"v_cvt_pk_bf16_f32 v{vXr}, v{vT}, v{vT}")
    a(f"v_lshlrev_b32 v{vT}, 2, v{vSlot}")
    for i in range(6): a(f"ds_bpermute_b32 v{vSc+i}, v{vT}, v{vXr} offset:{32*i}")
    step(1)
    a.c("hand-off tags of this launch")
    a("s_waitcnt lgkmcnt(0)")
    a(f"s_add_u32 s{sE}, s{sE}, 0x01010101")
    for k in range(4): a(f"s_bfe_u32 s{sTag[k]}, s{sE}, {(8 << 16) | (8*k):#x}")
    a(f"s_getreg_b32 s{sT0}, hwreg(HW_REG_XCC_ID, 0, 4)")
    if forceslow: a(f"s_and_b32 s{sT0}, s{sC}, 1")
    a(f"s_lshl_b32 s{sT0}, s{sT0}, 28"); a(f"s_and_b32 s{sId}, s{sE}, 0x0fffffff"); a(f"s_or_b32 s{sId}, s{sId}, s{sT0}")
    a(f"v_and_b32 v{vT}, 3, v{vL}"); a(f"v_lshlrev_b32 v{vT}, 3, v{vT}")
    a(f"v_bfe_u32 v{vPubD}, s{sE}, v{vT}, 8")
    a(f"s_add_u32 s{sE}, s{sE}, 0x01010101")
    a(f"v_bfe_u32 v{vTg2}, s{sE}, v{vT}, 8")
    a(f"s_mov_b32 s{sCnt}, {timeout}")
    buildA(vA, vSc); buildA(vA2, vSc+1)
    need("S5")
    a(f"s_cmp_ge_u32 s{sW}, 5"); a("s_cbranch_scc1 L_s1ffn")
    for i in range(6): mfma(vD+4*(i % 3), vA if i < 3 else vA2, vW+4*i, None if i < 3 else vD+4*(i % 3))
    a.label("L_s1back")
    c = Asm(); c.label("L_s1ffn")
    for i in range(6):
        mfma(vD, (vA, vA2)[i & 1], vW+4*i, None if i == 0 else vD, c)
        if i < 4: buildA((vA, vA2)[i & 1], vSc+i+2, c)
    c("s_nop 1"); c("s_branch L_s1back")
    cold.append(c.out)
    a(f"s_mov_b64 exec, {sr(sVal,2)}")
    for j in range(3): a(f"ds_write_b128 v{vRedW}, {vr(vD+4*j,4)} offset:{LDS_RED+256*j}")
    arrive(0)
    step(nb)
    await_all(0, lambda: red_read(LDS_RED))
    a(f"v_add_f32 v{vT}, v{vT}, v{vT+1}"); a(f"v_add_f32 v{vT+2}, v{vT+2}, v{vT+3}"); a(f"v_add_f32 v{vT+5}, v{vT+5}, v{vT+6}")
    a(f"v_add_f32 v{vT}, v{vT}, v{vT+4}"); a(f"v_add_f32 v{vT+5}, v{vT+5}, v{vT+7}"); a(f"v_add_f32 v{vT}, v{vT}, v{vT+2}")
    a(f"s_lshl_b32 s{sT0}, s{sC}, 2"); a(f"s_add_u32 s{sT0}, s{sT0}, s{sFo}"); a(f"s_add_u32 s{sT0}, s{sT0}, 7680")
    a(f"v_permlane32_swap_b32 v{vT}, v{vT+5}")
    a(f"v_add_f32 v{vT}, v{vT}, v{vT+5}")
    a(f"v_and_or_b32 v{vPubD}, v{vT}, s{sMask}, v{vPubD}")
    a(f"s_cmp_eq_u32 s{sW}, 7"); a("s_cselect_b64 exec, 1, 0")
    a(f"v_mov_b32 v{vPubD}, s{sId}"); a(f"v_mov_b32 v{vPubA}, s{sT0}")
    a("s_mov_b64 exec, -1")
    a(f"buffer_store_dword v{vPubD}, v{vPubA}, {sr(dWS,4)}, 0 offen", "pubq")
    phase("")
    stamp(0)
    issue_to(f"K{qpos-1}")
    def x1loads(q, f): return [f"buffer_load_dwordx4 {vr(vG,4)}, v{vL16}, {sr(dWS,4)}, s{q} offen sc1",
                               f"buffer_load_dwordx4 {vr(vG2,4)}, v{vFo}, {sr(dWS,4)}, s{f} offen sc1"]
    a(x1loads(sQo, sFo)[0], "gq"); a(x1loads(sQo, sFo)[1], "gf")
    a.c("what the ffn gather must hold: tags on the data lanes, this die's id word on the others")
    a(f"v_and_b32 v{vT+1}, 15, v{vL}"); a(f"v_cmp_gt_u32 vcc, 5, v{vT+1}")
    a(f"v_mov_b32 v{vT+1}, s{sId}"); a(f"v_mov_b32 v{vT+2}, 0xff")
    for k in range(4):
        a(f"v_mov_b32 v{vA+k}, s{sTag[k]}"); a(f"v_cndmask_b32 v{vA+k}, v{vT+1}, v{vA+k}, vcc")
    a(f"v_cndmask_b32 v{vA2}, -1, v{vT+2}, vcc")
    step(D - 1)
    phase("x1")
    need(f"K{qpos-1}")
    a.wait_vm("gf")
    a.label("L_x1chk")
    for k in range(4): a(f"v_xor_b32 v{vG+k}, s{sTag[k]}, v{vG+k}")
    for k in range(4): a(f"v_xor_b32 v{vG2+k}, v{vA+k}, v{vG2+k}")
    or_all(vT, [vG+k for k in range(4)]); or_all(vT+1, [vG2+k for k in range(4)])
    a(f"v_and_b32 v{vT}, 0xff, v{vT}"); a(f"v_and_or_b32 v{vT}, v{vT+1}, v{vA2}, v{vT}")
    a(f"v_cmp_ne_u32 vcc, 0, v{vT}")
    a("s_cbranch_vccnz L_x1slow")
    a.label("L_x1ok")
    c = Asm(); c.label("L_x1slow")
    c.c("not all there yet, or a member of the group sits on another die")
    c(f"v_and_b32 v{vT}, 0x0fffffff, v{vT}"); c(f"v_cmp_ne_u32 vcc, 0, v{vT}")
    c("s_cbranch_vccnz L_x1wait")
    c(f"s_mov_b32 s{sReg}, {SLOW}")
    c(f"v_not_b32 v{vT}, v{vA2}")
    for k in range(4): c(f"v_and_b32 v{vG2+k}, v{vT}, v{vG2+k}")
    c(f"buffer_store_dword v{vPubD}, v{vPubA}, {sr(dWS,4)}, s{sReg} offen sc1")
    c("s_branch L_x1ok")
    c.label("L_x1wait")
    c(f"s_sub_u32 s{sSpin}, s{sSpin}, 1"); c("s_cbranch_scc1 L_end")
    c(f"s_sub_u32 s{sCnt}, s{sCnt}, 1")
    c(f"s_cmp_lg_u32 s{sCnt}, 0"); c("s_cbranch_scc1 L_x1nopub")
    c(f"s_mov_b32 s{sT0}, {SLOW}")
    c(f"buffer_store_dword v{vPubD}, v{vPubA}, {sr(dWS,4)}, s{sT0} offen sc1")
    c.label("L_x1nopub")
    c.c("after enough misses publish write-through as well and look at the two areas in turn")
    c(f"s_and_b32 s{sT0}, s{sCnt}, 0x80000001"); c(f"s_cmp_eq_u32 s{sT0}, 0x80000001"); c(f"s_cselect_b32 s{sT0}, {SLOW}, 0")
    c(f"s_add_u32 s{sT1}, s{sT0}, s{sFo}"); c(f"s_add_u32 s{sT0}, s{sT0}, s{sQo}")
    for t in x1loads(sT0, sT1): c(t)
    c("s_waitcnt vmcnt(0)"); c("s_branch L_x1chk")
    cold.append(c.out)
    red8("v_add_f32", [vG+k for k in range(4)])
    a(f"s_min_u32 s{sT0}, s{sW}, 5"); a(f"s_lshl_b32 s{sT0}, s{sT0}, 6")
    a(f"v_cvt_pk_bf16_f32 v{vG}, v{vG}, v{vG+1}"); a(f"v_cvt_pk_bf16_f32 v{vG+1}, v{vG+2}, v{vG+3}")
    a(f"v_lshl_add_u32 v{vT+2}, v{vSlot}, 3, s{sT0}")
    a(f"ds_write_b64 v{vT+2}, {vr(vG,2)} offset:{LDS_Q}")
    arrive(1)
    step(1)
    a.c("SwiGLU for this wave's eight hidden units")
    red8("v_add_f32", [vG2+k for k in range(4)], R8 + ("row_mirror",))
    a(f"v_and_b32 v{vT}, 1, v{vSlot}"); a(f"v_cmp_eq_u32 vcc, 1, v{vT}")
    a(f"v_lshlrev_b32 v{vT+3}, 4, v{vCh}")
    a(f"s_cmp_lt_u32 s{sW}, 6"); a(f"s_cselect_b32 s{sT0}, 0, {OOB}")
    a(f"v_cndmask_b32 v{vG2}, v{vG2}, v{vG2+1}, vcc"); a(f"v_cndmask_b32 v{vG2+2}, v{vG2+2}, v{vG2+3}, vcc")
    a(f"v_or_b32 v{vPubA}, s{sT0}, v{vPubA}")
    step(1)
    rne(vG2, vG2); rne(vG2+2, vG2+2)
    a(f"v_permlane16_swap_b32 v{vG2}, v{vG2+2}")
    a(f"v_mul_f32 v{vT}, {f2u(-1.4426950408889634):#x}, v{vG2}")
    a(f"v_exp_f32 v{vT}, v{vT}"); a(f"v_add_f32 v{vT}, 1.0, v{vT}"); a(f"v_rcp_f32 v{vT}, v{vT}")
    a(f"v_mul_f32 v{vT}, v{vT}, v{vG2}"); rne(vT, vT)
    a(f"v_mul_f32 v{vT}, v{vT}, v{vG2+2}")
    a(f"v_cvt_pk_bf16_f32 v{vT}, v{vT}, v{vT}")
    buildA(vAh, vT)
    step(nb - 2)
    phase("qk")
    def qread():
        for j in range(3): a(f"ds_read_b128 {vr(vQ+4*j,4)}, v{vT+3} offset:{LDS_Q+128*j}")
    await_all(1, qread)
    stamp(1)
    sc = [vSc+g for g in range(8)]
    def dots(g):
        b = kreg(3*g)
        a(f"v_dot2_f32_bf16 v{vSc+g}, v{b}, v{vQ}, 0")
        a(f"v_dot2_f32_bf16 v{vT+g}, v{b+1}, v{vQ+1}, 0")
        for i in range(2, 12):
            d = vSc+g if i % 2 == 0 else vT+g
            a(f"v_dot2_f32_bf16 v{d}, v{b+i}, v{vQ+i}, v{d}")
        kdone[0] = g + 1
    def post(gs):
        r = [vSc+g for g in gs]
        for g in gs: a(f"v_add_f32 v{vSc+g}, v{vSc+g}, v{vT+g}")
        red8("v_add_f32", r); rne_pairs(r)
        for x in r: a(f"v_mul_f32 v{x}, {f2u(192 ** -0.5):#x}, v{x}")
        rne_pairs(r)
    def at(name):
        p0 = pos[0]; need(name)
        if pos[0] == p0: step(1)
    need("K5"); dots(0); dots(1)
    at("K11"); dots(2); dots(3)
    at("K11"); post(range(4))
    at("K17"); dots(4); dots(5)
    at("K20"); dots(6)
    phase("")
    issue_to(stream[idx["K23"] + D - 1][0] + str(stream[idx["K23"] + D - 1][1]))
    phase("sm")
    need("K23"); dots(7)
    step(1)
    post(range(4, 8))
    step(1)
    a(f"v_max3_f32 v{vG}, v{sc[0]}, v{sc[1]}, v{sc[2]}"); a(f"v_max3_f32 v{vG+1}, v{sc[3]}, v{sc[4]}, v{sc[5]}")
    a(f"v_max3_f32 v{vG}, v{vG}, v{sc[6]}, v{sc[7]}"); a(f"v_max_f32 v{vG}, v{vG}, v{vG+1}")
    red_hi("v_max_f32", [vG])
    a(f"v_readlane_b32 s{sMw}, v{vG}, 63")
    L2E = f"{f2u(1.4426950408889634):#x}"
    for r in sc: a(f"v_subrev_f32 v{r}, s{sMw}, v{r}")
    for r in sc: a(f"v_mul_f32 v{r}, {L2E}, v{r}")
    step(1)
    for r in sc: a(f"v_exp_f32 v{r}, v{r}")
    for k in range(4): a(f"v_add_f32 v{vT+k}, v{sc[k]}, v{sc[4+k]}")
    a(f"v_add_f32 v{vT}, v{vT}, v{vT+1}"); a(f"v_add_f32 v{vT+2}, v{vT+2}, v{vT+3}"); a(f"v_add_f32 v{vG+1}, v{vT}, v{vT+2}")
    a.c("(max, sum) of this wave: 16 tag bits under the bf16 max, 8 under the sum")
    a(f"s_and_b32 s{sT2}, s{sId}, 0xffff")
    a(f"s_lshl_b32 s{sT0}, s{sP}, 3"); a(f"s_add_u32 s{sT0}, s{sT0}, s{sW}"); a(f"s_lshl_b32 s{sT0}, s{sT0}, 3")
    red_hi("v_add_f32", [vG+1])
    a(f"s_add_u32 s{sT0}, s{sT0}, {WS_ML}"); a(f"v_mov_b32 v{vT}, s{sT0}")
    a(f"v_or_b32 v{vG}, s{sT2}, v{vG}")
    a(f"v_and_b32 v{vG+1}, 0xffffff00, v{vG+1}"); a(f"v_or_b32 v{vG+1}, s{sTag[2]}, v{vG+1}")
    a(f"s_mov_b32 exec_lo, 0"); a(f"s_mov_b32 exec_hi, 0x80000000")
    pub(f"buffer_store_dwordx2 {vr(vG,2)}, v{vT}, {sr(dWS,4)}, s{sReg} offen", "pubml")
    a("s_mov_b64 exec, -1")
    a(f"s_lshl_b32 s{sT0}, s{sC}, 3"); a(f"s_add_u32 s{sT0}, s{sT0}, s{sG}"); a(f"s_sub_u32 s{sT0}, s{sT0}, 240")
    a(f"s_lshl_b32 s{sT1}, s{sW}, 8"); a(f"s_or_b32 s{sT1}, s{sT1}, s{sT0}")
    a(f"s_cmp_lt_u32 s{sT1}, 10"); a("s_cbranch_scc1 L_park")
    a.label("L_parkback")
    c = Asm(); c.label("L_park")
    c.c("wave 0 of a reducer: park one probe line per mailbox copy in the memory-side cache")
    c(f"s_lshl_b32 s{sT0}, s{sT0}, 14"); c(f"s_add_u32 s{sT0}, s{sT0}, {WS_YP + 3072}")
    c(f"v_and_b32 v{vT}, 31, v{vL}"); c(f"v_lshrrev_b32 v{vT+1}, 5, v{vL}"); c(f"v_lshlrev_b32 v{vT+1}, 13, v{vT+1}")
    c(f"v_lshl_add_u32 v{vT}, v{vT}, 2, v{vT+1}")
    c(f"buffer_store_dword v{vZ}, v{vT}, {sr(dWS,4)}, s{sT0} offen sc1")
    c("s_branch L_parkback")
    cold.append(c.out)
    phase("")
    stamp(2)
    issue_to(f"V{mlpos-1}")
    a(f"s_lshl_b32 s{sT0}, s{sH}, 9"); a(f"s_add_u32 s{sT0}, s{sT0}, {WS_ML}"); a(f"s_add_u32 s{sT0}, s{sT0}, s{sReg}")
    a(f"v_lshlrev_b32 v{vFo}, 3, v{vL}")
    mload = f"buffer_load_dwordx2 {vr(vG,2)}, v{vFo}, {sr(dWS,4)}, s{sT0} offen sc1"
    a(mload, "gm")
    step(D - 1)
    phase("ml")
    need(f"V{mlpos-1}")
    a.wait_vm("gm")
    a.label("L_mlchk")
    a(f"v_xor_b32 v{vG}, s{sT2}, v{vG}"); a(f"v_xor_b32 v{vG+1}, s{sTag[2]}, v{vG+1}")
    a(f"v_and_b32 v{vT}, 0xffff, v{vG}"); a(f"v_and_b32 v{vT+1}, 0xff, v{vG+1}"); a(f"v_or_b32 v{vT}, v{vT}, v{vT+1}")
    a(f"v_cmp_ne_u32 vcc, 0, v{vT}")
    retry("L_mlchk", [mload])
    a(f"v_max_f32_dpp v{vT}, v{vG}, v{vG} {R8[0]} {DP}")
    red8("v_max_f32", [vT], R8[1:]); red_hi("v_max_f32", [vT])
    a(f"v_readlane_b32 s{sT0}, v{vT}, 63")
    a(f"v_mov_b32 v{vT+1}, s{sMw}")
    step(1)
    a(f"v_subrev_f32 v{vT}, s{sT0}, v{vG}"); a(f"v_subrev_f32 v{vT+1}, s{sT0}, v{vT+1}")
    a(f"v_mul_f32 v{vT}, {L2E}, v{vT}"); a(f"v_mul_f32 v{vT+1}, {L2E}, v{vT+1}")
    a(f"v_exp_f32 v{vT}, v{vT}"); a(f"v_exp_f32 v{vT+1}, v{vT+1}")
    a(f"v_mul_f32 v{vT}, v{vT}, v{vG+1}")
    red8("v_add_f32", [vT]); red_hi("v_add_f32", [vT])
    a(f"v_rcp_f32 v{vT}, v{vT}")
    a(f"v_mul_f32 v{vT}, v{vT}, v{vT+1}")
    a(f"v_readlane_b32 s{sT1}, v{vT}, 63")
    step(1)
    for r in sc: a(f"v_mul_f32 v{r}, s{sT1}, v{r}")
    for r in sc: a(f"v_cvt_pk_bf16_f32 v{r}, v{r}, v{r}")
    a.c("tags and offset of the o exchange")
    for k in range(4): a(f"s_bfe_u32 s{sTag[k]}, s{sE}, {(8 << 16) | (8*k):#x}")
    a(f"s_lshl_b32 s{sQo}, s{sPhi}, 10"); a(f"s_add_u32 s{sQo}, s{sQo}, {WS_QP}"); a(f"s_add_u32 s{sQo}, s{sQo}, s{sReg}")
    stamp(3)
    for g in range(8):
        if g in (0, 3) and arrived[0] >= idx[f"V{3*g+2}"]: step(1)
        if arrived[0] < idx[f"V{3*g+2}"]: phase("")
        A_ = vA if g % 2 == 0 else vA2
        buildA(A_, sc[g])
        for j in range(3):
            need(f"V{3*g+j}")
            mfma(vD+4*j, A_, vreg(3*g+j), None if g == 0 else vD+4*j)
            if g == 7:
                if j == 2:
                    while pos[0] < limit[0]: load(*stream[pos[0]]); pos[0] += 1
                    if skel == 2: a("s_waitcnt vmcnt(0)"); a("s_endpgm")
                    stamp(4)
                a(f"s_mov_b64 exec, {sr(sVal,2)}")
                a(f"ds_write_b128 v{vRedW}, {vr(vD+4*j,4)} offset:{LDS_RED+256*j}")
                a("s_mov_b64 exec, -1")
    a("s_waitcnt lgkmcnt(0)"); a("s_barrier")
    red_read(LDS_RED)
    red_sum8(vPubD, vTg2)
    pub(f"buffer_store_dword v{vPubD}, v{vPubA}, {sr(dWS,4)}, s{sReg} offen", "pubo")
    stamp(5)
    a(f"s_cmp_ge_u32 s{sC}, 30"); a("s_cbranch_scc1 L_reducer")
    snap = a.snapshot()
    if hold:
        a.c("a plain store waits behind older loads of the CU, so the last weight loads go out after the o stores")
        a("s_barrier")
        while pos[0] < len(stream): load(*stream[pos[0]]); pos[0] += 1
        a.wait_vm("pubo")
    oload = f"buffer_load_dwordx4 {vr(vG2,4)}, v{vL16}, {sr(dWS,4)}, s{sQo} offen sc1"
    a(oload)
    a.wait_vm("W4")
    mfma(vY, vAh, vW+16, None)
    a("s_branch L_ochk")
    a.label("L_opoll")
    a(oload)
    a(f"s_sub_u32 s{sSpin}, s{sSpin}, 1"); a("s_cbranch_scc1 L_end")
    a.label("L_ochk")
    a("s_waitcnt vmcnt(0)")
    untag([vG2])
    for k in range(4): a(f"v_add_f32_dpp v{vG+k}, v{vG2+k}, v{vG2+k} {R8[0]} {DP}")
    a("s_cbranch_vccnz L_opoll")
    if skel == 3: a("s_endpgm")
    stamp(6)
    red8("v_add_f32", [vG+k for k in range(4)], R8[1:])
    for k in range(4): a(f"v_cvt_pk_bf16_f32 v{vG+k}, v{vG+k}, v{vG+k}")
    As = (vA, vA2, vG2, vT)
    for r in range(4):
        buildA(As[r], vG+r)
        if r >= 1: mfma(vY, As[r-1], vW+4*(r-1), vY)
    mfma(vY, As[3], vW+12, vY)
    a(f"s_mov_b64 exec, {sr(sVal,2)}")
    a(f"s_cmp_ge_u32 s{sW}, 2")
    a(f"ds_write_b128 v{vRedW}, {vr(vY,4)} offset:{LDS_RED2}")
    a("s_mov_b64 exec, -1")
    a("s_waitcnt lgkmcnt(0)"); a("s_barrier")
    a("s_cbranch_scc1 L_exit3")
    red_read(LDS_RED2)
    red_sum8(vPubD, vTg2)
    a(f"buffer_store_dword v{vPubD}, v{vYo}, {sr(dWS,4)}, 0 offen sc1", "puby")
    a.label("L_exit3")
    stamp(7)
    finish()
    a.label("L_reducer")
    a.restore(snap)
    if skel == 3: a("s_endpgm")
    a(f"s_lshl_b32 s{sK}, s{sK}, 3"); a(f"s_add_u32 s{sK}, s{sK}, s{sG}")
    a(f"s_cmp_ge_u32 s{sK}, 10"); a("s_cbranch_scc1 L_exitr")
    a(f"s_cmp_ge_u32 s{sW}, 2")
    if stamps or diag is not None:
        a("s_cbranch_scc1 L_barx"); cold.append(["L_barx:", "    s_barrier", "    s_branch L_exitr"])
    else: a("s_cbranch_scc1 L_exitr")
    a(f"s_lshl_b32 s{sT0}, s{sK}, 2"); a(f"s_add_u32 s{sT0}, s{sT0}, s{sW}"); a(f"s_lshl_b32 s{sT0}, s{sT0}, 12")
    a(f"s_add_u32 s{sT0}, s{sT0}, {WS_YP}")
    a(f"s_lshl_b32 s{sK}, s{sK}, 1"); a(f"s_add_u32 s{sK}, s{sK}, s{sW}")
    y = vD
    def yl(n): return [f"buffer_load_dwordx4 {vr(vKV+12*n+4*i,4)}, v{vL16}, {sr(dWS,4)}, s{sT0} offen offset:{1024*i} sc1" for i in range(3)]
    a.c("which copy is nearer? loads return in order, so the gap behind the first one is long only if the second goes further")
    a(f"v_mov_b32 v{vT+2}, 8192")
    a(f"s_cmp_lg_u32 s{sW}, 0"); a("s_cbranch_scc1 L_probed")
    a("s_mov_b64 exec, 1")
    a("s_waitcnt vmcnt(0)")
    a(f"buffer_load_dword v{vT+3}, v{vZ}, {sr(dWS,4)}, s{sT0} offen offset:3072 sc1")
    a(f"buffer_load_dword v{vT+7}, v{vT+2}, {sr(dWS,4)}, s{sT0} offen offset:3072 sc1")
    a("s_waitcnt vmcnt(1)"); a("s_memtime s[4:5]")
    a("s_waitcnt vmcnt(0)"); a("s_memtime s[6:7]")
    a("s_waitcnt lgkmcnt(0)")
    a("s_sub_u32 s4, s6, s4")
    a("s_cmpk_gt_u32 s4, 90"); a("s_cselect_b32 s4, 0, 8192")
    a(f"v_mov_b32 v{vT+3}, s4")
    a(f"ds_write_b32 v{vZ}, v{vT+3} offset:{LDS_Q}")
    a("s_mov_b64 exec, -1")
    a("s_waitcnt lgkmcnt(0)")
    a.label("L_probed")
    a("s_barrier")
    a(f"ds_read_b32 v{vT+3}, v{vZ} offset:{LDS_Q}")
    a.c("output column of this lane: 32*line + 4*(l&7) + (l>>4)")
    a(f"v_lshrrev_b32 v{vT+1}, 4, v{vL}"); a(f"v_lshl_add_u32 v{vT+1}, v{vCh}, 2, v{vT+1}")
    a(f"s_lshl_b32 s{sT1}, s{sK}, 6"); a(f"v_lshl_add_u32 v{vYo}, v{vT+1}, 1, s{sT1}")
    a(f"buffer_load_ushort v{vXo}, v{vYo}, {sr(dX,4)}, 0 offen")
    a("s_waitcnt lgkmcnt(0)")
    a(f"v_add_u32 v{vL16}, v{vL16}, v{vT+3}")
    for n in range(ypipe):
        for t in yl(n): a(t)
    a.c("line 0's reducer hears (through its producers) from every workgroup: it advances the hand-off epoch")
    a(f"s_cmp_eq_u32 s{sK}, 0"); a(f"s_cselect_b32 s{sT2}, {WS_E}, {OOB}")
    a(f"v_mov_b32 v{vT+4}, s{sE}"); a(f"v_mov_b32 v{vT+5}, {OOB}"); a(f"v_mov_b32 v{vT+6}, {OOB}")
    a.c("one pass through the last lines with every store out of range: they are in the instruction cache afterwards")
    a(f"s_mov_b32 s{sT1}, 1"); a("s_branch L_yfin")
    a.label("L_ystart")
    a("s_mov_b64 exec, -1")
    a(f"s_mov_b32 s{sT1}, 0")
    a(f"v_mov_b32 v{vT+5}, s{sT2}"); a(f"v_mov_b32 v{vT+6}, v{vYo}")
    a(f"s_waitcnt vmcnt({3*ypipe})")
    a(f"v_lshlrev_b32 v{vXo}, 16, v{vXo}")
    a.label("L_ypoll")
    for n in range(ypipe):
        a(f"s_waitcnt vmcnt({3*(ypipe-1)})")
        b = vKV + 12*n
        untag([b, b+4, b+8])
        for k in range(4): a(f"v_add_f32 v{y+k}, v{b+k}, v{b+4+k}")
        for k in range(4): a(f"v_add_f32 v{y+k}, v{y+k}, v{b+8+k}")
        a("s_cbranch_vccz L_yfin")
        for t in yl(n): a(t)
    a(f"s_sub_u32 s{sSpin}, s{sSpin}, 1"); a("s_cbranch_scc0 L_ypoll")
    a("s_endpgm")
    a.label("L_yfin")
    a(f"buffer_store_dword v{vT+4}, v{vT+5}, {sr(dWS,4)}, 0 offen")
    stamp(9)
    a(f"v_permlane32_swap_b32 v{y}, v{y+2}"); a(f"v_permlane32_swap_b32 v{y+1}, v{y+3}")
    a(f"v_add_f32 v{y}, v{y}, v{y+2}"); a(f"v_add_f32 v{y+1}, v{y+1}, v{y+3}")
    a(f"v_permlane16_swap_b32 v{y}, v{y+1}")
    a(f"v_add_f32 v{y}, v{y}, v{y+1}")
    a(f"s_cmp_lg_u32 s{sT1}, 0")
    a(f"v_add_f32_dpp v{y}, v{y}, v{y} row_ror:8 {DP}")
    a(f"v_add_f32 v{y}, v{y}, v{vXo}")
    a(f"v_cvt_pk_bf16_f32 v{y}, v{y}, v{y}")
    a(f"buffer_store_short v{y}, v{vT+6}, {sr(dOUT,4)}, 0 offen")
    a("s_cbranch_scc1 L_ystart")
    a.label("L_exitr")
    stamp(8)
    finish()
    for blk in cold:
        for ln in blk: a.raw(ln)
    a.label("L_end")
    a("s_endpgm")
    if prefetch: a.raw("    .fill 512, 4, 0xbf810000")
    nv = (V.n + 7) // 8 * 8
    a.raw('.section .rodata,"a"'); a.raw(".p2align 6"); a.raw(f".amdhsa_kernel {NAME}_kernel")
    a.raw(f"  .amdhsa_next_free_vgpr {nv}"); a.raw("  .amdhsa_next_free_sgpr 102"); a.raw(f"  .amdhsa_accum_offset {nv}")
    a.raw("  .amdhsa_group_segment_fixed_size 0"); a.raw("  .amdhsa_kernarg_size 96"); a.raw("  .amdhsa_user_sgpr_count 2")
    a.raw("  .amdhsa_user_sgpr_kernarg_segment_ptr 1"); a.raw("  .amdhsa_system_sgpr_workgroup_id_x 1")
    a.raw(".end_amdhsa_kernel")
    return a.text()

if __name__ == "__main__":
    kw = {}
    out = sys.argv[1]
    for x in sys.argv[2:]:
        k, v = x.split("=")
        try: v = eval(v)
        except Exception: pass
        kw[k] = v
    open(out, "w").write(gen(**kw))
```

```python
import sys; sys.path.insert(0, "dev")
import gen3
V = {}
for i, (p, w) in enumerate(((12, (77, 3)), (30, (77, 3)), (54, (77, 3)), (12, (130, 5)), (30, (130, 5)), (54, (130, 5)))):
    V[f"h{i}"] = dict(diag=100+p, amp=10, selw=w, pace=None)
for k, v in V.items(): open(f"var/{k}.s", "w").write(gen3.gen(**v))
```

```python
import sys, struct, re
sys.path.insert(0, "dev")
from asmlib import *

NAME = "parallel_sum__gqa_block_cached__glu_gated_swiglu__decode"
def f2u(x): return struct.unpack("<I", struct.pack("<f", x))[0]

WS_E  = 0
WS_QP = 0x10000
WS_FP = 0x40000
WS_ML = 0x50000
SLOW  = 0x50000
WS_YP = 0x100000
WS_ST = 0x400000
WS_SIZE = 0x800000
OOB = 0x40000000
LDS_RED = 0
LDS_RED2 = 12288
LDS_Q = 24576
LDS_CNT = 25088

DOC = """;
; three, and a reducer polls the nearer of two mailbox copies. Nothing ever waits for the clock."""

def gen(qpos=14, mlpos=14, hold=2, nb=3, pace=(15, 27.6), pfrom=7, hi=(), ypipe=3, voff=2, kfirst=0, tpost=True, anchors=(), aoff=25, atau=None, lastdeep=1, lo2=None, relax=3, selw=None, rr=1, s1split=0, adj=0,
        ld="nt", lds=32768, spin=1 << 20, timeout=24, prefetch=True,
        stamps=False, diag=None, amp=0, trace=False, forceslow=False, skel=0):
    D, DH = 3, 4
    a = Asm()
    hdr = open("cdna_kernels/" + NAME + ".s.ref").read().split("\n")
    for ln in hdr:
        if ln.startswith(";") and "@launch" not in ln and "Override launch" not in ln and "grid=ceil" not in ln: a.raw(ln)
    a.raw(f"; @launch grid=(256,1,1) block=(512,1,1) lds={lds}")
    for ln in DOC.split("\n"): a.raw(ln)
    a.raw('.amdgcn_target "amdgcn-amd-amdhsa--gfx950"')
    a.raw(".text"); a.raw(f".globl {NAME}_kernel"); a.raw(".p2align 8"); a.raw(f".type {NAME}_kernel,@function")
    a.label(f"{NAME}_kernel")
    V = Regs(1, 256, "v"); S = Regs(28, 102, "s")
    pX, pK, pV, pWQ, pWO, pBX, pW1, pW3, pW2, pOUT, pDBG, pWS = [4 + 2*i for i in range(12)]
    dK, dV, dS1, dWS, dX = [S.get(4) for _ in range(5)]
    dWO, dW2, dOUT = 12, 20, S.get(4)
    sW, sG, sC, sP, sH, sS, sE, sT0, sT1, sT2, sT3, sSpin, sReg, sPhi, sK, sCnt, sQo, sFo, sId, sMask = [S.get() for _ in range(20)]
    sTag = [S.get() for _ in range(4)]
    sOff = [16, 17, 18]
    sS1, sS2 = S.get(), S.get(); sMw = sS1
    sBase, sAn, sSmp = 19, 8, 9
    dDBG = 24
    sVal = S.get(2); sTm = S.get(2); sStart = S.get(2)
    sSt = S.get(16) if (stamps or diag is not None) else None
    (vL, vSlot, vCh, vKoff, vS1a, vS1b, vS1c, vXr, vRedW, vRedR, vL16, vPubA, vPubD, vTg2, vWo, vW2o, vYo, vFo, vCn, vTr) = [V.get() for _ in range(20)]
    vZ = V.get(2)
    vM = V.get(4); vA = V.get(4); vA2 = V.get(4); vAh = V.get(4); vG = V.get(4); vG2 = V.get(4); vT = V.get(8)
    vY = V.get(4); vSc = V.get(8); vQ = V.get(12); vD = V.get(12); vW = V.get(24); vKV = V.get(96 + 12*voff)
    vXa, vXb, vXo = vY, vSc, vXr
    kreg = lambda i: vKV + 12*voff + 4*i
    vreg = lambda i: vKV + 4*i
    cold = []
    def stamp(n):
        if diag == n or stamps is True or (stamps == 'min' and n == 8) or (isinstance(stamps, tuple) and n in stamps):
            a(f"s_memrealtime {sr(10,2)}"); a("s_waitcnt lgkmcnt(0)"); a(f"s_mov_b32 s{sSt + (n if stamps else 0)}, s10")
    def finish():
        if diag is not None:
            if selw: a(f"s_cmpk_lg_u32 s2, {selw[0]}"); a("s_cbranch_scc1 L_end"); a(f"s_cmp_lg_u32 s{sW}, {selw[1]}"); a("s_cbranch_scc1 L_end")
            a(f"s_sub_u32 s{sSt}, s{sSt}, s{sStart}"); a(f"s_mul_i32 s{sSt}, s{sSt}, {amp or 1}"); a(f"s_add_u32 s{sSt}, s{sSt}, 5000")
            lp = a.newlabel("pad"); a.label(lp)
            a(f"s_memrealtime {sr(sTm,2)}"); a("s_waitcnt lgkmcnt(0)")
            a(f"s_sub_u32 s{sTm}, s{sTm}, s{sStart}"); a(f"s_cmp_lt_u32 s{sTm}, s{sSt}"); a(f"s_cbranch_scc1 {lp}")
        elif stamps:
            lp = a.newlabel("pad"); a.label(lp)
            a(f"s_memrealtime {sr(sTm,2)}"); a("s_waitcnt lgkmcnt(0)")
            a(f"s_sub_u32 s{sTm}, s{sTm}, s{sStart}"); a(f"s_cmp_lt_u32 s{sTm}, 3000"); a(f"s_cbranch_scc1 {lp}")
            a(f"s_mov_b32 s{sSt+13}, s{sReg}"); a(f"s_mov_b32 s{sSt+14}, s{sStart}"); a(f"s_mov_b32 s{sSt+15}, s{sSpin}")
            a(f"s_lshl_b32 s{sT0}, s{sP}, 3"); a(f"s_add_u32 s{sT0}, s{sT0}, s{sW}"); a(f"s_lshl_b32 s{sT0}, s{sT0}, 6")
            if trace:
                a("s_mov_b64 exec, -1")
                a(f"s_lshl_b32 s{sT1}, s{sT0}, 2"); a(f"s_add_u32 s{sT1}, s{sT1}, {WS_ST + 0x100000}")
                a(f"v_lshl_add_u32 v{vT}, v{vL}, 2, s{sT1}")
                a(f"buffer_store_dword v{vTr}, v{vT}, {sr(dWS,4)}, 0 offen")
            a("s_mov_b64 exec, 1")
            a(f"s_add_u32 s{sT0}, s{sT0}, {WS_ST}"); a(f"v_mov_b32 v{vT}, s{sT0}")
            for q in range(4):
                for k in range(4): a(f"v_mov_b32 v{vKV+80+4*q+k}, s{sSt+4*q+k}")
                a(f"buffer_store_dwordx4 {vr(vKV+80+4*q,4)}, v{vT}, {sr(dWS,4)}, 0 offen offset:{16*q}")
        a("s_endpgm")
    def rne(dst, src):
        a(f"v_cvt_pk_bf16_f32 v{dst}, v{src}, v{src}"); a(f"v_and_b32 v{dst}, 0xffff0000, v{dst}")
    def rne_pairs(regs):
        for x, y in zip(regs[0::2], regs[1::2]): a(f"v_cvt_pk_bf16_f32 v{y}, v{x}, v{y}")
        for x, y in zip(regs[0::2], regs[1::2]):
            a(f"v_lshlrev_b32 v{x}, 16, v{y}"); a(f"v_and_b32 v{y}, 0xffff0000, v{y}")
    DP = "row_mask:0xf bank_mask:0xf"
    R8 = ("quad_perm:[1,0,3,2]", "quad_perm:[2,3,0,1]", "row_half_mirror")
    def red8(op, regs, steps=R8):
        for m in steps:
            for r in regs: a(f"{op}_dpp v{r}, v{r}, v{r} {m} {DP}")
    def red_hi(op, regs):
        for r in regs: a(f"{op}_dpp v{r}, v{r}, v{r} row_ror:8 {DP}")
        for r in regs: a(f"{op}_dpp v{r}, v{r}, v{r} row_bcast:15 row_mask:0xa bank_mask:0xf")
        for r in regs: a(f"{op}_dpp v{r}, v{r}, v{r} row_bcast:31 row_mask:0xc bank_mask:0xf")
    def buildA(dst, dup, e=None):
        for k in range(4): (e or a)(f"v_and_b32 v{dst+k}, v{dup}, v{vM+k}")
    def mfma(d, A_, B_, c, e=None): (e or a)(f"v_mfma_f32_16x16x32_bf16 {vr(d,4)}, {vr(A_,4)}, {vr(B_,4)}, {'0' if c is None else vr(c,4)}")
    def or_all(dst, rs, e=None):
        e = e or a
        e(f"v_or3_b32 v{dst}, v{rs[0]}, v{rs[1]}, v{rs[2]}"); rs = rs[3:]
        while rs:
            if len(rs) >= 2: e(f"v_or3_b32 v{dst}, v{dst}, v{rs[0]}, v{rs[1]}"); rs = rs[2:]
            else: e(f"v_or_b32 v{dst}, v{dst}, v{rs[0]}"); rs = rs[1:]
    def untag(sets):
        for g in sets:
            for k in range(4): a(f"v_xor_b32 v{g+k}, s{sTag[k]}, v{g+k}")
        or_all(vT, [g+k for g in sets for k in range(4)])
        a(f"v_and_b32 v{vT}, 0xff, v{vT}")
        a(f"v_cmp_ne_u32 vcc, 0, v{vT}")
    def pub(text, name):
        ls = a.newlabel("pubslow"); lb = a.newlabel("pubback")
        a(f"s_cmp_lg_u32 s{sReg}, 0"); a(f"s_cbranch_scc1 {ls}")
        a(text, name)
        a.label(lb)
        cold.append([ls + ":", "    " + text + " sc1", f"    s_branch {lb}"])
    def retry(label, loads):
        lr = a.newlabel("retry")
        a(f"s_cbranch_vccnz {lr}")
        cold.append([lr + ":", f"    s_sub_u32 s{sSpin}, s{sSpin}, 1", "    s_cbranch_scc1 L_end"] + ["    " + t for t in loads] +
                    ["    s_waitcnt vmcnt(0)", f"    s_branch {label}"])
    def arrive(k):
        a("s_mov_b64 exec, 1"); a(f"ds_add_u32 v{vZ}, v{vZ+1} offset:{LDS_CNT+4*k}"); a("s_mov_b64 exec, -1")
    def await_all(k, reads):
        lb = a.newlabel("await"); a.label(lb)
        a(f"ds_read_b32 v{vCn}, v{vZ} offset:{LDS_CNT+4*k}")
        reads()
        a(f"s_sub_u32 s{sSpin}, s{sSpin}, 1"); a("s_cbranch_scc1 L_end")
        a("s_waitcnt lgkmcnt(0)")
        a(f"v_cmp_ne_u32 vcc, 8, v{vCn}"); a(f"s_cbranch_vccnz {lb}")
    def red_read(base):
        b = base // 256
        for q in range(4): a(f"ds_read2st64_b32 {vr(vT+2*q,2)}, v{vRedR} offset0:{b+12*q} offset1:{b+12*q+6}")
    def red_sum8(dst, tag):
        a("s_waitcnt lgkmcnt(2)")
        a(f"v_add_f32 v{vT}, v{vT}, v{vT+1}"); a(f"v_add_f32 v{vT+2}, v{vT+2}, v{vT+3}")
        a("s_waitcnt lgkmcnt(1)")
        a(f"v_add_f32 v{vT+4}, v{vT+4}, v{vT+5}"); a(f"v_add_f32 v{vT}, v{vT}, v{vT+2}")
        a("s_waitcnt lgkmcnt(0)")
        a(f"v_add_f32 v{vT+6}, v{vT+6}, v{vT+7}"); a(f"v_add_f32 v{vT}, v{vT}, v{vT+4}")
        a(f"v_add_f32 v{vT+1}, v{vT}, v{vT+6}"); a(f"v_add_f32 v{vT}, v{vT}, v{vT+6}")
        a(f"v_permlane32_swap_b32 v{vT}, v{vT+1}")
        a(f"v_add_f32 v{vT}, v{vT}, v{vT+1}")
        a(f"v_and_or_b32 v{dst}, v{vT}, s{sMask}, v{tag}")

    stream = [("K", i) for i in range(kfirst)] + [("S", i) for i in range(6)] + [("K", i) for i in range(kfirst, 24)]
    stream += [("V", i) for i in range(24)] + [("W", i) for i in range(5)]
    limit = [len(stream) - hold]
    idx = {f"{t}{i}": n for n, (t, i) in enumerate(stream)}
    kdone = [0]; pos = [0]; arrived = [-1]; deep = [False]
    def load(t, i):
        if t in "KV":
            g, j = divmod(i, 3)
            if t == "V": assert g - voff < kdone[0], "V load overwrites unconsumed K"
            so = "0" if g < 2 else f"s{sOff[(g>>1)-1]}"
            a(f"buffer_load_dwordx4 {vr(kreg(i) if t == 'K' else vreg(i),4)}, v{vKoff}, {sr(dK if t == 'K' else dV,4)}, {so} offen offset:{3072*(g&1)+128*j} {ld}", f"{t}{i}")
        elif t == "S":
            a(f"buffer_load_dwordx4 {vr(vW+4*i,4)}, v{(vS1a, vS1a, vS1a, vS1b, vS1b, vS1c)[i]}, {sr(dS1,4)}, {('0', f's{sS1}', f's{sS2}')[i % 3]} offen {ld}", f"S{i}")
        elif i < 4:
            a(f"buffer_load_dwordx4 {vr(vW+4*i,4)}, v{vWo}, {sr(dWO,4)}, 0 offen offset:{1280*i} {ld}", f"W{i}")
        else:
            a(f"buffer_load_dwordx4 {vr(vW+16,4)}, v{vW2o}, {sr(dW2,4)}, 0 offen {ld}", "W4")
    def wait_idx(n, extra=""):
        if n > arrived[0] or extra:
            t, i = stream[n]; a.wait_vm(f"{t}{i}", extra); arrived[0] = max(arrived[0], n)
    nchk = [0]
    def thr(p): return int(pace[0] + pace[1]*p) + relax*nchk[0]
    def step(n=1):
        for _ in range(n):
            p = pos[0]
            if p >= limit[0]: return
            if trace == 1 and p >= DH:
                a(f"s_memrealtime {sr(4,2)}"); a("s_waitcnt lgkmcnt(0)"); a(f"v_writelane_b32 v{vTr}, s4, {p}")
            if deep[0] or (pace and p >= limit[0] - lastdeep): wait_idx(p - DH)
            elif pace and p >= pfrom:
                if p - D > arrived[0] or tpost:
                    if not tpost: a(f"s_memrealtime {sr(sTm,2)}")
                    wait_idx(p - DH, "lgkmcnt(0)")
                    for k, (pp, pr) in enumerate(anchors):
                        if pp == p:
                            a(f"s_cmp_eq_u32 s{sSmp}, 0"); a(f"s_cbranch_scc1 L_post{k}")
                            a.label(f"L_postback{k}")
                            c = Asm(); c.label(f"L_post{k}")
                            c.c("32 sample waves add their clock (and a count) to a word of the zeroed debug buffer")
                            c(f"s_and_b32 s{sTm+1}, s{sTm}, 0xfffff"); c(f"s_bitset1_b32 s{sTm+1}, 26")
                            c("s_mov_b64 exec, 1"); c(f"v_mov_b32 v{vCn}, s{sTm+1}")
                            c(f"buffer_atomic_add v{vCn}, off, {sr(dDBG,4)}, 0 offset:{64*k}")
                            c("s_mov_b64 exec, -1"); c(f"s_branch L_postback{k}")
                            cold.append(c.out)
                        if pr == p:
                            a.c("measure 'behind' from the samples' mean once all 32 are in")
                            a(f"s_lshl_b32 s{sTm+1}, s{sTm}, 5"); a(f"s_sub_u32 s{sTm+1}, s{sAn}, s{sTm+1}")
                            a(f"s_bfe_i32 s{sTm+1}, s{sTm+1}, {(15 << 16) | 5:#x}")
                            a(f"s_add_u32 s{sTm+1}, s{sTm+1}, s{sTm}"); a(f"s_sub_u32 s{sTm+1}, s{sTm+1}, {thr(pp) - (aoff[k] if isinstance(aoff, tuple) else aoff)}")
                            a(f"s_bitcmp1_b32 s{sAn}, 31"); a(f"s_cselect_b32 s{sBase}, s{sTm+1}, s{sBase}")
                            if trace == 2: a(f"s_lshr_b32 s{sAn}, s{sAn}, 26"); a(f"v_writelane_b32 v{vTr}, s{sAn}, {60+k}")
                    a(f"s_sub_u32 s{sTm}, s{sTm}, s{sBase}")
                    if trace == 2: a(f"s_sub_u32 s{sTm+1}, s{sTm}, {thr(p) - 100000}"); a(f"v_writelane_b32 v{vTr}, s{sTm+1}, {p}")
                    if p - D > arrived[0]:
                        lb = a.newlabel("late")
                        a(f"s_cmpk_gt_i32 s{sTm}, {thr(p)}")
                        if adj: a(f"s_cselect_b32 s{sBase}, s{sStart+1}, s{sStart}")
                        a(f"s_cbranch_scc1 {lb}")
                        if relax: a(f"s_sub_u32 s{sBase}, s{sBase}, {relax}"); a.hist[-1].states = 0; nchk[0] += 1
                        t, i = stream[p - D]; a.wait_vm(f"{t}{i}"); a.hist[-1].states = 0
                        if lo2:
                            a(f"s_cmpk_gt_i32 s{sTm}, {int(lo2[0] + lo2[1]*p)}"); a.hist[-1].states = 0
                            a(f"s_cbranch_scc1 {lb}"); a.hist[-1].states = 0
                            t, i = stream[p - D + 1]; a.wait_vm(f"{t}{i}"); a.hist[-1].states = 0
                        a.label(lb)
            elif p >= D: wait_idx(p - D)
            load(*stream[p]); pos[0] += 1
            if diag == 100 + p: stamp(diag)
            if pace and tpost and pfrom <= p + 1 < limit[0] - lastdeep:
                a(f"s_memrealtime {sr(sTm,2)}")
                for k, (pp, pr) in enumerate(anchors):
                    if pr == p + 1: a(f"s_buffer_load_dword s{sAn}, {sr(dDBG,4)}, {64*k}")
    def need(name):
        n = idx[name]
        while arrived[0] < n and pos[0] < limit[0]: step()
        wait_idx(n)
    def issue_to(name):
        while pos[0] <= idx[name]: step()
    def phase(name):
        deep[0] = name in hi

    a("s_cmpk_ge_u32 s2, 256"); a("s_cbranch_scc1 L_end")
    a("s_load_dwordx16 s[4:19], s[0:1], 0")
    a("s_load_dwordx8 s[20:27], s[0:1], 64")
    a(f"s_memrealtime {sr(sStart,2)}")
    a(f"v_lshrrev_b32 v{vT}, 6, v0")
    a(f"v_and_b32 v{vL}, 63, v0")
    a(f"v_readfirstlane_b32 s{sW}, v{vT}")
    a(f"s_and_b32 s{sG}, s2, 7"); a(f"s_lshr_b32 s{sC}, s2, 3")
    a(f"s_lshl_b32 s{sP}, s{sG}, 5"); a(f"s_add_u32 s{sP}, s{sP}, s{sC}")
    a(f"v_lshrrev_b32 v{vSlot}, 3, v{vL}"); a(f"v_and_b32 v{vCh}, 7, v{vL}")
    def kaddr():
        a(f"s_lshl_b32 s{sT0}, s{sP}, 3"); a(f"s_add_u32 s{sT0}, s{sT0}, s{sW}"); a(f"s_mul_i32 s{sT0}, s{sT0}, 24576")
        a(f"v_mul_u32_u24 v{vKoff}, 384, v{vSlot}")
        a(f"v_lshl_add_u32 v{vT+1}, v{vCh}, 4, s{sT0}")
        a(f"v_add_u32 v{vKoff}, v{vKoff}, v{vT+1}")
        a(f"s_mov_b32 s{dK+2}, 50331648"); a(f"s_mov_b32 s{dK+3}, 0x20000")
    if kfirst: kaddr()
    a(f"s_lshr_b32 s{sH}, s{sP}, 3"); a(f"s_and_b32 s{sS}, s{sP}, 7")
    a(f"v_mov_b32 v{vZ}, 0"); a(f"v_mov_b32 v{vZ+1}, 0")
    a(f"ds_write_b64 v{vZ}, {vr(vZ,2)} offset:{LDS_CNT}")
    a.c("stage-1 role: waves 0-4 take 16 rows x 192 columns of wq, waves 5-7 take 48/40/40 rows x 64 columns of w1 or w3")
    a(f"s_max_u32 s{sT0}, s{sC}, 2"); a(f"s_sub_u32 s{sT0}, s{sT0}, 2")
    a(f"s_mul_i32 s{sPhi}, s{sT0}, 52"); a(f"s_lshr_b32 s{sPhi}, s{sPhi}, 8")
    a(f"s_mul_i32 s{sT1}, s{sPhi}, 5"); a(f"s_sub_u32 s{sK}, s{sT0}, s{sT1}")
    a(f"s_lshl_b32 s{sT0}, s{sK}, 7"); a(f"s_mul_i32 s{sT1}, s{sW}, 40"); a(f"s_add_u32 s{sT0}, s{sT0}, s{sT1}")
    a(f"s_cmp_eq_u32 s{sW}, 5"); a(f"s_cselect_b32 s{sT1}, 8, 0"); a(f"s_sub_u32 s{sT0}, s{sT0}, s{sT1}"); a(f"s_sub_u32 s{sT0}, s{sT0}, 192")
    a(f"s_lshr_b32 s{sT1}, s{sPhi}, 1"); a(f"s_mul_i32 s{sT2}, s{sG}, 3"); a(f"s_add_u32 s{sT1}, s{sT1}, s{sT2}"); a(f"s_lshl_b32 s{sT1}, s{sT1}, 7")
    a(f"s_cmp_lt_u32 s{sC}, 2"); a(f"s_cselect_b32 s{sT1}, {OOB}, s{sT1}")
    a(f"s_mul_i32 s{sT2}, s{sS}, 80"); a(f"s_lshl_b32 s{sT3}, s{sW}, 4"); a(f"s_add_u32 s{sT2}, s{sT2}, s{sT3}")
    a(f"s_mul_i32 s{sT3}, s{sH}, 384")
    a(f"s_cmp_lt_u32 s{sW}, 5")
    a(f"s_cselect_b32 s{sT0}, s{sT2}, s{sT0}"); a(f"s_cselect_b32 s{sT1}, s{sT3}, s{sT1}")
    a(f"s_cselect_b32 s{sT2}, 12, 3"); a(f"s_cselect_b32 s{sT3}, 4, 3"); a(f"s_cselect_b32 s{sQo}, 1, 192")
    a(f"s_lshl_b32 s{sT2}, s{sT2}, 10")
    a(f"s_mul_i32 s{dS1+2}, s{sT2}, 640"); a(f"s_mov_b32 s{dS1+3}, 0x20000")
    a(f"v_add_u32 v{vT}, s{sT0}, v{vSlot}")
    a(f"v_mul_lo_u32 v{vS1a}, v{vT}, s{sT2}")
    a(f"v_lshl_add_u32 v{vT+1}, v{vCh}, 4, s{sT1}")
    a(f"v_add_u32 v{vS1a}, v{vS1a}, v{vT+1}")
    a(f"s_lshl_b32 s{sS1}, s{sQo}, 7"); a(f"s_lshl_b32 s{sS2}, s{sQo}, 8")
    a("s_waitcnt lgkmcnt(0)")
    def s1desc():
        a(f"s_bitcmp1_b32 s{sPhi}, 0"); a(f"s_cselect_b64 {sr(dS1,2)}, {sr(pW3,2)}, {sr(pW1,2)}")
        a(f"s_cmp_lt_u32 s{sW}, 5"); a(f"s_cselect_b64 {sr(dS1,2)}, {sr(pWQ,2)}, {sr(dS1,2)}")
    if kfirst:
        a(f"s_mov_b64 {sr(dK,2)}, {sr(pK,2)}"); step(kfirst); s1desc(); step(3 - kfirst)
    else:
        s1desc()
        if rr:
            a.c("the waves take turns, so that their loads alternate in the CU's queue from the start")
            step(1); a("s_barrier"); step(1); a("s_barrier"); step(1)
            if rr > 1: a("s_barrier")
        else: step(3)
        a(f"s_mov_b64 {sr(dK,2)}, {sr(pK,2)}")
    a(f"s_load_dword s{sE}, {sr(pWS,2)}, {WS_E}")
    a(f"s_mov_b64 {sr(dX,2)}, {sr(pX,2)}"); a(f"s_mov_b32 s{dX+2}, 1280"); a(f"s_mov_b32 s{dX+3}, 0x20000")
    a(f"v_lshlrev_b32 v{vL16}, 4, v{vL}"); a(f"v_lshlrev_b32 v{vT+4}, 2, v{vL}")
    a(f"v_add_lshl_u32 v{vT+2}, v{vL}, s{sT0}, 1")
    a(f"buffer_load_dwordx4 {vr(vXa,4)}, v{vL16}, {sr(dX,4)}, 0 offen", "xa")
    a(f"buffer_load_dword v{vXb}, v{vT+4}, {sr(dX,4)}, 0 offen offset:1024", "xb")
    a(f"buffer_load_ushort v{vXr}, v{vT+2}, {sr(dX,4)}, 0 offen", "xr")
    if not rr: a("s_barrier")
    a(f"s_mul_i32 s{sT3}, s{sT3}, 24576")
    a(f"v_add_u32 v{vS1b}, s{sT3}, v{vS1a}")
    a(f"s_cmp_lt_u32 s{sW}, 6"); a(f"s_cselect_b32 s{sT3}, 0, {OOB}")
    a(f"v_or_b32 v{vS1c}, s{sT3}, v{vS1b}")
    if not kfirst: kaddr()
    a(f"v_mov_b32 v{vZ+1}, 1")
    if diag is not None: a(f"s_mov_b32 s{sSt}, s{sStart}")
    if trace: a(f"v_mov_b32 v{vTr}, 0")
    if stamps:
        for i in range(13): a(f"s_mov_b32 s{sSt+i}, 0")
    if prefetch:
        a.c("pull this kernel's code into the L2 (each wave one line)")
        a(f"s_getpc_b64 {sr(sTm,2)}")
        a(f"s_lshl_b32 s{sT0}, s{sC}, 3"); a(f"s_add_u32 s{sT0}, s{sT0}, s{sW}"); a(f"s_and_b32 s{sT0}, s{sT0}, 63")
        a(f"s_lshl_b32 s{sT0}, s{sT0}, 7")
        a(f"s_load_dword s{sCnt}, {sr(sTm,2)}, s{sT0}")
    a(f"s_mov_b64 {sr(dV,2)}, {sr(pV,2)}"); a(f"s_mov_b32 s{dV+2}, 50331648"); a(f"s_mov_b32 s{dV+3}, 0x20000")
    a(f"s_mov_b64 {sr(dWS,2)}, {sr(pWS,2)}"); a(f"s_mov_b32 s{dWS+2}, {WS_SIZE}"); a(f"s_mov_b32 s{dWS+3}, 0x20000")
    a(f"s_mov_b64 {sr(dOUT,2)}, {sr(pOUT,2)}"); a(f"s_mov_b32 s{dOUT+2}, 1280"); a(f"s_mov_b32 s{dOUT+3}, 0x20000")
    a(f"s_mov_b32 s{dWO+2}, 7864320"); a(f"s_mov_b32 s{dWO+3}, 0x20000")
    a(f"s_mov_b32 s{dW2+2}, 1966080"); a(f"s_mov_b32 s{dW2+3}, 0x20000")
    for i in range(3): a(f"s_mov_b32 s{sOff[i]}, {6144*(i+1)}")
    a(f"s_mov_b32 s{sBase}, s{sStart}")
    if adj: a(f"s_sub_u32 s{sStart+1}, s{sStart}, {adj}")
    if anchors:
        a(f"s_mov_b32 s{dDBG+2}, 256"); a(f"s_mov_b32 s{dDBG+3}, 0x20000")
        a.c("sample waves: one per head, every wave number equally often")
        a(f"s_add_u32 s{sSmp}, s{sH}, s{sW}"); a(f"s_and_b32 s{sSmp}, s{sSmp}, 7"); a(f"s_xor_b32 s{sT0}, s{sS}, 3"); a(f"s_or_b32 s{sSmp}, s{sSmp}, s{sT0}")
    a(f"s_mov_b32 s{sSpin}, {spin}"); a(f"s_mov_b32 s{sReg}, 0"); a(f"s_mov_b32 s{sMask}, 0xffffff00")
    a(f"s_mov_b32 s{sVal}, 0x00ff00ff"); a(f"s_mov_b32 s{sVal+1}, 0xff00ff00")
    a.c("MFMA A-operand masks")
    a(f"v_and_b32 v{vT}, 1, v{vL}"); a(f"v_lshlrev_b32 v{vT}, 4, v{vT}")
    a(f"v_mov_b32 v{vT+1}, 0xffff"); a(f"v_lshlrev_b32 v{vT}, v{vT}, v{vT+1}")
    a(f"v_lshrrev_b32 v{vT+1}, 1, v{vCh}")
    for k in range(4):
        a(f"v_cmp_eq_u32 vcc, {k}, v{vT+1}"); a(f"v_cndmask_b32 v{vM+k}, 0, v{vT}, vcc")
    a.c("LDS reduce addresses")
    a(f"v_lshrrev_b32 v{vT+2}, 5, v{vL}"); a(f"v_mul_u32_u24 v{vT}, 768, v{vT+2}")
    a(f"v_bfe_u32 v{vT+1}, v{vL}, 4, 1"); a(f"v_lshl_add_u32 v{vT+1}, v{vCh}, 1, v{vT+1}")
    a(f"v_lshl_add_u32 v{vT+1}, v{vT+1}, 4, v{vT}")
    a(f"s_mul_i32 s{sT0}, s{sW}, 1536")
    a(f"v_add_u32 v{vRedW}, s{sT0}, v{vT+1}")
    a(f"v_and_b32 v{vT+3}, 31, v{vL}")
    a(f"s_sub_u32 s{sT3}, s{sW}, 6"); a(f"s_min_u32 s{sT3}, s{sT3}, s{sW}")
    a(f"s_lshl_b32 s{sT0}, s{sT3}, 7")
    a(f"v_lshl_add_u32 v{vT+1}, v{vT+3}, 2, s{sT0}")
    a(f"v_add_u32 v{vRedR}, v{vT}, v{vT+1}")
    a.c("publish offsets: waves 0-5 lanes 0-31 q/o slot, waves 6-7 lanes 32-63 ffn slot, wave 7 lane 0 die id")
    a(f"s_mul_i32 s{sT0}, s{sH}, 6"); a(f"s_add_u32 s{sT0}, s{sT0}, s{sW}"); a(f"s_lshl_b32 s{sT0}, s{sT0}, 10")
    a(f"s_lshl_b32 s{sT1}, s{sS}, 4"); a(f"s_add_u32 s{sT0}, s{sT0}, s{sT1}"); a(f"s_add_u32 s{sT0}, s{sT0}, {WS_QP}")
    a(f"s_lshl_b32 s{sFo}, s{sG}, 13"); a(f"s_add_u32 s{sFo}, s{sFo}, {WS_FP}")
    a(f"s_and_b32 s{sT1}, s{sPhi}, 6"); a(f"s_add_u32 s{sT1}, s{sT1}, s{sT3}"); a(f"s_mul_i32 s{sT1}, s{sT1}, 1280")
    a(f"s_and_b32 s{sT2}, s{sPhi}, 1"); a(f"s_mul_i32 s{sT2}, s{sT2}, 5"); a(f"s_add_u32 s{sT2}, s{sT2}, s{sK}"); a(f"s_lshl_b32 s{sT2}, s{sT2}, 4")
    a(f"s_add_u32 s{sT1}, s{sT1}, s{sT2}"); a(f"s_add_u32 s{sT1}, s{sT1}, s{sFo}")
    a(f"s_cmp_lt_u32 s{sC}, 2"); a(f"s_cselect_b32 s{sT1}, {OOB}, s{sT1}")
    a(f"s_cmp_lt_u32 s{sW}, 6"); a(f"s_cselect_b32 s{sT0}, s{sT0}, {OOB}"); a(f"s_cselect_b32 s{sT1}, {OOB}, s{sT1}")
    a(f"v_lshrrev_b32 v{vT}, 2, v{vT+3}")
    a(f"v_lshl_add_u32 v{vT+1}, v{vT}, 7, s{sT0}")
    a(f"v_mul_u32_u24 v{vT+4}, 160, v{vT}"); a(f"v_add_u32 v{vT+4}, s{sT1}, v{vT+4}")
    a(f"v_cmp_gt_u32 vcc, 32, v{vL}")
    a(f"v_and_b32 v{vT+5}, 3, v{vL}")
    a(f"v_cndmask_b32 v{vT+1}, v{vT+4}, v{vT+1}, vcc")
    a(f"v_lshl_add_u32 v{vPubA}, v{vT+5}, 2, v{vT+1}")
    step(3)
    if skel == 1:
        snap1 = a.snapshot()
    a.c("stage-3 task: range rho = c/10, slab k = c%10 (c >= 30: reducers, slab (c-30)*8+G)")
    a(f"s_mul_i32 s{sT0}, s{sC}, 26"); a(f"s_lshr_b32 s{sT0}, s{sT0}, 8")
    a(f"s_mul_i32 s{sT1}, s{sT0}, 10"); a(f"s_sub_u32 s{sK}, s{sC}, s{sT1}")
    a(f"s_min_u32 s{sT2}, s{sT0}, 2"); a(f"s_lshl_b32 s{sT2}, s{sT2}, 3"); a(f"s_add_u32 s{sT3}, s{sT2}, s{sW}")
    a(f"s_mul_i32 s{sT2}, s{sG}, 24"); a(f"s_add_u32 s{sPhi}, s{sT3}, s{sT2}")
    a(f"s_lshl_b32 s{sT2}, s{sK}, 7")
    a(f"s_cmp_lt_u32 s{sC}, 30"); a(f"s_cselect_b32 s{sT2}, s{sT2}, {OOB}")
    a(f"v_lshl_add_u32 v{vT}, v{vCh}, 4, s{sT2}")
    a(f"s_mul_i32 s{sT2}, s{sPhi}, {8*1280}")
    a(f"v_mul_u32_u24 v{vT+1}, 1280, v{vSlot}"); a(f"v_add_u32 v{vT+1}, s{sT2}, v{vT+1}")
    a(f"v_add_u32 v{vW2o}, v{vT}, v{vT+1}")
    a(f"v_lshl_add_u32 v{vWo}, v{vT+1}, 2, v{vT}")
    if skel == 1:
        kdone[0] = 8; limit[0] = len(stream)
        a(f"buffer_store_dword v{vPubD}, v{vPubA}, {sr(dWS,4)}, 0 offen")
        while pos[0] < len(stream): step()
        a("s_waitcnt vmcnt(0)"); finish()
        a.restore(snap1); pos[0] = 6; arrived[0] = 2; kdone[0] = 0
    a.c("y publish offset: both copies of (slab, line w), slot 3G + rho")
    a(f"s_lshl_b32 s{sT1}, s{sK}, 2"); a(f"s_add_u32 s{sT1}, s{sT1}, s{sW}"); a(f"s_lshl_b32 s{sT1}, s{sT1}, 12")
    a(f"s_mul_i32 s{sT2}, s{sG}, 3"); a(f"s_add_u32 s{sT2}, s{sT2}, s{sT0}"); a(f"s_lshl_b32 s{sT2}, s{sT2}, 7")
    a(f"s_add_u32 s{sT1}, s{sT1}, s{sT2}"); a(f"s_add_u32 s{sT1}, s{sT1}, {WS_YP}")
    a(f"v_lshl_add_u32 v{vYo}, v{vT+3}, 2, s{sT1}"); a(f"v_lshl_add_u32 v{vYo}, v{vT+2}, 13, v{vYo}")
    a.c("gather offsets")
    a(f"s_min_u32 s{sT0}, s{sW}, 5"); a(f"s_mul_i32 s{sT1}, s{sH}, 6"); a(f"s_add_u32 s{sT0}, s{sT0}, s{sT1}")
    a(f"s_lshl_b32 s{sT0}, s{sT0}, 10"); a(f"s_add_u32 s{sQo}, s{sT0}, {WS_QP}")
    a(f"s_mul_i32 s{sT3}, s{sT3}, 320")
    a(f"v_lshrrev_b32 v{vT}, 4, v{vL}"); a(f"v_mul_u32_u24 v{vT}, 80, v{vT}"); a(f"v_add_u32 v{vT}, s{sT3}, v{vT}")
    a(f"v_and_b32 v{vT+1}, 15, v{vL}"); a(f"v_cmp_gt_u32 vcc, 5, v{vT+1}")
    a(f"v_mov_b32 v{vT+1}, 7680")
    a(f"v_cndmask_b32 v{vT}, v{vT+1}, v{vT}, vcc"); a(f"v_lshl_add_u32 v{vFo}, v{vCh}, 4, v{vT}")
    phase("s1")
    step(1)
    a.wait_vm("xr")
    xs = [vQ + i for i in range(10)]
    for i in range(5):
        src = vXa + i if i < 4 else vXb
        a(f"v_lshlrev_b32 v{xs[2*i]}, 16, v{src}"); a(f"v_and_b32 v{xs[2*i+1]}, 0xffff0000, v{src}")
    a(f"v_add_f32 v{vT}, v{xs[0]}, v{xs[1]}"); a(f"v_add_f32 v{vT+1}, v{xs[2]}, v{xs[3]}")
    for i in range(4, 10): a(f"v_add_f32 v{vT+(i&1)}, v{vT+(i&1)}, v{xs[i]}")
    a(f"v_add_f32 v{vT}, v{vT}, v{vT+1}")
    red8("v_add_f32", [vT]); red_hi("v_add_f32", [vT])
    a(f"v_readlane_b32 s{sT0}, v{vT}, 63")
    a(f"v_mov_b32 v{vT+2}, {f2u(1/640.):#x}")
    step(1)
    a(f"v_mul_f32 v{vT+3}, s{sT0}, v{vT+2}")
    for i in range(10): a(f"v_sub_f32 v{xs[i]}, v{xs[i]}, v{vT+3}")
    a(f"v_mul_f32 v{vT}, v{xs[0]}, v{xs[0]}"); a(f"v_mul_f32 v{vT+1}, v{xs[1]}, v{xs[1]}")
    for i in range(2, 10): a(f"v_fmac_f32 v{vT+(i&1)}, v{xs[i]}, v{xs[i]}")
    a(f"v_add_f32 v{vT}, v{vT}, v{vT+1}")
    step(1)
    red8("v_add_f32", [vT]); red_hi("v_add_f32", [vT])
    a(f"v_readlane_b32 s{sT0}, v{vT}, 63")
    a(f"v_lshlrev_b32 v{vXr}, 16, v{vXr}")
    rne(vT+3, vT+3)
    a(f"v_mul_f32 v{vT+2}, s{sT0}, v{vT+2}")
    a(f"v_sub_f32 v{vXr}, v{vXr}, v{vT+3}")
    step(1)
    rne(vT+2, vT+2); rne(vXr, vXr)
    a(f"v_add_f32 v{vT+2}, {f2u(1e-5):#x}, v{vT+2}"); rne(vT+2, vT+2)
    a(f"v_sqrt_f32 v{vT+2}, v{vT+2}"); rne(vT+2, vT+2)
    a(f"v_rcp_f32 v{vT+4}, v{vT+2}")
    a(f"v_mul_f32 v{vT}, v{vXr}, v{vT+4}"); a(f"v_fma_f32 v{vT+1}, -v{vT}, v{vT+2}, v{vXr}")
    a(f"v_fma_f32 v{vT}, v{vT+1}, v{vT+4}, v{vT}")
    a(f"v_cvt_pk_bf16_f32 v{vXr}, v{vT}, v{vT}")
    a(f"v_lshlrev_b32 v{vT}, 2, v{vSlot}")
    for i in range(6): a(f"ds_bpermute_b32 v{vSc+i}, v{vT}, v{vXr} offset:{32*i}")
    step(1)
    a.c("hand-off tags of this launch")
    a("s_waitcnt lgkmcnt(0)")
    a(f"s_add_u32 s{sE}, s{sE}, 0x01010101")
    for k in range(4): a(f"s_bfe_u32 s{sTag[k]}, s{sE}, {(8 << 16) | (8*k):#x}")
    a(f"s_getreg_b32 s{sT0}, hwreg(HW_REG_XCC_ID, 0, 4)")
    if forceslow: a(f"s_and_b32 s{sT0}, s{sC}, 1")
    a(f"s_lshl_b32 s{sT0}, s{sT0}, 28"); a(f"s_and_b32 s{sId}, s{sE}, 0x0fffffff"); a(f"s_or_b32 s{sId}, s{sId}, s{sT0}")
    a(f"v_and_b32 v{vT}, 3, v{vL}"); a(f"v_lshlrev_b32 v{vT}, 3, v{vT}")
    a(f"v_bfe_u32 v{vPubD}, s{sE}, v{vT}, 8")
    a(f"s_add_u32 s{sE}, s{sE}, 0x01010101")
    a(f"v_bfe_u32 v{vTg2}, s{sE}, v{vT}, 8")
    a(f"s_mov_b32 s{sCnt}, {timeout}")
    buildA(vA, vSc); buildA(vA2, vSc+1)
    need("S5")
    if s1split: step(1)
    a(f"s_cmp_lt_u32 s{sW}, 5"); a("s_cbranch_scc1 L_s1q")
    for i in range(6):
        mfma(vD, (vA, vA2)[i & 1], vW+4*i, None if i == 0 else vD)
        if i < 4: buildA((vA, vA2)[i & 1], vSc+i+2)
    a("s_nop 0"); a("s_branch L_s1back")
    a.label("L_s1q")
    a.hist = []
    for i in range(6): mfma(vD+4*(i % 3), vA if i < 3 else vA2, vW+4*i, None if i < 3 else vD+4*(i % 3))
    a.label("L_s1back")
    a(f"s_mov_b64 exec, {sr(sVal,2)}")
    for j in range(3): a(f"ds_write_b128 v{vRedW}, {vr(vD+4*j,4)} offset:{LDS_RED+256*j}")
    arrive(0)
    step(nb)
    await_all(0, lambda: red_read(LDS_RED))
    a(f"v_add_f32 v{vT}, v{vT}, v{vT+1}"); a(f"v_add_f32 v{vT+2}, v{vT+2}, v{vT+3}"); a(f"v_add_f32 v{vT+5}, v{vT+5}, v{vT+6}")
    a(f"v_add_f32 v{vT}, v{vT}, v{vT+4}"); a(f"v_add_f32 v{vT+5}, v{vT+5}, v{vT+7}"); a(f"v_add_f32 v{vT}, v{vT}, v{vT+2}")
    a(f"s_lshl_b32 s{sT0}, s{sC}, 2"); a(f"s_add_u32 s{sT0}, s{sT0}, s{sFo}"); a(f"s_add_u32 s{sT0}, s{sT0}, 7680")
    a(f"v_permlane32_swap_b32 v{vT}, v{vT+5}")
    a(f"v_add_f32 v{vT}, v{vT}, v{vT+5}")
    a(f"v_and_or_b32 v{vPubD}, v{vT}, s{sMask}, v{vPubD}")
    a(f"s_cmp_eq_u32 s{sW}, 7"); a("s_cselect_b64 exec, 1, 0")
    a(f"v_mov_b32 v{vPubD}, s{sId}"); a(f"v_mov_b32 v{vPubA}, s{sT0}")
    a("s_mov_b64 exec, -1")
    a(f"buffer_store_dword v{vPubD}, v{vPubA}, {sr(dWS,4)}, 0 offen", "pubq")
    phase("")
    stamp(0)
    issue_to(f"K{qpos-1}")
    def x1loads(q, f): return [f"buffer_load_dwordx4 {vr(vG,4)}, v{vL16}, {sr(dWS,4)}, s{q} offen sc1",
                               f"buffer_load_dwordx4 {vr(vG2,4)}, v{vFo}, {sr(dWS,4)}, s{f} offen sc1"]
    a(x1loads(sQo, sFo)[0], "gq"); a(x1loads(sQo, sFo)[1], "gf")
    a.c("what the ffn gather must hold: tags on the data lanes, this die's id word on the others")
    a(f"v_and_b32 v{vT+1}, 15, v{vL}"); a(f"v_cmp_gt_u32 vcc, 5, v{vT+1}")
    a(f"v_mov_b32 v{vT+1}, s{sId}"); a(f"v_mov_b32 v{vT+2}, 0xff")
    for k in range(4):
        a(f"v_mov_b32 v{vA+k}, s{sTag[k]}"); a(f"v_cndmask_b32 v{vA+k}, v{vT+1}, v{vA+k}, vcc")
    a(f"v_cndmask_b32 v{vA2}, -1, v{vT+2}, vcc")
    step(D - 1)
    phase("x1")
    need(f"K{qpos-1}")
    a.wait_vm("gf")
    a.label("L_x1chk")
    for k in range(4): a(f"v_xor_b32 v{vG+k}, s{sTag[k]}, v{vG+k}")
    for k in range(4): a(f"v_xor_b32 v{vG2+k}, v{vA+k}, v{vG2+k}")
    or_all(vT, [vG+k for k in range(4)]); or_all(vT+1, [vG2+k for k in range(4)])
    a(f"v_and_b32 v{vT}, 0xff, v{vT}"); a(f"v_and_or_b32 v{vT}, v{vT+1}, v{vA2}, v{vT}")
    a(f"v_cmp_ne_u32 vcc, 0, v{vT}")
    a("s_cbranch_vccnz L_x1slow")
    a.label("L_x1ok")
    c = Asm(); c.label("L_x1slow")
    c.c("not all there yet, or a member of the group sits on another die")
    c(f"v_and_b32 v{vT}, 0x0fffffff, v{vT}"); c(f"v_cmp_ne_u32 vcc, 0, v{vT}")
    c("s_cbranch_vccnz L_x1wait")
    c(f"s_mov_b32 s{sReg}, {SLOW}")
    c(f"v_not_b32 v{vT}, v{vA2}")
    for k in range(4): c(f"v_and_b32 v{vG2+k}, v{vT}, v{vG2+k}")
    c(f"buffer_store_dword v{vPubD}, v{vPubA}, {sr(dWS,4)}, s{sReg} offen sc1")
    c("s_branch L_x1ok")
    c.label("L_x1wait")
    c(f"s_sub_u32 s{sSpin}, s{sSpin}, 1"); c("s_cbranch_scc1 L_end")
    c(f"s_sub_u32 s{sCnt}, s{sCnt}, 1")
    c(f"s_cmp_lg_u32 s{sCnt}, 0"); c("s_cbranch_scc1 L_x1nopub")
    c(f"s_mov_b32 s{sT0}, {SLOW}")
    c(f"buffer_store_dword v{vPubD}, v{vPubA}, {sr(dWS,4)}, s{sT0} offen sc1")
    c.label("L_x1nopub")
    c.c("after enough misses publish write-through as well and look at the two areas in turn")
    c(f"s_and_b32 s{sT0}, s{sCnt}, 0x80000001"); c(f"s_cmp_eq_u32 s{sT0}, 0x80000001"); c(f"s_cselect_b32 s{sT0}, {SLOW}, 0")
    c(f"s_add_u32 s{sT1}, s{sT0}, s{sFo}"); c(f"s_add_u32 s{sT0}, s{sT0}, s{sQo}")
    for t in x1loads(sT0, sT1): c(t)
    c("s_waitcnt vmcnt(0)"); c("s_branch L_x1chk")
    cold.append(c.out)
    red8("v_add_f32", [vG+k for k in range(4)])
    a(f"s_min_u32 s{sT0}, s{sW}, 5"); a(f"s_lshl_b32 s{sT0}, s{sT0}, 6")
    a(f"v_cvt_pk_bf16_f32 v{vG}, v{vG}, v{vG+1}"); a(f"v_cvt_pk_bf16_f32 v{vG+1}, v{vG+2}, v{vG+3}")
    a(f"v_lshl_add_u32 v{vT+2}, v{vSlot}, 3, s{sT0}")
    a(f"ds_write_b64 v{vT+2}, {vr(vG,2)} offset:{LDS_Q}")
    arrive(1)
    step(1)
    a.c("SwiGLU for this wave's eight hidden units")
    red8("v_add_f32", [vG2+k for k in range(4)], R8 + ("row_mirror",))
    a(f"v_and_b32 v{vT}, 1, v{vSlot}"); a(f"v_cmp_eq_u32 vcc, 1, v{vT}")
    a(f"v_lshlrev_b32 v{vT+3}, 4, v{vCh}")
    a(f"s_cmp_lt_u32 s{sW}, 6"); a(f"s_cselect_b32 s{sT0}, 0, {OOB}")
    a(f"v_cndmask_b32 v{vG2}, v{vG2}, v{vG2+1}, vcc"); a(f"v_cndmask_b32 v{vG2+2}, v{vG2+2}, v{vG2+3}, vcc")
    a(f"v_or_b32 v{vPubA}, s{sT0}, v{vPubA}")
    step(1)
    rne(vG2, vG2); rne(vG2+2, vG2+2)
    a(f"v_permlane16_swap_b32 v{vG2}, v{vG2+2}")
    a(f"v_mul_f32 v{vT}, {f2u(-1.4426950408889634):#x}, v{vG2}")
    a(f"v_exp_f32 v{vT}, v{vT}"); a(f"v_add_f32 v{vT}, 1.0, v{vT}"); a(f"v_rcp_f32 v{vT}, v{vT}")
    a(f"v_mul_f32 v{vT}, v{vT}, v{vG2}"); rne(vT, vT)
    a(f"v_mul_f32 v{vT}, v{vT}, v{vG2+2}")
    a(f"v_cvt_pk_bf16_f32 v{vT}, v{vT}, v{vT}")
    buildA(vAh, vT)
    step(nb - 2)
    phase("qk")
    def qread():
        for j in range(3): a(f"ds_read_b128 {vr(vQ+4*j,4)}, v{vT+3} offset:{LDS_Q+128*j}")
    await_all(1, qread)
    stamp(1)
    sc = [vSc+g for g in range(8)]
    def dots(g):
        b = kreg(3*g)
        a(f"v_dot2_f32_bf16 v{vSc+g}, v{b}, v{vQ}, 0")
        a(f"v_dot2_f32_bf16 v{vT+g}, v{b+1}, v{vQ+1}, 0")
        for i in range(2, 12):
            d = vSc+g if i % 2 == 0 else vT+g
            a(f"v_dot2_f32_bf16 v{d}, v{b+i}, v{vQ+i}, v{d}")
        kdone[0] = g + 1
    def post(gs):
        r = [vSc+g for g in gs]
        for g in gs: a(f"v_add_f32 v{vSc+g}, v{vSc+g}, v{vT+g}")
        red8("v_add_f32", r); rne_pairs(r)
        for x in r: a(f"v_mul_f32 v{x}, {f2u(192 ** -0.5):#x}, v{x}")
        rne_pairs(r)
    def at(name):
        p0 = pos[0]; need(name)
        if pos[0] == p0: step(1)
    need("K5"); dots(0); dots(1)
    at("K11"); dots(2); dots(3)
    at("K11"); post(range(4))
    at("K17"); dots(4); dots(5)
    at("K20"); dots(6)
    phase("")
    issue_to(stream[idx["K23"] + D - 1][0] + str(stream[idx["K23"] + D - 1][1]))
    phase("sm")
    need("K23"); dots(7)
    step(1)
    post(range(4, 8))
    step(1)
    a(f"v_max3_f32 v{vG}, v{sc[0]}, v{sc[1]}, v{sc[2]}"); a(f"v_max3_f32 v{vG+1}, v{sc[3]}, v{sc[4]}, v{sc[5]}")
    a(f"v_max3_f32 v{vG}, v{vG}, v{sc[6]}, v{sc[7]}"); a(f"v_max_f32 v{vG}, v{vG}, v{vG+1}")
    red_hi("v_max_f32", [vG])
    a(f"v_readlane_b32 s{sMw}, v{vG}, 63")
    L2E = f"{f2u(1.4426950408889634):#x}"
    for r in sc: a(f"v_subrev_f32 v{r}, s{sMw}, v{r}")
    for r in sc: a(f"v_mul_f32 v{r}, {L2E}, v{r}")
    step(1)
    for r in sc: a(f"v_exp_f32 v{r}, v{r}")
    for k in range(4): a(f"v_add_f32 v{vT+k}, v{sc[k]}, v{sc[4+k]}")
    a(f"v_add_f32 v{vT}, v{vT}, v{vT+1}"); a(f"v_add_f32 v{vT+2}, v{vT+2}, v{vT+3}"); a(f"v_add_f32 v{vG+1}, v{vT}, v{vT+2}")
    a.c("(max, sum) of this wave: 16 tag bits under the bf16 max, 8 under the sum")
    a(f"s_and_b32 s{sT2}, s{sId}, 0xffff")
    a(f"s_lshl_b32 s{sT0}, s{sP}, 3"); a(f"s_add_u32 s{sT0}, s{sT0}, s{sW}"); a(f"s_lshl_b32 s{sT0}, s{sT0}, 3")
    red_hi("v_add_f32", [vG+1])
    a(f"s_add_u32 s{sT0}, s{sT0}, {WS_ML}"); a(f"v_mov_b32 v{vT}, s{sT0}")
    a(f"v_or_b32 v{vG}, s{sT2}, v{vG}")
    a(f"v_and_b32 v{vG+1}, 0xffffff00, v{vG+1}"); a(f"v_or_b32 v{vG+1}, s{sTag[2]}, v{vG+1}")
    a(f"s_mov_b32 exec_lo, 0"); a(f"s_mov_b32 exec_hi, 0x80000000")
    pub(f"buffer_store_dwordx2 {vr(vG,2)}, v{vT}, {sr(dWS,4)}, s{sReg} offen", "pubml")
    a("s_mov_b64 exec, -1")
    a(f"s_lshl_b32 s{sT0}, s{sC}, 3"); a(f"s_add_u32 s{sT0}, s{sT0}, s{sG}"); a(f"s_sub_u32 s{sT0}, s{sT0}, 240")
    a(f"s_lshl_b32 s{sT1}, s{sW}, 8"); a(f"s_or_b32 s{sT1}, s{sT1}, s{sT0}")
    a(f"s_cmp_lt_u32 s{sT1}, 10"); a("s_cbranch_scc1 L_park")
    a.label("L_parkback")
    c = Asm(); c.label("L_park")
    c.c("wave 0 of a reducer: park one probe line per mailbox copy in the memory-side cache")
    c(f"s_lshl_b32 s{sT0}, s{sT0}, 14"); c(f"s_add_u32 s{sT0}, s{sT0}, {WS_YP + 3072}")
    c(f"v_and_b32 v{vT}, 31, v{vL}"); c(f"v_lshrrev_b32 v{vT+1}, 5, v{vL}"); c(f"v_lshlrev_b32 v{vT+1}, 13, v{vT+1}")
    c(f"v_lshl_add_u32 v{vT}, v{vT}, 2, v{vT+1}")
    c(f"buffer_store_dword v{vZ}, v{vT}, {sr(dWS,4)}, s{sT0} offen sc1")
    c("s_branch L_parkback")
    cold.append(c.out)
    phase("")
    stamp(2)
    issue_to(f"V{mlpos-1}")
    a(f"s_lshl_b32 s{sT0}, s{sH}, 9"); a(f"s_add_u32 s{sT0}, s{sT0}, {WS_ML}"); a(f"s_add_u32 s{sT0}, s{sT0}, s{sReg}")
    a(f"v_lshlrev_b32 v{vFo}, 3, v{vL}")
    mload = f"buffer_load_dwordx2 {vr(vG,2)}, v{vFo}, {sr(dWS,4)}, s{sT0} offen sc1"
    a(mload, "gm")
    step(D - 1)
    phase("ml")
    need(f"V{mlpos-1}")
    a.wait_vm("gm")
    a.label("L_mlchk")
    a(f"v_xor_b32 v{vG}, s{sT2}, v{vG}"); a(f"v_xor_b32 v{vG+1}, s{sTag[2]}, v{vG+1}")
    a(f"v_and_b32 v{vT}, 0xffff, v{vG}"); a(f"v_and_b32 v{vT+1}, 0xff, v{vG+1}"); a(f"v_or_b32 v{vT}, v{vT}, v{vT+1}")
    a(f"v_cmp_ne_u32 vcc, 0, v{vT}")
    retry("L_mlchk", [mload])
    a(f"v_max_f32_dpp v{vT}, v{vG}, v{vG} {R8[0]} {DP}")
    red8("v_max_f32", [vT], R8[1:]); red_hi("v_max_f32", [vT])
    a(f"v_readlane_b32 s{sT0}, v{vT}, 63")
    a(f"v_mov_b32 v{vT+1}, s{sMw}")
    step(1)
    a(f"v_subrev_f32 v{vT}, s{sT0}, v{vG}"); a(f"v_subrev_f32 v{vT+1}, s{sT0}, v{vT+1}")
    a(f"v_mul_f32 v{vT}, {L2E}, v{vT}"); a(f"v_mul_f32 v{vT+1}, {L2E}, v{vT+1}")
    a(f"v_exp_f32 v{vT}, v{vT}"); a(f"v_exp_f32 v{vT+1}, v{vT+1}")
    a(f"v_mul_f32 v{vT}, v{vT}, v{vG+1}")
    red8("v_add_f32", [vT]); red_hi("v_add_f32", [vT])
    a(f"v_rcp_f32 v{vT}, v{vT}")
    a(f"v_mul_f32 v{vT}, v{vT}, v{vT+1}")
    a(f"v_readlane_b32 s{sT1}, v{vT}, 63")
    step(1)
    for r in sc: a(f"v_mul_f32 v{r}, s{sT1}, v{r}")
    for r in sc: a(f"v_cvt_pk_bf16_f32 v{r}, v{r}, v{r}")
    a.c("tags and offset of the o exchange")
    for k in range(4): a(f"s_bfe_u32 s{sTag[k]}, s{sE}, {(8 << 16) | (8*k):#x}")
    a(f"s_lshl_b32 s{sQo}, s{sPhi}, 10"); a(f"s_add_u32 s{sQo}, s{sQo}, {WS_QP}"); a(f"s_add_u32 s{sQo}, s{sQo}, s{sReg}")
    stamp(3)
    for g in range(8):
        if g in (0, 3) and arrived[0] >= idx[f"V{3*g+2}"]: step(1)
        if arrived[0] < idx[f"V{3*g+2}"]: phase("")
        A_ = vA if g % 2 == 0 else vA2
        buildA(A_, sc[g])
        for j in range(3):
            need(f"V{3*g+j}")
            mfma(vD+4*j, A_, vreg(3*g+j), None if g == 0 else vD+4*j)
            if g == 7:
                if j == 2:
                    while pos[0] < limit[0]: load(*stream[pos[0]]); pos[0] += 1
                    if skel == 2: a("s_waitcnt vmcnt(0)"); a("s_endpgm")
                    stamp(4)
                a(f"s_mov_b64 exec, {sr(sVal,2)}")
                a(f"ds_write_b128 v{vRedW}, {vr(vD+4*j,4)} offset:{LDS_RED+256*j}")
                a("s_mov_b64 exec, -1")
    a("s_waitcnt lgkmcnt(0)"); a("s_barrier")
    red_read(LDS_RED)
    red_sum8(vPubD, vTg2)
    pub(f"buffer_store_dword v{vPubD}, v{vPubA}, {sr(dWS,4)}, s{sReg} offen", "pubo")
    stamp(5)
    a(f"s_cmp_ge_u32 s{sC}, 30"); a("s_cbranch_scc1 L_reducer")
    snap = a.snapshot()
    if hold:
        a.c("a plain store waits behind older loads of the CU, so the last weight loads go out after the o stores")
        a("s_barrier")
        while pos[0] < len(stream): load(*stream[pos[0]]); pos[0] += 1
        a.wait_vm("pubo")
    oload = f"buffer_load_dwordx4 {vr(vG2,4)}, v{vL16}, {sr(dWS,4)}, s{sQo} offen sc1"
    a(oload)
    a.wait_vm("W4")
    stamp(10)
    mfma(vY, vAh, vW+16, None)
    a("s_branch L_ochk")
    a.label("L_opoll")
    a(oload)
    a(f"s_sub_u32 s{sSpin}, s{sSpin}, 1"); a("s_cbranch_scc1 L_end")
    a.label("L_ochk")
    a("s_waitcnt vmcnt(0)")
    untag([vG2])
    for k in range(4): a(f"v_add_f32_dpp v{vG+k}, v{vG2+k}, v{vG2+k} {R8[0]} {DP}")
    a("s_cbranch_vccnz L_opoll")
    if skel == 3: a("s_endpgm")
    stamp(6)
    red8("v_add_f32", [vG+k for k in range(4)], R8[1:])
    for k in range(4): a(f"v_cvt_pk_bf16_f32 v{vG+k}, v{vG+k}, v{vG+k}")
    As = (vA, vA2, vG2, vT)
    for r in range(4):
        buildA(As[r], vG+r)
        if r >= 1: mfma(vY, As[r-1], vW+4*(r-1), vY)
    mfma(vY, As[3], vW+12, vY)
    a(f"s_mov_b64 exec, {sr(sVal,2)}")
    a(f"s_cmp_ge_u32 s{sW}, 2")
    a(f"ds_write_b128 v{vRedW}, {vr(vY,4)} offset:{LDS_RED2}")
    a("s_mov_b64 exec, -1")
    a("s_waitcnt lgkmcnt(0)"); a("s_barrier")
    a("s_cbranch_scc1 L_exit3")
    red_read(LDS_RED2)
    red_sum8(vPubD, vTg2)
    a(f"buffer_store_dword v{vPubD}, v{vYo}, {sr(dWS,4)}, 0 offen sc1", "puby")
    a.label("L_exit3")
    stamp(7)
    finish()
    a.label("L_reducer")
    a.restore(snap)
    if skel == 3: a("s_endpgm")
    a(f"s_lshl_b32 s{sK}, s{sK}, 3"); a(f"s_add_u32 s{sK}, s{sK}, s{sG}")
    a(f"s_cmp_ge_u32 s{sK}, 10"); a("s_cbranch_scc1 L_exitr")
    a(f"s_cmp_ge_u32 s{sW}, 2")
    if stamps or diag is not None:
        a("s_cbranch_scc1 L_barx"); cold.append(["L_barx:", "    s_barrier", "    s_branch L_exitr"])
    else: a("s_cbranch_scc1 L_exitr")
    a(f"s_lshl_b32 s{sT0}, s{sK}, 2"); a(f"s_add_u32 s{sT0}, s{sT0}, s{sW}"); a(f"s_lshl_b32 s{sT0}, s{sT0}, 12")
    a(f"s_add_u32 s{sT0}, s{sT0}, {WS_YP}")
    a(f"s_lshl_b32 s{sK}, s{sK}, 1"); a(f"s_add_u32 s{sK}, s{sK}, s{sW}")
    y = vD
    def yl(n): return [f"buffer_load_dwordx4 {vr(vKV+12*n+4*i,4)}, v{vL16}, {sr(dWS,4)}, s{sT0} offen offset:{1024*i} sc1" for i in range(3)]
    a.c("which copy is nearer? loads return in order, so the gap behind the first one is long only if the second goes further")
    a(f"v_mov_b32 v{vT+2}, 8192")
    a(f"s_cmp_lg_u32 s{sW}, 0"); a("s_cbranch_scc1 L_probed")
    a("s_mov_b64 exec, 1")
    a("s_waitcnt vmcnt(0)")
    a(f"buffer_load_dword v{vT+3}, v{vZ}, {sr(dWS,4)}, s{sT0} offen offset:3072 sc1")
    a(f"buffer_load_dword v{vT+7}, v{vT+2}, {sr(dWS,4)}, s{sT0} offen offset:3072 sc1")
    a("s_waitcnt vmcnt(1)"); a("s_memtime s[4:5]")
    a("s_waitcnt vmcnt(0)"); a("s_memtime s[6:7]")
    a("s_waitcnt lgkmcnt(0)")
    a("s_sub_u32 s4, s6, s4")
    a("s_cmpk_gt_u32 s4, 90"); a("s_cselect_b32 s4, 0, 8192")
    a(f"v_mov_b32 v{vT+3}, s4")
    a(f"ds_write_b32 v{vZ}, v{vT+3} offset:{LDS_Q}")
    a("s_mov_b64 exec, -1")
    a("s_waitcnt lgkmcnt(0)")
    a.label("L_probed")
    a("s_barrier")
    a(f"ds_read_b32 v{vT+3}, v{vZ} offset:{LDS_Q}")
    a.c("output column of this lane: 32*line + 4*(l&7) + (l>>4)")
    a(f"v_lshrrev_b32 v{vT+1}, 4, v{vL}"); a(f"v_lshl_add_u32 v{vT+1}, v{vCh}, 2, v{vT+1}")
    a(f"s_lshl_b32 s{sT1}, s{sK}, 6"); a(f"v_lshl_add_u32 v{vYo}, v{vT+1}, 1, s{sT1}")
    a(f"buffer_load_ushort v{vXo}, v{vYo}, {sr(dX,4)}, 0 offen")
    a("s_waitcnt lgkmcnt(0)")
    a(f"v_add_u32 v{vL16}, v{vL16}, v{vT+3}")
    for n in range(ypipe):
        for t in yl(n): a(t)
    a.c("line 0's reducer hears (through its producers) from every workgroup: it advances the hand-off epoch")
    a(f"s_cmp_eq_u32 s{sK}, 0"); a(f"s_cselect_b32 s{sT2}, {WS_E}, {OOB}")
    a(f"v_mov_b32 v{vT+4}, s{sE}"); a(f"v_mov_b32 v{vT+5}, {OOB}"); a(f"v_mov_b32 v{vT+6}, {OOB}")
    a.c("one pass through the last lines with every store out of range: they are in the instruction cache afterwards")
    a(f"s_mov_b32 s{sT1}, 1"); a("s_branch L_yfin")
    a.label("L_ystart")
    a("s_mov_b64 exec, -1")
    a(f"s_mov_b32 s{sT1}, 0")
    a(f"v_mov_b32 v{vT+5}, s{sT2}"); a(f"v_mov_b32 v{vT+6}, v{vYo}")
    a(f"s_waitcnt vmcnt({3*ypipe})")
    a(f"v_lshlrev_b32 v{vXo}, 16, v{vXo}")
    a.label("L_ypoll")
    for n in range(ypipe):
        a(f"s_waitcnt vmcnt({3*(ypipe-1)})")
        b = vKV + 12*n
        untag([b, b+4, b+8])
        for k in range(4): a(f"v_add_f32 v{y+k}, v{b+k}, v{b+4+k}")
        for k in range(4): a(f"v_add_f32 v{y+k}, v{y+k}, v{b+8+k}")
        a("s_cbranch_vccz L_yfin")
        for t in yl(n): a(t)
    a(f"s_sub_u32 s{sSpin}, s{sSpin}, 1"); a("s_cbranch_scc0 L_ypoll")
    a("s_endpgm")
    a.label("L_yfin")
    a(f"buffer_store_dword v{vT+4}, v{vT+5}, {sr(dWS,4)}, 0 offen")
    stamp(9)
    a(f"v_permlane32_swap_b32 v{y}, v{y+2}"); a(f"v_permlane32_swap_b32 v{y+1}, v{y+3}")
    a(f"v_add_f32 v{y}, v{y}, v{y+2}"); a(f"v_add_f32 v{y+1}, v{y+1}, v{y+3}")
    a(f"v_permlane16_swap_b32 v{y}, v{y+1}")
    a(f"v_add_f32 v{y}, v{y}, v{y+1}")
    a(f"s_cmp_lg_u32 s{sT1}, 0")
    a(f"v_add_f32_dpp v{y}, v{y}, v{y} row_ror:8 {DP}")
    a(f"v_add_f32 v{y}, v{y}, v{vXo}")
    a(f"v_cvt_pk_bf16_f32 v{y}, v{y}, v{y}")
    a(f"buffer_store_short v{y}, v{vT+6}, {sr(dOUT,4)}, 0 offen")
    a("s_cbranch_scc1 L_ystart")
    a.label("L_exitr")
    stamp(8)
    finish()
    for blk in cold:
        for ln in blk: a.raw(ln)
    a.label("L_end")
    a("s_endpgm")
    if prefetch: a.raw("    .fill 512, 4, 0xbf810000")
    nv = (V.n + 7) // 8 * 8
    a.raw('.section .rodata,"a"'); a.raw(".p2align 6"); a.raw(f".amdhsa_kernel {NAME}_kernel")
    a.raw(f"  .amdhsa_next_free_vgpr {nv}"); a.raw("  .amdhsa_next_free_sgpr 102"); a.raw(f"  .amdhsa_accum_offset {nv}")
    a.raw("  .amdhsa_group_segment_fixed_size 0"); a.raw("  .amdhsa_kernarg_size 96"); a.raw("  .amdhsa_user_sgpr_count 2")
    a.raw("  .amdhsa_user_sgpr_kernarg_segment_ptr 1"); a.raw("  .amdhsa_system_sgpr_workgroup_id_x 1")
    a.raw(".end_amdhsa_kernel")
    return a.text()

if __name__ == "__main__":
    kw = {}
    out = sys.argv[1]
    for x in sys.argv[2:]:
        k, v = x.split("=")
        try: v = eval(v)
        except Exception: pass
        kw[k] = v
    open(out, "w").write(gen(**kw))
```

```python
import sys, struct, re
sys.path.insert(0, "dev")
from asmlib import *

NAME = "parallel_sum__gqa_block_cached__glu_gated_swiglu__decode"
def f2u(x): return struct.unpack("<I", struct.pack("<f", x))[0]

WS_E  = 0
WS_QP = 0x10000
WS_FP = 0x40000
WS_ML = 0x50000
SLOW  = 0x50000
WS_YP = 0x100000
WS_ST = 0x400000
WS_SIZE = 0x800000
OOB = 0x40000000
LDS_RED = 0
LDS_RED2 = 12288
LDS_Q = 24576
LDS_CNT = 25088

DOC = """;
; depends on it. The y mailboxes exist twice, once per side of the memory system; a reducer polls the nearer copy."""

def gen(qpos=14, mlpos=14, hold=2, nb=3, pace=(15, 27.6), pfrom=7, hi=(), ypipe=3, voff=2, kfirst=0, tpost=True, anchors=(), aoff=25, atau=None, lastdeep=1, lo2=None, relax=3, selw=None, rr=1, s1split=0, adj=0, gbase=0, ylast=False, outfl='', efl='', touch=0, ibsts=True,
        ld="nt", lds=32768, spin=1 << 20, timeout=24, prefetch=True,
        stamps=False, diag=None, amp=0, trace=False, forceslow=False, skel=0):
    D, DH = 3, 4
    a = Asm()
    hdr = open("cdna_kernels/" + NAME + ".s.ref").read().split("\n")
    for ln in hdr:
        if ln.startswith(";") and "@launch" not in ln and "Override launch" not in ln and "grid=ceil" not in ln: a.raw(ln)
    a.raw(f"; @launch grid=(256,1,1) block=(512,1,1) lds={lds}")
    for ln in DOC.split("\n"): a.raw(ln)
    a.raw('.amdgcn_target "amdgcn-amd-amdhsa--gfx950"')
    a.raw(".text"); a.raw(f".globl {NAME}_kernel"); a.raw(".p2align 8"); a.raw(f".type {NAME}_kernel,@function")
    a.label(f"{NAME}_kernel")
    V = Regs(1, 256, "v"); S = Regs(28, 102, "s")
    pX, pK, pV, pWQ, pWO, pBX, pW1, pW3, pW2, pOUT, pDBG, pWS = [4 + 2*i for i in range(12)]
    dK, dV, dS1, dWS, dX = [S.get(4) for _ in range(5)]
    dWO, dW2, dOUT = 12, 20, S.get(4)
    sW, sG, sC, sP, sH, sS, sE, sT0, sT1, sT2, sT3, sSpin, sReg, sPhi, sK, sCnt, sQo, sFo, sId, sMask = [S.get() for _ in range(20)]
    sTag = [S.get() for _ in range(4)]
    sOff = [16, 17, 18]
    sS1, sS2 = S.get(), S.get(); sMw = sS1
    sBase, sAn, sSmp = 19, 8, 9
    dDBG = 24
    sVal = S.get(2); sTm = S.get(2); sStart = S.get(2)
    sSt = S.get(16) if (stamps or diag is not None) else None
    (vL, vSlot, vCh, vKoff, vS1a, vS1b, vS1c, vXr, vRedW, vRedR, vL16, vPubA, vPubD, vTg2, vWo, vW2o, vYo, vFo, vCn, vTr) = [V.get() for _ in range(20)]
    vZ = V.get(2)
    vM = V.get(4); vA = V.get(4); vA2 = V.get(4); vAh = V.get(4); vG = V.get(4); vG2 = V.get(4); vT = V.get(8)
    vY = V.get(4); vSc = V.get(8); vQ = V.get(12); vD = V.get(12); vW = V.get(24); vKV = V.get(96 + 12*voff)
    vXa, vXb, vXo = vY, vSc, vXr
    kreg = lambda i: vKV + 12*voff + 4*i
    vreg = lambda i: vKV + 4*i
    cold = []
    def stamp(n):
        if diag == n or stamps is True or (stamps == 'min' and n == 8) or (isinstance(stamps, tuple) and n in stamps):
            a(f"s_memrealtime {sr(10,2)}"); a("s_waitcnt lgkmcnt(0)"); a(f"s_mov_b32 s{sSt + (n if stamps else 0)}, s10")
    def finish():
        if diag is not None:
            if selw: a(f"s_cmpk_lg_u32 s2, {selw[0]}"); a("s_cbranch_scc1 L_end"); a(f"s_cmp_lg_u32 s{sW}, {selw[1]}"); a("s_cbranch_scc1 L_end")
            a(f"s_sub_u32 s{sSt}, s{sSt}, s{sStart}"); a(f"s_mul_i32 s{sSt}, s{sSt}, {amp or 1}"); a(f"s_add_u32 s{sSt}, s{sSt}, 5000")
            lp = a.newlabel("pad"); a.label(lp)
            a(f"s_memrealtime {sr(sTm,2)}"); a("s_waitcnt lgkmcnt(0)")
            a(f"s_sub_u32 s{sTm}, s{sTm}, s{sStart}"); a(f"s_cmp_lt_u32 s{sTm}, s{sSt}"); a(f"s_cbranch_scc1 {lp}")
        elif stamps:
            lp = a.newlabel("pad"); a.label(lp)
            a(f"s_memrealtime {sr(sTm,2)}"); a("s_waitcnt lgkmcnt(0)")
            a(f"s_sub_u32 s{sTm}, s{sTm}, s{sStart}"); a(f"s_cmp_lt_u32 s{sTm}, 3000"); a(f"s_cbranch_scc1 {lp}")
            a(f"s_mov_b32 s{sSt+13}, s{sReg}"); a(f"s_mov_b32 s{sSt+14}, s{sStart}"); a(f"s_mov_b32 s{sSt+15}, s{sSpin}")
            a(f"s_lshl_b32 s{sT0}, s{sP}, 3"); a(f"s_add_u32 s{sT0}, s{sT0}, s{sW}"); a(f"s_lshl_b32 s{sT0}, s{sT0}, 6")
            if trace:
                a("s_mov_b64 exec, -1")
                a(f"s_lshl_b32 s{sT1}, s{sT0}, 2"); a(f"s_add_u32 s{sT1}, s{sT1}, {WS_ST + 0x100000}")
                a(f"v_lshl_add_u32 v{vT}, v{vL}, 2, s{sT1}")
                a(f"buffer_store_dword v{vTr}, v{vT}, {sr(dWS,4)}, 0 offen")
            a("s_mov_b64 exec, 1")
            a(f"s_add_u32 s{sT0}, s{sT0}, {WS_ST}"); a(f"v_mov_b32 v{vT}, s{sT0}")
            for q in range(4):
                for k in range(4): a(f"v_mov_b32 v{vKV+80+4*q+k}, s{sSt+4*q+k}")
                a(f"buffer_store_dwordx4 {vr(vKV+80+4*q,4)}, v{vT}, {sr(dWS,4)}, 0 offen offset:{16*q}")
        a("s_endpgm")
    def rne(dst, src):
        a(f"v_cvt_pk_bf16_f32 v{dst}, v{src}, v{src}"); a(f"v_and_b32 v{dst}, 0xffff0000, v{dst}")
    def rne_pairs(regs):
        for x, y in zip(regs[0::2], regs[1::2]): a(f"v_cvt_pk_bf16_f32 v{y}, v{x}, v{y}")
        for x, y in zip(regs[0::2], regs[1::2]):
            a(f"v_lshlrev_b32 v{x}, 16, v{y}"); a(f"v_and_b32 v{y}, 0xffff0000, v{y}")
    DP = "row_mask:0xf bank_mask:0xf"
    R8 = ("quad_perm:[1,0,3,2]", "quad_perm:[2,3,0,1]", "row_half_mirror")
    def red8(op, regs, steps=R8):
        for m in steps:
            for r in regs: a(f"{op}_dpp v{r}, v{r}, v{r} {m} {DP}")
    def red_hi(op, regs):
        for r in regs: a(f"{op}_dpp v{r}, v{r}, v{r} row_ror:8 {DP}")
        for r in regs: a(f"{op}_dpp v{r}, v{r}, v{r} row_bcast:15 row_mask:0xa bank_mask:0xf")
        for r in regs: a(f"{op}_dpp v{r}, v{r}, v{r} row_bcast:31 row_mask:0xc bank_mask:0xf")
    def buildA(dst, dup, e=None):
        for k in range(4): (e or a)(f"v_and_b32 v{dst+k}, v{dup}, v{vM+k}")
    def mfma(d, A_, B_, c, e=None): (e or a)(f"v_mfma_f32_16x16x32_bf16 {vr(d,4)}, {vr(A_,4)}, {vr(B_,4)}, {'0' if c is None else vr(c,4)}")
    def or_all(dst, rs, e=None):
        e = e or a
        e(f"v_or3_b32 v{dst}, v{rs[0]}, v{rs[1]}, v{rs[2]}"); rs = rs[3:]
        while rs:
            if len(rs) >= 2: e(f"v_or3_b32 v{dst}, v{dst}, v{rs[0]}, v{rs[1]}"); rs = rs[2:]
            else: e(f"v_or_b32 v{dst}, v{dst}, v{rs[0]}"); rs = rs[1:]
    def untag(sets):
        for g in sets:
            for k in range(4): a(f"v_xor_b32 v{g+k}, s{sTag[k]}, v{g+k}")
        or_all(vT, [g+k for g in sets for k in range(4)])
        a(f"v_and_b32 v{vT}, 0xff, v{vT}")
        a(f"v_cmp_ne_u32 vcc, 0, v{vT}")
    def pub(text, name):
        ls = a.newlabel("pubslow"); lb = a.newlabel("pubback")
        a(f"s_cmp_lg_u32 s{sReg}, 0"); a(f"s_cbranch_scc1 {ls}")
        a(text, name)
        a.label(lb)
        cold.append([ls + ":", "    " + text + " sc1", f"    s_branch {lb}"])
    def retry(label, loads):
        lr = a.newlabel("retry")
        a(f"s_cbranch_vccnz {lr}")
        cold.append([lr + ":", f"    s_sub_u32 s{sSpin}, s{sSpin}, 1", "    s_cbranch_scc1 L_end"] + ["    " + t for t in loads] +
                    ["    s_waitcnt vmcnt(0)", f"    s_branch {label}"])
    def arrive(k):
        a("s_mov_b64 exec, 1"); a(f"ds_add_u32 v{vZ}, v{vZ+1} offset:{LDS_CNT+4*k}"); a("s_mov_b64 exec, -1")
    def await_all(k, reads):
        lb = a.newlabel("await"); a.label(lb)
        a(f"ds_read_b32 v{vCn}, v{vZ} offset:{LDS_CNT+4*k}")
        reads()
        a(f"s_sub_u32 s{sSpin}, s{sSpin}, 1"); a("s_cbranch_scc1 L_end")
        a("s_waitcnt lgkmcnt(0)")
        a(f"v_cmp_ne_u32 vcc, 8, v{vCn}"); a(f"s_cbranch_vccnz {lb}")
    def red_read(base):
        b = base // 256
        for q in range(4): a(f"ds_read2st64_b32 {vr(vT+2*q,2)}, v{vRedR} offset0:{b+12*q} offset1:{b+12*q+6}")
    def red_sum8(dst, tag):
        a("s_waitcnt lgkmcnt(2)")
        a(f"v_add_f32 v{vT}, v{vT}, v{vT+1}"); a(f"v_add_f32 v{vT+2}, v{vT+2}, v{vT+3}")
        a("s_waitcnt lgkmcnt(1)")
        a(f"v_add_f32 v{vT+4}, v{vT+4}, v{vT+5}"); a(f"v_add_f32 v{vT}, v{vT}, v{vT+2}")
        a("s_waitcnt lgkmcnt(0)")
        a(f"v_add_f32 v{vT+6}, v{vT+6}, v{vT+7}"); a(f"v_add_f32 v{vT}, v{vT}, v{vT+4}")
        a(f"v_add_f32 v{vT+1}, v{vT}, v{vT+6}"); a(f"v_add_f32 v{vT}, v{vT}, v{vT+6}")
        a(f"v_permlane32_swap_b32 v{vT}, v{vT+1}")
        a(f"v_add_f32 v{vT}, v{vT}, v{vT+1}")
        a(f"v_and_or_b32 v{dst}, v{vT}, s{sMask}, v{tag}")

    stream = [("K", i) for i in range(kfirst)] + [("S", i) for i in range(6)] + [("K", i) for i in range(kfirst, 24)]
    stream += [("V", i) for i in range(24)] + [("W", i) for i in range(5)]
    limit = [len(stream) - hold]
    idx = {f"{t}{i}": n for n, (t, i) in enumerate(stream)}
    kdone = [0]; pos = [0]; arrived = [-1]; deep = [False]
    def load(t, i):
        if t in "KV":
            g, j = divmod(i, 3)
            if t == "V": assert g - voff < kdone[0], "V load overwrites unconsumed K"
            so = "0" if g < 2 else f"s{sOff[(g>>1)-1]}"
            a(f"buffer_load_dwordx4 {vr(kreg(i) if t == 'K' else vreg(i),4)}, v{vKoff}, {sr(dK if t == 'K' else dV,4)}, {so} offen offset:{3072*(g&1)+128*j} {ld}", f"{t}{i}")
        elif t == "S":
            a(f"buffer_load_dwordx4 {vr(vW+4*i,4)}, v{(vS1a, vS1a, vS1a, vS1b, vS1b, vS1c)[i]}, {sr(dS1,4)}, {('0', f's{sS1}', f's{sS2}')[i % 3]} offen {ld}", f"S{i}")
        elif i < 4:
            a(f"buffer_load_dwordx4 {vr(vW+4*i,4)}, v{vWo}, {sr(dWO,4)}, 0 offen offset:{1280*i} {ld}", f"W{i}")
        else:
            a(f"buffer_load_dwordx4 {vr(vW+16,4)}, v{vW2o}, {sr(dW2,4)}, 0 offen {ld}", "W4")
    def wait_idx(n, extra=""):
        if n > arrived[0] or extra:
            t, i = stream[n]; a.wait_vm(f"{t}{i}", extra); arrived[0] = max(arrived[0], n)
    nchk = [0]
    def thr(p): return int(pace[0] + pace[1]*p) + relax*nchk[0]
    def step(n=1):
        for _ in range(n):
            p = pos[0]
            if p >= limit[0]: return
            if trace == 1 and p >= DH:
                a(f"s_memrealtime {sr(4,2)}"); a("s_waitcnt lgkmcnt(0)"); a(f"v_writelane_b32 v{vTr}, s4, {p}")
            if deep[0] or (pace and p >= limit[0] - lastdeep): wait_idx(p - DH)
            elif pace and p >= pfrom:
                if p - D > arrived[0] or tpost:
                    if not tpost: a(f"s_memrealtime {sr(sTm,2)}")
                    wait_idx(p - DH, "lgkmcnt(0)")
                    if gbase == p:
                        a.c("measure 'behind' from the mean start of the eight groups once all have posted")
                        a(f"s_min_u32 s{sTm+1}, s4, s5")
                        for k in range(6, 12): a(f"s_min_u32 s{sTm+1}, s{sTm+1}, s{k}")
                        for k in range(5, 12): a(f"s_add_u32 s4, s4, s{k}")
                        a(f"s_lshl_b32 s5, s{sStart}, 3"); a("s_sub_u32 s4, s4, s5"); a("s_ashr_i32 s4, s4, 3")
                        a(f"s_cmp_eq_u32 s{sTm+1}, 0"); a("s_cselect_b32 s4, 0, s4"); a(f"s_add_u32 s{sBase}, s{sBase}, s4")
                    for k, (pp, pr) in enumerate(anchors):
                        if pp == p:
                            a(f"s_cmp_eq_u32 s{sSmp}, 0"); a(f"s_cbranch_scc1 L_post{k}")
                            a.label(f"L_postback{k}")
                            c = Asm(); c.label(f"L_post{k}")
                            c.c("32 sample waves add their clock (and a count) to a word of the zeroed debug buffer")
                            c(f"s_and_b32 s{sTm+1}, s{sTm}, 0xfffff"); c(f"s_bitset1_b32 s{sTm+1}, 26")
                            c("s_mov_b64 exec, 1"); c(f"v_mov_b32 v{vCn}, s{sTm+1}")
                            c(f"buffer_atomic_add v{vCn}, off, {sr(dDBG,4)}, 0 offset:{64*k}")
                            c("s_mov_b64 exec, -1"); c(f"s_branch L_postback{k}")
                            cold.append(c.out)
                        if pr == p:
                            a.c("measure 'behind' from the samples' mean once all 32 are in")
                            a(f"s_lshl_b32 s{sTm+1}, s{sTm}, 5"); a(f"s_sub_u32 s{sTm+1}, s{sAn}, s{sTm+1}")
                            a(f"s_bfe_i32 s{sTm+1}, s{sTm+1}, {(15 << 16) | 5:#x}")
                            a(f"s_add_u32 s{sTm+1}, s{sTm+1}, s{sTm}"); a(f"s_sub_u32 s{sTm+1}, s{sTm+1}, {thr(pp) - (aoff[k] if isinstance(aoff, tuple) else aoff)}")
                            a(f"s_bitcmp1_b32 s{sAn}, 31"); a(f"s_cselect_b32 s{sBase}, s{sTm+1}, s{sBase}")
                            if trace == 2: a(f"s_lshr_b32 s{sAn}, s{sAn}, 26"); a(f"v_writelane_b32 v{vTr}, s{sAn}, {60+k}")
                    a(f"s_sub_u32 s{sTm}, s{sTm}, s{sBase}")
                    if trace == 2: a(f"s_sub_u32 s{sTm+1}, s{sTm}, {thr(p) - 100000}"); a(f"v_writelane_b32 v{vTr}, s{sTm+1}, {p}")
                    if p - D > arrived[0]:
                        lb = a.newlabel("deep")
                        a(f"s_cmpk_gt_i32 s{sTm}, {thr(p)}")
                        if adj: a(f"s_cselect_b32 s{sBase}, s{sStart+1}, s{sStart}")
                        a(f"s_cbranch_scc1 {lb}")
                        th = thr(p)
                        if relax: a(f"s_sub_u32 s{sBase}, s{sBase}, {relax}"); a.hist[-1].states = 0; nchk[0] += 1
                        t, i = stream[p - D]; a.wait_vm(f"{t}{i}"); a.hist[-1].states = 0
                        if lo2:
                            a(f"s_cmpk_gt_i32 s{sTm}, {th - lo2}"); a.hist[-1].states = 0
                            a(f"s_cbranch_scc1 {lb}"); a.hist[-1].states = 0
                            t, i = stream[p - D + 1]; a.wait_vm(f"{t}{i}"); a.hist[-1].states = 0
                        a.label(lb)
            elif p >= D: wait_idx(p - D)
            load(*stream[p]); pos[0] += 1
            if diag == 100 + p: stamp(diag)
            if pace and tpost and pfrom <= p + 1 < limit[0] - lastdeep:
                a(f"s_memrealtime {sr(sTm,2)}")
                if gbase == p + 1: a(f"s_buffer_load_dwordx8 s[4:11], {sr(dDBG,4)}, 0")
                for k, (pp, pr) in enumerate(anchors):
                    if pr == p + 1: a(f"s_buffer_load_dword s{sAn}, {sr(dDBG,4)}, {64*k}")
    def need(name):
        n = idx[name]
        while arrived[0] < n and pos[0] < limit[0]: step()
        wait_idx(n)
    def issue_to(name):
        while pos[0] <= idx[name]: step()
    def phase(name):
        deep[0] = name in hi

    a("s_cmpk_ge_u32 s2, 256"); a("s_cbranch_scc1 L_end")
    a("s_load_dwordx16 s[4:19], s[0:1], 0")
    a("s_load_dwordx8 s[20:27], s[0:1], 64")
    a(f"s_memrealtime {sr(sStart,2)}")
    a(f"v_lshrrev_b32 v{vT}, 6, v0")
    a(f"v_and_b32 v{vL}, 63, v0")
    a(f"v_readfirstlane_b32 s{sW}, v{vT}")
    a(f"s_and_b32 s{sG}, s2, 7"); a(f"s_lshr_b32 s{sC}, s2, 3")
    a(f"s_lshl_b32 s{sP}, s{sG}, 5"); a(f"s_add_u32 s{sP}, s{sP}, s{sC}")
    a(f"v_lshrrev_b32 v{vSlot}, 3, v{vL}"); a(f"v_and_b32 v{vCh}, 7, v{vL}")
    def kaddr():
        a(f"s_lshl_b32 s{sT0}, s{sP}, 3"); a(f"s_add_u32 s{sT0}, s{sT0}, s{sW}"); a(f"s_mul_i32 s{sT0}, s{sT0}, 24576")
        a(f"v_mul_u32_u24 v{vKoff}, 384, v{vSlot}")
        a(f"v_lshl_add_u32 v{vT+1}, v{vCh}, 4, s{sT0}")
        a(f"v_add_u32 v{vKoff}, v{vKoff}, v{vT+1}")
        a(f"s_mov_b32 s{dK+2}, 50331648"); a(f"s_mov_b32 s{dK+3}, 0x20000")
    if kfirst: kaddr()
    a(f"s_lshr_b32 s{sH}, s{sP}, 3"); a(f"s_and_b32 s{sS}, s{sP}, 7")
    a(f"v_mov_b32 v{vZ}, 0"); a(f"v_mov_b32 v{vZ+1}, 0")
    a(f"ds_write_b64 v{vZ}, {vr(vZ,2)} offset:{LDS_CNT}")
    a.c("stage-1 role: waves 0-4 take 16 rows x 192 columns of wq, waves 5-7 take 48/40/40 rows x 64 columns of w1 or w3")
    a(f"s_max_u32 s{sT0}, s{sC}, 2"); a(f"s_sub_u32 s{sT0}, s{sT0}, 2")
    a(f"s_mul_i32 s{sPhi}, s{sT0}, 52"); a(f"s_lshr_b32 s{sPhi}, s{sPhi}, 8")
    a(f"s_mul_i32 s{sT1}, s{sPhi}, 5"); a(f"s_sub_u32 s{sK}, s{sT0}, s{sT1}")
    a(f"s_lshl_b32 s{sT0}, s{sK}, 7"); a(f"s_mul_i32 s{sT1}, s{sW}, 40"); a(f"s_add_u32 s{sT0}, s{sT0}, s{sT1}")
    a(f"s_cmp_eq_u32 s{sW}, 5"); a(f"s_cselect_b32 s{sT1}, 8, 0"); a(f"s_sub_u32 s{sT0}, s{sT0}, s{sT1}"); a(f"s_sub_u32 s{sT0}, s{sT0}, 192")
    a(f"s_lshr_b32 s{sT1}, s{sPhi}, 1"); a(f"s_mul_i32 s{sT2}, s{sG}, 3"); a(f"s_add_u32 s{sT1}, s{sT1}, s{sT2}"); a(f"s_lshl_b32 s{sT1}, s{sT1}, 7")
    a(f"s_cmp_lt_u32 s{sC}, 2"); a(f"s_cselect_b32 s{sT1}, {OOB}, s{sT1}")
    a(f"s_mul_i32 s{sT2}, s{sS}, 80"); a(f"s_lshl_b32 s{sT3}, s{sW}, 4"); a(f"s_add_u32 s{sT2}, s{sT2}, s{sT3}")
    a(f"s_mul_i32 s{sT3}, s{sH}, 384")
    a(f"s_cmp_lt_u32 s{sW}, 5")
    a(f"s_cselect_b32 s{sT0}, s{sT2}, s{sT0}"); a(f"s_cselect_b32 s{sT1}, s{sT3}, s{sT1}")
    a(f"s_cselect_b32 s{sT2}, 12, 3"); a(f"s_cselect_b32 s{sT3}, 4, 3"); a(f"s_cselect_b32 s{sQo}, 1, 192")
    a(f"s_lshl_b32 s{sT2}, s{sT2}, 10")
    a(f"s_mul_i32 s{dS1+2}, s{sT2}, 640"); a(f"s_mov_b32 s{dS1+3}, 0x20000")
    a(f"v_add_u32 v{vT}, s{sT0}, v{vSlot}")
    a(f"v_mul_lo_u32 v{vS1a}, v{vT}, s{sT2}")
    a(f"v_lshl_add_u32 v{vT+1}, v{vCh}, 4, s{sT1}")
    a(f"v_add_u32 v{vS1a}, v{vS1a}, v{vT+1}")
    a(f"s_lshl_b32 s{sS1}, s{sQo}, 7"); a(f"s_lshl_b32 s{sS2}, s{sQo}, 8")
    a("s_waitcnt lgkmcnt(0)")
    def s1desc():
        a(f"s_bitcmp1_b32 s{sPhi}, 0"); a(f"s_cselect_b64 {sr(dS1,2)}, {sr(pW3,2)}, {sr(pW1,2)}")
        a(f"s_cmp_lt_u32 s{sW}, 5"); a(f"s_cselect_b64 {sr(dS1,2)}, {sr(pWQ,2)}, {sr(dS1,2)}")
    if kfirst:
        a(f"s_mov_b64 {sr(dK,2)}, {sr(pK,2)}"); step(kfirst); s1desc(); step(3 - kfirst)
    else:
        s1desc()
        if rr:
            a.c("the waves take turns, so that their loads alternate in the CU's queue from the start")
            step(1); a("s_barrier"); step(1); a("s_barrier"); step(1)
            if rr > 1: a("s_barrier")
        else: step(3)
        a(f"s_mov_b64 {sr(dK,2)}, {sr(pK,2)}")
    a(f"s_load_dword s{sE}, {sr(pWS,2)}, {WS_E}")
    a(f"s_mov_b64 {sr(dX,2)}, {sr(pX,2)}"); a(f"s_mov_b32 s{dX+2}, 1280"); a(f"s_mov_b32 s{dX+3}, 0x20000")
    a(f"v_lshlrev_b32 v{vL16}, 4, v{vL}"); a(f"v_lshlrev_b32 v{vT+4}, 2, v{vL}")
    a(f"v_add_lshl_u32 v{vT+2}, v{vL}, s{sT0}, 1")
    a(f"buffer_load_dwordx4 {vr(vXa,4)}, v{vL16}, {sr(dX,4)}, 0 offen", "xa")
    a(f"buffer_load_dword v{vXb}, v{vT+4}, {sr(dX,4)}, 0 offen offset:1024", "xb")
    a(f"buffer_load_ushort v{vXr}, v{vT+2}, {sr(dX,4)}, 0 offen", "xr")
    if not rr: a("s_barrier")
    a(f"s_mul_i32 s{sT3}, s{sT3}, 24576")
    a(f"v_add_u32 v{vS1b}, s{sT3}, v{vS1a}")
    a(f"s_cmp_lt_u32 s{sW}, 6"); a(f"s_cselect_b32 s{sT3}, 0, {OOB}")
    a(f"v_or_b32 v{vS1c}, s{sT3}, v{vS1b}")
    if not kfirst: kaddr()
    a(f"v_mov_b32 v{vZ+1}, 1")
    if diag is not None: a(f"s_mov_b32 s{sSt}, s{sStart}")
    if trace: a(f"v_mov_b32 v{vTr}, 0")
    if stamps:
        for i in range(13): a(f"s_mov_b32 s{sSt+i}, 0")
    if prefetch:
        a.c("pull this kernel's code into the L2 (each wave one line)")
        a(f"s_getpc_b64 {sr(sTm,2)}")
        a(f"s_lshl_b32 s{sT0}, s{sC}, 3"); a(f"s_add_u32 s{sT0}, s{sT0}, s{sW}"); a(f"s_and_b32 s{sT0}, s{sT0}, 63")
        a(f"s_lshl_b32 s{sT0}, s{sT0}, 7"); a(f"s_addk_i32 s{sT0}, 768")
        a(f"s_load_dword s{sCnt}, {sr(sTm,2)}, s{sT0}")
    a(f"s_mov_b64 {sr(dV,2)}, {sr(pV,2)}"); a(f"s_mov_b32 s{dV+2}, 50331648"); a(f"s_mov_b32 s{dV+3}, 0x20000")
    a(f"s_mov_b64 {sr(dWS,2)}, {sr(pWS,2)}"); a(f"s_mov_b32 s{dWS+2}, {WS_SIZE}"); a(f"s_mov_b32 s{dWS+3}, 0x20000")
    a(f"s_mov_b64 {sr(dOUT,2)}, {sr(pOUT,2)}"); a(f"s_mov_b32 s{dOUT+2}, 1280"); a(f"s_mov_b32 s{dOUT+3}, 0x20000")
    a(f"s_mov_b32 s{dWO+2}, 7864320"); a(f"s_mov_b32 s{dWO+3}, 0x20000")
    a(f"s_mov_b32 s{dW2+2}, 1966080"); a(f"s_mov_b32 s{dW2+3}, 0x20000")
    for i in range(3): a(f"s_mov_b32 s{sOff[i]}, {6144*(i+1)}")
    a(f"s_mov_b32 s{sBase}, s{sStart}")
    if adj: a(f"s_sub_u32 s{sStart+1}, s{sStart}, {adj}")
    if gbase:
        a.c("one wave per group posts its start time in the zeroed debug buffer")
        a(f"s_mov_b32 s{dDBG+2}, 256"); a(f"s_mov_b32 s{dDBG+3}, 0x20000")
        a(f"s_or_b32 s{sT0}, s{sStart}, 1"); a(f"v_mov_b32 v{vT}, s{sT0}")
        a(f"s_lshl_b32 s{sT0}, s{sG}, 2"); a(f"s_or_b32 s{sT1}, s{sC}, s{sW}"); a(f"s_cselect_b32 s{sT0}, {OOB}, s{sT0}")
        a(f"v_mov_b32 v{vT+1}, s{sT0}")
        a(f"buffer_store_dword v{vT}, v{vT+1}, {sr(dDBG,4)}, 0 offen sc1")
    if anchors:
        a(f"s_mov_b32 s{dDBG+2}, 256"); a(f"s_mov_b32 s{dDBG+3}, 0x20000")
        a.c("sample waves: one per head, every wave number equally often")
        a(f"s_add_u32 s{sSmp}, s{sH}, s{sW}"); a(f"s_and_b32 s{sSmp}, s{sSmp}, 7"); a(f"s_xor_b32 s{sT0}, s{sS}, 3"); a(f"s_or_b32 s{sSmp}, s{sSmp}, s{sT0}")
    a(f"s_mov_b32 s{sSpin}, {spin}"); a(f"s_mov_b32 s{sReg}, 0"); a(f"s_mov_b32 s{sMask}, 0xffffff00")
    a(f"s_mov_b32 s{sVal}, 0x00ff00ff"); a(f"s_mov_b32 s{sVal+1}, 0xff00ff00")
    a.c("MFMA A-operand masks")
    a(f"v_and_b32 v{vT}, 1, v{vL}"); a(f"v_lshlrev_b32 v{vT}, 4, v{vT}")
    a(f"v_mov_b32 v{vT+1}, 0xffff"); a(f"v_lshlrev_b32 v{vT}, v{vT}, v{vT+1}")
    a(f"v_lshrrev_b32 v{vT+1}, 1, v{vCh}")
    for k in range(4):
        a(f"v_cmp_eq_u32 vcc, {k}, v{vT+1}"); a(f"v_cndmask_b32 v{vM+k}, 0, v{vT}, vcc")
    a.c("LDS reduce addresses")
    a(f"v_lshrrev_b32 v{vT+2}, 5, v{vL}"); a(f"v_mul_u32_u24 v{vT}, 768, v{vT+2}")
    a(f"v_bfe_u32 v{vT+1}, v{vL}, 4, 1"); a(f"v_lshl_add_u32 v{vT+1}, v{vCh}, 1, v{vT+1}")
    a(f"v_lshl_add_u32 v{vT+1}, v{vT+1}, 4, v{vT}")
    a(f"s_mul_i32 s{sT0}, s{sW}, 1536")
    a(f"v_add_u32 v{vRedW}, s{sT0}, v{vT+1}")
    a(f"v_and_b32 v{vT+3}, 31, v{vL}")
    a(f"s_sub_u32 s{sT3}, s{sW}, 6"); a(f"s_min_u32 s{sT3}, s{sT3}, s{sW}")
    a(f"s_lshl_b32 s{sT0}, s{sT3}, 7")
    a(f"v_lshl_add_u32 v{vT+1}, v{vT+3}, 2, s{sT0}")
    a(f"v_add_u32 v{vRedR}, v{vT}, v{vT+1}")
    a.c("publish offsets: waves 0-5 lanes 0-31 q/o slot, waves 6-7 lanes 32-63 ffn slot, wave 7 lane 0 die id")
    a(f"s_mul_i32 s{sT0}, s{sH}, 6"); a(f"s_add_u32 s{sT0}, s{sT0}, s{sW}"); a(f"s_lshl_b32 s{sT0}, s{sT0}, 10")
    a(f"s_lshl_b32 s{sT1}, s{sS}, 4"); a(f"s_add_u32 s{sT0}, s{sT0}, s{sT1}"); a(f"s_add_u32 s{sT0}, s{sT0}, {WS_QP}")
    a(f"s_lshl_b32 s{sFo}, s{sG}, 13"); a(f"s_add_u32 s{sFo}, s{sFo}, {WS_FP}")
    a(f"s_and_b32 s{sT1}, s{sPhi}, 6"); a(f"s_add_u32 s{sT1}, s{sT1}, s{sT3}"); a(f"s_mul_i32 s{sT1}, s{sT1}, 1280")
    a(f"s_and_b32 s{sT2}, s{sPhi}, 1"); a(f"s_mul_i32 s{sT2}, s{sT2}, 5"); a(f"s_add_u32 s{sT2}, s{sT2}, s{sK}"); a(f"s_lshl_b32 s{sT2}, s{sT2}, 4")
    a(f"s_add_u32 s{sT1}, s{sT1}, s{sT2}"); a(f"s_add_u32 s{sT1}, s{sT1}, s{sFo}")
    a(f"s_cmp_lt_u32 s{sC}, 2"); a(f"s_cselect_b32 s{sT1}, {OOB}, s{sT1}")
    a(f"s_cmp_lt_u32 s{sW}, 6"); a(f"s_cselect_b32 s{sT0}, s{sT0}, {OOB}"); a(f"s_cselect_b32 s{sT1}, {OOB}, s{sT1}")
    a(f"v_lshrrev_b32 v{vT}, 2, v{vT+3}")
    a(f"v_lshl_add_u32 v{vT+1}, v{vT}, 7, s{sT0}")
    a(f"v_mul_u32_u24 v{vT+4}, 160, v{vT}"); a(f"v_add_u32 v{vT+4}, s{sT1}, v{vT+4}")
    a(f"v_cmp_gt_u32 vcc, 32, v{vL}")
    a(f"v_and_b32 v{vT+5}, 3, v{vL}")
    a(f"v_cndmask_b32 v{vT+1}, v{vT+4}, v{vT+1}, vcc")
    a(f"v_lshl_add_u32 v{vPubA}, v{vT+5}, 2, v{vT+1}")
    step(3)
    if skel == 1:
        snap1 = a.snapshot()
    a.c("stage-3 task: range rho = c/10, slab k = c%10 (c >= 30: reducers, slab (c-30)*8+G)")
    a(f"s_mul_i32 s{sT0}, s{sC}, 26"); a(f"s_lshr_b32 s{sT0}, s{sT0}, 8")
    a(f"s_mul_i32 s{sT1}, s{sT0}, 10"); a(f"s_sub_u32 s{sK}, s{sC}, s{sT1}")
    a(f"s_min_u32 s{sT2}, s{sT0}, 2"); a(f"s_lshl_b32 s{sT2}, s{sT2}, 3"); a(f"s_add_u32 s{sT3}, s{sT2}, s{sW}")
    a(f"s_mul_i32 s{sT2}, s{sG}, 24"); a(f"s_add_u32 s{sPhi}, s{sT3}, s{sT2}")
    a(f"s_lshl_b32 s{sT2}, s{sK}, 7")
    a(f"s_cmp_lt_u32 s{sC}, 30"); a(f"s_cselect_b32 s{sT2}, s{sT2}, {OOB}")
    a(f"v_lshl_add_u32 v{vT}, v{vCh}, 4, s{sT2}")
    a(f"s_mul_i32 s{sT2}, s{sPhi}, {8*1280}")
    a(f"v_mul_u32_u24 v{vT+1}, 1280, v{vSlot}"); a(f"v_add_u32 v{vT+1}, s{sT2}, v{vT+1}")
    a(f"v_add_u32 v{vW2o}, v{vT}, v{vT+1}")
    a(f"v_lshl_add_u32 v{vWo}, v{vT+1}, 2, v{vT}")
    if skel == 1:
        kdone[0] = 8; limit[0] = len(stream)
        a(f"buffer_store_dword v{vPubD}, v{vPubA}, {sr(dWS,4)}, 0 offen")
        while pos[0] < len(stream): step()
        a("s_waitcnt vmcnt(0)"); finish()
        a.restore(snap1); pos[0] = 6; arrived[0] = 2; kdone[0] = 0
    a.c("y publish offset: both copies of (slab, line w), slot 3G + rho")
    if ylast: a(f"s_lshl_b32 s{sT1}, s{sK}, 14")
    else: a(f"s_lshl_b32 s{sT1}, s{sK}, 2"); a(f"s_add_u32 s{sT1}, s{sT1}, s{sW}"); a(f"s_lshl_b32 s{sT1}, s{sT1}, 12")
    a(f"s_mul_i32 s{sT2}, s{sG}, 3"); a(f"s_add_u32 s{sT2}, s{sT2}, s{sT0}"); a(f"s_lshl_b32 s{sT2}, s{sT2}, 7")
    a(f"s_add_u32 s{sT1}, s{sT1}, s{sT2}"); a(f"s_add_u32 s{sT1}, s{sT1}, {WS_YP}")
    a(f"v_lshl_add_u32 v{vYo}, v{vT+3}, 2, s{sT1}"); a(f"v_lshl_add_u32 v{vYo}, v{vT+2}, {12 if ylast else 13}, v{vYo}")
    a.c("gather offsets")
    a(f"s_min_u32 s{sT0}, s{sW}, 5"); a(f"s_mul_i32 s{sT1}, s{sH}, 6"); a(f"s_add_u32 s{sT0}, s{sT0}, s{sT1}")
    a(f"s_lshl_b32 s{sT0}, s{sT0}, 10"); a(f"s_add_u32 s{sQo}, s{sT0}, {WS_QP}")
    a(f"s_mul_i32 s{sT3}, s{sT3}, 320")
    a(f"v_lshrrev_b32 v{vT}, 4, v{vL}"); a(f"v_mul_u32_u24 v{vT}, 80, v{vT}"); a(f"v_add_u32 v{vT}, s{sT3}, v{vT}")
    a(f"v_and_b32 v{vT+1}, 15, v{vL}"); a(f"v_cmp_gt_u32 vcc, 5, v{vT+1}")
    a(f"v_mov_b32 v{vT+1}, 7680")
    a(f"v_cndmask_b32 v{vT}, v{vT+1}, v{vT}, vcc"); a(f"v_lshl_add_u32 v{vFo}, v{vCh}, 4, v{vT}")
    phase("s1")
    step(1)
    a.wait_vm("xr")
    xs = [vQ + i for i in range(10)]
    for i in range(5):
        src = vXa + i if i < 4 else vXb
        a(f"v_lshlrev_b32 v{xs[2*i]}, 16, v{src}"); a(f"v_and_b32 v{xs[2*i+1]}, 0xffff0000, v{src}")
    a(f"v_add_f32 v{vT}, v{xs[0]}, v{xs[1]}"); a(f"v_add_f32 v{vT+1}, v{xs[2]}, v{xs[3]}")
    for i in range(4, 10): a(f"v_add_f32 v{vT+(i&1)}, v{vT+(i&1)}, v{xs[i]}")
    a(f"v_add_f32 v{vT}, v{vT}, v{vT+1}")
    red8("v_add_f32", [vT]); red_hi("v_add_f32", [vT])
    a(f"v_readlane_b32 s{sT0}, v{vT}, 63")
    a(f"v_mov_b32 v{vT+2}, {f2u(1/640.):#x}")
    step(1)
    a(f"v_mul_f32 v{vT+3}, s{sT0}, v{vT+2}")
    for i in range(10): a(f"v_sub_f32 v{xs[i]}, v{xs[i]}, v{vT+3}")
    a(f"v_mul_f32 v{vT}, v{xs[0]}, v{xs[0]}"); a(f"v_mul_f32 v{vT+1}, v{xs[1]}, v{xs[1]}")
    for i in range(2, 10): a(f"v_fmac_f32 v{vT+(i&1)}, v{xs[i]}, v{xs[i]}")
    a(f"v_add_f32 v{vT}, v{vT}, v{vT+1}")
    step(1)
    red8("v_add_f32", [vT]); red_hi("v_add_f32", [vT])
    a(f"v_readlane_b32 s{sT0}, v{vT}, 63")
    a(f"v_lshlrev_b32 v{vXr}, 16, v{vXr}")
    rne(vT+3, vT+3)
    a(f"v_mul_f32 v{vT+2}, s{sT0}, v{vT+2}")
    a(f"v_sub_f32 v{vXr}, v{vXr}, v{vT+3}")
    step(1)
    rne(vT+2, vT+2); rne(vXr, vXr)
    a(f"v_add_f32 v{vT+2}, {f2u(1e-5):#x}, v{vT+2}"); rne(vT+2, vT+2)
    a(f"v_sqrt_f32 v{vT+2}, v{vT+2}"); rne(vT+2, vT+2)
    a(f"v_rcp_f32 v{vT+4}, v{vT+2}")
    a(f"v_mul_f32 v{vT}, v{vXr}, v{vT+4}"); a(f"v_fma_f32 v{vT+1}, -v{vT}, v{vT+2}, v{vXr}")
    a(f"v_fma_f32 v{vT}, v{vT+1}, v{vT+4}, v{vT}")
    a(f"v_cvt_pk_bf16_f32 v{vXr}, v{vT}, v{vT}")
    a(f"v_lshlrev_b32 v{vT}, 2, v{vSlot}")
    for i in range(6): a(f"ds_bpermute_b32 v{vSc+i}, v{vT}, v{vXr} offset:{32*i}")
    step(1)
    a.c("hand-off tags of this launch")
    a("s_waitcnt lgkmcnt(0)")
    a(f"s_add_u32 s{sE}, s{sE}, 0x01010101")
    for k in range(4): a(f"s_bfe_u32 s{sTag[k]}, s{sE}, {(8 << 16) | (8*k):#x}")
    a(f"s_getreg_b32 s{sT0}, hwreg(HW_REG_XCC_ID, 0, 4)")
    if forceslow: a(f"s_and_b32 s{sT0}, s{sC}, 1")
    a(f"s_lshl_b32 s{sT0}, s{sT0}, 28"); a(f"s_and_b32 s{sId}, s{sE}, 0x0fffffff"); a(f"s_or_b32 s{sId}, s{sId}, s{sT0}")
    a(f"v_and_b32 v{vT}, 3, v{vL}"); a(f"v_lshlrev_b32 v{vT}, 3, v{vT}")
    a(f"v_bfe_u32 v{vPubD}, s{sE}, v{vT}, 8")
    a(f"s_add_u32 s{sE}, s{sE}, 0x01010101")
    a(f"v_bfe_u32 v{vTg2}, s{sE}, v{vT}, 8")
    a(f"s_mov_b32 s{sCnt}, {timeout}")
    buildA(vA, vSc); buildA(vA2, vSc+1)
    need("S5")
    if s1split: step(1)
    a(f"s_cmp_lt_u32 s{sW}, 5"); a("s_cbranch_scc1 L_s1q")
    for i in range(6):
        mfma(vD, (vA, vA2)[i & 1], vW+4*i, None if i == 0 else vD)
        if i < 4: buildA((vA, vA2)[i & 1], vSc+i+2)
    a("s_nop 0"); a("s_branch L_s1back")
    a.label("L_s1q")
    a.hist = []
    for i in range(6): mfma(vD+4*(i % 3), vA if i < 3 else vA2, vW+4*i, None if i < 3 else vD+4*(i % 3))
    a.label("L_s1back")
    a(f"s_mov_b64 exec, {sr(sVal,2)}")
    for j in range(3): a(f"ds_write_b128 v{vRedW}, {vr(vD+4*j,4)} offset:{LDS_RED+256*j}")
    arrive(0)
    step(nb)
    await_all(0, lambda: red_read(LDS_RED))
    a(f"v_add_f32 v{vT}, v{vT}, v{vT+1}"); a(f"v_add_f32 v{vT+2}, v{vT+2}, v{vT+3}"); a(f"v_add_f32 v{vT+5}, v{vT+5}, v{vT+6}")
    a(f"v_add_f32 v{vT}, v{vT}, v{vT+4}"); a(f"v_add_f32 v{vT+5}, v{vT+5}, v{vT+7}"); a(f"v_add_f32 v{vT}, v{vT}, v{vT+2}")
    a(f"s_lshl_b32 s{sT0}, s{sC}, 2"); a(f"s_add_u32 s{sT0}, s{sT0}, s{sFo}"); a(f"s_add_u32 s{sT0}, s{sT0}, 7680")
    a(f"v_permlane32_swap_b32 v{vT}, v{vT+5}")
    a(f"v_add_f32 v{vT}, v{vT}, v{vT+5}")
    a(f"v_and_or_b32 v{vPubD}, v{vT}, s{sMask}, v{vPubD}")
    a(f"s_cmp_eq_u32 s{sW}, 7"); a("s_cselect_b64 exec, 1, 0")
    a(f"v_mov_b32 v{vPubD}, s{sId}"); a(f"v_mov_b32 v{vPubA}, s{sT0}")
    a("s_mov_b64 exec, -1")
    a(f"buffer_store_dword v{vPubD}, v{vPubA}, {sr(dWS,4)}, 0 offen", "pubq")
    phase("")
    stamp(0)
    issue_to(f"K{qpos-1}")
    def x1loads(q, f): return [f"buffer_load_dwordx4 {vr(vG,4)}, v{vL16}, {sr(dWS,4)}, s{q} offen sc1",
                               f"buffer_load_dwordx4 {vr(vG2,4)}, v{vFo}, {sr(dWS,4)}, s{f} offen sc1"]
    a(x1loads(sQo, sFo)[0], "gq"); a(x1loads(sQo, sFo)[1], "gf")
    a.c("what the ffn gather must hold: tags on the data lanes, this die's id word on the others")
    a(f"v_and_b32 v{vT+1}, 15, v{vL}"); a(f"v_cmp_gt_u32 vcc, 5, v{vT+1}")
    a(f"v_mov_b32 v{vT+1}, s{sId}"); a(f"v_mov_b32 v{vT+2}, 0xff")
    for k in range(4):
        a(f"v_mov_b32 v{vA+k}, s{sTag[k]}"); a(f"v_cndmask_b32 v{vA+k}, v{vT+1}, v{vA+k}, vcc")
    a(f"v_cndmask_b32 v{vA2}, -1, v{vT+2}, vcc")
    step(D - 1)
    phase("x1")
    need(f"K{qpos-1}")
    a.wait_vm("gf")
    a.label("L_x1chk")
    for k in range(4): a(f"v_xor_b32 v{vG+k}, s{sTag[k]}, v{vG+k}")
    for k in range(4): a(f"v_xor_b32 v{vG2+k}, v{vA+k}, v{vG2+k}")
    or_all(vT, [vG+k for k in range(4)]); or_all(vT+1, [vG2+k for k in range(4)])
    a(f"v_and_b32 v{vT}, 0xff, v{vT}"); a(f"v_and_or_b32 v{vT}, v{vT+1}, v{vA2}, v{vT}")
    a(f"v_cmp_ne_u32 vcc, 0, v{vT}")
    a("s_cbranch_vccnz L_x1slow")
    a.label("L_x1ok")
    c = Asm(); c.label("L_x1slow")
    c.c("not all there yet, or a member of the group sits on another die")
    c(f"v_and_b32 v{vT}, 0x0fffffff, v{vT}"); c(f"v_cmp_ne_u32 vcc, 0, v{vT}")
    c("s_cbranch_vccnz L_x1wait")
    c(f"s_mov_b32 s{sReg}, {SLOW}")
    c(f"v_not_b32 v{vT}, v{vA2}")
    for k in range(4): c(f"v_and_b32 v{vG2+k}, v{vT}, v{vG2+k}")
    c(f"buffer_store_dword v{vPubD}, v{vPubA}, {sr(dWS,4)}, s{sReg} offen sc1")
    c("s_branch L_x1ok")
    c.label("L_x1wait")
    c(f"s_sub_u32 s{sSpin}, s{sSpin}, 1"); c("s_cbranch_scc1 L_end")
    c(f"s_sub_u32 s{sCnt}, s{sCnt}, 1")
    c(f"s_cmp_lg_u32 s{sCnt}, 0"); c("s_cbranch_scc1 L_x1nopub")
    c(f"s_mov_b32 s{sT0}, {SLOW}")
    c(f"buffer_store_dword v{vPubD}, v{vPubA}, {sr(dWS,4)}, s{sT0} offen sc1")
    c.label("L_x1nopub")
    c.c("after enough misses publish write-through as well and look at the two areas in turn")
    c(f"s_and_b32 s{sT0}, s{sCnt}, 0x80000001"); c(f"s_cmp_eq_u32 s{sT0}, 0x80000001"); c(f"s_cselect_b32 s{sT0}, {SLOW}, 0")
    c(f"s_add_u32 s{sT1}, s{sT0}, s{sFo}"); c(f"s_add_u32 s{sT0}, s{sT0}, s{sQo}")
    for t in x1loads(sT0, sT1): c(t)
    c("s_waitcnt vmcnt(0)"); c("s_branch L_x1chk")
    cold.append(c.out)
    red8("v_add_f32", [vG+k for k in range(4)])
    a(f"s_min_u32 s{sT0}, s{sW}, 5"); a(f"s_lshl_b32 s{sT0}, s{sT0}, 6")
    a(f"v_cvt_pk_bf16_f32 v{vG}, v{vG}, v{vG+1}"); a(f"v_cvt_pk_bf16_f32 v{vG+1}, v{vG+2}, v{vG+3}")
    a(f"v_lshl_add_u32 v{vT+2}, v{vSlot}, 3, s{sT0}")
    a(f"ds_write_b64 v{vT+2}, {vr(vG,2)} offset:{LDS_Q}")
    arrive(1)
    step(1)
    a.c("SwiGLU for this wave's eight hidden units")
    red8("v_add_f32", [vG2+k for k in range(4)], R8 + ("row_mirror",))
    a(f"v_and_b32 v{vT}, 1, v{vSlot}"); a(f"v_cmp_eq_u32 vcc, 1, v{vT}")
    a(f"v_lshlrev_b32 v{vT+3}, 4, v{vCh}")
    a(f"s_cmp_lt_u32 s{sW}, 6"); a(f"s_cselect_b32 s{sT0}, 0, {OOB}")
    a(f"v_cndmask_b32 v{vG2}, v{vG2}, v{vG2+1}, vcc"); a(f"v_cndmask_b32 v{vG2+2}, v{vG2+2}, v{vG2+3}, vcc")
    a(f"v_or_b32 v{vPubA}, s{sT0}, v{vPubA}")
    step(1)
    rne(vG2, vG2); rne(vG2+2, vG2+2)
    a(f"v_permlane16_swap_b32 v{vG2}, v{vG2+2}")
    a(f"v_mul_f32 v{vT}, {f2u(-1.4426950408889634):#x}, v{vG2}")
    a(f"v_exp_f32 v{vT}, v{vT}"); a(f"v_add_f32 v{vT}, 1.0, v{vT}"); a(f"v_rcp_f32 v{vT}, v{vT}")
    a(f"v_mul_f32 v{vT}, v{vT}, v{vG2}"); rne(vT, vT)
    a(f"v_mul_f32 v{vT}, v{vT}, v{vG2+2}")
    a(f"v_cvt_pk_bf16_f32 v{vT}, v{vT}, v{vT}")
    buildA(vAh, vT)
    step(nb - 2)
    phase("qk")
    def qread():
        for j in range(3): a(f"ds_read_b128 {vr(vQ+4*j,4)}, v{vT+3} offset:{LDS_Q+128*j}")
    await_all(1, qread)
    stamp(1)
    sc = [vSc+g for g in range(8)]
    def dots(g):
        b = kreg(3*g)
        a(f"v_dot2_f32_bf16 v{vSc+g}, v{b}, v{vQ}, 0")
        a(f"v_dot2_f32_bf16 v{vT+g}, v{b+1}, v{vQ+1}, 0")
        for i in range(2, 12):
            d = vSc+g if i % 2 == 0 else vT+g
            a(f"v_dot2_f32_bf16 v{d}, v{b+i}, v{vQ+i}, v{d}")
        kdone[0] = g + 1
    def post(gs):
        r = [vSc+g for g in gs]
        for g in gs: a(f"v_add_f32 v{vSc+g}, v{vSc+g}, v{vT+g}")
        red8("v_add_f32", r); rne_pairs(r)
        for x in r: a(f"v_mul_f32 v{x}, {f2u(192 ** -0.5):#x}, v{x}")
        rne_pairs(r)
    def at(name):
        p0 = pos[0]; need(name)
        if pos[0] == p0: step(1)
    need("K5"); dots(0); dots(1)
    at("K11"); dots(2); dots(3)
    at("K11"); post(range(4))
    at("K17"); dots(4); dots(5)
    at("K20"); dots(6)
    phase("")
    issue_to(stream[idx["K23"] + D - 1][0] + str(stream[idx["K23"] + D - 1][1]))
    phase("sm")
    need("K23"); dots(7)
    step(1)
    post(range(4, 8))
    step(1)
    a(f"v_max3_f32 v{vG}, v{sc[0]}, v{sc[1]}, v{sc[2]}"); a(f"v_max3_f32 v{vG+1}, v{sc[3]}, v{sc[4]}, v{sc[5]}")
    a(f"v_max3_f32 v{vG}, v{vG}, v{sc[6]}, v{sc[7]}"); a(f"v_max_f32 v{vG}, v{vG}, v{vG+1}")
    red_hi("v_max_f32", [vG])
    a(f"v_readlane_b32 s{sMw}, v{vG}, 63")
    L2E = f"{f2u(1.4426950408889634):#x}"
    for r in sc: a(f"v_subrev_f32 v{r}, s{sMw}, v{r}")
    for r in sc: a(f"v_mul_f32 v{r}, {L2E}, v{r}")
    step(1)
    for r in sc: a(f"v_exp_f32 v{r}, v{r}")
    for k in range(4): a(f"v_add_f32 v{vT+k}, v{sc[k]}, v{sc[4+k]}")
    a(f"v_add_f32 v{vT}, v{vT}, v{vT+1}"); a(f"v_add_f32 v{vT+2}, v{vT+2}, v{vT+3}"); a(f"v_add_f32 v{vG+1}, v{vT}, v{vT+2}")
    a.c("(max, sum) of this wave: 16 tag bits under the bf16 max, 8 under the sum")
    a(f"s_and_b32 s{sT2}, s{sId}, 0xffff")
    a(f"s_lshl_b32 s{sT0}, s{sP}, 3"); a(f"s_add_u32 s{sT0}, s{sT0}, s{sW}"); a(f"s_lshl_b32 s{sT0}, s{sT0}, 3")
    red_hi("v_add_f32", [vG+1])
    a(f"s_add_u32 s{sT0}, s{sT0}, {WS_ML}"); a(f"v_mov_b32 v{vT}, s{sT0}")
    a(f"v_or_b32 v{vG}, s{sT2}, v{vG}")
    a(f"v_and_b32 v{vG+1}, 0xffffff00, v{vG+1}"); a(f"v_or_b32 v{vG+1}, s{sTag[2]}, v{vG+1}")
    a(f"s_mov_b32 exec_lo, 0"); a(f"s_mov_b32 exec_hi, 0x80000000")
    pub(f"buffer_store_dwordx2 {vr(vG,2)}, v{vT}, {sr(dWS,4)}, s{sReg} offen", "pubml")
    a("s_mov_b64 exec, -1")
    a(f"s_lshl_b32 s{sT0}, s{sC}, 3"); a(f"s_add_u32 s{sT0}, s{sT0}, s{sG}"); a(f"s_sub_u32 s{sT0}, s{sT0}, 240")
    a(f"s_lshl_b32 s{sT1}, s{sW}, 8"); a(f"s_or_b32 s{sT1}, s{sT1}, s{sT0}")
    a(f"s_cmp_lt_u32 s{sT1}, 10"); a("s_cbranch_scc1 L_park")
    a.label("L_parkback")
    c = Asm(); c.label("L_park")
    c.c("wave 0 of a reducer: park one probe line per mailbox copy in the memory-side cache")
    c(f"s_lshl_b32 s{sT0}, s{sT0}, 14"); c(f"s_add_u32 s{sT0}, s{sT0}, {WS_YP + 3072}")
    c(f"v_and_b32 v{vT}, 31, v{vL}"); c(f"v_lshrrev_b32 v{vT+1}, 5, v{vL}"); c(f"v_lshlrev_b32 v{vT+1}, 13, v{vT+1}")
    c(f"v_lshl_add_u32 v{vT}, v{vT}, 2, v{vT+1}")
    c(f"buffer_store_dword v{vZ}, v{vT}, {sr(dWS,4)}, s{sT0} offen sc1")
    c("s_branch L_parkback")
    cold.append(c.out)
    if touch:
        a.c("first touch of the stage-3 weight pages, so that their translations are there when the last loads go out")
        a("s_mov_b64 exec, 1")
        a(f"buffer_load_dword v{vQ}, v{vW2o}, {sr(dW2,4)}, 0 offen")
        if touch > 1: a(f"buffer_load_dword v{vQ+1}, v{vWo}, {sr(dWO,4)}, 0 offen")
        a("s_mov_b64 exec, -1")
    phase("")
    stamp(2)
    issue_to(f"V{mlpos-1}")
    a(f"s_lshl_b32 s{sT0}, s{sH}, 9"); a(f"s_add_u32 s{sT0}, s{sT0}, {WS_ML}"); a(f"s_add_u32 s{sT0}, s{sT0}, s{sReg}")
    a(f"v_lshlrev_b32 v{vFo}, 3, v{vL}")
    mload = f"buffer_load_dwordx2 {vr(vG,2)}, v{vFo}, {sr(dWS,4)}, s{sT0} offen sc1"
    a(mload, "gm")
    step(D - 1)
    phase("ml")
    need(f"V{mlpos-1}")
    a.wait_vm("gm")
    a.label("L_mlchk")
    a(f"v_xor_b32 v{vG}, s{sT2}, v{vG}"); a(f"v_xor_b32 v{vG+1}, s{sTag[2]}, v{vG+1}")
    a(f"v_and_b32 v{vT}, 0xffff, v{vG}"); a(f"v_and_b32 v{vT+1}, 0xff, v{vG+1}"); a(f"v_or_b32 v{vT}, v{vT}, v{vT+1}")
    a(f"v_cmp_ne_u32 vcc, 0, v{vT}")
    retry("L_mlchk", [mload])
    a(f"v_max_f32_dpp v{vT}, v{vG}, v{vG} {R8[0]} {DP}")
    red8("v_max_f32", [vT], R8[1:]); red_hi("v_max_f32", [vT])
    a(f"v_readlane_b32 s{sT0}, v{vT}, 63")
    a(f"v_mov_b32 v{vT+1}, s{sMw}")
    step(1)
    a(f"v_subrev_f32 v{vT}, s{sT0}, v{vG}"); a(f"v_subrev_f32 v{vT+1}, s{sT0}, v{vT+1}")
    a(f"v_mul_f32 v{vT}, {L2E}, v{vT}"); a(f"v_mul_f32 v{vT+1}, {L2E}, v{vT+1}")
    a(f"v_exp_f32 v{vT}, v{vT}"); a(f"v_exp_f32 v{vT+1}, v{vT+1}")
    a(f"v_mul_f32 v{vT}, v{vT}, v{vG+1}")
    red8("v_add_f32", [vT]); red_hi("v_add_f32", [vT])
    a(f"v_rcp_f32 v{vT}, v{vT}")
    a(f"v_mul_f32 v{vT}, v{vT}, v{vT+1}")
    a(f"v_readlane_b32 s{sT1}, v{vT}, 63")
    step(1)
    for r in sc: a(f"v_mul_f32 v{r}, s{sT1}, v{r}")
    for r in sc: a(f"v_cvt_pk_bf16_f32 v{r}, v{r}, v{r}")
    if ylast: a(f"v_lshlrev_b32 v{vFo}, 2, v{vL}"); a(f"s_movk_i32 s{sT2}, 8192")
    a.c("tags and offset of the o exchange")
    for k in range(4): a(f"s_bfe_u32 s{sTag[k]}, s{sE}, {(8 << 16) | (8*k):#x}")
    a(f"s_lshl_b32 s{sQo}, s{sPhi}, 10"); a(f"s_add_u32 s{sQo}, s{sQo}, {WS_QP}"); a(f"s_add_u32 s{sQo}, s{sQo}, s{sReg}")
    stamp(3)
    for g in range(8):
        if g in (0, 3) and arrived[0] >= idx[f"V{3*g+2}"]: step(1)
        if arrived[0] < idx[f"V{3*g+2}"]: phase("")
        A_ = vA if g % 2 == 0 else vA2
        buildA(A_, sc[g])
        for j in range(3):
            need(f"V{3*g+j}")
            mfma(vD+4*j, A_, vreg(3*g+j), None if g == 0 else vD+4*j)
            if g == 7:
                if j == 2:
                    while pos[0] < limit[0]: load(*stream[pos[0]]); pos[0] += 1
                    if skel == 2: a("s_waitcnt vmcnt(0)"); a("s_endpgm")
                    stamp(4)
                a(f"s_mov_b64 exec, {sr(sVal,2)}")
                a(f"ds_write_b128 v{vRedW}, {vr(vD+4*j,4)} offset:{LDS_RED+256*j}")
                a("s_mov_b64 exec, -1")
    a("s_waitcnt lgkmcnt(0)"); a("s_barrier")
    red_read(LDS_RED)
    red_sum8(vPubD, vTg2)
    pub(f"buffer_store_dword v{vPubD}, v{vPubA}, {sr(dWS,4)}, s{sReg} offen", "pubo")
    stamp(5)
    a(f"s_cmp_ge_u32 s{sC}, 30"); a("s_cbranch_scc1 L_reducer")
    snap = a.snapshot()
    if hold:
        a.c("a plain store waits behind older loads of the CU, so the last weight loads go out after the o stores")
        a("s_barrier")
        while pos[0] < len(stream): load(*stream[pos[0]]); pos[0] += 1
        a.wait_vm("pubo")
    oload = f"buffer_load_dwordx4 {vr(vG2,4)}, v{vL16}, {sr(dWS,4)}, s{sQo} offen sc1"
    a(oload)
    a.wait_vm("W4")
    stamp(10)
    mfma(vY, vAh, vW+16, None)
    a("s_branch L_ochk")
    a.label("L_opoll")
    a(oload)
    a(f"s_sub_u32 s{sSpin}, s{sSpin}, 1"); a("s_cbranch_scc1 L_end")
    a.label("L_ochk")
    a("s_waitcnt vmcnt(0)")
    untag([vG2])
    for k in range(4): a(f"v_add_f32_dpp v{vG+k}, v{vG2+k}, v{vG2+k} {R8[0]} {DP}")
    a("s_cbranch_vccnz L_opoll")
    if skel == 3: a("s_endpgm")
    stamp(6)
    red8("v_add_f32", [vG+k for k in range(4)], R8[1:])
    for k in range(4): a(f"v_cvt_pk_bf16_f32 v{vG+k}, v{vG+k}, v{vG+k}")
    As = (vA, vA2, vG2, vT)
    for r in range(4):
        buildA(As[r], vG+r)
        if r >= 1: mfma(vY, As[r-1], vW+4*(r-1), vY)
    mfma(vY, As[3], vW+12, vY)
    if ylast:
        a.c("no barrier: every wave writes, counts itself in and reads all partials; the last one in has them all")
        a(f"s_mov_b64 exec, {sr(sVal,2)}")
        a(f"ds_write_b128 v{vRedW}, {vr(vY,4)} offset:{LDS_RED2}")
        a("s_mov_b64 exec, 1")
        a(f"ds_add_rtn_u32 v{vCn}, v{vZ}, v{vZ+1} offset:{LDS_CNT}")
        a("s_mov_b64 exec, -1")
        b = LDS_RED2 // 256; yv = vKV
        for q in range(8): a(f"ds_read2st64_b32 {vr(yv+2*q,2)}, v{vFo} offset0:{b+6*q} offset1:{b+6*q+3}")
        a("s_waitcnt lgkmcnt(8)")
        a(f"v_readfirstlane_b32 s{sT0}, v{vCn}")
        a(f"s_cmp_lg_u32 s{sT0}, 15"); a("s_cbranch_scc1 L_exit3")
        a("s_waitcnt lgkmcnt(4)")
        a(f"v_pk_add_f32 {vr(yv,2)}, {vr(yv,2)}, {vr(yv+2,2)}"); a(f"v_pk_add_f32 {vr(yv+4,2)}, {vr(yv+4,2)}, {vr(yv+6,2)}")
        a(f"v_pk_add_f32 {vr(yv,2)}, {vr(yv,2)}, {vr(yv+4,2)}")
        a("s_waitcnt lgkmcnt(2)")
        a(f"v_pk_add_f32 {vr(yv+8,2)}, {vr(yv+8,2)}, {vr(yv+10,2)}")
        a(f"v_pk_add_f32 {vr(yv,2)}, {vr(yv,2)}, {vr(yv+8,2)}")
        a("s_waitcnt lgkmcnt(0)")
        a(f"v_pk_add_f32 {vr(yv+12,2)}, {vr(yv+12,2)}, {vr(yv+14,2)}")
        a(f"v_pk_add_f32 {vr(yv,2)}, {vr(yv,2)}, {vr(yv+12,2)}")
        a(f"v_add_f32 v{yv}, v{yv}, v{yv+1}")
        a(f"v_and_or_b32 v{vPubD}, v{yv}, s{sMask}, v{vTg2}")
        a(f"buffer_store_dword v{vPubD}, v{vYo}, {sr(dWS,4)}, 0 offen sc1")
        a(f"buffer_store_dword v{vPubD}, v{vYo}, {sr(dWS,4)}, s{sT2} offen sc1")
    else:
        a(f"s_mov_b64 exec, {sr(sVal,2)}")
        a(f"s_cmp_ge_u32 s{sW}, 2")
        a(f"ds_write_b128 v{vRedW}, {vr(vY,4)} offset:{LDS_RED2}")
        a("s_mov_b64 exec, -1")
        a("s_waitcnt lgkmcnt(0)"); a("s_barrier")
        a("s_cbranch_scc1 L_exit3")
        red_read(LDS_RED2)
        red_sum8(vPubD, vTg2)
        a(f"buffer_store_dword v{vPubD}, v{vYo}, {sr(dWS,4)}, 0 offen sc1", "puby")
    a.label("L_exit3")
    stamp(7)
    finish()
    a.label("L_reducer")
    a.restore(snap)
    if skel == 3: a("s_endpgm")
    a(f"s_lshl_b32 s{sK}, s{sK}, 3"); a(f"s_add_u32 s{sK}, s{sK}, s{sG}")
    a(f"s_cmp_ge_u32 s{sK}, 10"); a("s_cbranch_scc1 L_exitr")
    a(f"s_cmp_ge_u32 s{sW}, 2")
    if stamps or diag is not None:
        a("s_cbranch_scc1 L_barx"); cold.append(["L_barx:", "    s_barrier", "    s_branch L_exitr"])
    else: a("s_cbranch_scc1 L_exitr")
    a(f"s_lshl_b32 s{sT0}, s{sK}, 2"); a(f"s_add_u32 s{sT0}, s{sT0}, s{sW}"); a(f"s_lshl_b32 s{sT0}, s{sT0}, 12")
    a(f"s_add_u32 s{sT0}, s{sT0}, {WS_YP}")
    a(f"s_lshl_b32 s{sK}, s{sK}, 1"); a(f"s_add_u32 s{sK}, s{sK}, s{sW}")
    y = vD
    def yl(n): return [f"buffer_load_dwordx4 {vr(vKV+12*n+4*i,4)}, v{vL16}, {sr(dWS,4)}, s{sT0} offen offset:{1024*i} sc1" for i in range(3)]
    def colcalc():
        a.c("output column of this lane: 32*line + 4*(l&7) + (l>>4)")
        a(f"v_lshrrev_b32 v{vT+1}, 4, v{vL}"); a(f"v_lshl_add_u32 v{vT+1}, v{vCh}, 2, v{vT+1}")
        a(f"s_lshl_b32 s{sT1}, s{sK}, 6"); a(f"v_lshl_add_u32 v{vYo}, v{vT+1}, 1, s{sT1}")
        a.c("line 0's reducer hears (through its producers) from every workgroup: it advances the hand-off epoch")
        a(f"s_cmp_eq_u32 s{sK}, 0"); a(f"s_cselect_b32 s{sT2}, {WS_E}, {OOB}")
        a(f"v_mov_b32 v{vT+4}, s{sE}"); a(f"v_mov_b32 v{vT+5}, {OOB}"); a(f"v_mov_b32 v{vT+6}, {OOB}")
    if ibsts:
        a.c("which copy is nearer? loads return in order: the second is still out after the first only if it goes further")
        a(f"s_cmp_eq_u32 s{sW}, 0"); a(f"s_cselect_b32 s{sT1}, 0, {OOB}")
        a(f"v_mov_b32 v{vT+1}, s{sT1}"); a(f"v_or_b32 v{vT+2}, 8192, v{vT+1}")
        a("s_waitcnt vmcnt(0)")
        a(f"buffer_load_dword v{vT+3}, v{vT+1}, {sr(dWS,4)}, s{sT0} offen offset:3072 sc1")
        a(f"buffer_load_dword v{vT+7}, v{vT+2}, {sr(dWS,4)}, s{sT0} offen offset:3072 sc1")
        a("s_waitcnt vmcnt(1)")
        colcalc()
        a(f"s_lshl_b32 s{sT1}, s{sW}, 2"); a(f"v_mov_b32 v{vT+1}, s{sT1}")
        a("s_getreg_b32 s4, hwreg(HW_REG_IB_STS, 0, 4)")
        if stamps is True: a(f"s_add_u32 s{sSt+11}, s4, 100")
        a("s_cmp_lg_u32 s4, 0"); a("s_cselect_b32 s4, 0, 8192")
        a(f"v_mov_b32 v{vT+3}, s4")
        a(f"ds_write_b32 v{vT+1}, v{vT+3} offset:{LDS_Q}")
        a("s_waitcnt lgkmcnt(0)")
        a("s_barrier")
        a(f"ds_read_b32 v{vT+3}, v{vZ} offset:{LDS_Q}")
    else:
        a.c("which copy is nearer? loads return in order, so the gap behind the first one is long only if the second goes further")
        a(f"v_mov_b32 v{vT+2}, 8192")
        a(f"s_cmp_lg_u32 s{sW}, 0"); a("s_cbranch_scc1 L_probed")
        a("s_mov_b64 exec, 1")
        a("s_waitcnt vmcnt(0)")
        a(f"buffer_load_dword v{vT+3}, v{vZ}, {sr(dWS,4)}, s{sT0} offen offset:3072 sc1")
        a(f"buffer_load_dword v{vT+7}, v{vT+2}, {sr(dWS,4)}, s{sT0} offen offset:3072 sc1")
        a("s_waitcnt vmcnt(1)"); a("s_memtime s[4:5]")
        a("s_waitcnt vmcnt(0)"); a("s_memtime s[6:7]")
        a("s_waitcnt lgkmcnt(0)")
        a("s_sub_u32 s4, s6, s4")
        a("s_cmpk_gt_u32 s4, 90"); a("s_cselect_b32 s4, 0, 8192")
        a(f"v_mov_b32 v{vT+3}, s4")
        a(f"ds_write_b32 v{vZ}, v{vT+3} offset:{LDS_Q}")
        a("s_mov_b64 exec, -1")
        a("s_waitcnt lgkmcnt(0)")
        a.label("L_probed")
        a("s_barrier")
        a(f"ds_read_b32 v{vT+3}, v{vZ} offset:{LDS_Q}")
        colcalc()
    a(f"buffer_load_ushort v{vXo}, v{vYo}, {sr(dX,4)}, 0 offen")
    a("s_waitcnt lgkmcnt(0)")
    a(f"v_add_u32 v{vL16}, v{vL16}, v{vT+3}")
    for n in range(ypipe):
        for t in yl(n): a(t)
    a.c("one pass through the last lines with every store out of range: they are in the instruction cache afterwards")
    a(f"s_mov_b32 s{sT1}, 1"); a("s_branch L_yfin")
    a.label("L_ystart")
    a("s_mov_b64 exec, -1")
    a(f"s_mov_b32 s{sT1}, 0")
    a(f"v_mov_b32 v{vT+5}, s{sT2}"); a(f"v_mov_b32 v{vT+6}, v{vYo}")
    a(f"s_waitcnt vmcnt({3*ypipe})")
    a(f"v_lshlrev_b32 v{vXo}, 16, v{vXo}")
    a.label("L_ypoll")
    for n in range(ypipe):
        a(f"s_waitcnt vmcnt({3*(ypipe-1)})")
        b = vKV + 12*n
        untag([b, b+4, b+8])
        for k in range(4): a(f"v_add_f32 v{y+k}, v{b+k}, v{b+4+k}")
        for k in range(4): a(f"v_add_f32 v{y+k}, v{y+k}, v{b+8+k}")
        a("s_cbranch_vccz L_yfin")
        for t in yl(n): a(t)
    a(f"s_sub_u32 s{sSpin}, s{sSpin}, 1"); a("s_cbranch_scc0 L_ypoll")
    a("s_endpgm")
    a.label("L_yfin")
    a(f"buffer_store_dword v{vT+4}, v{vT+5}, {sr(dWS,4)}, 0 offen {efl}")
    stamp(9)
    a(f"v_permlane32_swap_b32 v{y}, v{y+2}"); a(f"v_permlane32_swap_b32 v{y+1}, v{y+3}")
    a(f"v_add_f32 v{y}, v{y}, v{y+2}"); a(f"v_add_f32 v{y+1}, v{y+1}, v{y+3}")
    a(f"v_permlane16_swap_b32 v{y}, v{y+1}")
    a(f"v_add_f32 v{y}, v{y}, v{y+1}")
    a(f"s_cmp_lg_u32 s{sT1}, 0")
    a(f"v_add_f32_dpp v{y}, v{y}, v{y} row_ror:8 {DP}")
    a(f"v_add_f32 v{y}, v{y}, v{vXo}")
    a(f"v_cvt_pk_bf16_f32 v{y}, v{y}, v{y}")
    a(f"buffer_store_short v{y}, v{vT+6}, {sr(dOUT,4)}, 0 offen {outfl}")
    a("s_cbranch_scc1 L_ystart")
    a.label("L_exitr")
    stamp(8)
    finish()
    for blk in cold:
        for ln in blk: a.raw(ln)
    a.label("L_end")
    a("s_endpgm")
    if prefetch: a.raw("    .fill 512, 4, 0xbf810000")
    nv = (V.n + 7) // 8 * 8
    a.raw('.section .rodata,"a"'); a.raw(".p2align 6"); a.raw(f".amdhsa_kernel {NAME}_kernel")
    a.raw(f"  .amdhsa_next_free_vgpr {nv}"); a.raw("  .amdhsa_next_free_sgpr 102"); a.raw(f"  .amdhsa_accum_offset {nv}")
    a.raw("  .amdhsa_group_segment_fixed_size 0"); a.raw("  .amdhsa_kernarg_size 96"); a.raw("  .amdhsa_user_sgpr_count 2")
    a.raw("  .amdhsa_user_sgpr_kernarg_segment_ptr 1"); a.raw("  .amdhsa_system_sgpr_workgroup_id_x 1")
    a.raw(".end_amdhsa_kernel")
    return a.text()

if __name__ == "__main__":
    kw = {}
    out = sys.argv[1]
    for x in sys.argv[2:]:
        k, v = x.split("=")
        try: v = eval(v)
        except Exception: pass
        kw[k] = v
    open(out, "w").write(gen(**kw))
```

```python
import sys, struct, re
sys.path.insert(0, "dev")
from asmlib import *

NAME = "parallel_sum__gqa_block_cached__glu_gated_swiglu__decode"
def f2u(x): return struct.unpack("<I", struct.pack("<f", x))[0]

WS_E  = 0
WS_QP = 0x10000
WS_FP = 0x40000
WS_ML = 0x50000
SLOW  = 0x50000
WS_YP = 0x100000
WS_ST = 0x400000
WS_SIZE = 0x800000
OOB = 0x40000000
LDS_RED = 0
LDS_RED2 = 12288
LDS_Q = 24576
LDS_CNT = 25088

DOC = """;
; depends on it. The y mailboxes exist twice, once per side of the memory system; a reducer polls the nearer copy."""

def gen(qpos=14, mlpos=14, hold=2, nb=3, pace=(15, 27.6), pfrom=7, hi=(), ypipe=3, voff=2, kfirst=0, tpost=True, anchors=(), aoff=25, atau=None, lastdeep=1, lo2=None, relax=3, selw=None, rr=1, s1split=0, adj=0, gbase=0, ylast=False, outfl='', efl='', touch=0, ibsts=True, ydry=False,
        ld="nt", lds=32768, spin=1 << 20, timeout=24, prefetch=False,
        stamps=False, diag=None, amp=0, trace=False, forceslow=False, skel=0):
    D, DH = 3, 4
    a = Asm()
    hdr = open("cdna_kernels/" + NAME + ".s.ref").read().split("\n")
    for ln in hdr:
        if ln.startswith(";") and "@launch" not in ln and "Override launch" not in ln and "grid=ceil" not in ln: a.raw(ln)
    a.raw(f"; @launch grid=(256,1,1) block=(512,1,1) lds={lds}")
    for ln in DOC.split("\n"): a.raw(ln)
    a.raw('.amdgcn_target "amdgcn-amd-amdhsa--gfx950"')
    a.raw(".text"); a.raw(f".globl {NAME}_kernel"); a.raw(".p2align 8"); a.raw(f".type {NAME}_kernel,@function")
    a.label(f"{NAME}_kernel")
    V = Regs(1, 256, "v"); S = Regs(28, 102, "s")
    pX, pK, pV, pWQ, pWO, pBX, pW1, pW3, pW2, pOUT, pDBG, pWS = [4 + 2*i for i in range(12)]
    dK, dV, dS1, dWS, dX = [S.get(4) for _ in range(5)]
    dWO, dW2, dOUT = 12, 20, S.get(4)
    sW, sG, sC, sP, sH, sS, sE, sT0, sT1, sT2, sT3, sSpin, sReg, sPhi, sK, sCnt, sQo, sFo, sId, sMask = [S.get() for _ in range(20)]
    sTag = [S.get() for _ in range(4)]
    sOff = [16, 17, 18]
    sS1, sS2 = S.get(), S.get(); sMw = sS1
    sBase, sAn, sSmp = 19, 8, 9
    dDBG = 24
    sVal = S.get(2); sTm = S.get(2); sStart = S.get(2)
    sSt = S.get(16) if (stamps or diag is not None) else None
    (vL, vSlot, vCh, vKoff, vS1a, vS1b, vS1c, vXr, vRedW, vRedR, vL16, vPubA, vPubD, vTg2, vWo, vW2o, vYo, vFo, vCn, vTr) = [V.get() for _ in range(20)]
    vZ = V.get(2)
    vM = V.get(4); vA = V.get(4); vA2 = V.get(4); vAh = V.get(4); vG = V.get(4); vG2 = V.get(4); vT = V.get(8)
    vY = V.get(4); vSc = V.get(8); vQ = V.get(12); vD = V.get(12); vW = V.get(24); vKV = V.get(96 + 12*voff)
    vXa, vXb, vXo = vY, vSc, vXr
    kreg = lambda i: vKV + 12*voff + 4*i
    vreg = lambda i: vKV + 4*i
    cold = []
    def stamp(n):
        if diag == n or stamps is True or (stamps == 'min' and n == 8) or (isinstance(stamps, tuple) and n in stamps):
            a(f"s_memrealtime {sr(10,2)}"); a("s_waitcnt lgkmcnt(0)"); a(f"s_mov_b32 s{sSt + (n if stamps else 0)}, s10")
    def finish():
        if diag is not None:
            if selw: a(f"s_cmpk_lg_u32 s2, {selw[0]}"); a("s_cbranch_scc1 L_end"); a(f"s_cmp_lg_u32 s{sW}, {selw[1]}"); a("s_cbranch_scc1 L_end")
            a(f"s_sub_u32 s{sSt}, s{sSt}, s{sStart}"); a(f"s_mul_i32 s{sSt}, s{sSt}, {amp or 1}"); a(f"s_add_u32 s{sSt}, s{sSt}, 5000")
            lp = a.newlabel("pad"); a.label(lp)
            a(f"s_memrealtime {sr(sTm,2)}"); a("s_waitcnt lgkmcnt(0)")
            a(f"s_sub_u32 s{sTm}, s{sTm}, s{sStart}"); a(f"s_cmp_lt_u32 s{sTm}, s{sSt}"); a(f"s_cbranch_scc1 {lp}")
        elif stamps:
            lp = a.newlabel("pad"); a.label(lp)
            a(f"s_memrealtime {sr(sTm,2)}"); a("s_waitcnt lgkmcnt(0)")
            a(f"s_sub_u32 s{sTm}, s{sTm}, s{sStart}"); a(f"s_cmp_lt_u32 s{sTm}, 3000"); a(f"s_cbranch_scc1 {lp}")
            a(f"s_mov_b32 s{sSt+13}, s{sReg}"); a(f"s_mov_b32 s{sSt+14}, s{sStart}"); a(f"s_mov_b32 s{sSt+15}, s{sSpin}")
            a(f"s_lshl_b32 s{sT0}, s{sP}, 3"); a(f"s_add_u32 s{sT0}, s{sT0}, s{sW}"); a(f"s_lshl_b32 s{sT0}, s{sT0}, 6")
            if trace:
                a("s_mov_b64 exec, -1")
                a(f"s_lshl_b32 s{sT1}, s{sT0}, 2"); a(f"s_add_u32 s{sT1}, s{sT1}, {WS_ST + 0x100000}")
                a(f"v_lshl_add_u32 v{vT}, v{vL}, 2, s{sT1}")
                a(f"buffer_store_dword v{vTr}, v{vT}, {sr(dWS,4)}, 0 offen")
            a("s_mov_b64 exec, 1")
            a(f"s_add_u32 s{sT0}, s{sT0}, {WS_ST}"); a(f"v_mov_b32 v{vT}, s{sT0}")
            for q in range(4):
                for k in range(4): a(f"v_mov_b32 v{vKV+80+4*q+k}, s{sSt+4*q+k}")
                a(f"buffer_store_dwordx4 {vr(vKV+80+4*q,4)}, v{vT}, {sr(dWS,4)}, 0 offen offset:{16*q}")
        a("s_endpgm")
    def rne(dst, src):
        a(f"v_cvt_pk_bf16_f32 v{dst}, v{src}, v{src}"); a(f"v_and_b32 v{dst}, 0xffff0000, v{dst}")
    def rne_pairs(regs):
        for x, y in zip(regs[0::2], regs[1::2]): a(f"v_cvt_pk_bf16_f32 v{y}, v{x}, v{y}")
        for x, y in zip(regs[0::2], regs[1::2]):
            a(f"v_lshlrev_b32 v{x}, 16, v{y}"); a(f"v_and_b32 v{y}, 0xffff0000, v{y}")
    DP = "row_mask:0xf bank_mask:0xf"
    R8 = ("quad_perm:[1,0,3,2]", "quad_perm:[2,3,0,1]", "row_half_mirror")
    def red8(op, regs, steps=R8):
        for m in steps:
            for r in regs: a(f"{op}_dpp v{r}, v{r}, v{r} {m} {DP}")
    def red_hi(op, regs):
        for r in regs: a(f"{op}_dpp v{r}, v{r}, v{r} row_ror:8 {DP}")
        for r in regs: a(f"{op}_dpp v{r}, v{r}, v{r} row_bcast:15 row_mask:0xa bank_mask:0xf")
        for r in regs: a(f"{op}_dpp v{r}, v{r}, v{r} row_bcast:31 row_mask:0xc bank_mask:0xf")
    def buildA(dst, dup, e=None):
        for k in range(4): (e or a)(f"v_and_b32 v{dst+k}, v{dup}, v{vM+k}")
    def mfma(d, A_, B_, c, e=None): (e or a)(f"v_mfma_f32_16x16x32_bf16 {vr(d,4)}, {vr(A_,4)}, {vr(B_,4)}, {'0' if c is None else vr(c,4)}")
    def or_all(dst, rs, e=None):
        e = e or a
        e(f"v_or3_b32 v{dst}, v{rs[0]}, v{rs[1]}, v{rs[2]}"); rs = rs[3:]
        while rs:
            if len(rs) >= 2: e(f"v_or3_b32 v{dst}, v{dst}, v{rs[0]}, v{rs[1]}"); rs = rs[2:]
            else: e(f"v_or_b32 v{dst}, v{dst}, v{rs[0]}"); rs = rs[1:]
    def untag(sets):
        for g in sets:
            for k in range(4): a(f"v_xor_b32 v{g+k}, s{sTag[k]}, v{g+k}")
        or_all(vT, [g+k for g in sets for k in range(4)])
        a(f"v_and_b32 v{vT}, 0xff, v{vT}")
        a(f"v_cmp_ne_u32 vcc, 0, v{vT}")
    def pub(text, name):
        ls = a.newlabel("pubslow"); lb = a.newlabel("pubback")
        a(f"s_cmp_lg_u32 s{sReg}, 0"); a(f"s_cbranch_scc1 {ls}")
        a(text, name)
        a.label(lb)
        cold.append([ls + ":", "    " + text + " sc1", f"    s_branch {lb}"])
    def retry(label, loads):
        lr = a.newlabel("retry")
        a(f"s_cbranch_vccnz {lr}")
        cold.append([lr + ":", f"    s_sub_u32 s{sSpin}, s{sSpin}, 1", "    s_cbranch_scc1 L_end"] + ["    " + t for t in loads] +
                    ["    s_waitcnt vmcnt(0)", f"    s_branch {label}"])
    def arrive(k):
        a("s_mov_b64 exec, 1"); a(f"ds_add_u32 v{vZ}, v{vZ+1} offset:{LDS_CNT+4*k}"); a("s_mov_b64 exec, -1")
    def await_all(k, reads):
        lb = a.newlabel("await"); a.label(lb)
        a(f"ds_read_b32 v{vCn}, v{vZ} offset:{LDS_CNT+4*k}")
        reads()
        a(f"s_sub_u32 s{sSpin}, s{sSpin}, 1"); a("s_cbranch_scc1 L_end")
        a("s_waitcnt lgkmcnt(0)")
        a(f"v_cmp_ne_u32 vcc, 8, v{vCn}"); a(f"s_cbranch_vccnz {lb}")
    def red_read(base):
        b = base // 256
        for q in range(4): a(f"ds_read2st64_b32 {vr(vT+2*q,2)}, v{vRedR} offset0:{b+12*q} offset1:{b+12*q+6}")
    def red_sum8(dst, tag):
        a("s_waitcnt lgkmcnt(2)")
        a(f"v_add_f32 v{vT}, v{vT}, v{vT+1}"); a(f"v_add_f32 v{vT+2}, v{vT+2}, v{vT+3}")
        a("s_waitcnt lgkmcnt(1)")
        a(f"v_add_f32 v{vT+4}, v{vT+4}, v{vT+5}"); a(f"v_add_f32 v{vT}, v{vT}, v{vT+2}")
        a("s_waitcnt lgkmcnt(0)")
        a(f"v_add_f32 v{vT+6}, v{vT+6}, v{vT+7}"); a(f"v_add_f32 v{vT}, v{vT}, v{vT+4}")
        a(f"v_add_f32 v{vT+1}, v{vT}, v{vT+6}"); a(f"v_add_f32 v{vT}, v{vT}, v{vT+6}")
        a(f"v_permlane32_swap_b32 v{vT}, v{vT+1}")
        a(f"v_add_f32 v{vT}, v{vT}, v{vT+1}")
        a(f"v_and_or_b32 v{dst}, v{vT}, s{sMask}, v{tag}")

    stream = [("K", i) for i in range(kfirst)] + [("S", i) for i in range(6)] + [("K", i) for i in range(kfirst, 24)]
    stream += [("V", i) for i in range(24)] + [("W", i) for i in range(5)]
    limit = [len(stream) - hold]
    idx = {f"{t}{i}": n for n, (t, i) in enumerate(stream)}
    kdone = [0]; pos = [0]; arrived = [-1]; deep = [False]
    def load(t, i):
        if t in "KV":
            g, j = divmod(i, 3)
            if t == "V": assert g - voff < kdone[0], "V load overwrites unconsumed K"
            so = "0" if g < 2 else f"s{sOff[(g>>1)-1]}"
            a(f"buffer_load_dwordx4 {vr(kreg(i) if t == 'K' else vreg(i),4)}, v{vKoff}, {sr(dK if t == 'K' else dV,4)}, {so} offen offset:{3072*(g&1)+128*j} {ld}", f"{t}{i}")
        elif t == "S":
            a(f"buffer_load_dwordx4 {vr(vW+4*i,4)}, v{(vS1a, vS1a, vS1a, vS1b, vS1b, vS1c)[i]}, {sr(dS1,4)}, {('0', f's{sS1}', f's{sS2}')[i % 3]} offen {ld}", f"S{i}")
        elif i < 4:
            a(f"buffer_load_dwordx4 {vr(vW+4*i,4)}, v{vWo}, {sr(dWO,4)}, 0 offen offset:{1280*i} {ld}", f"W{i}")
        else:
            a(f"buffer_load_dwordx4 {vr(vW+16,4)}, v{vW2o}, {sr(dW2,4)}, 0 offen {ld}", "W4")
    def wait_idx(n, extra=""):
        if n > arrived[0] or extra:
            t, i = stream[n]; a.wait_vm(f"{t}{i}", extra); arrived[0] = max(arrived[0], n)
    nchk = [0]
    def thr(p): return int(pace[0] + pace[1]*p) + relax*nchk[0]
    def step(n=1):
        for _ in range(n):
            p = pos[0]
            if p >= limit[0]: return
            if trace == 1 and p >= DH:
                a(f"s_memrealtime {sr(4,2)}"); a("s_waitcnt lgkmcnt(0)"); a(f"v_writelane_b32 v{vTr}, s4, {p}")
            if deep[0] or (pace and p >= limit[0] - lastdeep): wait_idx(p - DH)
            elif pace and p >= pfrom:
                if p - D > arrived[0] or tpost:
                    if not tpost: a(f"s_memrealtime {sr(sTm,2)}")
                    wait_idx(p - DH, "lgkmcnt(0)")
                    if gbase == p:
                        a.c("measure 'behind' from the mean start of the eight groups once all have posted")
                        a(f"s_min_u32 s{sTm+1}, s4, s5")
                        for k in range(6, 12): a(f"s_min_u32 s{sTm+1}, s{sTm+1}, s{k}")
                        for k in range(5, 12): a(f"s_add_u32 s4, s4, s{k}")
                        a(f"s_lshl_b32 s5, s{sStart}, 3"); a("s_sub_u32 s4, s4, s5"); a("s_ashr_i32 s4, s4, 3")
                        a(f"s_cmp_eq_u32 s{sTm+1}, 0"); a("s_cselect_b32 s4, 0, s4"); a(f"s_add_u32 s{sBase}, s{sBase}, s4")
                    for k, (pp, pr) in enumerate(anchors):
                        if pp == p:
                            a(f"s_cmp_eq_u32 s{sSmp}, 0"); a(f"s_cbranch_scc1 L_post{k}")
                            a.label(f"L_postback{k}")
                            c = Asm(); c.label(f"L_post{k}")
                            c.c("32 sample waves add their clock (and a count) to a word of the zeroed debug buffer")
                            c(f"s_and_b32 s{sTm+1}, s{sTm}, 0xfffff"); c(f"s_bitset1_b32 s{sTm+1}, 26")
                            c("s_mov_b64 exec, 1"); c(f"v_mov_b32 v{vCn}, s{sTm+1}")
                            c(f"buffer_atomic_add v{vCn}, off, {sr(dDBG,4)}, 0 offset:{64*k}")
                            c("s_mov_b64 exec, -1"); c(f"s_branch L_postback{k}")
                            cold.append(c.out)
                        if pr == p:
                            a.c("measure 'behind' from the samples' mean once all 32 are in")
                            a(f"s_lshl_b32 s{sTm+1}, s{sTm}, 5"); a(f"s_sub_u32 s{sTm+1}, s{sAn}, s{sTm+1}")
                            a(f"s_bfe_i32 s{sTm+1}, s{sTm+1}, {(15 << 16) | 5:#x}")
                            a(f"s_add_u32 s{sTm+1}, s{sTm+1}, s{sTm}"); a(f"s_sub_u32 s{sTm+1}, s{sTm+1}, {thr(pp) - (aoff[k] if isinstance(aoff, tuple) else aoff)}")
                            a(f"s_bitcmp1_b32 s{sAn}, 31"); a(f"s_cselect_b32 s{sBase}, s{sTm+1}, s{sBase}")
                            if trace == 2: a(f"s_lshr_b32 s{sAn}, s{sAn}, 26"); a(f"v_writelane_b32 v{vTr}, s{sAn}, {60+k}")
                    a(f"s_sub_u32 s{sTm}, s{sTm}, s{sBase}")
                    if trace == 2: a(f"s_sub_u32 s{sTm+1}, s{sTm}, {thr(p) - 100000}"); a(f"v_writelane_b32 v{vTr}, s{sTm+1}, {p}")
                    if p - D > arrived[0]:
                        lb = a.newlabel("deep")
                        a(f"s_cmpk_gt_i32 s{sTm}, {thr(p)}")
                        if adj: a(f"s_cselect_b32 s{sBase}, s{sStart+1}, s{sStart}")
                        a(f"s_cbranch_scc1 {lb}")
                        th = thr(p)
                        if relax: a(f"s_sub_u32 s{sBase}, s{sBase}, {relax}"); a.hist[-1].states = 0; nchk[0] += 1
                        t, i = stream[p - D]; a.wait_vm(f"{t}{i}"); a.hist[-1].states = 0
                        if lo2:
                            a(f"s_cmpk_gt_i32 s{sTm}, {th - lo2}"); a.hist[-1].states = 0
                            a(f"s_cbranch_scc1 {lb}"); a.hist[-1].states = 0
                            t, i = stream[p - D + 1]; a.wait_vm(f"{t}{i}"); a.hist[-1].states = 0
                        a.label(lb)
            elif p >= D: wait_idx(p - D)
            load(*stream[p]); pos[0] += 1
            if diag == 100 + p: stamp(diag)
            if pace and tpost and pfrom <= p + 1 < limit[0] - lastdeep:
                a(f"s_memrealtime {sr(sTm,2)}")
                if gbase == p + 1: a(f"s_buffer_load_dwordx8 s[4:11], {sr(dDBG,4)}, 0")
                for k, (pp, pr) in enumerate(anchors):
                    if pr == p + 1: a(f"s_buffer_load_dword s{sAn}, {sr(dDBG,4)}, {64*k}")
    def need(name):
        n = idx[name]
        while arrived[0] < n and pos[0] < limit[0]: step()
        wait_idx(n)
    def issue_to(name):
        while pos[0] <= idx[name]: step()
    def phase(name):
        deep[0] = name in hi

    a("s_cmpk_ge_u32 s2, 256"); a("s_cbranch_scc1 L_end")
    a("s_load_dwordx16 s[4:19], s[0:1], 0")
    a("s_load_dwordx8 s[20:27], s[0:1], 64")
    a(f"s_memrealtime {sr(sStart,2)}")
    a(f"v_lshrrev_b32 v{vT}, 6, v0")
    a(f"v_and_b32 v{vL}, 63, v0")
    a(f"v_readfirstlane_b32 s{sW}, v{vT}")
    a(f"s_and_b32 s{sG}, s2, 7"); a(f"s_lshr_b32 s{sC}, s2, 3")
    a(f"s_lshl_b32 s{sP}, s{sG}, 5"); a(f"s_add_u32 s{sP}, s{sP}, s{sC}")
    a(f"v_lshrrev_b32 v{vSlot}, 3, v{vL}"); a(f"v_and_b32 v{vCh}, 7, v{vL}")
    def kaddr():
        a(f"s_lshl_b32 s{sT0}, s{sP}, 3"); a(f"s_add_u32 s{sT0}, s{sT0}, s{sW}"); a(f"s_mul_i32 s{sT0}, s{sT0}, 24576")
        a(f"v_mul_u32_u24 v{vKoff}, 384, v{vSlot}")
        a(f"v_lshl_add_u32 v{vT+1}, v{vCh}, 4, s{sT0}")
        a(f"v_add_u32 v{vKoff}, v{vKoff}, v{vT+1}")
        a(f"s_mov_b32 s{dK+2}, 50331648"); a(f"s_mov_b32 s{dK+3}, 0x20000")
    if kfirst: kaddr()
    a(f"s_lshr_b32 s{sH}, s{sP}, 3"); a(f"s_and_b32 s{sS}, s{sP}, 7")
    a(f"v_mov_b32 v{vZ}, 0"); a(f"v_mov_b32 v{vZ+1}, 0")
    a(f"ds_write_b64 v{vZ}, {vr(vZ,2)} offset:{LDS_CNT}")
    a.c("stage-1 role: waves 0-4 take 16 rows x 192 columns of wq, waves 5-7 take 48/40/40 rows x 64 columns of w1 or w3")
    a(f"s_max_u32 s{sT0}, s{sC}, 2"); a(f"s_sub_u32 s{sT0}, s{sT0}, 2")
    a(f"s_mul_i32 s{sPhi}, s{sT0}, 52"); a(f"s_lshr_b32 s{sPhi}, s{sPhi}, 8")
    a(f"s_mul_i32 s{sT1}, s{sPhi}, 5"); a(f"s_sub_u32 s{sK}, s{sT0}, s{sT1}")
    a(f"s_lshl_b32 s{sT0}, s{sK}, 7"); a(f"s_mul_i32 s{sT1}, s{sW}, 40"); a(f"s_add_u32 s{sT0}, s{sT0}, s{sT1}")
    a(f"s_cmp_eq_u32 s{sW}, 5"); a(f"s_cselect_b32 s{sT1}, 8, 0"); a(f"s_sub_u32 s{sT0}, s{sT0}, s{sT1}"); a(f"s_sub_u32 s{sT0}, s{sT0}, 192")
    a(f"s_lshr_b32 s{sT1}, s{sPhi}, 1"); a(f"s_mul_i32 s{sT2}, s{sG}, 3"); a(f"s_add_u32 s{sT1}, s{sT1}, s{sT2}"); a(f"s_lshl_b32 s{sT1}, s{sT1}, 7")
    a(f"s_cmp_lt_u32 s{sC}, 2"); a(f"s_cselect_b32 s{sT1}, {OOB}, s{sT1}")
    a(f"s_mul_i32 s{sT2}, s{sS}, 80"); a(f"s_lshl_b32 s{sT3}, s{sW}, 4"); a(f"s_add_u32 s{sT2}, s{sT2}, s{sT3}")
    a(f"s_mul_i32 s{sT3}, s{sH}, 384")
    a(f"s_cmp_lt_u32 s{sW}, 5")
    a(f"s_cselect_b32 s{sT0}, s{sT2}, s{sT0}"); a(f"s_cselect_b32 s{sT1}, s{sT3}, s{sT1}")
    a(f"s_cselect_b32 s{sT2}, 12, 3"); a(f"s_cselect_b32 s{sT3}, 4, 3"); a(f"s_cselect_b32 s{sQo}, 1, 192")
    a(f"s_lshl_b32 s{sT2}, s{sT2}, 10")
    a(f"s_mul_i32 s{dS1+2}, s{sT2}, 640"); a(f"s_mov_b32 s{dS1+3}, 0x20000")
    a(f"v_add_u32 v{vT}, s{sT0}, v{vSlot}")
    a(f"v_mul_lo_u32 v{vS1a}, v{vT}, s{sT2}")
    a(f"v_lshl_add_u32 v{vT+1}, v{vCh}, 4, s{sT1}")
    a(f"v_add_u32 v{vS1a}, v{vS1a}, v{vT+1}")
    a(f"s_lshl_b32 s{sS1}, s{sQo}, 7"); a(f"s_lshl_b32 s{sS2}, s{sQo}, 8")
    a("s_waitcnt lgkmcnt(0)")
    def s1desc():
        a(f"s_bitcmp1_b32 s{sPhi}, 0"); a(f"s_cselect_b64 {sr(dS1,2)}, {sr(pW3,2)}, {sr(pW1,2)}")
        a(f"s_cmp_lt_u32 s{sW}, 5"); a(f"s_cselect_b64 {sr(dS1,2)}, {sr(pWQ,2)}, {sr(dS1,2)}")
    if kfirst:
        a(f"s_mov_b64 {sr(dK,2)}, {sr(pK,2)}"); step(kfirst); s1desc(); step(3 - kfirst)
    else:
        s1desc()
        if rr:
            a.c("the waves take turns, so that their loads alternate in the CU's queue from the start")
            step(1); a("s_barrier"); step(1); a("s_barrier"); step(1)
            if rr > 1: a("s_barrier")
        else: step(3)
        a(f"s_mov_b64 {sr(dK,2)}, {sr(pK,2)}")
    a(f"s_load_dword s{sE}, {sr(pWS,2)}, {WS_E}")
    a(f"s_mov_b64 {sr(dX,2)}, {sr(pX,2)}"); a(f"s_mov_b32 s{dX+2}, 1280"); a(f"s_mov_b32 s{dX+3}, 0x20000")
    a(f"v_lshlrev_b32 v{vL16}, 4, v{vL}"); a(f"v_lshlrev_b32 v{vT+4}, 2, v{vL}")
    a(f"v_add_lshl_u32 v{vT+2}, v{vL}, s{sT0}, 1")
    a(f"buffer_load_dwordx4 {vr(vXa,4)}, v{vL16}, {sr(dX,4)}, 0 offen", "xa")
    a(f"buffer_load_dword v{vXb}, v{vT+4}, {sr(dX,4)}, 0 offen offset:1024", "xb")
    a(f"buffer_load_ushort v{vXr}, v{vT+2}, {sr(dX,4)}, 0 offen", "xr")
    if not rr: a("s_barrier")
    a(f"s_mul_i32 s{sT3}, s{sT3}, 24576")
    a(f"v_add_u32 v{vS1b}, s{sT3}, v{vS1a}")
    a(f"s_cmp_lt_u32 s{sW}, 6"); a(f"s_cselect_b32 s{sT3}, 0, {OOB}")
    a(f"v_or_b32 v{vS1c}, s{sT3}, v{vS1b}")
    if not kfirst: kaddr()
    a(f"v_mov_b32 v{vZ+1}, 1")
    if diag is not None: a(f"s_mov_b32 s{sSt}, s{sStart}")
    if trace: a(f"v_mov_b32 v{vTr}, 0")
    if stamps:
        for i in range(13): a(f"s_mov_b32 s{sSt+i}, 0")
    if prefetch:
        a.c("pull this kernel's code into the L2 (each wave one line)")
        a(f"s_getpc_b64 {sr(sTm,2)}")
        a(f"s_lshl_b32 s{sT0}, s{sC}, 3"); a(f"s_add_u32 s{sT0}, s{sT0}, s{sW}"); a(f"s_and_b32 s{sT0}, s{sT0}, 63")
        a(f"s_lshl_b32 s{sT0}, s{sT0}, 7"); a(f"s_addk_i32 s{sT0}, 768")
        a(f"s_load_dword s{sCnt}, {sr(sTm,2)}, s{sT0}")
    a(f"s_mov_b64 {sr(dV,2)}, {sr(pV,2)}"); a(f"s_mov_b32 s{dV+2}, 50331648"); a(f"s_mov_b32 s{dV+3}, 0x20000")
    a(f"s_mov_b64 {sr(dWS,2)}, {sr(pWS,2)}"); a(f"s_mov_b32 s{dWS+2}, {WS_SIZE}"); a(f"s_mov_b32 s{dWS+3}, 0x20000")
    a(f"s_mov_b64 {sr(dOUT,2)}, {sr(pOUT,2)}"); a(f"s_mov_b32 s{dOUT+2}, 1280"); a(f"s_mov_b32 s{dOUT+3}, 0x20000")
    a(f"s_mov_b32 s{dWO+2}, 7864320"); a(f"s_mov_b32 s{dWO+3}, 0x20000")
    a(f"s_mov_b32 s{dW2+2}, 1966080"); a(f"s_mov_b32 s{dW2+3}, 0x20000")
    for i in range(3): a(f"s_mov_b32 s{sOff[i]}, {6144*(i+1)}")
    a(f"s_mov_b32 s{sBase}, s{sStart}")
    if adj: a(f"s_sub_u32 s{sStart+1}, s{sStart}, {adj}")
    if gbase:
        a.c("one wave per group posts its start time in the zeroed debug buffer")
        a(f"s_mov_b32 s{dDBG+2}, 256"); a(f"s_mov_b32 s{dDBG+3}, 0x20000")
        a(f"s_or_b32 s{sT0}, s{sStart}, 1"); a(f"v_mov_b32 v{vT}, s{sT0}")
        a(f"s_lshl_b32 s{sT0}, s{sG}, 2"); a(f"s_or_b32 s{sT1}, s{sC}, s{sW}"); a(f"s_cselect_b32 s{sT0}, {OOB}, s{sT0}")
        a(f"v_mov_b32 v{vT+1}, s{sT0}")
        a(f"buffer_store_dword v{vT}, v{vT+1}, {sr(dDBG,4)}, 0 offen sc1")
    if anchors:
        a(f"s_mov_b32 s{dDBG+2}, 256"); a(f"s_mov_b32 s{dDBG+3}, 0x20000")
        a.c("sample waves: one per head, every wave number equally often")
        a(f"s_add_u32 s{sSmp}, s{sH}, s{sW}"); a(f"s_and_b32 s{sSmp}, s{sSmp}, 7"); a(f"s_xor_b32 s{sT0}, s{sS}, 3"); a(f"s_or_b32 s{sSmp}, s{sSmp}, s{sT0}")
    a(f"s_mov_b32 s{sSpin}, {spin}"); a(f"s_mov_b32 s{sReg}, 0"); a(f"s_mov_b32 s{sMask}, 0xffffff00")
    a(f"s_mov_b32 s{sVal}, 0x00ff00ff"); a(f"s_mov_b32 s{sVal+1}, 0xff00ff00")
    a.c("MFMA A-operand masks")
    a(f"v_and_b32 v{vT}, 1, v{vL}"); a(f"v_lshlrev_b32 v{vT}, 4, v{vT}")
    a(f"v_mov_b32 v{vT+1}, 0xffff"); a(f"v_lshlrev_b32 v{vT}, v{vT}, v{vT+1}")
    a(f"v_lshrrev_b32 v{vT+1}, 1, v{vCh}")
    for k in range(4):
        a(f"v_cmp_eq_u32 vcc, {k}, v{vT+1}"); a(f"v_cndmask_b32 v{vM+k}, 0, v{vT}, vcc")
    a.c("LDS reduce addresses")
    a(f"v_lshrrev_b32 v{vT+2}, 5, v{vL}"); a(f"v_mul_u32_u24 v{vT}, 768, v{vT+2}")
    a(f"v_bfe_u32 v{vT+1}, v{vL}, 4, 1"); a(f"v_lshl_add_u32 v{vT+1}, v{vCh}, 1, v{vT+1}")
    a(f"v_lshl_add_u32 v{vT+1}, v{vT+1}, 4, v{vT}")
    a(f"s_mul_i32 s{sT0}, s{sW}, 1536")
    a(f"v_add_u32 v{vRedW}, s{sT0}, v{vT+1}")
    a(f"v_and_b32 v{vT+3}, 31, v{vL}")
    a(f"s_sub_u32 s{sT3}, s{sW}, 6"); a(f"s_min_u32 s{sT3}, s{sT3}, s{sW}")
    a(f"s_lshl_b32 s{sT0}, s{sT3}, 7")
    a(f"v_lshl_add_u32 v{vT+1}, v{vT+3}, 2, s{sT0}")
    a(f"v_add_u32 v{vRedR}, v{vT}, v{vT+1}")
    a.c("publish offsets: waves 0-5 lanes 0-31 q/o slot, waves 6-7 lanes 32-63 ffn slot, wave 7 lane 0 die id")
    a(f"s_mul_i32 s{sT0}, s{sH}, 6"); a(f"s_add_u32 s{sT0}, s{sT0}, s{sW}"); a(f"s_lshl_b32 s{sT0}, s{sT0}, 10")
    a(f"s_lshl_b32 s{sT1}, s{sS}, 4"); a(f"s_add_u32 s{sT0}, s{sT0}, s{sT1}"); a(f"s_add_u32 s{sT0}, s{sT0}, {WS_QP}")
    a(f"s_lshl_b32 s{sFo}, s{sG}, 13"); a(f"s_add_u32 s{sFo}, s{sFo}, {WS_FP}")
    a(f"s_and_b32 s{sT1}, s{sPhi}, 6"); a(f"s_add_u32 s{sT1}, s{sT1}, s{sT3}"); a(f"s_mul_i32 s{sT1}, s{sT1}, 1280")
    a(f"s_and_b32 s{sT2}, s{sPhi}, 1"); a(f"s_mul_i32 s{sT2}, s{sT2}, 5"); a(f"s_add_u32 s{sT2}, s{sT2}, s{sK}"); a(f"s_lshl_b32 s{sT2}, s{sT2}, 4")
    a(f"s_add_u32 s{sT1}, s{sT1}, s{sT2}"); a(f"s_add_u32 s{sT1}, s{sT1}, s{sFo}")
    a(f"s_cmp_lt_u32 s{sC}, 2"); a(f"s_cselect_b32 s{sT1}, {OOB}, s{sT1}")
    a(f"s_cmp_lt_u32 s{sW}, 6"); a(f"s_cselect_b32 s{sT0}, s{sT0}, {OOB}"); a(f"s_cselect_b32 s{sT1}, {OOB}, s{sT1}")
    a(f"v_lshrrev_b32 v{vT}, 2, v{vT+3}")
    a(f"v_lshl_add_u32 v{vT+1}, v{vT}, 7, s{sT0}")
    a(f"v_mul_u32_u24 v{vT+4}, 160, v{vT}"); a(f"v_add_u32 v{vT+4}, s{sT1}, v{vT+4}")
    a(f"v_cmp_gt_u32 vcc, 32, v{vL}")
    a(f"v_and_b32 v{vT+5}, 3, v{vL}")
    a(f"v_cndmask_b32 v{vT+1}, v{vT+4}, v{vT+1}, vcc")
    a(f"v_lshl_add_u32 v{vPubA}, v{vT+5}, 2, v{vT+1}")
    step(3)
    if skel == 1:
        snap1 = a.snapshot()
    a.c("stage-3 task: range rho = c/10, slab k = c%10 (c >= 30: reducers, slab (c-30)*8+G)")
    a(f"s_mul_i32 s{sT0}, s{sC}, 26"); a(f"s_lshr_b32 s{sT0}, s{sT0}, 8")
    a(f"s_mul_i32 s{sT1}, s{sT0}, 10"); a(f"s_sub_u32 s{sK}, s{sC}, s{sT1}")
    a(f"s_min_u32 s{sT2}, s{sT0}, 2"); a(f"s_lshl_b32 s{sT2}, s{sT2}, 3"); a(f"s_add_u32 s{sT3}, s{sT2}, s{sW}")
    a(f"s_mul_i32 s{sT2}, s{sG}, 24"); a(f"s_add_u32 s{sPhi}, s{sT3}, s{sT2}")
    a(f"s_lshl_b32 s{sT2}, s{sK}, 7")
    a(f"s_cmp_lt_u32 s{sC}, 30"); a(f"s_cselect_b32 s{sT2}, s{sT2}, {OOB}")
    a(f"v_lshl_add_u32 v{vT}, v{vCh}, 4, s{sT2}")
    a(f"s_mul_i32 s{sT2}, s{sPhi}, {8*1280}")
    a(f"v_mul_u32_u24 v{vT+1}, 1280, v{vSlot}"); a(f"v_add_u32 v{vT+1}, s{sT2}, v{vT+1}")
    a(f"v_add_u32 v{vW2o}, v{vT}, v{vT+1}")
    a(f"v_lshl_add_u32 v{vWo}, v{vT+1}, 2, v{vT}")
    if skel == 1:
        kdone[0] = 8; limit[0] = len(stream)
        a(f"buffer_store_dword v{vPubD}, v{vPubA}, {sr(dWS,4)}, 0 offen")
        while pos[0] < len(stream): step()
        a("s_waitcnt vmcnt(0)"); finish()
        a.restore(snap1); pos[0] = 6; arrived[0] = 2; kdone[0] = 0
    a.c("y publish offset: both copies of (slab, line w), slot 3G + rho")
    if ylast: a(f"s_lshl_b32 s{sT1}, s{sK}, 14")
    else: a(f"s_lshl_b32 s{sT1}, s{sK}, 2"); a(f"s_add_u32 s{sT1}, s{sT1}, s{sW}"); a(f"s_lshl_b32 s{sT1}, s{sT1}, 12")
    a(f"s_mul_i32 s{sT2}, s{sG}, 3"); a(f"s_add_u32 s{sT2}, s{sT2}, s{sT0}"); a(f"s_lshl_b32 s{sT2}, s{sT2}, 7")
    a(f"s_add_u32 s{sT1}, s{sT1}, s{sT2}"); a(f"s_add_u32 s{sT1}, s{sT1}, {WS_YP}")
    a(f"v_lshl_add_u32 v{vYo}, v{vT+3}, 2, s{sT1}"); a(f"v_lshl_add_u32 v{vYo}, v{vT+2}, {12 if ylast else 13}, v{vYo}")
    a.c("gather offsets")
    a(f"s_min_u32 s{sT0}, s{sW}, 5"); a(f"s_mul_i32 s{sT1}, s{sH}, 6"); a(f"s_add_u32 s{sT0}, s{sT0}, s{sT1}")
    a(f"s_lshl_b32 s{sT0}, s{sT0}, 10"); a(f"s_add_u32 s{sQo}, s{sT0}, {WS_QP}")
    a(f"s_mul_i32 s{sT3}, s{sT3}, 320")
    a(f"v_lshrrev_b32 v{vT}, 4, v{vL}"); a(f"v_mul_u32_u24 v{vT}, 80, v{vT}"); a(f"v_add_u32 v{vT}, s{sT3}, v{vT}")
    a(f"v_and_b32 v{vT+1}, 15, v{vL}"); a(f"v_cmp_gt_u32 vcc, 5, v{vT+1}")
    a(f"v_mov_b32 v{vT+1}, 7680")
    a(f"v_cndmask_b32 v{vT}, v{vT+1}, v{vT}, vcc"); a(f"v_lshl_add_u32 v{vFo}, v{vCh}, 4, v{vT}")
    phase("s1")
    step(1)
    a.wait_vm("xr")
    xs = [vQ + i for i in range(10)]
    for i in range(5):
        src = vXa + i if i < 4 else vXb
        a(f"v_lshlrev_b32 v{xs[2*i]}, 16, v{src}"); a(f"v_and_b32 v{xs[2*i+1]}, 0xffff0000, v{src}")
    a(f"v_add_f32 v{vT}, v{xs[0]}, v{xs[1]}"); a(f"v_add_f32 v{vT+1}, v{xs[2]}, v{xs[3]}")
    for i in range(4, 10): a(f"v_add_f32 v{vT+(i&1)}, v{vT+(i&1)}, v{xs[i]}")
    a(f"v_add_f32 v{vT}, v{vT}, v{vT+1}")
    red8("v_add_f32", [vT]); red_hi("v_add_f32", [vT])
    a(f"v_readlane_b32 s{sT0}, v{vT}, 63")
    a(f"v_mov_b32 v{vT+2}, {f2u(1/640.):#x}")
    step(1)
    a(f"v_mul_f32 v{vT+3}, s{sT0}, v{vT+2}")
    for i in range(10): a(f"v_sub_f32 v{xs[i]}, v{xs[i]}, v{vT+3}")
    a(f"v_mul_f32 v{vT}, v{xs[0]}, v{xs[0]}"); a(f"v_mul_f32 v{vT+1}, v{xs[1]}, v{xs[1]}")
    for i in range(2, 10): a(f"v_fmac_f32 v{vT+(i&1)}, v{xs[i]}, v{xs[i]}")
    a(f"v_add_f32 v{vT}, v{vT}, v{vT+1}")
    step(1)
    red8("v_add_f32", [vT]); red_hi("v_add_f32", [vT])
    a(f"v_readlane_b32 s{sT0}, v{vT}, 63")
    a(f"v_lshlrev_b32 v{vXr}, 16, v{vXr}")
    rne(vT+3, vT+3)
    a(f"v_mul_f32 v{vT+2}, s{sT0}, v{vT+2}")
    a(f"v_sub_f32 v{vXr}, v{vXr}, v{vT+3}")
    step(1)
    rne(vT+2, vT+2); rne(vXr, vXr)
    a(f"v_add_f32 v{vT+2}, {f2u(1e-5):#x}, v{vT+2}"); rne(vT+2, vT+2)
    a(f"v_sqrt_f32 v{vT+2}, v{vT+2}"); rne(vT+2, vT+2)
    a(f"v_rcp_f32 v{vT+4}, v{vT+2}")
    a(f"v_mul_f32 v{vT}, v{vXr}, v{vT+4}"); a(f"v_fma_f32 v{vT+1}, -v{vT}, v{vT+2}, v{vXr}")
    a(f"v_fma_f32 v{vT}, v{vT+1}, v{vT+4}, v{vT}")
    a(f"v_cvt_pk_bf16_f32 v{vXr}, v{vT}, v{vT}")
    a(f"v_lshlrev_b32 v{vT}, 2, v{vSlot}")
    for i in range(6): a(f"ds_bpermute_b32 v{vSc+i}, v{vT}, v{vXr} offset:{32*i}")
    step(1)
    a.c("hand-off tags of this launch")
    a("s_waitcnt lgkmcnt(0)")
    a(f"s_add_u32 s{sE}, s{sE}, 0x01010101")
    for k in range(4): a(f"s_bfe_u32 s{sTag[k]}, s{sE}, {(8 << 16) | (8*k):#x}")
    a(f"s_getreg_b32 s{sT0}, hwreg(HW_REG_XCC_ID, 0, 4)")
    if forceslow: a(f"s_and_b32 s{sT0}, s{sC}, 1")
    a(f"s_lshl_b32 s{sT0}, s{sT0}, 28"); a(f"s_and_b32 s{sId}, s{sE}, 0x0fffffff"); a(f"s_or_b32 s{sId}, s{sId}, s{sT0}")
    a(f"v_and_b32 v{vT}, 3, v{vL}"); a(f"v_lshlrev_b32 v{vT}, 3, v{vT}")
    a(f"v_bfe_u32 v{vPubD}, s{sE}, v{vT}, 8")
    a(f"s_add_u32 s{sE}, s{sE}, 0x01010101")
    a(f"v_bfe_u32 v{vTg2}, s{sE}, v{vT}, 8")
    a(f"s_mov_b32 s{sCnt}, {timeout}")
    buildA(vA, vSc); buildA(vA2, vSc+1)
    need("S5")
    if s1split: step(1)
    a(f"s_cmp_lt_u32 s{sW}, 5"); a("s_cbranch_scc1 L_s1q")
    for i in range(6):
        mfma(vD, (vA, vA2)[i & 1], vW+4*i, None if i == 0 else vD)
        if i < 4: buildA((vA, vA2)[i & 1], vSc+i+2)
    a("s_nop 0"); a("s_branch L_s1back")
    a.label("L_s1q")
    a.hist = []
    for i in range(6): mfma(vD+4*(i % 3), vA if i < 3 else vA2, vW+4*i, None if i < 3 else vD+4*(i % 3))
    a.label("L_s1back")
    a(f"s_mov_b64 exec, {sr(sVal,2)}")
    for j in range(3): a(f"ds_write_b128 v{vRedW}, {vr(vD+4*j,4)} offset:{LDS_RED+256*j}")
    arrive(0)
    step(nb)
    await_all(0, lambda: red_read(LDS_RED))
    a(f"v_add_f32 v{vT}, v{vT}, v{vT+1}"); a(f"v_add_f32 v{vT+2}, v{vT+2}, v{vT+3}"); a(f"v_add_f32 v{vT+5}, v{vT+5}, v{vT+6}")
    a(f"v_add_f32 v{vT}, v{vT}, v{vT+4}"); a(f"v_add_f32 v{vT+5}, v{vT+5}, v{vT+7}"); a(f"v_add_f32 v{vT}, v{vT}, v{vT+2}")
    a(f"s_lshl_b32 s{sT0}, s{sC}, 2"); a(f"s_add_u32 s{sT0}, s{sT0}, s{sFo}"); a(f"s_add_u32 s{sT0}, s{sT0}, 7680")
    a(f"v_permlane32_swap_b32 v{vT}, v{vT+5}")
    a(f"v_add_f32 v{vT}, v{vT}, v{vT+5}")
    a(f"v_and_or_b32 v{vPubD}, v{vT}, s{sMask}, v{vPubD}")
    a(f"s_cmp_eq_u32 s{sW}, 7"); a("s_cselect_b64 exec, 1, 0")
    a(f"v_mov_b32 v{vPubD}, s{sId}"); a(f"v_mov_b32 v{vPubA}, s{sT0}")
    a("s_mov_b64 exec, -1")
    a(f"buffer_store_dword v{vPubD}, v{vPubA}, {sr(dWS,4)}, 0 offen", "pubq")
    phase("")
    stamp(0)
    issue_to(f"K{qpos-1}")
    def x1loads(q, f): return [f"buffer_load_dwordx4 {vr(vG,4)}, v{vL16}, {sr(dWS,4)}, s{q} offen sc1",
                               f"buffer_load_dwordx4 {vr(vG2,4)}, v{vFo}, {sr(dWS,4)}, s{f} offen sc1"]
    a(x1loads(sQo, sFo)[0], "gq"); a(x1loads(sQo, sFo)[1], "gf")
    a.c("what the ffn gather must hold: tags on the data lanes, this die's id word on the others")
    a(f"v_and_b32 v{vT+1}, 15, v{vL}"); a(f"v_cmp_gt_u32 vcc, 5, v{vT+1}")
    a(f"v_mov_b32 v{vT+1}, s{sId}"); a(f"v_mov_b32 v{vT+2}, 0xff")
    for k in range(4):
        a(f"v_mov_b32 v{vA+k}, s{sTag[k]}"); a(f"v_cndmask_b32 v{vA+k}, v{vT+1}, v{vA+k}, vcc")
    a(f"v_cndmask_b32 v{vA2}, -1, v{vT+2}, vcc")
    step(D - 1)
    phase("x1")
    need(f"K{qpos-1}")
    a.wait_vm("gf")
    a.label("L_x1chk")
    for k in range(4): a(f"v_xor_b32 v{vG+k}, s{sTag[k]}, v{vG+k}")
    for k in range(4): a(f"v_xor_b32 v{vG2+k}, v{vA+k}, v{vG2+k}")
    or_all(vT, [vG+k for k in range(4)]); or_all(vT+1, [vG2+k for k in range(4)])
    a(f"v_and_b32 v{vT}, 0xff, v{vT}"); a(f"v_and_or_b32 v{vT}, v{vT+1}, v{vA2}, v{vT}")
    a(f"v_cmp_ne_u32 vcc, 0, v{vT}")
    a("s_cbranch_vccnz L_x1slow")
    a.label("L_x1ok")
    c = Asm(); c.label("L_x1slow")
    c.c("not all there yet, or a member of the group sits on another die")
    c(f"v_and_b32 v{vT}, 0x0fffffff, v{vT}"); c(f"v_cmp_ne_u32 vcc, 0, v{vT}")
    c("s_cbranch_vccnz L_x1wait")
    c(f"s_mov_b32 s{sReg}, {SLOW}")
    c(f"v_not_b32 v{vT}, v{vA2}")
    for k in range(4): c(f"v_and_b32 v{vG2+k}, v{vT}, v{vG2+k}")
    c(f"buffer_store_dword v{vPubD}, v{vPubA}, {sr(dWS,4)}, s{sReg} offen sc1")
    c("s_branch L_x1ok")
    c.label("L_x1wait")
    c(f"s_sub_u32 s{sSpin}, s{sSpin}, 1"); c("s_cbranch_scc1 L_end")
    c(f"s_sub_u32 s{sCnt}, s{sCnt}, 1")
    c(f"s_cmp_lg_u32 s{sCnt}, 0"); c("s_cbranch_scc1 L_x1nopub")
    c(f"s_mov_b32 s{sT0}, {SLOW}")
    c(f"buffer_store_dword v{vPubD}, v{vPubA}, {sr(dWS,4)}, s{sT0} offen sc1")
    c.label("L_x1nopub")
    c.c("after enough misses publish write-through as well and look at the two areas in turn")
    c(f"s_and_b32 s{sT0}, s{sCnt}, 0x80000001"); c(f"s_cmp_eq_u32 s{sT0}, 0x80000001"); c(f"s_cselect_b32 s{sT0}, {SLOW}, 0")
    c(f"s_add_u32 s{sT1}, s{sT0}, s{sFo}"); c(f"s_add_u32 s{sT0}, s{sT0}, s{sQo}")
    for t in x1loads(sT0, sT1): c(t)
    c("s_waitcnt vmcnt(0)"); c("s_branch L_x1chk")
    cold.append(c.out)
    red8("v_add_f32", [vG+k for k in range(4)])
    a(f"s_min_u32 s{sT0}, s{sW}, 5"); a(f"s_lshl_b32 s{sT0}, s{sT0}, 6")
    a(f"v_cvt_pk_bf16_f32 v{vG}, v{vG}, v{vG+1}"); a(f"v_cvt_pk_bf16_f32 v{vG+1}, v{vG+2}, v{vG+3}")
    a(f"v_lshl_add_u32 v{vT+2}, v{vSlot}, 3, s{sT0}")
    a(f"ds_write_b64 v{vT+2}, {vr(vG,2)} offset:{LDS_Q}")
    arrive(1)
    step(1)
    a.c("SwiGLU for this wave's eight hidden units")
    red8("v_add_f32", [vG2+k for k in range(4)], R8 + ("row_mirror",))
    a(f"v_and_b32 v{vT}, 1, v{vSlot}"); a(f"v_cmp_eq_u32 vcc, 1, v{vT}")
    a(f"v_lshlrev_b32 v{vT+3}, 4, v{vCh}")
    a(f"s_cmp_lt_u32 s{sW}, 6"); a(f"s_cselect_b32 s{sT0}, 0, {OOB}")
    a(f"v_cndmask_b32 v{vG2}, v{vG2}, v{vG2+1}, vcc"); a(f"v_cndmask_b32 v{vG2+2}, v{vG2+2}, v{vG2+3}, vcc")
    a(f"v_or_b32 v{vPubA}, s{sT0}, v{vPubA}")
    step(1)
    rne(vG2, vG2); rne(vG2+2, vG2+2)
    a(f"v_permlane16_swap_b32 v{vG2}, v{vG2+2}")
    a(f"v_mul_f32 v{vT}, {f2u(-1.4426950408889634):#x}, v{vG2}")
    a(f"v_exp_f32 v{vT}, v{vT}"); a(f"v_add_f32 v{vT}, 1.0, v{vT}"); a(f"v_rcp_f32 v{vT}, v{vT}")
    a(f"v_mul_f32 v{vT}, v{vT}, v{vG2}"); rne(vT, vT)
    a(f"v_mul_f32 v{vT}, v{vT}, v{vG2+2}")
    a(f"v_cvt_pk_bf16_f32 v{vT}, v{vT}, v{vT}")
    buildA(vAh, vT)
    step(nb - 2)
    phase("qk")
    def qread():
        for j in range(3): a(f"ds_read_b128 {vr(vQ+4*j,4)}, v{vT+3} offset:{LDS_Q+128*j}")
    await_all(1, qread)
    stamp(1)
    sc = [vSc+g for g in range(8)]
    def dots(g):
        b = kreg(3*g)
        a(f"v_dot2_f32_bf16 v{vSc+g}, v{b}, v{vQ}, 0")
        a(f"v_dot2_f32_bf16 v{vT+g}, v{b+1}, v{vQ+1}, 0")
        for i in range(2, 12):
            d = vSc+g if i % 2 == 0 else vT+g
            a(f"v_dot2_f32_bf16 v{d}, v{b+i}, v{vQ+i}, v{d}")
        kdone[0] = g + 1
    def post(gs):
        r = [vSc+g for g in gs]
        for g in gs: a(f"v_add_f32 v{vSc+g}, v{vSc+g}, v{vT+g}")
        red8("v_add_f32", r); rne_pairs(r)
        for x in r: a(f"v_mul_f32 v{x}, {f2u(192 ** -0.5):#x}, v{x}")
        rne_pairs(r)
    def at(name):
        p0 = pos[0]; need(name)
        if pos[0] == p0: step(1)
    need("K5"); dots(0); dots(1)
    at("K11"); dots(2); dots(3)
    at("K11"); post(range(4))
    at("K17"); dots(4); dots(5)
    at("K20"); dots(6)
    phase("")
    issue_to(stream[idx["K23"] + D - 1][0] + str(stream[idx["K23"] + D - 1][1]))
    phase("sm")
    need("K23"); dots(7)
    step(1)
    post(range(4, 8))
    step(1)
    a(f"v_max3_f32 v{vG}, v{sc[0]}, v{sc[1]}, v{sc[2]}"); a(f"v_max3_f32 v{vG+1}, v{sc[3]}, v{sc[4]}, v{sc[5]}")
    a(f"v_max3_f32 v{vG}, v{vG}, v{sc[6]}, v{sc[7]}"); a(f"v_max_f32 v{vG}, v{vG}, v{vG+1}")
    red_hi("v_max_f32", [vG])
    a(f"v_readlane_b32 s{sMw}, v{vG}, 63")
    L2E = f"{f2u(1.4426950408889634):#x}"
    for r in sc: a(f"v_subrev_f32 v{r}, s{sMw}, v{r}")
    for r in sc: a(f"v_mul_f32 v{r}, {L2E}, v{r}")
    step(1)
    for r in sc: a(f"v_exp_f32 v{r}, v{r}")
    for k in range(4): a(f"v_add_f32 v{vT+k}, v{sc[k]}, v{sc[4+k]}")
    a(f"v_add_f32 v{vT}, v{vT}, v{vT+1}"); a(f"v_add_f32 v{vT+2}, v{vT+2}, v{vT+3}"); a(f"v_add_f32 v{vG+1}, v{vT}, v{vT+2}")
    a.c("(max, sum) of this wave: 16 tag bits under the bf16 max, 8 under the sum")
    a(f"s_and_b32 s{sT2}, s{sId}, 0xffff")
    a(f"s_lshl_b32 s{sT0}, s{sP}, 3"); a(f"s_add_u32 s{sT0}, s{sT0}, s{sW}"); a(f"s_lshl_b32 s{sT0}, s{sT0}, 3")
    red_hi("v_add_f32", [vG+1])
    a(f"s_add_u32 s{sT0}, s{sT0}, {WS_ML}"); a(f"v_mov_b32 v{vT}, s{sT0}")
    a(f"v_or_b32 v{vG}, s{sT2}, v{vG}")
    a(f"v_and_b32 v{vG+1}, 0xffffff00, v{vG+1}"); a(f"v_or_b32 v{vG+1}, s{sTag[2]}, v{vG+1}")
    a(f"s_mov_b32 exec_lo, 0"); a(f"s_mov_b32 exec_hi, 0x80000000")
    pub(f"buffer_store_dwordx2 {vr(vG,2)}, v{vT}, {sr(dWS,4)}, s{sReg} offen", "pubml")
    a("s_mov_b64 exec, -1")
    a(f"s_lshl_b32 s{sT0}, s{sC}, 3"); a(f"s_add_u32 s{sT0}, s{sT0}, s{sG}"); a(f"s_sub_u32 s{sT0}, s{sT0}, 240")
    a(f"s_lshl_b32 s{sT1}, s{sW}, 8"); a(f"s_or_b32 s{sT1}, s{sT1}, s{sT0}")
    a(f"s_cmp_lt_u32 s{sT1}, 10"); a("s_cbranch_scc1 L_park")
    a.label("L_parkback")
    c = Asm(); c.label("L_park")
    c.c("wave 0 of a reducer: park one probe line per mailbox copy in the memory-side cache")
    c(f"s_lshl_b32 s{sT0}, s{sT0}, 14"); c(f"s_add_u32 s{sT0}, s{sT0}, {WS_YP + 3072}")
    c(f"v_and_b32 v{vT}, 31, v{vL}"); c(f"v_lshrrev_b32 v{vT+1}, 5, v{vL}"); c(f"v_lshlrev_b32 v{vT+1}, 13, v{vT+1}")
    c(f"v_lshl_add_u32 v{vT}, v{vT}, 2, v{vT+1}")
    c(f"buffer_store_dword v{vZ}, v{vT}, {sr(dWS,4)}, s{sT0} offen sc1")
    c("s_branch L_parkback")
    cold.append(c.out)
    if touch:
        a.c("first touch of the stage-3 weight pages, so that their translations are there when the last loads go out")
        a("s_mov_b64 exec, 1")
        a(f"buffer_load_dword v{vQ}, v{vW2o}, {sr(dW2,4)}, 0 offen")
        if touch > 1: a(f"buffer_load_dword v{vQ+1}, v{vWo}, {sr(dWO,4)}, 0 offen")
        a("s_mov_b64 exec, -1")
    phase("")
    stamp(2)
    issue_to(f"V{mlpos-1}")
    a(f"s_lshl_b32 s{sT0}, s{sH}, 9"); a(f"s_add_u32 s{sT0}, s{sT0}, {WS_ML}"); a(f"s_add_u32 s{sT0}, s{sT0}, s{sReg}")
    a(f"v_lshlrev_b32 v{vFo}, 3, v{vL}")
    mload = f"buffer_load_dwordx2 {vr(vG,2)}, v{vFo}, {sr(dWS,4)}, s{sT0} offen sc1"
    a(mload, "gm")
    step(D - 1)
    phase("ml")
    need(f"V{mlpos-1}")
    a.wait_vm("gm")
    a.label("L_mlchk")
    a(f"v_xor_b32 v{vG}, s{sT2}, v{vG}"); a(f"v_xor_b32 v{vG+1}, s{sTag[2]}, v{vG+1}")
    a(f"v_and_b32 v{vT}, 0xffff, v{vG}"); a(f"v_and_b32 v{vT+1}, 0xff, v{vG+1}"); a(f"v_or_b32 v{vT}, v{vT}, v{vT+1}")
    a(f"v_cmp_ne_u32 vcc, 0, v{vT}")
    retry("L_mlchk", [mload])
    a(f"v_max_f32_dpp v{vT}, v{vG}, v{vG} {R8[0]} {DP}")
    red8("v_max_f32", [vT], R8[1:]); red_hi("v_max_f32", [vT])
    a(f"v_readlane_b32 s{sT0}, v{vT}, 63")
    a(f"v_mov_b32 v{vT+1}, s{sMw}")
    step(1)
    a(f"v_subrev_f32 v{vT}, s{sT0}, v{vG}"); a(f"v_subrev_f32 v{vT+1}, s{sT0}, v{vT+1}")
    a(f"v_mul_f32 v{vT}, {L2E}, v{vT}"); a(f"v_mul_f32 v{vT+1}, {L2E}, v{vT+1}")
    a(f"v_exp_f32 v{vT}, v{vT}"); a(f"v_exp_f32 v{vT+1}, v{vT+1}")
    a(f"v_mul_f32 v{vT}, v{vT}, v{vG+1}")
    red8("v_add_f32", [vT]); red_hi("v_add_f32", [vT])
    a(f"v_rcp_f32 v{vT}, v{vT}")
    a(f"v_mul_f32 v{vT}, v{vT}, v{vT+1}")
    a(f"v_readlane_b32 s{sT1}, v{vT}, 63")
    step(1)
    for r in sc: a(f"v_mul_f32 v{r}, s{sT1}, v{r}")
    for r in sc: a(f"v_cvt_pk_bf16_f32 v{r}, v{r}, v{r}")
    if ylast: a(f"v_lshlrev_b32 v{vFo}, 2, v{vL}"); a(f"s_movk_i32 s{sT2}, 8192")
    a.c("tags and offset of the o exchange")
    for k in range(4): a(f"s_bfe_u32 s{sTag[k]}, s{sE}, {(8 << 16) | (8*k):#x}")
    a(f"s_lshl_b32 s{sQo}, s{sPhi}, 10"); a(f"s_add_u32 s{sQo}, s{sQo}, {WS_QP}"); a(f"s_add_u32 s{sQo}, s{sQo}, s{sReg}")
    stamp(3)
    for g in range(8):
        if g in (0, 3) and arrived[0] >= idx[f"V{3*g+2}"]: step(1)
        if arrived[0] < idx[f"V{3*g+2}"]: phase("")
        A_ = vA if g % 2 == 0 else vA2
        buildA(A_, sc[g])
        for j in range(3):
            need(f"V{3*g+j}")
            mfma(vD+4*j, A_, vreg(3*g+j), None if g == 0 else vD+4*j)
            if g == 7:
                if j == 2:
                    while pos[0] < limit[0]: load(*stream[pos[0]]); pos[0] += 1
                    if skel == 2: a("s_waitcnt vmcnt(0)"); a("s_endpgm")
                    stamp(4)
                a(f"s_mov_b64 exec, {sr(sVal,2)}")
                a(f"ds_write_b128 v{vRedW}, {vr(vD+4*j,4)} offset:{LDS_RED+256*j}")
                a("s_mov_b64 exec, -1")
    a("s_waitcnt lgkmcnt(0)"); a("s_barrier")
    red_read(LDS_RED)
    red_sum8(vPubD, vTg2)
    pub(f"buffer_store_dword v{vPubD}, v{vPubA}, {sr(dWS,4)}, s{sReg} offen", "pubo")
    stamp(5)
    a(f"s_cmp_ge_u32 s{sC}, 30"); a("s_cbranch_scc1 L_reducer")
    snap = a.snapshot()
    if hold:
        a.c("a plain store waits behind older loads of the CU, so the last weight loads go out after the o stores")
        a("s_barrier")
        while pos[0] < len(stream): load(*stream[pos[0]]); pos[0] += 1
        a.wait_vm("pubo")
    oload = f"buffer_load_dwordx4 {vr(vG2,4)}, v{vL16}, {sr(dWS,4)}, s{sQo} offen sc1"
    a(oload)
    a.wait_vm("W4")
    stamp(10)
    mfma(vY, vAh, vW+16, None)
    a("s_branch L_ochk")
    a.label("L_opoll")
    a(oload)
    a(f"s_sub_u32 s{sSpin}, s{sSpin}, 1"); a("s_cbranch_scc1 L_end")
    a.label("L_ochk")
    a("s_waitcnt vmcnt(0)")
    untag([vG2])
    for k in range(4): a(f"v_add_f32_dpp v{vG+k}, v{vG2+k}, v{vG2+k} {R8[0]} {DP}")
    a("s_cbranch_vccnz L_opoll")
    if skel == 3: a("s_endpgm")
    stamp(6)
    red8("v_add_f32", [vG+k for k in range(4)], R8[1:])
    for k in range(4): a(f"v_cvt_pk_bf16_f32 v{vG+k}, v{vG+k}, v{vG+k}")
    As = (vA, vA2, vG2, vT)
    for r in range(4):
        buildA(As[r], vG+r)
        if r >= 1: mfma(vY, As[r-1], vW+4*(r-1), vY)
    mfma(vY, As[3], vW+12, vY)
    if ylast:
        a.c("no barrier: every wave writes, counts itself in and reads all partials; the last one in has them all")
        a(f"s_mov_b64 exec, {sr(sVal,2)}")
        a(f"ds_write_b128 v{vRedW}, {vr(vY,4)} offset:{LDS_RED2}")
        a("s_mov_b64 exec, 1")
        a(f"ds_add_rtn_u32 v{vCn}, v{vZ}, v{vZ+1} offset:{LDS_CNT}")
        a("s_mov_b64 exec, -1")
        b = LDS_RED2 // 256; yv = vKV
        for q in range(8): a(f"ds_read2st64_b32 {vr(yv+2*q,2)}, v{vFo} offset0:{b+6*q} offset1:{b+6*q+3}")
        a("s_waitcnt lgkmcnt(8)")
        a(f"v_readfirstlane_b32 s{sT0}, v{vCn}")
        a(f"s_cmp_lg_u32 s{sT0}, 15"); a("s_cbranch_scc1 L_exit3")
        a("s_waitcnt lgkmcnt(4)")
        a(f"v_pk_add_f32 {vr(yv,2)}, {vr(yv,2)}, {vr(yv+2,2)}"); a(f"v_pk_add_f32 {vr(yv+4,2)}, {vr(yv+4,2)}, {vr(yv+6,2)}")
        a(f"v_pk_add_f32 {vr(yv,2)}, {vr(yv,2)}, {vr(yv+4,2)}")
        a("s_waitcnt lgkmcnt(2)")
        a(f"v_pk_add_f32 {vr(yv+8,2)}, {vr(yv+8,2)}, {vr(yv+10,2)}")
        a(f"v_pk_add_f32 {vr(yv,2)}, {vr(yv,2)}, {vr(yv+8,2)}")
        a("s_waitcnt lgkmcnt(0)")
        a(f"v_pk_add_f32 {vr(yv+12,2)}, {vr(yv+12,2)}, {vr(yv+14,2)}")
        a(f"v_pk_add_f32 {vr(yv,2)}, {vr(yv,2)}, {vr(yv+12,2)}")
        a(f"v_add_f32 v{yv}, v{yv}, v{yv+1}")
        a(f"v_and_or_b32 v{vPubD}, v{yv}, s{sMask}, v{vTg2}")
        a(f"buffer_store_dword v{vPubD}, v{vYo}, {sr(dWS,4)}, 0 offen sc1")
        a(f"buffer_store_dword v{vPubD}, v{vYo}, {sr(dWS,4)}, s{sT2} offen sc1")
    else:
        a(f"s_mov_b64 exec, {sr(sVal,2)}")
        a(f"s_cmp_ge_u32 s{sW}, 2")
        a(f"ds_write_b128 v{vRedW}, {vr(vY,4)} offset:{LDS_RED2}")
        a("s_mov_b64 exec, -1")
        a("s_waitcnt lgkmcnt(0)"); a("s_barrier")
        a("s_cbranch_scc1 L_exit3")
        red_read(LDS_RED2)
        red_sum8(vPubD, vTg2)
        a(f"buffer_store_dword v{vPubD}, v{vYo}, {sr(dWS,4)}, 0 offen sc1", "puby")
    a.label("L_exit3")
    stamp(7)
    finish()
    a.label("L_reducer")
    a.restore(snap)
    if skel == 3: a("s_endpgm")
    a(f"s_lshl_b32 s{sK}, s{sK}, 3"); a(f"s_add_u32 s{sK}, s{sK}, s{sG}")
    a(f"s_cmp_ge_u32 s{sK}, 10"); a("s_cbranch_scc1 L_exitr")
    a(f"s_cmp_ge_u32 s{sW}, 2")
    if stamps or diag is not None:
        a("s_cbranch_scc1 L_barx"); cold.append(["L_barx:", "    s_barrier", "    s_branch L_exitr"])
    else: a("s_cbranch_scc1 L_exitr")
    a(f"s_lshl_b32 s{sT0}, s{sK}, 2"); a(f"s_add_u32 s{sT0}, s{sT0}, s{sW}"); a(f"s_lshl_b32 s{sT0}, s{sT0}, 12")
    a(f"s_add_u32 s{sT0}, s{sT0}, {WS_YP}")
    a(f"s_lshl_b32 s{sK}, s{sK}, 1"); a(f"s_add_u32 s{sK}, s{sK}, s{sW}")
    y = vD
    def yl(n): return [f"buffer_load_dwordx4 {vr(vKV+12*n+4*i,4)}, v{vL16}, {sr(dWS,4)}, s{sT0} offen offset:{1024*i} sc1" for i in range(3)]
    def colcalc():
        a.c("output column of this lane: 32*line + 4*(l&7) + (l>>4)")
        a(f"v_lshrrev_b32 v{vT+1}, 4, v{vL}"); a(f"v_lshl_add_u32 v{vT+1}, v{vCh}, 2, v{vT+1}")
        a(f"s_lshl_b32 s{sT1}, s{sK}, 6"); a(f"v_lshl_add_u32 v{vYo}, v{vT+1}, 1, s{sT1}")
        a.c("line 0's reducer hears (through its producers) from every workgroup: it advances the hand-off epoch")
        a(f"s_cmp_eq_u32 s{sK}, 0"); a(f"s_cselect_b32 s{sT2}, {WS_E}, {OOB}")
        a(f"v_mov_b32 v{vT+4}, s{sE}")
        if ydry: a(f"v_mov_b32 v{vT+5}, {OOB}"); a(f"v_mov_b32 v{vT+6}, {OOB}")
        else: a(f"v_mov_b32 v{vT+5}, s{sT2}"); a(f"v_mov_b32 v{vT+6}, v{vYo}")
    if ibsts:
        a.c("which copy is nearer? loads return in order: the second is still out after the first only if it goes further")
        a(f"s_cmp_eq_u32 s{sW}, 0"); a(f"s_cselect_b32 s{sT1}, 0, {OOB}")
        a(f"v_mov_b32 v{vT+1}, s{sT1}"); a(f"v_or_b32 v{vT+2}, 8192, v{vT+1}")
        a("s_waitcnt vmcnt(0)")
        a(f"buffer_load_dword v{vT+3}, v{vT+1}, {sr(dWS,4)}, s{sT0} offen offset:3072 sc1")
        a(f"buffer_load_dword v{vT+7}, v{vT+2}, {sr(dWS,4)}, s{sT0} offen offset:3072 sc1")
        a("s_waitcnt vmcnt(1)")
        colcalc()
        a(f"s_lshl_b32 s{sT1}, s{sW}, 2"); a(f"v_mov_b32 v{vT+1}, s{sT1}")
        a("s_getreg_b32 s4, hwreg(HW_REG_IB_STS, 0, 4)")
        if stamps is True: a(f"s_add_u32 s{sSt+11}, s4, 100")
        a("s_cmp_lg_u32 s4, 0"); a("s_cselect_b32 s4, 0, 8192")
        a(f"v_mov_b32 v{vT+3}, s4")
        a(f"ds_write_b32 v{vT+1}, v{vT+3} offset:{LDS_Q}")
        a("s_waitcnt lgkmcnt(0)")
        a("s_barrier")
        a(f"ds_read_b32 v{vT+3}, v{vZ} offset:{LDS_Q}")
    else:
        a.c("which copy is nearer? loads return in order, so the gap behind the first one is long only if the second goes further")
        a(f"v_mov_b32 v{vT+2}, 8192")
        a(f"s_cmp_lg_u32 s{sW}, 0"); a("s_cbranch_scc1 L_probed")
        a("s_mov_b64 exec, 1")
        a("s_waitcnt vmcnt(0)")
        a(f"buffer_load_dword v{vT+3}, v{vZ}, {sr(dWS,4)}, s{sT0} offen offset:3072 sc1")
        a(f"buffer_load_dword v{vT+7}, v{vT+2}, {sr(dWS,4)}, s{sT0} offen offset:3072 sc1")
        a("s_waitcnt vmcnt(1)"); a("s_memtime s[4:5]")
        a("s_waitcnt vmcnt(0)"); a("s_memtime s[6:7]")
        a("s_waitcnt lgkmcnt(0)")
        a("s_sub_u32 s4, s6, s4")
        a("s_cmpk_gt_u32 s4, 90"); a("s_cselect_b32 s4, 0, 8192")
        a(f"v_mov_b32 v{vT+3}, s4")
        a(f"ds_write_b32 v{vZ}, v{vT+3} offset:{LDS_Q}")
        a("s_mov_b64 exec, -1")
        a("s_waitcnt lgkmcnt(0)")
        a.label("L_probed")
        a("s_barrier")
        a(f"ds_read_b32 v{vT+3}, v{vZ} offset:{LDS_Q}")
        colcalc()
    a(f"buffer_load_ushort v{vXo}, v{vYo}, {sr(dX,4)}, 0 offen")
    a("s_waitcnt lgkmcnt(0)")
    a(f"v_add_u32 v{vL16}, v{vL16}, v{vT+3}")
    for n in range(ypipe):
        for t in yl(n): a(t)
    if ydry:
        a.c("one pass through the last lines with every store out of range: they are in the instruction cache afterwards")
        a(f"s_mov_b32 s{sT1}, 1"); a("s_branch L_yfin")
        a.label("L_ystart")
        a(f"s_mov_b32 s{sT1}, 0")
    if ydry: a(f"v_mov_b32 v{vT+5}, s{sT2}"); a(f"v_mov_b32 v{vT+6}, v{vYo}")
    a(f"s_waitcnt vmcnt({3*ypipe})")
    a(f"v_lshlrev_b32 v{vXo}, 16, v{vXo}")
    a.label("L_ypoll")
    for n in range(ypipe):
        a(f"s_waitcnt vmcnt({3*(ypipe-1)})")
        b = vKV + 12*n
        untag([b, b+4, b+8])
        for k in range(4): a(f"v_add_f32 v{y+k}, v{b+k}, v{b+4+k}")
        for k in range(4): a(f"v_add_f32 v{y+k}, v{y+k}, v{b+8+k}")
        a("s_cbranch_vccz L_yfin")
        for t in yl(n): a(t)
    a(f"s_sub_u32 s{sSpin}, s{sSpin}, 1"); a("s_cbranch_scc0 L_ypoll")
    a("s_endpgm")
    a.label("L_yfin")
    a(f"buffer_store_dword v{vT+4}, v{vT+5}, {sr(dWS,4)}, 0 offen {efl}")
    stamp(9)
    a(f"v_permlane32_swap_b32 v{y}, v{y+2}"); a(f"v_permlane32_swap_b32 v{y+1}, v{y+3}")
    a(f"v_add_f32 v{y}, v{y}, v{y+2}"); a(f"v_add_f32 v{y+1}, v{y+1}, v{y+3}")
    a(f"v_permlane16_swap_b32 v{y}, v{y+1}")
    a(f"v_add_f32 v{y}, v{y}, v{y+1}")
    if ydry: a(f"s_cmp_lg_u32 s{sT1}, 0")
    a(f"v_add_f32_dpp v{y}, v{y}, v{y} row_ror:8 {DP}")
    a(f"v_add_f32 v{y}, v{y}, v{vXo}")
    a(f"v_cvt_pk_bf16_f32 v{y}, v{y}, v{y}")
    a(f"buffer_store_short v{y}, v{vT+6}, {sr(dOUT,4)}, 0 offen {outfl}")
    if ydry: a("s_cbranch_scc1 L_ystart")
    a.label("L_exitr")
    stamp(8)
    finish()
    for blk in cold:
        for ln in blk: a.raw(ln)
    a.label("L_end")
    a("s_endpgm")
    if prefetch: a.raw("    .fill 512, 4, 0xbf810000")
    nv = (V.n + 7) // 8 * 8
    a.raw('.section .rodata,"a"'); a.raw(".p2align 6"); a.raw(f".amdhsa_kernel {NAME}_kernel")
    a.raw(f"  .amdhsa_next_free_vgpr {nv}"); a.raw("  .amdhsa_next_free_sgpr 102"); a.raw(f"  .amdhsa_accum_offset {nv}")
    a.raw("  .amdhsa_group_segment_fixed_size 0"); a.raw("  .amdhsa_kernarg_size 96"); a.raw("  .amdhsa_user_sgpr_count 2")
    a.raw("  .amdhsa_user_sgpr_kernarg_segment_ptr 1"); a.raw("  .amdhsa_system_sgpr_workgroup_id_x 1")
    a.raw(".end_amdhsa_kernel")
    return a.text()

if __name__ == "__main__":
    kw = {}
    out = sys.argv[1]
    for x in sys.argv[2:]:
        k, v = x.split("=")
        try: v = eval(v)
        except Exception: pass
        kw[k] = v
    open(out, "w").write(gen(**kw))
```

```python
import sys, struct, re
sys.path.insert(0, "dev")
from asmlib import *

NAME = "parallel_sum__gqa_block_cached__glu_gated_swiglu__decode"
def f2u(x): return struct.unpack("<I", struct.pack("<f", x))[0]

WS_E  = 0
WS_QP = 0x10000
WS_FP = 0x40000
WS_ML = 0x50000
SLOW  = 0x50000
WS_YP = 0x100000
WS_ST = 0x400000
WS_SIZE = 0x800000
OOB = 0x40000000
LDS_RED = 0
LDS_RED2 = 12288
LDS_Q = 24576
LDS_CNT = 25088

DOC = """;
; depends on it. The y mailboxes exist twice, once per side of the memory system; a reducer polls the nearer copy."""

def gen(qpos=14, mlpos=14, hold=2, nb=3, pace=(10, 27.6), pfrom=7, hi=(), ypipe=3, voff=2, kfirst=0, tpost=True, anchors=(), aoff=25, atau=None, lastdeep=1, lo2=None, relax=2, selw=None, rr=1, s1split=0, adj=0, gbase=0, ylast=False, outfl='', efl='', touch=0, ibsts=True, ydry=False, thin=3, DH=4, hi5=None, bucket=None, w4early=False, endthin=99, endrelax=99, thinto=99, thinph=0, trim=True, skip67=False, pollat='pubo', rr2=False,
        ld="nt", lds=32768, spin=1 << 20, timeout=24, prefetch=False,
        stamps=False, diag=None, amp=0, trace=False, forceslow=False, skel=0):
    D = 3
    a = Asm()
    hdr = open("cdna_kernels/" + NAME + ".s.ref").read().split("\n")
    for ln in hdr:
        if ln.startswith(";") and "@launch" not in ln and "Override launch" not in ln and "grid=ceil" not in ln: a.raw(ln)
    a.raw(f"; @launch grid=(256,1,1) block=(512,1,1) lds={lds}")
    for ln in DOC.split("\n"): a.raw(ln)
    a.raw('.amdgcn_target "amdgcn-amd-amdhsa--gfx950"')
    a.raw(".text"); a.raw(f".globl {NAME}_kernel"); a.raw(".p2align 8"); a.raw(f".type {NAME}_kernel,@function")
    a.label(f"{NAME}_kernel")
    V = Regs(1, 256, "v"); S = Regs(28, 102, "s")
    pX, pK, pV, pWQ, pWO, pBX, pW1, pW3, pW2, pOUT, pDBG, pWS = [4 + 2*i for i in range(12)]
    dK, dV, dS1, dWS, dX = [S.get(4) for _ in range(5)]
    dWO, dW2, dOUT = 12, 20, S.get(4)
    sW, sG, sC, sP, sH, sS, sE, sT0, sT1, sT2, sT3, sSpin, sReg, sPhi, sK, sCnt, sQo, sFo, sId, sMask = [S.get() for _ in range(20)]
    sTag = [S.get() for _ in range(4)]
    sOff = [16, 17, 18]
    sS1, sS2 = S.get(), S.get(); sMw = sS1
    sBase, sAn, sSmp = 19, 8, 9
    dDBG = 24
    sVal = S.get(2); sTm = S.get(2); sStart = S.get(2)
    sSt = S.get(16) if (stamps or diag is not None) else None
    (vL, vSlot, vCh, vKoff, vS1a, vS1b, vS1c, vXr, vRedW, vRedR, vL16, vPubA, vPubD, vTg2, vWo, vW2o, vYo, vFo, vCn, vTr) = [V.get() for _ in range(20)]
    vZ = V.get(2)
    vM = V.get(4); vA = V.get(4); vA2 = V.get(4); vAh = V.get(4); vG = V.get(4); vG2 = V.get(4); vT = V.get(8)
    vY = V.get(4); vSc = V.get(8); vQ = V.get(12); vD = V.get(12); vW = V.get(24); vKV = V.get(96 + 12*voff)
    vXa, vXb, vXo = vY, vSc, vXr
    kreg = lambda i: vKV + 12*voff + 4*i
    vreg = lambda i: vKV + 4*i
    cold = []
    def stamp(n):
        if diag == n or stamps is True or (stamps == 'min' and n == 8) or (isinstance(stamps, tuple) and n in stamps):
            a(f"s_memrealtime {sr(10,2)}"); a("s_waitcnt lgkmcnt(0)"); a(f"s_mov_b32 s{sSt + (n if stamps else 0)}, s10")
    def finish():
        if diag is not None:
            if selw: a(f"s_cmpk_lg_u32 s2, {selw[0]}"); a("s_cbranch_scc1 L_end"); a(f"s_cmp_lg_u32 s{sW}, {selw[1]}"); a("s_cbranch_scc1 L_end")
            a(f"s_sub_u32 s{sSt}, s{sSt}, s{sStart}"); a(f"s_mul_i32 s{sSt}, s{sSt}, {amp or 1}"); a(f"s_add_u32 s{sSt}, s{sSt}, 5000")
            lp = a.newlabel("pad"); a.label(lp)
            a(f"s_memrealtime {sr(sTm,2)}"); a("s_waitcnt lgkmcnt(0)")
            a(f"s_sub_u32 s{sTm}, s{sTm}, s{sStart}"); a(f"s_cmp_lt_u32 s{sTm}, s{sSt}"); a(f"s_cbranch_scc1 {lp}")
        elif stamps:
            lp = a.newlabel("pad"); a.label(lp)
            a(f"s_memrealtime {sr(sTm,2)}"); a("s_waitcnt lgkmcnt(0)")
            a(f"s_sub_u32 s{sTm}, s{sTm}, s{sStart}"); a(f"s_cmp_lt_u32 s{sTm}, 3000"); a(f"s_cbranch_scc1 {lp}")
            a(f"s_mov_b32 s{sSt+13}, s{sReg}"); a(f"s_mov_b32 s{sSt+14}, s{sStart}"); a(f"s_mov_b32 s{sSt+15}, s{sSpin}")
            a(f"s_lshl_b32 s{sT0}, s{sP}, 3"); a(f"s_add_u32 s{sT0}, s{sT0}, s{sW}"); a(f"s_lshl_b32 s{sT0}, s{sT0}, 6")
            if trace:
                a("s_mov_b64 exec, -1")
                a(f"s_lshl_b32 s{sT1}, s{sT0}, 2"); a(f"s_add_u32 s{sT1}, s{sT1}, {WS_ST + 0x100000}")
                a(f"v_lshl_add_u32 v{vT}, v{vL}, 2, s{sT1}")
                a(f"buffer_store_dword v{vTr}, v{vT}, {sr(dWS,4)}, 0 offen")
            a("s_mov_b64 exec, 1")
            a(f"s_add_u32 s{sT0}, s{sT0}, {WS_ST}"); a(f"v_mov_b32 v{vT}, s{sT0}")
            for q in range(4):
                for k in range(4): a(f"v_mov_b32 v{vKV+80+4*q+k}, s{sSt+4*q+k}")
                a(f"buffer_store_dwordx4 {vr(vKV+80+4*q,4)}, v{vT}, {sr(dWS,4)}, 0 offen offset:{16*q}")
        a("s_endpgm")
    def rne(dst, src):
        a(f"v_cvt_pk_bf16_f32 v{dst}, v{src}, v{src}"); a(f"v_and_b32 v{dst}, 0xffff0000, v{dst}")
    def rne_pairs(regs):
        for x, y in zip(regs[0::2], regs[1::2]): a(f"v_cvt_pk_bf16_f32 v{y}, v{x}, v{y}")
        for x, y in zip(regs[0::2], regs[1::2]):
            a(f"v_lshlrev_b32 v{x}, 16, v{y}"); a(f"v_and_b32 v{y}, 0xffff0000, v{y}")
    DP = "row_mask:0xf bank_mask:0xf"
    R8 = ("quad_perm:[1,0,3,2]", "quad_perm:[2,3,0,1]", "row_half_mirror")
    def red8(op, regs, steps=R8):
        for m in steps:
            for r in regs: a(f"{op}_dpp v{r}, v{r}, v{r} {m} {DP}")
    def red_hi(op, regs):
        for r in regs: a(f"{op}_dpp v{r}, v{r}, v{r} row_ror:8 {DP}")
        for r in regs: a(f"{op}_dpp v{r}, v{r}, v{r} row_bcast:15 row_mask:0xa bank_mask:0xf")
        for r in regs: a(f"{op}_dpp v{r}, v{r}, v{r} row_bcast:31 row_mask:0xc bank_mask:0xf")
    def buildA(dst, dup, e=None):
        for k in range(4): (e or a)(f"v_and_b32 v{dst+k}, v{dup}, v{vM+k}")
    def mfma(d, A_, B_, c, e=None): (e or a)(f"v_mfma_f32_16x16x32_bf16 {vr(d,4)}, {vr(A_,4)}, {vr(B_,4)}, {'0' if c is None else vr(c,4)}")
    def or_all(dst, rs, e=None):
        e = e or a
        e(f"v_or3_b32 v{dst}, v{rs[0]}, v{rs[1]}, v{rs[2]}"); rs = rs[3:]
        while rs:
            if len(rs) >= 2: e(f"v_or3_b32 v{dst}, v{dst}, v{rs[0]}, v{rs[1]}"); rs = rs[2:]
            else: e(f"v_or_b32 v{dst}, v{dst}, v{rs[0]}"); rs = rs[1:]
    def untag(sets):
        for g in sets:
            for k in range(4): a(f"v_xor_b32 v{g+k}, s{sTag[k]}, v{g+k}")
        or_all(vT, [g+k for g in sets for k in range(4)])
        if trim: a(f"v_cmp_ne_u32_sdwa vcc, v{vT}, v{vZ} src0_sel:BYTE_0 src1_sel:DWORD")
        else:
            a(f"v_and_b32 v{vT}, 0xff, v{vT}")
            a(f"v_cmp_ne_u32 vcc, 0, v{vT}")
    def pub(text, name, cmp=True):
        ls = a.newlabel("pubslow"); lb = a.newlabel("pubback")
        if cmp: a(f"s_cmp_lg_u32 s{sReg}, 0")
        a(f"s_cbranch_scc1 {ls}")
        a(text, name)
        a.label(lb)
        cold.append([ls + ":", "    " + text + " sc1", f"    s_branch {lb}"])
    def retry(label, loads):
        lr = a.newlabel("retry")
        a(f"s_cbranch_vccnz {lr}")
        cold.append([lr + ":", f"    s_sub_u32 s{sSpin}, s{sSpin}, 1", "    s_cbranch_scc1 L_end"] + ["    " + t for t in loads] +
                    ["    s_waitcnt vmcnt(0)", f"    s_branch {label}"])
    def arrive(k):
        a("s_mov_b64 exec, 1"); a(f"ds_add_u32 v{vZ}, v{vZ+1} offset:{LDS_CNT+4*k}"); a("s_mov_b64 exec, -1")
    def await_all(k, reads):
        lb = a.newlabel("await"); a.label(lb)
        a(f"ds_read_b32 v{vCn}, v{vZ} offset:{LDS_CNT+4*k}")
        reads()
        a(f"s_sub_u32 s{sSpin}, s{sSpin}, 1"); a("s_cbranch_scc1 L_end")
        a("s_waitcnt lgkmcnt(0)")
        a(f"v_cmp_ne_u32 vcc, 8, v{vCn}"); a(f"s_cbranch_vccnz {lb}")
    def red_read(base):
        b = base // 256
        for q in range(4): a(f"ds_read2st64_b32 {vr(vT+2*q,2)}, v{vRedR} offset0:{b+12*q} offset1:{b+12*q+6}")
    def pk(d, x, y): a(f"v_pk_add_f32 {vr(d,2)}, {vr(x,2)}, {vr(y,2)}")
    def red_sum8(dst, tag):
        if trim:
            a("s_waitcnt lgkmcnt(2)"); pk(vT, vT, vT+2)
            a("s_waitcnt lgkmcnt(1)"); pk(vT, vT, vT+4)
            a("s_waitcnt lgkmcnt(0)"); pk(vT, vT, vT+6)
            a(f"v_pk_add_f32 {vr(vT,2)}, {vr(vT,2)}, {vr(vT,2)} op_sel:[0,1] op_sel_hi:[1,0]")
            a(f"v_permlane32_swap_b32 v{vT}, v{vT+1}")
            a(f"v_add_f32 v{vT}, v{vT}, v{vT+1}")
            a(f"v_and_or_b32 v{dst}, v{vT}, s{sMask}, v{tag}")
            return
        a("s_waitcnt lgkmcnt(2)")
        a(f"v_add_f32 v{vT}, v{vT}, v{vT+1}"); a(f"v_add_f32 v{vT+2}, v{vT+2}, v{vT+3}")
        a("s_waitcnt lgkmcnt(1)")
        a(f"v_add_f32 v{vT+4}, v{vT+4}, v{vT+5}"); a(f"v_add_f32 v{vT}, v{vT}, v{vT+2}")
        a("s_waitcnt lgkmcnt(0)")
        a(f"v_add_f32 v{vT+6}, v{vT+6}, v{vT+7}"); a(f"v_add_f32 v{vT}, v{vT}, v{vT+4}")
        a(f"v_add_f32 v{vT+1}, v{vT}, v{vT+6}"); a(f"v_add_f32 v{vT}, v{vT}, v{vT+6}")
        a(f"v_permlane32_swap_b32 v{vT}, v{vT+1}")
        a(f"v_add_f32 v{vT}, v{vT}, v{vT+1}")
        a(f"v_and_or_b32 v{dst}, v{vT}, s{sMask}, v{tag}")

    stream = [("K", i) for i in range(kfirst)] + [("S", i) for i in range(6)] + [("K", i) for i in range(kfirst, 24)]
    if w4early: stream.insert(kfirst + 6, ("W", 4))
    stream += [("V", i) for i in range(24)] + [("W", i) for i in range(4 if w4early else 5)]
    w4reg = vKV + 20 if w4early else vW + 16
    limit = [len(stream) - hold]
    idx = {f"{t}{i}": n for n, (t, i) in enumerate(stream)}
    kdone = [0]; pos = [0]; arrived = [-1]; deep = [False]
    def load(t, i):
        if t in "KV":
            g, j = divmod(i, 3)
            if t == "V": assert g - voff < kdone[0], "V load overwrites unconsumed K"
            so = "0" if g < 2 else f"s{sOff[(g>>1)-1]}"
            a(f"buffer_load_dwordx4 {vr(kreg(i) if t == 'K' else vreg(i),4)}, v{vKoff}, {sr(dK if t == 'K' else dV,4)}, {so} offen offset:{3072*(g&1)+128*j} {ld}", f"{t}{i}")
        elif t == "S":
            a(f"buffer_load_dwordx4 {vr(vW+4*i,4)}, v{(vS1a, vS1a, vS1a, vS1b, vS1b, vS1c)[i]}, {sr(dS1,4)}, {('0', f's{sS1}', f's{sS2}')[i % 3]} offen {ld}", f"S{i}")
        elif i < 4:
            a(f"buffer_load_dwordx4 {vr(vW+4*i,4)}, v{vWo}, {sr(dWO,4)}, 0 offen offset:{1280*i} {ld}", f"W{i}")
        else:
            a(f"buffer_load_dwordx4 {vr(w4reg,4)}, v{vW2o}, {sr(dW2,4)}, 0 offen {ld}", "W4")
    def wait_idx(n, extra=""):
        if n > arrived[0] or extra:
            t, i = stream[n]; a.wait_vm(f"{t}{i}", extra); arrived[0] = max(arrived[0], n)
    nchk = [0]
    def thr(p): return int(pace[0] + pace[1]*p) + relax*nchk[0]
    def step(n=1):
        for _ in range(n):
            p = pos[0]
            if p >= limit[0]: return
            if trace == 1 and p >= DH:
                a(f"s_memrealtime {sr(4,2)}"); a("s_waitcnt lgkmcnt(0)"); a(f"v_writelane_b32 v{vTr}, s4, {p}")
            if deep[0] or (pace and p >= limit[0] - lastdeep): wait_idx(p - 4)
            elif pace and p >= pfrom:
                if p - D > arrived[0] or tpost:
                    if not tpost: a(f"s_memrealtime {sr(sTm,2)}")
                    wait_idx(p - DH, "lgkmcnt(0)")
                    if gbase == p:
                        a.c("measure 'behind' from the mean start of the eight groups once all have posted")
                        a(f"s_min_u32 s{sTm+1}, s4, s5")
                        for k in range(6, 12): a(f"s_min_u32 s{sTm+1}, s{sTm+1}, s{k}")
                        for k in range(5, 12): a(f"s_add_u32 s4, s4, s{k}")
                        a(f"s_lshl_b32 s5, s{sStart}, 3"); a("s_sub_u32 s4, s4, s5"); a("s_ashr_i32 s4, s4, 3")
                        a(f"s_cmp_eq_u32 s{sTm+1}, 0"); a("s_cselect_b32 s4, 0, s4"); a(f"s_add_u32 s{sBase}, s{sBase}, s4")
                    for k, (pp, pr) in enumerate(anchors):
                        if pp == p:
                            a(f"s_cmp_eq_u32 s{sSmp}, 0"); a(f"s_cbranch_scc1 L_post{k}")
                            a.label(f"L_postback{k}")
                            c = Asm(); c.label(f"L_post{k}")
                            c.c("32 sample waves add their clock (and a count) to a word of the zeroed debug buffer")
                            c(f"s_and_b32 s{sTm+1}, s{sTm}, 0xfffff"); c(f"s_bitset1_b32 s{sTm+1}, 26")
                            c("s_mov_b64 exec, 1"); c(f"v_mov_b32 v{vCn}, s{sTm+1}")
                            c(f"buffer_atomic_add v{vCn}, off, {sr(dDBG,4)}, 0 offset:{64*k}")
                            c("s_mov_b64 exec, -1"); c(f"s_branch L_postback{k}")
                            cold.append(c.out)
                        if pr == p:
                            a.c("measure 'behind' from the samples' mean once all 32 are in")
                            a(f"s_lshl_b32 s{sTm+1}, s{sTm}, 5"); a(f"s_sub_u32 s{sTm+1}, s{sAn}, s{sTm+1}")
                            a(f"s_bfe_i32 s{sTm+1}, s{sTm+1}, {(15 << 16) | 5:#x}")
                            a(f"s_add_u32 s{sTm+1}, s{sTm+1}, s{sTm}"); a(f"s_sub_u32 s{sTm+1}, s{sTm+1}, {thr(pp) - (aoff[k] if isinstance(aoff, tuple) else aoff)}")
                            a(f"s_bitcmp1_b32 s{sAn}, 31"); a(f"s_cselect_b32 s{sBase}, s{sTm+1}, s{sBase}")
                            if trace == 2: a(f"s_lshr_b32 s{sAn}, s{sAn}, 26"); a(f"v_writelane_b32 v{vTr}, s{sAn}, {60+k}")
                    a(f"s_sub_u32 s{sTm}, s{sTm}, s{sBase}")
                    if trace == 2: a(f"s_sub_u32 s{sTm+1}, s{sTm}, {thr(p) - 100000}"); a(f"v_writelane_b32 v{vTr}, s{sTm+1}, {p}")
                    if p - D > arrived[0]:
                        lb = a.newlabel("deep")
                        if bucket:
                            a(f"s_lshr_b32 s{sTm+1}, s{sAn}, {bucket[2]}"); a(f"s_add_u32 s{sBase}, s{sBase}, s{sTm+1}"); a(f"s_add_u32 s{sAn}, s{sAn}, {bucket[0]}")
                        if hi5:
                            l4 = a.newlabel("deeper")
                            a(f"s_cmpk_gt_i32 s{sTm}, {thr(p) + hi5}"); a(f"s_cbranch_scc1 {lb}")
                            t, i = stream[p - 4]; a.wait_vm(f"{t}{i}"); a.hist[-1].states = 0
                        a(f"s_cmpk_gt_i32 s{sTm}, {thr(p)}")
                        if adj: a(f"s_cselect_b32 s{sBase}, s{sStart+1}, s{sStart}")
                        a(f"s_cbranch_scc1 {lb}")
                        th = thr(p)
                        if bucket:
                            a(f"s_sub_i32 s{sAn}, s{sAn}, {bucket[0] + bucket[1]}"); a.hist[-1].states = 0
                            a(f"s_max_i32 s{sAn}, s{sAn}, 0"); a.hist[-1].states = 0
                        if relax and p < endrelax: a(f"s_sub_u32 s{sBase}, s{sBase}, {relax}"); a.hist[-1].states = 0; nchk[0] += 1
                        t, i = stream[p - D + (1 if (thin and p % thin == thinph and p < thinto) or p >= endthin else 0)]; a.wait_vm(f"{t}{i}"); a.hist[-1].states = 0
                        if lo2:
                            a(f"s_cmpk_gt_i32 s{sTm}, {th - lo2}"); a.hist[-1].states = 0
                            a(f"s_cbranch_scc1 {lb}"); a.hist[-1].states = 0
                            t, i = stream[p - D + 1]; a.wait_vm(f"{t}{i}"); a.hist[-1].states = 0
                        a.label(lb)
            elif p >= D: wait_idx(p - D)
            load(*stream[p]); pos[0] += 1
            if diag == 100 + p: stamp(diag)
            if pace and tpost and pfrom <= p + 1 < limit[0] - lastdeep:
                a(f"s_memrealtime {sr(sTm,2)}")
                if gbase == p + 1: a(f"s_buffer_load_dwordx8 s[4:11], {sr(dDBG,4)}, 0")
                for k, (pp, pr) in enumerate(anchors):
                    if pr == p + 1: a(f"s_buffer_load_dword s{sAn}, {sr(dDBG,4)}, {64*k}")
    def need(name):
        n = idx[name]
        while arrived[0] < n and pos[0] < limit[0]: step()
        wait_idx(n)
    def issue_to(name):
        while pos[0] <= idx[name]: step()
    def phase(name):
        deep[0] = name in hi

    a("s_cmpk_ge_u32 s2, 256"); a("s_cbranch_scc1 L_end")
    a("s_load_dwordx16 s[4:19], s[0:1], 0")
    a("s_load_dwordx8 s[20:27], s[0:1], 64")
    a(f"s_memrealtime {sr(sStart,2)}")
    a(f"v_lshrrev_b32 v{vT}, 6, v0")
    a(f"v_and_b32 v{vL}, 63, v0")
    a(f"v_readfirstlane_b32 s{sW}, v{vT}")
    a(f"s_and_b32 s{sG}, s2, 7"); a(f"s_lshr_b32 s{sC}, s2, 3")
    a(f"s_lshl_b32 s{sP}, s{sG}, 5"); a(f"s_add_u32 s{sP}, s{sP}, s{sC}")
    a(f"v_lshrrev_b32 v{vSlot}, 3, v{vL}"); a(f"v_and_b32 v{vCh}, 7, v{vL}")
    def kaddr():
        a(f"s_lshl_b32 s{sT0}, s{sP}, 3"); a(f"s_add_u32 s{sT0}, s{sT0}, s{sW}"); a(f"s_mul_i32 s{sT0}, s{sT0}, 24576")
        a(f"v_mul_u32_u24 v{vKoff}, 384, v{vSlot}")
        a(f"v_lshl_add_u32 v{vT+1}, v{vCh}, 4, s{sT0}")
        a(f"v_add_u32 v{vKoff}, v{vKoff}, v{vT+1}")
        a(f"s_mov_b32 s{dK+2}, 50331648"); a(f"s_mov_b32 s{dK+3}, 0x20000")
    if kfirst: kaddr()
    a(f"s_lshr_b32 s{sH}, s{sP}, 3"); a(f"s_and_b32 s{sS}, s{sP}, 7")
    a(f"v_mov_b32 v{vZ}, 0"); a(f"v_mov_b32 v{vZ+1}, 0")
    a(f"ds_write_b64 v{vZ}, {vr(vZ,2)} offset:{LDS_CNT}")
    a.c("stage-1 role: waves 0-4 take 16 rows x 192 columns of wq, waves 5-7 take 48/40/40 rows x 64 columns of w1 or w3")
    a(f"s_max_u32 s{sT0}, s{sC}, 2"); a(f"s_sub_u32 s{sT0}, s{sT0}, 2")
    a(f"s_mul_i32 s{sPhi}, s{sT0}, 52"); a(f"s_lshr_b32 s{sPhi}, s{sPhi}, 8")
    a(f"s_mul_i32 s{sT1}, s{sPhi}, 5"); a(f"s_sub_u32 s{sK}, s{sT0}, s{sT1}")
    a(f"s_lshl_b32 s{sT0}, s{sK}, 7"); a(f"s_mul_i32 s{sT1}, s{sW}, 40"); a(f"s_add_u32 s{sT0}, s{sT0}, s{sT1}")
    a(f"s_cmp_eq_u32 s{sW}, 5"); a(f"s_cselect_b32 s{sT1}, 8, 0"); a(f"s_sub_u32 s{sT0}, s{sT0}, s{sT1}"); a(f"s_sub_u32 s{sT0}, s{sT0}, 192")
    a(f"s_lshr_b32 s{sT1}, s{sPhi}, 1"); a(f"s_mul_i32 s{sT2}, s{sG}, 3"); a(f"s_add_u32 s{sT1}, s{sT1}, s{sT2}"); a(f"s_lshl_b32 s{sT1}, s{sT1}, 7")
    a(f"s_cmp_lt_u32 s{sC}, 2"); a(f"s_cselect_b32 s{sT1}, {OOB}, s{sT1}")
    a(f"s_mul_i32 s{sT2}, s{sS}, 80"); a(f"s_lshl_b32 s{sT3}, s{sW}, 4"); a(f"s_add_u32 s{sT2}, s{sT2}, s{sT3}")
    a(f"s_mul_i32 s{sT3}, s{sH}, 384")
    a(f"s_cmp_lt_u32 s{sW}, 5")
    a(f"s_cselect_b32 s{sT0}, s{sT2}, s{sT0}"); a(f"s_cselect_b32 s{sT1}, s{sT3}, s{sT1}")
    a(f"s_cselect_b32 s{sT2}, 12, 3"); a(f"s_cselect_b32 s{sT3}, 4, 3"); a(f"s_cselect_b32 s{sQo}, 1, 192")
    a(f"s_lshl_b32 s{sT2}, s{sT2}, 10")
    a(f"s_mul_i32 s{dS1+2}, s{sT2}, 640"); a(f"s_mov_b32 s{dS1+3}, 0x20000")
    a(f"v_add_u32 v{vT}, s{sT0}, v{vSlot}")
    a(f"v_mul_lo_u32 v{vS1a}, v{vT}, s{sT2}")
    a(f"v_lshl_add_u32 v{vT+1}, v{vCh}, 4, s{sT1}")
    a(f"v_add_u32 v{vS1a}, v{vS1a}, v{vT+1}")
    a(f"s_lshl_b32 s{sS1}, s{sQo}, 7"); a(f"s_lshl_b32 s{sS2}, s{sQo}, 8")
    a("s_waitcnt lgkmcnt(0)")
    def s1desc():
        a(f"s_bitcmp1_b32 s{sPhi}, 0"); a(f"s_cselect_b64 {sr(dS1,2)}, {sr(pW3,2)}, {sr(pW1,2)}")
        a(f"s_cmp_lt_u32 s{sW}, 5"); a(f"s_cselect_b64 {sr(dS1,2)}, {sr(pWQ,2)}, {sr(dS1,2)}")
    if kfirst:
        a(f"s_mov_b64 {sr(dK,2)}, {sr(pK,2)}"); step(kfirst); s1desc(); step(3 - kfirst)
    else:
        s1desc()
        if rr:
            a.c("the waves take turns, so that their loads alternate in the CU's queue from the start")
            step(1); a("s_barrier"); step(1); a("s_barrier"); step(1)
            if rr > 1: a("s_barrier")
        else: step(3)
        a(f"s_mov_b64 {sr(dK,2)}, {sr(pK,2)}")
    a(f"s_load_dword s{sE}, {sr(pWS,2)}, {WS_E}")
    a(f"s_mov_b64 {sr(dX,2)}, {sr(pX,2)}"); a(f"s_mov_b32 s{dX+2}, 1280"); a(f"s_mov_b32 s{dX+3}, 0x20000")
    a(f"v_lshlrev_b32 v{vL16}, 4, v{vL}"); a(f"v_lshlrev_b32 v{vT+4}, 2, v{vL}")
    a(f"v_add_lshl_u32 v{vT+2}, v{vL}, s{sT0}, 1")
    a(f"buffer_load_dwordx4 {vr(vXa,4)}, v{vL16}, {sr(dX,4)}, 0 offen", "xa")
    a(f"buffer_load_dword v{vXb}, v{vT+4}, {sr(dX,4)}, 0 offen offset:1024", "xb")
    a(f"buffer_load_ushort v{vXr}, v{vT+2}, {sr(dX,4)}, 0 offen", "xr")
    if not rr: a("s_barrier")
    a(f"s_mul_i32 s{sT3}, s{sT3}, 24576")
    a(f"v_add_u32 v{vS1b}, s{sT3}, v{vS1a}")
    a(f"s_cmp_lt_u32 s{sW}, 6"); a(f"s_cselect_b32 s{sT3}, 0, {OOB}")
    a(f"v_or_b32 v{vS1c}, s{sT3}, v{vS1b}")
    if not kfirst: kaddr()
    a(f"v_mov_b32 v{vZ+1}, 1")
    if diag is not None: a(f"s_mov_b32 s{sSt}, s{sStart}")
    if trace: a(f"v_mov_b32 v{vTr}, 0")
    if stamps:
        for i in range(13): a(f"s_mov_b32 s{sSt+i}, 0")
    if prefetch:
        a.c("pull this kernel's code into the L2 (each wave one line)")
        a(f"s_getpc_b64 {sr(sTm,2)}")
        a(f"s_lshl_b32 s{sT0}, s{sC}, 3"); a(f"s_add_u32 s{sT0}, s{sT0}, s{sW}"); a(f"s_and_b32 s{sT0}, s{sT0}, 63")
        a(f"s_lshl_b32 s{sT0}, s{sT0}, 7"); a(f"s_addk_i32 s{sT0}, 768")
        a(f"s_load_dword s{sCnt}, {sr(sTm,2)}, s{sT0}")
    a(f"s_mov_b64 {sr(dV,2)}, {sr(pV,2)}"); a(f"s_mov_b32 s{dV+2}, 50331648"); a(f"s_mov_b32 s{dV+3}, 0x20000")
    a(f"s_mov_b64 {sr(dWS,2)}, {sr(pWS,2)}"); a(f"s_mov_b32 s{dWS+2}, {WS_SIZE}"); a(f"s_mov_b32 s{dWS+3}, 0x20000")
    a(f"s_mov_b64 {sr(dOUT,2)}, {sr(pOUT,2)}"); a(f"s_mov_b32 s{dOUT+2}, 1280"); a(f"s_mov_b32 s{dOUT+3}, 0x20000")
    a(f"s_mov_b32 s{dWO+2}, 7864320"); a(f"s_mov_b32 s{dWO+3}, 0x20000")
    a(f"s_mov_b32 s{dW2+2}, 1966080"); a(f"s_mov_b32 s{dW2+3}, 0x20000")
    for i in range(3): a(f"s_mov_b32 s{sOff[i]}, {6144*(i+1)}")
    a(f"s_mov_b32 s{sBase}, s{sStart}")
    if adj: a(f"s_sub_u32 s{sStart+1}, s{sStart}, {adj}")
    if bucket: a(f"s_mov_b32 s{sAn}, 0")
    if gbase:
        a.c("one wave per group posts its start time in the zeroed debug buffer")
        a(f"s_mov_b32 s{dDBG+2}, 256"); a(f"s_mov_b32 s{dDBG+3}, 0x20000")
        a(f"s_or_b32 s{sT0}, s{sStart}, 1"); a(f"v_mov_b32 v{vT}, s{sT0}")
        a(f"s_lshl_b32 s{sT0}, s{sG}, 2"); a(f"s_or_b32 s{sT1}, s{sC}, s{sW}"); a(f"s_cselect_b32 s{sT0}, {OOB}, s{sT0}")
        a(f"v_mov_b32 v{vT+1}, s{sT0}")
        a(f"buffer_store_dword v{vT}, v{vT+1}, {sr(dDBG,4)}, 0 offen sc1")
    if anchors:
        a(f"s_mov_b32 s{dDBG+2}, 256"); a(f"s_mov_b32 s{dDBG+3}, 0x20000")
        a.c("sample waves: one per head, every wave number equally often")
        a(f"s_add_u32 s{sSmp}, s{sH}, s{sW}"); a(f"s_and_b32 s{sSmp}, s{sSmp}, 7"); a(f"s_xor_b32 s{sT0}, s{sS}, 3"); a(f"s_or_b32 s{sSmp}, s{sSmp}, s{sT0}")
    a(f"s_mov_b32 s{sSpin}, {spin}"); a(f"s_mov_b32 s{sReg}, 0"); a(f"s_mov_b32 s{sMask}, 0xffffff00")
    a(f"s_mov_b32 s{sVal}, 0x00ff00ff"); a(f"s_mov_b32 s{sVal+1}, 0xff00ff00")
    a.c("MFMA A-operand masks")
    a(f"v_and_b32 v{vT}, 1, v{vL}"); a(f"v_lshlrev_b32 v{vT}, 4, v{vT}")
    a(f"v_mov_b32 v{vT+1}, 0xffff"); a(f"v_lshlrev_b32 v{vT}, v{vT}, v{vT+1}")
    a(f"v_lshrrev_b32 v{vT+1}, 1, v{vCh}")
    for k in range(4):
        a(f"v_cmp_eq_u32 vcc, {k}, v{vT+1}"); a(f"v_cndmask_b32 v{vM+k}, 0, v{vT}, vcc")
    a.c("LDS reduce addresses")
    a(f"v_lshrrev_b32 v{vT+2}, 5, v{vL}"); a(f"v_mul_u32_u24 v{vT}, 768, v{vT+2}")
    a(f"v_bfe_u32 v{vT+1}, v{vL}, 4, 1"); a(f"v_lshl_add_u32 v{vT+1}, v{vCh}, 1, v{vT+1}")
    a(f"v_lshl_add_u32 v{vT+1}, v{vT+1}, 4, v{vT}")
    a(f"s_mul_i32 s{sT0}, s{sW}, 1536")
    a(f"v_add_u32 v{vRedW}, s{sT0}, v{vT+1}")
    a(f"v_and_b32 v{vT+3}, 31, v{vL}")
    a(f"s_sub_u32 s{sT3}, s{sW}, 6"); a(f"s_min_u32 s{sT3}, s{sT3}, s{sW}")
    a(f"s_lshl_b32 s{sT0}, s{sT3}, 7")
    a(f"v_lshl_add_u32 v{vT+1}, v{vT+3}, 2, s{sT0}")
    a(f"v_add_u32 v{vRedR}, v{vT}, v{vT+1}")
    a.c("publish offsets: waves 0-5 lanes 0-31 q/o slot, waves 6-7 lanes 32-63 ffn slot, wave 7 lane 0 die id")
    a(f"s_mul_i32 s{sT0}, s{sH}, 6"); a(f"s_add_u32 s{sT0}, s{sT0}, s{sW}"); a(f"s_lshl_b32 s{sT0}, s{sT0}, 10")
    a(f"s_lshl_b32 s{sT1}, s{sS}, 4"); a(f"s_add_u32 s{sT0}, s{sT0}, s{sT1}"); a(f"s_add_u32 s{sT0}, s{sT0}, {WS_QP}")
    a(f"s_lshl_b32 s{sFo}, s{sG}, 13"); a(f"s_add_u32 s{sFo}, s{sFo}, {WS_FP}")
    a(f"s_and_b32 s{sT1}, s{sPhi}, 6"); a(f"s_add_u32 s{sT1}, s{sT1}, s{sT3}"); a(f"s_mul_i32 s{sT1}, s{sT1}, 1280")
    a(f"s_and_b32 s{sT2}, s{sPhi}, 1"); a(f"s_mul_i32 s{sT2}, s{sT2}, 5"); a(f"s_add_u32 s{sT2}, s{sT2}, s{sK}"); a(f"s_lshl_b32 s{sT2}, s{sT2}, 4")
    a(f"s_add_u32 s{sT1}, s{sT1}, s{sT2}"); a(f"s_add_u32 s{sT1}, s{sT1}, s{sFo}")
    a(f"s_cmp_lt_u32 s{sC}, 2"); a(f"s_cselect_b32 s{sT1}, {OOB}, s{sT1}")
    a(f"s_cmp_lt_u32 s{sW}, 6"); a(f"s_cselect_b32 s{sT0}, s{sT0}, {OOB}"); a(f"s_cselect_b32 s{sT1}, {OOB}, s{sT1}")
    a(f"v_lshrrev_b32 v{vT}, 2, v{vT+3}")
    a(f"v_lshl_add_u32 v{vT+1}, v{vT}, 7, s{sT0}")
    a(f"v_mul_u32_u24 v{vT+4}, 160, v{vT}"); a(f"v_add_u32 v{vT+4}, s{sT1}, v{vT+4}")
    a(f"v_cmp_gt_u32 vcc, 32, v{vL}")
    a(f"v_and_b32 v{vT+5}, 3, v{vL}")
    a(f"v_cndmask_b32 v{vT+1}, v{vT+4}, v{vT+1}, vcc")
    a(f"v_lshl_add_u32 v{vPubA}, v{vT+5}, 2, v{vT+1}")
    step(3)
    if skel == 1:
        snap1 = a.snapshot()
    a.c("stage-3 task: range rho = c/10, slab k = c%10 (c >= 30: reducers, slab (c-30)*8+G)")
    a(f"s_mul_i32 s{sT0}, s{sC}, 26"); a(f"s_lshr_b32 s{sT0}, s{sT0}, 8")
    a(f"s_mul_i32 s{sT1}, s{sT0}, 10"); a(f"s_sub_u32 s{sK}, s{sC}, s{sT1}")
    a(f"s_min_u32 s{sT2}, s{sT0}, 2"); a(f"s_lshl_b32 s{sT2}, s{sT2}, 3"); a(f"s_add_u32 s{sT3}, s{sT2}, s{sW}")
    a(f"s_mul_i32 s{sT2}, s{sG}, 24"); a(f"s_add_u32 s{sPhi}, s{sT3}, s{sT2}")
    a(f"s_lshl_b32 s{sT2}, s{sK}, 7")
    a(f"s_cmp_lt_u32 s{sC}, 30"); a(f"s_cselect_b32 s{sT2}, s{sT2}, {OOB}")
    a(f"v_lshl_add_u32 v{vT}, v{vCh}, 4, s{sT2}")
    a(f"s_mul_i32 s{sT2}, s{sPhi}, {8*1280}")
    a(f"v_mul_u32_u24 v{vT+1}, 1280, v{vSlot}"); a(f"v_add_u32 v{vT+1}, s{sT2}, v{vT+1}")
    a(f"v_add_u32 v{vW2o}, v{vT}, v{vT+1}")
    a(f"v_lshl_add_u32 v{vWo}, v{vT+1}, 2, v{vT}")
    if skel == 1:
        kdone[0] = 8; limit[0] = len(stream)
        a(f"buffer_store_dword v{vPubD}, v{vPubA}, {sr(dWS,4)}, 0 offen")
        while pos[0] < len(stream): step()
        a("s_waitcnt vmcnt(0)"); finish()
        a.restore(snap1); pos[0] = 6; arrived[0] = 2; kdone[0] = 0
    a.c("y publish offset: both copies of (slab, line w), slot 3G + rho")
    if ylast: a(f"s_lshl_b32 s{sT1}, s{sK}, 14")
    else: a(f"s_lshl_b32 s{sT1}, s{sK}, 2"); a(f"s_add_u32 s{sT1}, s{sT1}, s{sW}"); a(f"s_lshl_b32 s{sT1}, s{sT1}, 12")
    a(f"s_mul_i32 s{sT2}, s{sG}, 3"); a(f"s_add_u32 s{sT2}, s{sT2}, s{sT0}"); a(f"s_lshl_b32 s{sT2}, s{sT2}, 7")
    a(f"s_add_u32 s{sT1}, s{sT1}, s{sT2}"); a(f"s_add_u32 s{sT1}, s{sT1}, {WS_YP}")
    a(f"v_lshl_add_u32 v{vYo}, v{vT+3}, 2, s{sT1}"); a(f"v_lshl_add_u32 v{vYo}, v{vT+2}, {12 if ylast else 13}, v{vYo}")
    a.c("gather offsets")
    a(f"s_min_u32 s{sT0}, s{sW}, 5"); a(f"s_mul_i32 s{sT1}, s{sH}, 6"); a(f"s_add_u32 s{sT0}, s{sT0}, s{sT1}")
    a(f"s_lshl_b32 s{sT0}, s{sT0}, 10"); a(f"s_add_u32 s{sQo}, s{sT0}, {WS_QP}")
    a(f"s_mul_i32 s{sT3}, s{sT3}, 320")
    a(f"v_lshrrev_b32 v{vT}, 4, v{vL}"); a(f"v_mul_u32_u24 v{vT}, 80, v{vT}"); a(f"v_add_u32 v{vT}, s{sT3}, v{vT}")
    a(f"v_and_b32 v{vT+1}, 15, v{vL}"); a(f"v_cmp_gt_u32 vcc, 5, v{vT+1}")
    a(f"v_mov_b32 v{vT+1}, 7680")
    a(f"v_cndmask_b32 v{vT}, v{vT+1}, v{vT}, vcc"); a(f"v_lshl_add_u32 v{vFo}, v{vCh}, 4, v{vT}")
    phase("s1")
    step(1)
    a.wait_vm("xr")
    xs = [vQ + i for i in range(10)]
    for i in range(5):
        src = vXa + i if i < 4 else vXb
        a(f"v_lshlrev_b32 v{xs[2*i]}, 16, v{src}"); a(f"v_and_b32 v{xs[2*i+1]}, 0xffff0000, v{src}")
    a(f"v_add_f32 v{vT}, v{xs[0]}, v{xs[1]}"); a(f"v_add_f32 v{vT+1}, v{xs[2]}, v{xs[3]}")
    for i in range(4, 10): a(f"v_add_f32 v{vT+(i&1)}, v{vT+(i&1)}, v{xs[i]}")
    a(f"v_add_f32 v{vT}, v{vT}, v{vT+1}")
    red8("v_add_f32", [vT]); red_hi("v_add_f32", [vT])
    a(f"v_readlane_b32 s{sT0}, v{vT}, 63")
    a(f"v_mov_b32 v{vT+2}, {f2u(1/640.):#x}")
    step(1)
    a(f"v_mul_f32 v{vT+3}, s{sT0}, v{vT+2}")
    for i in range(10): a(f"v_sub_f32 v{xs[i]}, v{xs[i]}, v{vT+3}")
    a(f"v_mul_f32 v{vT}, v{xs[0]}, v{xs[0]}"); a(f"v_mul_f32 v{vT+1}, v{xs[1]}, v{xs[1]}")
    for i in range(2, 10): a(f"v_fmac_f32 v{vT+(i&1)}, v{xs[i]}, v{xs[i]}")
    a(f"v_add_f32 v{vT}, v{vT}, v{vT+1}")
    step(1)
    red8("v_add_f32", [vT]); red_hi("v_add_f32", [vT])
    a(f"v_readlane_b32 s{sT0}, v{vT}, 63")
    a(f"v_lshlrev_b32 v{vXr}, 16, v{vXr}")
    rne(vT+3, vT+3)
    a(f"v_mul_f32 v{vT+2}, s{sT0}, v{vT+2}")
    a(f"v_sub_f32 v{vXr}, v{vXr}, v{vT+3}")
    step(1)
    rne(vT+2, vT+2); rne(vXr, vXr)
    a(f"v_add_f32 v{vT+2}, {f2u(1e-5):#x}, v{vT+2}"); rne(vT+2, vT+2)
    a(f"v_sqrt_f32 v{vT+2}, v{vT+2}"); rne(vT+2, vT+2)
    a(f"v_rcp_f32 v{vT+4}, v{vT+2}")
    a(f"v_mul_f32 v{vT}, v{vXr}, v{vT+4}"); a(f"v_fma_f32 v{vT+1}, -v{vT}, v{vT+2}, v{vXr}")
    a(f"v_fma_f32 v{vT}, v{vT+1}, v{vT+4}, v{vT}")
    a(f"v_cvt_pk_bf16_f32 v{vXr}, v{vT}, v{vT}")
    a(f"v_lshlrev_b32 v{vT}, 2, v{vSlot}")
    for i in range(6): a(f"ds_bpermute_b32 v{vSc+i}, v{vT}, v{vXr} offset:{32*i}")
    step(1)
    a.c("hand-off tags of this launch")
    a("s_waitcnt lgkmcnt(0)")
    a(f"s_add_u32 s{sE}, s{sE}, 0x01010101")
    for k in range(4): a(f"s_bfe_u32 s{sTag[k]}, s{sE}, {(8 << 16) | (8*k):#x}")
    a(f"s_getreg_b32 s{sT0}, hwreg(HW_REG_XCC_ID, 0, 4)")
    if forceslow: a(f"s_and_b32 s{sT0}, s{sC}, 1")
    a(f"s_lshl_b32 s{sT0}, s{sT0}, 28"); a(f"s_and_b32 s{sId}, s{sE}, 0x0fffffff"); a(f"s_or_b32 s{sId}, s{sId}, s{sT0}")
    a(f"v_and_b32 v{vT}, 3, v{vL}"); a(f"v_lshlrev_b32 v{vT}, 3, v{vT}")
    a(f"v_bfe_u32 v{vPubD}, s{sE}, v{vT}, 8")
    a(f"s_add_u32 s{sE}, s{sE}, 0x01010101")
    a(f"v_bfe_u32 v{vTg2}, s{sE}, v{vT}, 8")
    a(f"s_mov_b32 s{sCnt}, {timeout}")
    buildA(vA, vSc); buildA(vA2, vSc+1)
    need("S5")
    if s1split: step(1)
    a(f"s_cmp_lt_u32 s{sW}, 5"); a("s_cbranch_scc1 L_s1q")
    for i in range(6):
        mfma(vD, (vA, vA2)[i & 1], vW+4*i, None if i == 0 else vD)
        if i < 4: buildA((vA, vA2)[i & 1], vSc+i+2)
    a("s_nop 0"); a("s_branch L_s1back")
    a.label("L_s1q")
    a.hist = []
    for i in range(6): mfma(vD+4*(i % 3), vA if i < 3 else vA2, vW+4*i, None if i < 3 else vD+4*(i % 3))
    a.label("L_s1back")
    a(f"s_mov_b64 exec, {sr(sVal,2)}")
    for j in range(3): a(f"ds_write_b128 v{vRedW}, {vr(vD+4*j,4)} offset:{LDS_RED+256*j}")
    arrive(0)
    step(nb)
    await_all(0, lambda: red_read(LDS_RED))
    a(f"v_add_f32 v{vT}, v{vT}, v{vT+1}"); a(f"v_add_f32 v{vT+2}, v{vT+2}, v{vT+3}"); a(f"v_add_f32 v{vT+5}, v{vT+5}, v{vT+6}")
    a(f"v_add_f32 v{vT}, v{vT}, v{vT+4}"); a(f"v_add_f32 v{vT+5}, v{vT+5}, v{vT+7}"); a(f"v_add_f32 v{vT}, v{vT}, v{vT+2}")
    a(f"s_lshl_b32 s{sT0}, s{sC}, 2"); a(f"s_add_u32 s{sT0}, s{sT0}, s{sFo}"); a(f"s_add_u32 s{sT0}, s{sT0}, 7680")
    a(f"v_permlane32_swap_b32 v{vT}, v{vT+5}")
    a(f"v_add_f32 v{vT}, v{vT}, v{vT+5}")
    a(f"v_and_or_b32 v{vPubD}, v{vT}, s{sMask}, v{vPubD}")
    a(f"s_cmp_eq_u32 s{sW}, 7"); a("s_cselect_b64 exec, 1, 0")
    a(f"v_mov_b32 v{vPubD}, s{sId}"); a(f"v_mov_b32 v{vPubA}, s{sT0}")
    a("s_mov_b64 exec, -1")
    a(f"buffer_store_dword v{vPubD}, v{vPubA}, {sr(dWS,4)}, 0 offen", "pubq")
    phase("")
    stamp(0)
    issue_to(f"K{qpos-1}")
    def x1loads(q, f): return [f"buffer_load_dwordx4 {vr(vG,4)}, v{vL16}, {sr(dWS,4)}, s{q} offen sc1",
                               f"buffer_load_dwordx4 {vr(vG2,4)}, v{vFo}, {sr(dWS,4)}, s{f} offen sc1"]
    a(x1loads(sQo, sFo)[0], "gq"); a(x1loads(sQo, sFo)[1], "gf")
    a.c("what the ffn gather must hold: tags on the data lanes, this die's id word on the others")
    a(f"v_and_b32 v{vT+1}, 15, v{vL}"); a(f"v_cmp_gt_u32 vcc, 5, v{vT+1}")
    a(f"v_mov_b32 v{vT+1}, s{sId}"); a(f"v_mov_b32 v{vT+2}, 0xff")
    for k in range(4):
        a(f"v_mov_b32 v{vA+k}, s{sTag[k]}"); a(f"v_cndmask_b32 v{vA+k}, v{vT+1}, v{vA+k}, vcc")
    a(f"v_cndmask_b32 v{vA2}, -1, v{vT+2}, vcc")
    step(D - 1)
    phase("x1")
    need(f"K{qpos-1}")
    a.wait_vm("gf")
    a.label("L_x1chk")
    for k in range(4): a(f"v_xor_b32 v{vG+k}, s{sTag[k]}, v{vG+k}")
    for k in range(4): a(f"v_xor_b32 v{vG2+k}, v{vA+k}, v{vG2+k}")
    or_all(vT, [vG+k for k in range(4)]); or_all(vT+1, [vG2+k for k in range(4)])
    a(f"v_and_b32 v{vT}, 0xff, v{vT}"); a(f"v_and_or_b32 v{vT}, v{vT+1}, v{vA2}, v{vT}")
    a(f"v_cmp_ne_u32 vcc, 0, v{vT}")
    a("s_cbranch_vccnz L_x1slow")
    a.label("L_x1ok")
    c = Asm(); c.label("L_x1slow")
    c.c("not all there yet, or a member of the group sits on another die")
    c(f"v_and_b32 v{vT}, 0x0fffffff, v{vT}"); c(f"v_cmp_ne_u32 vcc, 0, v{vT}")
    c("s_cbranch_vccnz L_x1wait")
    c(f"s_mov_b32 s{sReg}, {SLOW}")
    c(f"v_not_b32 v{vT}, v{vA2}")
    for k in range(4): c(f"v_and_b32 v{vG2+k}, v{vT}, v{vG2+k}")
    c(f"buffer_store_dword v{vPubD}, v{vPubA}, {sr(dWS,4)}, s{sReg} offen sc1")
    c("s_branch L_x1ok")
    c.label("L_x1wait")
    c(f"s_sub_u32 s{sSpin}, s{sSpin}, 1"); c("s_cbranch_scc1 L_end")
    c(f"s_sub_u32 s{sCnt}, s{sCnt}, 1")
    c(f"s_cmp_lg_u32 s{sCnt}, 0"); c("s_cbranch_scc1 L_x1nopub")
    c(f"s_mov_b32 s{sT0}, {SLOW}")
    c(f"buffer_store_dword v{vPubD}, v{vPubA}, {sr(dWS,4)}, s{sT0} offen sc1")
    c.label("L_x1nopub")
    c.c("after enough misses publish write-through as well and look at the two areas in turn")
    c(f"s_and_b32 s{sT0}, s{sCnt}, 0x80000001"); c(f"s_cmp_eq_u32 s{sT0}, 0x80000001"); c(f"s_cselect_b32 s{sT0}, {SLOW}, 0")
    c(f"s_add_u32 s{sT1}, s{sT0}, s{sFo}"); c(f"s_add_u32 s{sT0}, s{sT0}, s{sQo}")
    for t in x1loads(sT0, sT1): c(t)
    c("s_waitcnt vmcnt(0)"); c("s_branch L_x1chk")
    cold.append(c.out)
    red8("v_add_f32", [vG+k for k in range(4)])
    a(f"s_min_u32 s{sT0}, s{sW}, 5"); a(f"s_lshl_b32 s{sT0}, s{sT0}, 6")
    a(f"v_cvt_pk_bf16_f32 v{vG}, v{vG}, v{vG+1}"); a(f"v_cvt_pk_bf16_f32 v{vG+1}, v{vG+2}, v{vG+3}")
    a(f"v_lshl_add_u32 v{vT+2}, v{vSlot}, 3, s{sT0}")
    a(f"ds_write_b64 v{vT+2}, {vr(vG,2)} offset:{LDS_Q}")
    arrive(1)
    step(1)
    a.c("SwiGLU for this wave's eight hidden units")
    red8("v_add_f32", [vG2+k for k in range(4)], R8 + ("row_mirror",))
    a(f"v_and_b32 v{vT}, 1, v{vSlot}"); a(f"v_cmp_eq_u32 vcc, 1, v{vT}")
    a(f"v_lshlrev_b32 v{vT+3}, 4, v{vCh}")
    a(f"s_cmp_lt_u32 s{sW}, 6"); a(f"s_cselect_b32 s{sT0}, 0, {OOB}")
    a(f"v_cndmask_b32 v{vG2}, v{vG2}, v{vG2+1}, vcc"); a(f"v_cndmask_b32 v{vG2+2}, v{vG2+2}, v{vG2+3}, vcc")
    a(f"v_or_b32 v{vPubA}, s{sT0}, v{vPubA}")
    step(1)
    rne(vG2, vG2); rne(vG2+2, vG2+2)
    a(f"v_permlane16_swap_b32 v{vG2}, v{vG2+2}")
    a(f"v_mul_f32 v{vT}, {f2u(-1.4426950408889634):#x}, v{vG2}")
    a(f"v_exp_f32 v{vT}, v{vT}"); a(f"v_add_f32 v{vT}, 1.0, v{vT}"); a(f"v_rcp_f32 v{vT}, v{vT}")
    a(f"v_mul_f32 v{vT}, v{vT}, v{vG2}"); rne(vT, vT)
    a(f"v_mul_f32 v{vT}, v{vT}, v{vG2+2}")
    a(f"v_cvt_pk_bf16_f32 v{vT}, v{vT}, v{vT}")
    buildA(vAh, vT)
    if w4early:
        assert pos[0] <= idx["V5"] and voff == 2
        mfma(vY, vAh, w4reg, None)
    step(nb - 2)
    phase("qk")
    def qread():
        for j in range(3): a(f"ds_read_b128 {vr(vQ+4*j,4)}, v{vT+3} offset:{LDS_Q+128*j}")
    await_all(1, qread)
    stamp(1)
    sc = [vSc+g for g in range(8)]
    def dots(g):
        b = kreg(3*g)
        a(f"v_dot2_f32_bf16 v{vSc+g}, v{b}, v{vQ}, 0")
        a(f"v_dot2_f32_bf16 v{vT+g}, v{b+1}, v{vQ+1}, 0")
        for i in range(2, 12):
            d = vSc+g if i % 2 == 0 else vT+g
            a(f"v_dot2_f32_bf16 v{d}, v{b+i}, v{vQ+i}, v{d}")
        kdone[0] = g + 1
    def post(gs):
        r = [vSc+g for g in gs]
        for g in gs: a(f"v_add_f32 v{vSc+g}, v{vSc+g}, v{vT+g}")
        red8("v_add_f32", r); rne_pairs(r)
        for x in r: a(f"v_mul_f32 v{x}, {f2u(192 ** -0.5):#x}, v{x}")
        rne_pairs(r)
    def at(name):
        p0 = pos[0]; need(name)
        if pos[0] == p0: step(1)
    need("K5"); dots(0); dots(1)
    at("K11"); dots(2); dots(3)
    at("K11"); post(range(4))
    at("K17"); dots(4); dots(5)
    at("K20"); dots(6)
    phase("")
    issue_to(stream[idx["K23"] + D - 1][0] + str(stream[idx["K23"] + D - 1][1]))
    phase("sm")
    need("K23"); dots(7)
    step(1)
    post(range(4, 8))
    step(1)
    a(f"v_max3_f32 v{vG}, v{sc[0]}, v{sc[1]}, v{sc[2]}"); a(f"v_max3_f32 v{vG+1}, v{sc[3]}, v{sc[4]}, v{sc[5]}")
    a(f"v_max3_f32 v{vG}, v{vG}, v{sc[6]}, v{sc[7]}"); a(f"v_max_f32 v{vG}, v{vG}, v{vG+1}")
    red_hi("v_max_f32", [vG])
    a(f"v_readlane_b32 s{sMw}, v{vG}, 63")
    L2E = f"{f2u(1.4426950408889634):#x}"
    for r in sc: a(f"v_subrev_f32 v{r}, s{sMw}, v{r}")
    for r in sc: a(f"v_mul_f32 v{r}, {L2E}, v{r}")
    step(1)
    for r in sc: a(f"v_exp_f32 v{r}, v{r}")
    for k in range(4): a(f"v_add_f32 v{vT+k}, v{sc[k]}, v{sc[4+k]}")
    a(f"v_add_f32 v{vT}, v{vT}, v{vT+1}"); a(f"v_add_f32 v{vT+2}, v{vT+2}, v{vT+3}"); a(f"v_add_f32 v{vG+1}, v{vT}, v{vT+2}")
    a.c("(max, sum) of this wave: 16 tag bits under the bf16 max, 8 under the sum")
    a(f"s_and_b32 s{sT2}, s{sId}, 0xffff")
    a(f"s_lshl_b32 s{sT0}, s{sP}, 3"); a(f"s_add_u32 s{sT0}, s{sT0}, s{sW}"); a(f"s_lshl_b32 s{sT0}, s{sT0}, 3")
    red_hi("v_add_f32", [vG+1])
    a(f"s_add_u32 s{sT0}, s{sT0}, {WS_ML}"); a(f"v_mov_b32 v{vT}, s{sT0}")
    a(f"v_or_b32 v{vG}, s{sT2}, v{vG}")
    a(f"v_and_b32 v{vG+1}, 0xffffff00, v{vG+1}"); a(f"v_or_b32 v{vG+1}, s{sTag[2]}, v{vG+1}")
    a(f"s_mov_b32 exec_lo, 0"); a(f"s_mov_b32 exec_hi, 0x80000000")
    pub(f"buffer_store_dwordx2 {vr(vG,2)}, v{vT}, {sr(dWS,4)}, s{sReg} offen", "pubml")
    a("s_mov_b64 exec, -1")
    a(f"s_lshl_b32 s{sT0}, s{sC}, 3"); a(f"s_add_u32 s{sT0}, s{sT0}, s{sG}"); a(f"s_sub_u32 s{sT0}, s{sT0}, 240")
    a(f"s_lshl_b32 s{sT1}, s{sW}, 8"); a(f"s_or_b32 s{sT1}, s{sT1}, s{sT0}")
    a(f"s_cmp_lt_u32 s{sT1}, 10"); a("s_cbranch_scc1 L_park")
    a.label("L_parkback")
    c = Asm(); c.label("L_park")
    c.c("wave 0 of a reducer: park one probe line per mailbox copy in the memory-side cache")
    c(f"s_lshl_b32 s{sT0}, s{sT0}, 14"); c(f"s_add_u32 s{sT0}, s{sT0}, {WS_YP + 3072}")
    c(f"v_and_b32 v{vT}, 31, v{vL}"); c(f"v_lshrrev_b32 v{vT+1}, 5, v{vL}"); c(f"v_lshlrev_b32 v{vT+1}, 13, v{vT+1}")
    c(f"v_lshl_add_u32 v{vT}, v{vT}, 2, v{vT+1}")
    c(f"buffer_store_dword v{vZ}, v{vT}, {sr(dWS,4)}, s{sT0} offen sc1")
    c("s_branch L_parkback")
    cold.append(c.out)
    if touch:
        a.c("first touch of the stage-3 weight pages, so that their translations are there when the last loads go out")
        a("s_mov_b64 exec, 1")
        a(f"buffer_load_dword v{vQ}, v{vW2o}, {sr(dW2,4)}, 0 offen")
        if touch > 1: a(f"buffer_load_dword v{vQ+1}, v{vWo}, {sr(dWO,4)}, 0 offen")
        a("s_mov_b64 exec, -1")
    phase("")
    stamp(2)
    issue_to(f"V{mlpos-1}")
    a(f"s_lshl_b32 s{sT0}, s{sH}, 9"); a(f"s_add_u32 s{sT0}, s{sT0}, {WS_ML}"); a(f"s_add_u32 s{sT0}, s{sT0}, s{sReg}")
    a(f"v_lshlrev_b32 v{vFo}, 3, v{vL}")
    mload = f"buffer_load_dwordx2 {vr(vG,2)}, v{vFo}, {sr(dWS,4)}, s{sT0} offen sc1"
    a(mload, "gm")
    step(D - 1)
    phase("ml")
    need(f"V{mlpos-1}")
    a.wait_vm("gm")
    a.label("L_mlchk")
    a(f"v_xor_b32 v{vG}, s{sT2}, v{vG}"); a(f"v_xor_b32 v{vG+1}, s{sTag[2]}, v{vG+1}")
    a(f"v_and_b32 v{vT}, 0xffff, v{vG}"); a(f"v_and_b32 v{vT+1}, 0xff, v{vG+1}"); a(f"v_or_b32 v{vT}, v{vT}, v{vT+1}")
    a(f"v_cmp_ne_u32 vcc, 0, v{vT}")
    retry("L_mlchk", [mload])
    a(f"v_max_f32_dpp v{vT}, v{vG}, v{vG} {R8[0]} {DP}")
    red8("v_max_f32", [vT], R8[1:]); red_hi("v_max_f32", [vT])
    a(f"v_readlane_b32 s{sT0}, v{vT}, 63")
    a(f"v_mov_b32 v{vT+1}, s{sMw}")
    step(1)
    a(f"v_subrev_f32 v{vT}, s{sT0}, v{vG}"); a(f"v_subrev_f32 v{vT+1}, s{sT0}, v{vT+1}")
    a(f"v_mul_f32 v{vT}, {L2E}, v{vT}"); a(f"v_mul_f32 v{vT+1}, {L2E}, v{vT+1}")
    a(f"v_exp_f32 v{vT}, v{vT}"); a(f"v_exp_f32 v{vT+1}, v{vT+1}")
    a(f"v_mul_f32 v{vT}, v{vT}, v{vG+1}")
    red8("v_add_f32", [vT]); red_hi("v_add_f32", [vT])
    a(f"v_rcp_f32 v{vT}, v{vT}")
    a(f"v_mul_f32 v{vT}, v{vT}, v{vT+1}")
    a(f"v_readlane_b32 s{sT1}, v{vT}, 63")
    step(1)
    for r in sc: a(f"v_mul_f32 v{r}, s{sT1}, v{r}")
    for r in sc: a(f"v_cvt_pk_bf16_f32 v{r}, v{r}, v{r}")
    if ylast: a(f"v_lshlrev_b32 v{vFo}, 2, v{vL}"); a(f"s_movk_i32 s{sT2}, 8192")
    a.c("tags and offset of the o exchange")
    for k in range(4): a(f"s_bfe_u32 s{sTag[k]}, s{sE}, {(8 << 16) | (8*k):#x}")
    a(f"s_lshl_b32 s{sQo}, s{sPhi}, 10"); a(f"s_add_u32 s{sQo}, s{sQo}, {WS_QP}"); a(f"s_add_u32 s{sQo}, s{sQo}, s{sReg}")
    stamp(3)
    for g in range(8):
        if g in (0, 3) and arrived[0] >= idx[f"V{3*g+2}"]: step(1)
        if arrived[0] < idx[f"V{3*g+2}"]: phase("")
        A_ = vA if g % 2 == 0 else vA2
        buildA(A_, sc[g])
        for j in range(3):
            need(f"V{3*g+j}")
            mfma(vD+4*j, A_, vreg(3*g+j), None if g == 0 else vD+4*j)
            if g == 7:
                if j == 2:
                    while pos[0] < limit[0]: load(*stream[pos[0]]); pos[0] += 1
                    if skel == 2: a("s_waitcnt vmcnt(0)"); a("s_endpgm")
                    stamp(4)
                a(f"s_mov_b64 exec, {sr(sVal,2)}")
                a(f"ds_write_b128 v{vRedW}, {vr(vD+4*j,4)} offset:{LDS_RED+256*j}")
                a("s_mov_b64 exec, -1")
    if skip67: a(f"s_cmp_ge_u32 s{sW}, 6")
    a("s_waitcnt lgkmcnt(0)"); a("s_barrier")
    if skip67: a("s_cbranch_scc1 L_nopub")
    red_read(LDS_RED)
    if trim: a(f"s_cmp_lg_u32 s{sReg}, 0")
    red_sum8(vPubD, vTg2)
    pub(f"buffer_store_dword v{vPubD}, v{vPubA}, {sr(dWS,4)}, s{sReg} offen", "pubo", not trim)
    if skip67: a.label("L_nopub")
    stamp(5)
    if not trim:
        a(f"s_cmp_ge_u32 s{sC}, 30"); a("s_cbranch_scc1 L_reducer")
        snap = a.snapshot()
    if hold:
        a.c("a plain store waits behind older loads of the CU, so the last weight loads go out after the o stores")
        nh = 0
        while pos[0] < len(stream):
            if nh == 0 or rr2: a("s_barrier")
            load(*stream[pos[0]]); pos[0] += 1; nh += 1
    if trim:
        a(f"s_cmp_ge_u32 s{sC}, 30"); a("s_cbranch_scc1 L_reducer")
        snap = a.snapshot()
    if hold: a.wait_vm(pollat)
    oload = f"buffer_load_dwordx4 {vr(vG2,4)}, v{vL16}, {sr(dWS,4)}, s{sQo} offen sc1"
    a(oload)
    if not w4early:
        a.wait_vm("W4")
        stamp(10)
        mfma(vY, vAh, vW+16, None)
    a("s_branch L_ochk")
    a.label("L_opoll")
    a(oload)
    a(f"s_sub_u32 s{sSpin}, s{sSpin}, 1"); a("s_cbranch_scc1 L_end")
    a.label("L_ochk")
    a("s_waitcnt vmcnt(0)")
    untag([vG2])
    for k in range(4): a(f"v_add_f32_dpp v{vG+k}, v{vG2+k}, v{vG2+k} {R8[0]} {DP}")
    a("s_cbranch_vccnz L_opoll")
    if skel == 3: a("s_endpgm")
    stamp(6)
    red8("v_add_f32", [vG+k for k in range(4)], R8[1:])
    for k in range(4): a(f"v_cvt_pk_bf16_f32 v{vG+k}, v{vG+k}, v{vG+k}")
    As = (vA, vA2, vG2, vT)
    for r in range(4):
        buildA(As[r], vG+r)
        if r >= 1: mfma(vY, As[r-1], vW+4*(r-1), vY)
    mfma(vY, As[3], vW+12, vY)
    if ylast:
        a.c("no barrier: every wave writes, counts itself in and reads all partials; the last one in has them all")
        a(f"s_mov_b64 exec, {sr(sVal,2)}")
        a(f"ds_write_b128 v{vRedW}, {vr(vY,4)} offset:{LDS_RED2}")
        a("s_mov_b64 exec, 1")
        a(f"ds_add_rtn_u32 v{vCn}, v{vZ}, v{vZ+1} offset:{LDS_CNT}")
        a("s_mov_b64 exec, -1")
        b = LDS_RED2 // 256; yv = vKV
        for q in range(8): a(f"ds_read2st64_b32 {vr(yv+2*q,2)}, v{vFo} offset0:{b+6*q} offset1:{b+6*q+3}")
        a("s_waitcnt lgkmcnt(8)")
        a(f"v_readfirstlane_b32 s{sT0}, v{vCn}")
        a(f"s_cmp_lg_u32 s{sT0}, 15"); a("s_cbranch_scc1 L_exit3")
        a("s_waitcnt lgkmcnt(4)")
        a(f"v_pk_add_f32 {vr(yv,2)}, {vr(yv,2)}, {vr(yv+2,2)}"); a(f"v_pk_add_f32 {vr(yv+4,2)}, {vr(yv+4,2)}, {vr(yv+6,2)}")
        a(f"v_pk_add_f32 {vr(yv,2)}, {vr(yv,2)}, {vr(yv+4,2)}")
        a("s_waitcnt lgkmcnt(2)")
        a(f"v_pk_add_f32 {vr(yv+8,2)}, {vr(yv+8,2)}, {vr(yv+10,2)}")
        a(f"v_pk_add_f32 {vr(yv,2)}, {vr(yv,2)}, {vr(yv+8,2)}")
        a("s_waitcnt lgkmcnt(0)")
        a(f"v_pk_add_f32 {vr(yv+12,2)}, {vr(yv+12,2)}, {vr(yv+14,2)}")
        a(f"v_pk_add_f32 {vr(yv,2)}, {vr(yv,2)}, {vr(yv+12,2)}")
        a(f"v_add_f32 v{yv}, v{yv}, v{yv+1}")
        a(f"v_and_or_b32 v{vPubD}, v{yv}, s{sMask}, v{vTg2}")
        a(f"buffer_store_dword v{vPubD}, v{vYo}, {sr(dWS,4)}, 0 offen sc1")
        a(f"buffer_store_dword v{vPubD}, v{vYo}, {sr(dWS,4)}, s{sT2} offen sc1")
    else:
        a(f"s_mov_b64 exec, {sr(sVal,2)}")
        a(f"s_cmp_ge_u32 s{sW}, 2")
        a(f"ds_write_b128 v{vRedW}, {vr(vY,4)} offset:{LDS_RED2}")
        a("s_mov_b64 exec, -1")
        a("s_waitcnt lgkmcnt(0)"); a("s_barrier")
        a("s_cbranch_scc1 L_exit3")
        red_read(LDS_RED2)
        red_sum8(vPubD, vTg2)
        a(f"buffer_store_dword v{vPubD}, v{vYo}, {sr(dWS,4)}, 0 offen sc1", "puby")
    a.label("L_exit3")
    stamp(7)
    finish()
    a.label("L_reducer")
    a.restore(snap)
    if skel == 3: a("s_endpgm")
    a(f"s_lshl_b32 s{sK}, s{sK}, 3"); a(f"s_add_u32 s{sK}, s{sK}, s{sG}")
    a(f"s_cmp_ge_u32 s{sK}, 10"); a("s_cbranch_scc1 L_exitr")
    a(f"s_cmp_ge_u32 s{sW}, 2")
    if stamps or diag is not None:
        a("s_cbranch_scc1 L_barx"); cold.append(["L_barx:", "    s_barrier", "    s_branch L_exitr"])
    else: a("s_cbranch_scc1 L_exitr")
    a(f"s_lshl_b32 s{sT0}, s{sK}, 2"); a(f"s_add_u32 s{sT0}, s{sT0}, s{sW}"); a(f"s_lshl_b32 s{sT0}, s{sT0}, 12")
    a(f"s_add_u32 s{sT0}, s{sT0}, {WS_YP}")
    a(f"s_lshl_b32 s{sK}, s{sK}, 1"); a(f"s_add_u32 s{sK}, s{sK}, s{sW}")
    y = vD
    def yl(n): return [f"buffer_load_dwordx4 {vr(vKV+12*n+4*i,4)}, v{vL16}, {sr(dWS,4)}, s{sT0} offen offset:{1024*i} sc1" for i in range(3)]
    def colcalc():
        a.c("output column of this lane: 32*line + 4*(l&7) + (l>>4)")
        a(f"v_lshrrev_b32 v{vT+1}, 4, v{vL}"); a(f"v_lshl_add_u32 v{vT+1}, v{vCh}, 2, v{vT+1}")
        a(f"s_lshl_b32 s{sT1}, s{sK}, 6"); a(f"v_lshl_add_u32 v{vYo}, v{vT+1}, 1, s{sT1}")
        a.c("line 0's reducer hears (through its producers) from every workgroup: it advances the hand-off epoch")
        a(f"s_cmp_eq_u32 s{sK}, 0"); a(f"s_cselect_b32 s{sT2}, {WS_E}, {OOB}")
        a(f"v_mov_b32 v{vT+4}, s{sE}")
        if ydry: a(f"v_mov_b32 v{vT+5}, {OOB}"); a(f"v_mov_b32 v{vT+6}, {OOB}")
        else: a(f"v_mov_b32 v{vT+5}, s{sT2}"); a(f"v_mov_b32 v{vT+6}, v{vYo}")
    if ibsts:
        a.c("which copy is nearer? loads return in order: the second is still out after the first only if it goes further")
        a(f"s_cmp_eq_u32 s{sW}, 0"); a(f"s_cselect_b32 s{sT1}, 0, {OOB}")
        a(f"v_mov_b32 v{vT+1}, s{sT1}"); a(f"v_or_b32 v{vT+2}, 8192, v{vT+1}")
        a("s_waitcnt vmcnt(0)")
        a(f"buffer_load_dword v{vT+3}, v{vT+1}, {sr(dWS,4)}, s{sT0} offen offset:3072 sc1")
        a(f"buffer_load_dword v{vT+7}, v{vT+2}, {sr(dWS,4)}, s{sT0} offen offset:3072 sc1")
        a("s_waitcnt vmcnt(1)")
        colcalc()
        a(f"s_lshl_b32 s{sT1}, s{sW}, 2"); a(f"v_mov_b32 v{vT+1}, s{sT1}")
        a("s_getreg_b32 s4, hwreg(HW_REG_IB_STS, 0, 4)")
        if stamps is True: a(f"s_add_u32 s{sSt+11}, s4, 100")
        a("s_cmp_lg_u32 s4, 0"); a("s_cselect_b32 s4, 0, 8192")
        a(f"v_mov_b32 v{vT+3}, s4")
        a(f"ds_write_b32 v{vT+1}, v{vT+3} offset:{LDS_Q}")
        a("s_waitcnt lgkmcnt(0)")
        a("s_barrier")
        a(f"ds_read_b32 v{vT+3}, v{vZ} offset:{LDS_Q}")
    else:
        a.c("which copy is nearer? loads return in order, so the gap behind the first one is long only if the second goes further")
        a(f"v_mov_b32 v{vT+2}, 8192")
        a(f"s_cmp_lg_u32 s{sW}, 0"); a("s_cbranch_scc1 L_probed")
        a("s_mov_b64 exec, 1")
        a("s_waitcnt vmcnt(0)")
        a(f"buffer_load_dword v{vT+3}, v{vZ}, {sr(dWS,4)}, s{sT0} offen offset:3072 sc1")
        a(f"buffer_load_dword v{vT+7}, v{vT+2}, {sr(dWS,4)}, s{sT0} offen offset:3072 sc1")
        a("s_waitcnt vmcnt(1)"); a("s_memtime s[4:5]")
        a("s_waitcnt vmcnt(0)"); a("s_memtime s[6:7]")
        a("s_waitcnt lgkmcnt(0)")
        a("s_sub_u32 s4, s6, s4")
        a("s_cmpk_gt_u32 s4, 90"); a("s_cselect_b32 s4, 0, 8192")
        a(f"v_mov_b32 v{vT+3}, s4")
        a(f"ds_write_b32 v{vZ}, v{vT+3} offset:{LDS_Q}")
        a("s_mov_b64 exec, -1")
        a("s_waitcnt lgkmcnt(0)")
        a.label("L_probed")
        a("s_barrier")
        a(f"ds_read_b32 v{vT+3}, v{vZ} offset:{LDS_Q}")
        colcalc()
    a(f"buffer_load_ushort v{vXo}, v{vYo}, {sr(dX,4)}, 0 offen")
    a("s_waitcnt lgkmcnt(0)")
    a(f"v_add_u32 v{vL16}, v{vL16}, v{vT+3}")
    for n in range(ypipe):
        for t in yl(n): a(t)
    if ydry:
        a.c("one pass through the last lines with every store out of range: they are in the instruction cache afterwards")
        a(f"s_mov_b32 s{sT1}, 1"); a("s_branch L_yfin")
        a.label("L_ystart")
        a(f"s_mov_b32 s{sT1}, 0")
    if ydry: a(f"v_mov_b32 v{vT+5}, s{sT2}"); a(f"v_mov_b32 v{vT+6}, v{vYo}")
    a(f"s_waitcnt vmcnt({3*ypipe})")
    a(f"v_lshlrev_b32 v{vXo}, 16, v{vXo}")
    a.label("L_ypoll")
    for n in range(ypipe):
        a(f"s_waitcnt vmcnt({3*(ypipe-1)})")
        b = vKV + 12*n
        untag([b, b+4, b+8])
        if trim:
            pk(y, b, b+4); pk(y+2, b+2, b+6); pk(y, y, b+8); pk(y+2, y+2, b+10)
        else:
            for k in range(4): a(f"v_add_f32 v{y+k}, v{b+k}, v{b+4+k}")
            for k in range(4): a(f"v_add_f32 v{y+k}, v{y+k}, v{b+8+k}")
        a("s_cbranch_vccz L_yfin")
        for t in yl(n): a(t)
    a(f"s_sub_u32 s{sSpin}, s{sSpin}, 1"); a("s_cbranch_scc0 L_ypoll")
    a("s_endpgm")
    a.label("L_yfin")
    a(f"buffer_store_dword v{vT+4}, v{vT+5}, {sr(dWS,4)}, 0 offen {efl}")
    stamp(9)
    a(f"v_permlane32_swap_b32 v{y}, v{y+2}"); a(f"v_permlane32_swap_b32 v{y+1}, v{y+3}")
    if trim: pk(y, y, y+2)
    else: a(f"v_add_f32 v{y}, v{y}, v{y+2}"); a(f"v_add_f32 v{y+1}, v{y+1}, v{y+3}")
    a(f"v_permlane16_swap_b32 v{y}, v{y+1}")
    a(f"v_add_f32 v{y}, v{y}, v{y+1}")
    if ydry: a(f"s_cmp_lg_u32 s{sT1}, 0")
    a(f"v_add_f32_dpp v{y}, v{y}, v{y} row_ror:8 {DP}")
    a(f"v_add_f32 v{y}, v{y}, v{vXo}")
    a(f"v_cvt_pk_bf16_f32 v{y}, v{y}, v{y}")
    a(f"buffer_store_short v{y}, v{vT+6}, {sr(dOUT,4)}, 0 offen {outfl}")
    if ydry: a("s_cbranch_scc1 L_ystart")
    a.label("L_exitr")
    stamp(8)
    finish()
    for blk in cold:
        for ln in blk: a.raw(ln)
    a.label("L_end")
    a("s_endpgm")
    if prefetch: a.raw("    .fill 512, 4, 0xbf810000")
    nv = (V.n + 7) // 8 * 8
    a.raw('.section .rodata,"a"'); a.raw(".p2align 6"); a.raw(f".amdhsa_kernel {NAME}_kernel")
    a.raw(f"  .amdhsa_next_free_vgpr {nv}"); a.raw("  .amdhsa_next_free_sgpr 102"); a.raw(f"  .amdhsa_accum_offset {nv}")
    a.raw("  .amdhsa_group_segment_fixed_size 0"); a.raw("  .amdhsa_kernarg_size 96"); a.raw("  .amdhsa_user_sgpr_count 2")
    a.raw("  .amdhsa_user_sgpr_kernarg_segment_ptr 1"); a.raw("  .amdhsa_system_sgpr_workgroup_id_x 1")
    a.raw(".end_amdhsa_kernel")
    return a.text()

if __name__ == "__main__":
    kw = {}
    out = sys.argv[1]
    for x in sys.argv[2:]:
        k, v = x.split("=")
        try: v = eval(v)
        except Exception: pass
        kw[k] = v
    open(out, "w").write(gen(**kw))
```

```python
import sys, struct, re
sys.path.insert(0, "dev")
from asmlib import *

NAME = "parallel_sum__gqa_block_cached__glu_gated_swiglu__decode"
def f2u(x): return struct.unpack("<I", struct.pack("<f", x))[0]

WS_E  = 0
WS_QP = 0x10000
WS_FP = 0x40000
WS_ML = 0x50000
SLOW  = 0x50000
WS_YP = 0x100000
WS_ST = 0x400000
WS_SIZE = 0x800000
OOB = 0x40000000
LDS_RED = 0
LDS_RED2 = 12288
LDS_Q = 24576
LDS_CNT = 25088

DOC = """;
; depends on it. The y mailboxes exist twice, once per side of the memory system; a reducer polls the nearer copy."""

def gen(qpos=14, mlpos=14, hold=2, nb=3, pace=(10, 27.6), pfrom=7, hi=(), ypipe=3, voff=2, kfirst=0, tpost=True, anchors=(), aoff=25, atau=None, lastdeep=1, lo2=None, relax=2, selw=None, rr=1, s1split=0, adj=0, gbase=0, ylast=False, outfl='', efl='', touch=0, ibsts=True, ydry=False, thin=3, DH=4, hi5=None, bucket=None, w4early=False, endthin=99, endrelax=99, thinto=99, thinph=0, trim=True, skip67=False, pollat='pubo', rr2=False, wb=False,
        ld="nt", lds=32768, spin=1 << 20, timeout=24, prefetch=False,
        stamps=False, diag=None, amp=0, trace=False, forceslow=False, skel=0):
    D = 3
    a = Asm()
    hdr = open("cdna_kernels/" + NAME + ".s.ref").read().split("\n")
    for ln in hdr:
        if ln.startswith(";") and "@launch" not in ln and "Override launch" not in ln and "grid=ceil" not in ln: a.raw(ln)
    a.raw(f"; @launch grid=(256,1,1) block=(512,1,1) lds={lds}")
    for ln in DOC.split("\n"): a.raw(ln)
    a.raw('.amdgcn_target "amdgcn-amd-amdhsa--gfx950"')
    a.raw(".text"); a.raw(f".globl {NAME}_kernel"); a.raw(".p2align 8"); a.raw(f".type {NAME}_kernel,@function")
    a.label(f"{NAME}_kernel")
    V = Regs(1, 256, "v"); S = Regs(28, 102, "s")
    pX, pK, pV, pWQ, pWO, pBX, pW1, pW3, pW2, pOUT, pDBG, pWS = [4 + 2*i for i in range(12)]
    dK, dV, dS1, dWS, dX = [S.get(4) for _ in range(5)]
    dWO, dW2, dOUT = 12, 20, S.get(4)
    sW, sG, sC, sP, sH, sS, sE, sT0, sT1, sT2, sT3, sSpin, sReg, sPhi, sK, sCnt, sQo, sFo, sId, sMask = [S.get() for _ in range(20)]
    sTag = [S.get() for _ in range(4)]
    sOff = [16, 17, 18]
    sS1, sS2 = S.get(), S.get(); sMw = sS1
    sBase, sAn, sSmp = 19, 8, 9
    dDBG = 24
    sVal = S.get(2); sTm = S.get(2); sStart = S.get(2)
    sSt = S.get(16) if (stamps or diag is not None) else None
    (vL, vSlot, vCh, vKoff, vS1a, vS1b, vS1c, vXr, vRedW, vRedR, vL16, vPubA, vPubD, vTg2, vWo, vW2o, vYo, vFo, vCn, vTr) = [V.get() for _ in range(20)]
    vZ = V.get(2)
    vM = V.get(4); vA = V.get(4); vA2 = V.get(4); vAh = V.get(4); vG = V.get(4); vG2 = V.get(4); vT = V.get(8)
    vY = V.get(4); vSc = V.get(8); vQ = V.get(12); vD = V.get(12); vW = V.get(24); vKV = V.get(96 + 12*voff)
    vXa, vXb, vXo = vY, vSc, vXr
    kreg = lambda i: vKV + 12*voff + 4*i
    vreg = lambda i: vKV + 4*i
    cold = []
    def stamp(n):
        if diag == n or stamps is True or (stamps == 'min' and n == 8) or (isinstance(stamps, tuple) and n in stamps):
            a(f"s_memrealtime {sr(10,2)}"); a("s_waitcnt lgkmcnt(0)"); a(f"s_mov_b32 s{sSt + (n if stamps else 0)}, s10")
    def finish():
        if diag is not None:
            if selw: a(f"s_cmpk_lg_u32 s2, {selw[0]}"); a("s_cbranch_scc1 L_end"); a(f"s_cmp_lg_u32 s{sW}, {selw[1]}"); a("s_cbranch_scc1 L_end")
            a(f"s_sub_u32 s{sSt}, s{sSt}, s{sStart}"); a(f"s_mul_i32 s{sSt}, s{sSt}, {amp or 1}"); a(f"s_add_u32 s{sSt}, s{sSt}, 5000")
            if wb:
                lq = a.newlabel("pre"); a.label(lq)
                a(f"s_memrealtime {sr(sTm,2)}"); a("s_waitcnt lgkmcnt(0)")
                a(f"s_sub_u32 s{sTm}, s{sTm}, s{sStart}"); a(f"s_cmpk_lt_u32 s{sTm}, 3000"); a(f"s_cbranch_scc1 {lq}")
                lq = a.newlabel("nowb")
                a(f"s_or_b32 s{sT0}, s{sC}, s{sW}"); a(f"s_cbranch_scc1 {lq}")
                a.raw("    buffer_wbl2 sc1"); a("s_waitcnt vmcnt(0)")
                a.label(lq)
            lp = a.newlabel("pad"); a.label(lp)
            a(f"s_memrealtime {sr(sTm,2)}"); a("s_waitcnt lgkmcnt(0)")
            a(f"s_sub_u32 s{sTm}, s{sTm}, s{sStart}"); a(f"s_cmp_lt_u32 s{sTm}, s{sSt}"); a(f"s_cbranch_scc1 {lp}")
        elif stamps:
            lp = a.newlabel("pad"); a.label(lp)
            a(f"s_memrealtime {sr(sTm,2)}"); a("s_waitcnt lgkmcnt(0)")
            a(f"s_sub_u32 s{sTm}, s{sTm}, s{sStart}"); a(f"s_cmp_lt_u32 s{sTm}, 3000"); a(f"s_cbranch_scc1 {lp}")
            a(f"s_mov_b32 s{sSt+13}, s{sReg}"); a(f"s_mov_b32 s{sSt+14}, s{sStart}"); a(f"s_mov_b32 s{sSt+15}, s{sSpin}")
            a(f"s_lshl_b32 s{sT0}, s{sP}, 3"); a(f"s_add_u32 s{sT0}, s{sT0}, s{sW}"); a(f"s_lshl_b32 s{sT0}, s{sT0}, 6")
            if trace:
                a("s_mov_b64 exec, -1")
                a(f"s_lshl_b32 s{sT1}, s{sT0}, 2"); a(f"s_add_u32 s{sT1}, s{sT1}, {WS_ST + 0x100000}")
                a(f"v_lshl_add_u32 v{vT}, v{vL}, 2, s{sT1}")
                a(f"buffer_store_dword v{vTr}, v{vT}, {sr(dWS,4)}, 0 offen")
            a("s_mov_b64 exec, 1")
            a(f"s_add_u32 s{sT0}, s{sT0}, {WS_ST}"); a(f"v_mov_b32 v{vT}, s{sT0}")
            for q in range(4):
                for k in range(4): a(f"v_mov_b32 v{vKV+80+4*q+k}, s{sSt+4*q+k}")
                a(f"buffer_store_dwordx4 {vr(vKV+80+4*q,4)}, v{vT}, {sr(dWS,4)}, 0 offen offset:{16*q}")
        a("s_endpgm")
    def rne(dst, src):
        a(f"v_cvt_pk_bf16_f32 v{dst}, v{src}, v{src}"); a(f"v_and_b32 v{dst}, 0xffff0000, v{dst}")
    def rne_pairs(regs):
        for x, y in zip(regs[0::2], regs[1::2]): a(f"v_cvt_pk_bf16_f32 v{y}, v{x}, v{y}")
        for x, y in zip(regs[0::2], regs[1::2]):
            a(f"v_lshlrev_b32 v{x}, 16, v{y}"); a(f"v_and_b32 v{y}, 0xffff0000, v{y}")
    DP = "row_mask:0xf bank_mask:0xf"
    R8 = ("quad_perm:[1,0,3,2]", "quad_perm:[2,3,0,1]", "row_half_mirror")
    def red8(op, regs, steps=R8):
        for m in steps:
            for r in regs: a(f"{op}_dpp v{r}, v{r}, v{r} {m} {DP}")
    def red_hi(op, regs):
        for r in regs: a(f"{op}_dpp v{r}, v{r}, v{r} row_ror:8 {DP}")
        for r in regs: a(f"{op}_dpp v{r}, v{r}, v{r} row_bcast:15 row_mask:0xa bank_mask:0xf")
        for r in regs: a(f"{op}_dpp v{r}, v{r}, v{r} row_bcast:31 row_mask:0xc bank_mask:0xf")
    def buildA(dst, dup, e=None):
        for k in range(4): (e or a)(f"v_and_b32 v{dst+k}, v{dup}, v{vM+k}")
    def mfma(d, A_, B_, c, e=None): (e or a)(f"v_mfma_f32_16x16x32_bf16 {vr(d,4)}, {vr(A_,4)}, {vr(B_,4)}, {'0' if c is None else vr(c,4)}")
    def or_all(dst, rs, e=None):
        e = e or a
        e(f"v_or3_b32 v{dst}, v{rs[0]}, v{rs[1]}, v{rs[2]}"); rs = rs[3:]
        while rs:
            if len(rs) >= 2: e(f"v_or3_b32 v{dst}, v{dst}, v{rs[0]}, v{rs[1]}"); rs = rs[2:]
            else: e(f"v_or_b32 v{dst}, v{dst}, v{rs[0]}"); rs = rs[1:]
    def untag(sets):
        for g in sets:
            for k in range(4): a(f"v_xor_b32 v{g+k}, s{sTag[k]}, v{g+k}")
        or_all(vT, [g+k for g in sets for k in range(4)])
        if trim: a(f"v_cmp_ne_u32_sdwa vcc, v{vT}, v{vZ} src0_sel:BYTE_0 src1_sel:DWORD")
        else:
            a(f"v_and_b32 v{vT}, 0xff, v{vT}")
            a(f"v_cmp_ne_u32 vcc, 0, v{vT}")
    def pub(text, name, cmp=True):
        ls = a.newlabel("pubslow"); lb = a.newlabel("pubback")
        if cmp: a(f"s_cmp_lg_u32 s{sReg}, 0")
        a(f"s_cbranch_scc1 {ls}")
        a(text, name)
        a.label(lb)
        cold.append([ls + ":", "    " + text + " sc1", f"    s_branch {lb}"])
    def retry(label, loads):
        lr = a.newlabel("retry")
        a(f"s_cbranch_vccnz {lr}")
        cold.append([lr + ":", f"    s_sub_u32 s{sSpin}, s{sSpin}, 1", "    s_cbranch_scc1 L_end"] + ["    " + t for t in loads] +
                    ["    s_waitcnt vmcnt(0)", f"    s_branch {label}"])
    def arrive(k):
        a("s_mov_b64 exec, 1"); a(f"ds_add_u32 v{vZ}, v{vZ+1} offset:{LDS_CNT+4*k}"); a("s_mov_b64 exec, -1")
    def await_all(k, reads):
        lb = a.newlabel("await"); a.label(lb)
        a(f"ds_read_b32 v{vCn}, v{vZ} offset:{LDS_CNT+4*k}")
        reads()
        a(f"s_sub_u32 s{sSpin}, s{sSpin}, 1"); a("s_cbranch_scc1 L_end")
        a("s_waitcnt lgkmcnt(0)")
        a(f"v_cmp_ne_u32 vcc, 8, v{vCn}"); a(f"s_cbranch_vccnz {lb}")
    def red_read(base):
        b = base // 256
        for q in range(4): a(f"ds_read2st64_b32 {vr(vT+2*q,2)}, v{vRedR} offset0:{b+12*q} offset1:{b+12*q+6}")
    def pk(d, x, y): a(f"v_pk_add_f32 {vr(d,2)}, {vr(x,2)}, {vr(y,2)}")
    def red_sum8(dst, tag):
        if trim:
            a("s_waitcnt lgkmcnt(2)"); pk(vT, vT, vT+2)
            a("s_waitcnt lgkmcnt(1)"); pk(vT, vT, vT+4)
            a("s_waitcnt lgkmcnt(0)"); pk(vT, vT, vT+6)
            a(f"v_pk_add_f32 {vr(vT,2)}, {vr(vT,2)}, {vr(vT,2)} op_sel:[0,1] op_sel_hi:[1,0]")
            a(f"v_permlane32_swap_b32 v{vT}, v{vT+1}")
            a(f"v_add_f32 v{vT}, v{vT}, v{vT+1}")
            a(f"v_and_or_b32 v{dst}, v{vT}, s{sMask}, v{tag}")
            return
        a("s_waitcnt lgkmcnt(2)")
        a(f"v_add_f32 v{vT}, v{vT}, v{vT+1}"); a(f"v_add_f32 v{vT+2}, v{vT+2}, v{vT+3}")
        a("s_waitcnt lgkmcnt(1)")
        a(f"v_add_f32 v{vT+4}, v{vT+4}, v{vT+5}"); a(f"v_add_f32 v{vT}, v{vT}, v{vT+2}")
        a("s_waitcnt lgkmcnt(0)")
        a(f"v_add_f32 v{vT+6}, v{vT+6}, v{vT+7}"); a(f"v_add_f32 v{vT}, v{vT}, v{vT+4}")
        a(f"v_add_f32 v{vT+1}, v{vT}, v{vT+6}"); a(f"v_add_f32 v{vT}, v{vT}, v{vT+6}")
        a(f"v_permlane32_swap_b32 v{vT}, v{vT+1}")
        a(f"v_add_f32 v{vT}, v{vT}, v{vT+1}")
        a(f"v_and_or_b32 v{dst}, v{vT}, s{sMask}, v{tag}")

    stream = [("K", i) for i in range(kfirst)] + [("S", i) for i in range(6)] + [("K", i) for i in range(kfirst, 24)]
    if w4early: stream.insert(kfirst + 6, ("W", 4))
    stream += [("V", i) for i in range(24)] + [("W", i) for i in range(4 if w4early else 5)]
    w4reg = vKV + 20 if w4early else vW + 16
    limit = [len(stream) - hold]
    idx = {f"{t}{i}": n for n, (t, i) in enumerate(stream)}
    kdone = [0]; pos = [0]; arrived = [-1]; deep = [False]
    def load(t, i):
        if t in "KV":
            g, j = divmod(i, 3)
            if t == "V": assert g - voff < kdone[0], "V load overwrites unconsumed K"
            so = "0" if g < 2 else f"s{sOff[(g>>1)-1]}"
            a(f"buffer_load_dwordx4 {vr(kreg(i) if t == 'K' else vreg(i),4)}, v{vKoff}, {sr(dK if t == 'K' else dV,4)}, {so} offen offset:{3072*(g&1)+128*j} {ld}", f"{t}{i}")
        elif t == "S":
            a(f"buffer_load_dwordx4 {vr(vW+4*i,4)}, v{(vS1a, vS1a, vS1a, vS1b, vS1b, vS1c)[i]}, {sr(dS1,4)}, {('0', f's{sS1}', f's{sS2}')[i % 3]} offen {ld}", f"S{i}")
        elif i < 4:
            a(f"buffer_load_dwordx4 {vr(vW+4*i,4)}, v{vWo}, {sr(dWO,4)}, 0 offen offset:{1280*i} {ld}", f"W{i}")
        else:
            a(f"buffer_load_dwordx4 {vr(w4reg,4)}, v{vW2o}, {sr(dW2,4)}, 0 offen {ld}", "W4")
    def wait_idx(n, extra=""):
        if n > arrived[0] or extra:
            t, i = stream[n]; a.wait_vm(f"{t}{i}", extra); arrived[0] = max(arrived[0], n)
    nchk = [0]
    def thr(p): return int(pace[0] + pace[1]*p) + relax*nchk[0]
    def step(n=1):
        for _ in range(n):
            p = pos[0]
            if p >= limit[0]: return
            if trace == 1 and p >= DH:
                a(f"s_memrealtime {sr(4,2)}"); a("s_waitcnt lgkmcnt(0)"); a(f"v_writelane_b32 v{vTr}, s4, {p}")
            if deep[0] or (pace and p >= limit[0] - lastdeep): wait_idx(p - 4)
            elif pace and p >= pfrom:
                if p - D > arrived[0] or tpost:
                    if not tpost: a(f"s_memrealtime {sr(sTm,2)}")
                    wait_idx(p - DH, "lgkmcnt(0)")
                    if gbase == p:
                        a.c("measure 'behind' from the mean start of the eight groups once all have posted")
                        a(f"s_min_u32 s{sTm+1}, s4, s5")
                        for k in range(6, 12): a(f"s_min_u32 s{sTm+1}, s{sTm+1}, s{k}")
                        for k in range(5, 12): a(f"s_add_u32 s4, s4, s{k}")
                        a(f"s_lshl_b32 s5, s{sStart}, 3"); a("s_sub_u32 s4, s4, s5"); a("s_ashr_i32 s4, s4, 3")
                        a(f"s_cmp_eq_u32 s{sTm+1}, 0"); a("s_cselect_b32 s4, 0, s4"); a(f"s_add_u32 s{sBase}, s{sBase}, s4")
                    for k, (pp, pr) in enumerate(anchors):
                        if pp == p:
                            a(f"s_cmp_eq_u32 s{sSmp}, 0"); a(f"s_cbranch_scc1 L_post{k}")
                            a.label(f"L_postback{k}")
                            c = Asm(); c.label(f"L_post{k}")
                            c.c("32 sample waves add their clock (and a count) to a word of the zeroed debug buffer")
                            c(f"s_and_b32 s{sTm+1}, s{sTm}, 0xfffff"); c(f"s_bitset1_b32 s{sTm+1}, 26")
                            c("s_mov_b64 exec, 1"); c(f"v_mov_b32 v{vCn}, s{sTm+1}")
                            c(f"buffer_atomic_add v{vCn}, off, {sr(dDBG,4)}, 0 offset:{64*k}")
                            c("s_mov_b64 exec, -1"); c(f"s_branch L_postback{k}")
                            cold.append(c.out)
                        if pr == p:
                            a.c("measure 'behind' from the samples' mean once all 32 are in")
                            a(f"s_lshl_b32 s{sTm+1}, s{sTm}, 5"); a(f"s_sub_u32 s{sTm+1}, s{sAn}, s{sTm+1}")
                            a(f"s_bfe_i32 s{sTm+1}, s{sTm+1}, {(15 << 16) | 5:#x}")
                            a(f"s_add_u32 s{sTm+1}, s{sTm+1}, s{sTm}"); a(f"s_sub_u32 s{sTm+1}, s{sTm+1}, {thr(pp) - (aoff[k] if isinstance(aoff, tuple) else aoff)}")
                            a(f"s_bitcmp1_b32 s{sAn}, 31"); a(f"s_cselect_b32 s{sBase}, s{sTm+1}, s{sBase}")
                            if trace == 2: a(f"s_lshr_b32 s{sAn}, s{sAn}, 26"); a(f"v_writelane_b32 v{vTr}, s{sAn}, {60+k}")
                    a(f"s_sub_u32 s{sTm}, s{sTm}, s{sBase}")
                    if trace == 2: a(f"s_sub_u32 s{sTm+1}, s{sTm}, {thr(p) - 100000}"); a(f"v_writelane_b32 v{vTr}, s{sTm+1}, {p}")
                    if p - D > arrived[0]:
                        lb = a.newlabel("deep")
                        if bucket:
                            a(f"s_lshr_b32 s{sTm+1}, s{sAn}, {bucket[2]}"); a(f"s_add_u32 s{sBase}, s{sBase}, s{sTm+1}"); a(f"s_add_u32 s{sAn}, s{sAn}, {bucket[0]}")
                        if hi5:
                            l4 = a.newlabel("deeper")
                            a(f"s_cmpk_gt_i32 s{sTm}, {thr(p) + hi5}"); a(f"s_cbranch_scc1 {lb}")
                            t, i = stream[p - 4]; a.wait_vm(f"{t}{i}"); a.hist[-1].states = 0
                        a(f"s_cmpk_gt_i32 s{sTm}, {thr(p)}")
                        if adj: a(f"s_cselect_b32 s{sBase}, s{sStart+1}, s{sStart}")
                        a(f"s_cbranch_scc1 {lb}")
                        th = thr(p)
                        if bucket:
                            a(f"s_sub_i32 s{sAn}, s{sAn}, {bucket[0] + bucket[1]}"); a.hist[-1].states = 0
                            a(f"s_max_i32 s{sAn}, s{sAn}, 0"); a.hist[-1].states = 0
                        if relax and p < endrelax: a(f"s_sub_u32 s{sBase}, s{sBase}, {relax}"); a.hist[-1].states = 0; nchk[0] += 1
                        t, i = stream[p - D + (1 if (thin and p % thin == thinph and p < thinto) or p >= endthin else 0)]; a.wait_vm(f"{t}{i}"); a.hist[-1].states = 0
                        if lo2:
                            a(f"s_cmpk_gt_i32 s{sTm}, {th - lo2}"); a.hist[-1].states = 0
                            a(f"s_cbranch_scc1 {lb}"); a.hist[-1].states = 0
                            t, i = stream[p - D + 1]; a.wait_vm(f"{t}{i}"); a.hist[-1].states = 0
                        a.label(lb)
            elif p >= D: wait_idx(p - D)
            load(*stream[p]); pos[0] += 1
            if diag == 100 + p: stamp(diag)
            if pace and tpost and pfrom <= p + 1 < limit[0] - lastdeep:
                a(f"s_memrealtime {sr(sTm,2)}")
                if gbase == p + 1: a(f"s_buffer_load_dwordx8 s[4:11], {sr(dDBG,4)}, 0")
                for k, (pp, pr) in enumerate(anchors):
                    if pr == p + 1: a(f"s_buffer_load_dword s{sAn}, {sr(dDBG,4)}, {64*k}")
    def need(name):
        n = idx[name]
        while arrived[0] < n and pos[0] < limit[0]: step()
        wait_idx(n)
    def issue_to(name):
        while pos[0] <= idx[name]: step()
    def phase(name):
        deep[0] = name in hi

    a("s_cmpk_ge_u32 s2, 256"); a("s_cbranch_scc1 L_end")
    a("s_load_dwordx16 s[4:19], s[0:1], 0")
    a("s_load_dwordx8 s[20:27], s[0:1], 64")
    a(f"s_memrealtime {sr(sStart,2)}")
    a(f"v_lshrrev_b32 v{vT}, 6, v0")
    a(f"v_and_b32 v{vL}, 63, v0")
    a(f"v_readfirstlane_b32 s{sW}, v{vT}")
    a(f"s_and_b32 s{sG}, s2, 7"); a(f"s_lshr_b32 s{sC}, s2, 3")
    a(f"s_lshl_b32 s{sP}, s{sG}, 5"); a(f"s_add_u32 s{sP}, s{sP}, s{sC}")
    a(f"v_lshrrev_b32 v{vSlot}, 3, v{vL}"); a(f"v_and_b32 v{vCh}, 7, v{vL}")
    def kaddr():
        a(f"s_lshl_b32 s{sT0}, s{sP}, 3"); a(f"s_add_u32 s{sT0}, s{sT0}, s{sW}"); a(f"s_mul_i32 s{sT0}, s{sT0}, 24576")
        a(f"v_mul_u32_u24 v{vKoff}, 384, v{vSlot}")
        a(f"v_lshl_add_u32 v{vT+1}, v{vCh}, 4, s{sT0}")
        a(f"v_add_u32 v{vKoff}, v{vKoff}, v{vT+1}")
        a(f"s_mov_b32 s{dK+2}, 50331648"); a(f"s_mov_b32 s{dK+3}, 0x20000")
    if kfirst: kaddr()
    a(f"s_lshr_b32 s{sH}, s{sP}, 3"); a(f"s_and_b32 s{sS}, s{sP}, 7")
    a(f"v_mov_b32 v{vZ}, 0"); a(f"v_mov_b32 v{vZ+1}, 0")
    a(f"ds_write_b64 v{vZ}, {vr(vZ,2)} offset:{LDS_CNT}")
    a.c("stage-1 role: waves 0-4 take 16 rows x 192 columns of wq, waves 5-7 take 48/40/40 rows x 64 columns of w1 or w3")
    a(f"s_max_u32 s{sT0}, s{sC}, 2"); a(f"s_sub_u32 s{sT0}, s{sT0}, 2")
    a(f"s_mul_i32 s{sPhi}, s{sT0}, 52"); a(f"s_lshr_b32 s{sPhi}, s{sPhi}, 8")
    a(f"s_mul_i32 s{sT1}, s{sPhi}, 5"); a(f"s_sub_u32 s{sK}, s{sT0}, s{sT1}")
    a(f"s_lshl_b32 s{sT0}, s{sK}, 7"); a(f"s_mul_i32 s{sT1}, s{sW}, 40"); a(f"s_add_u32 s{sT0}, s{sT0}, s{sT1}")
    a(f"s_cmp_eq_u32 s{sW}, 5"); a(f"s_cselect_b32 s{sT1}, 8, 0"); a(f"s_sub_u32 s{sT0}, s{sT0}, s{sT1}"); a(f"s_sub_u32 s{sT0}, s{sT0}, 192")
    a(f"s_lshr_b32 s{sT1}, s{sPhi}, 1"); a(f"s_mul_i32 s{sT2}, s{sG}, 3"); a(f"s_add_u32 s{sT1}, s{sT1}, s{sT2}"); a(f"s_lshl_b32 s{sT1}, s{sT1}, 7")
    a(f"s_cmp_lt_u32 s{sC}, 2"); a(f"s_cselect_b32 s{sT1}, {OOB}, s{sT1}")
    a(f"s_mul_i32 s{sT2}, s{sS}, 80"); a(f"s_lshl_b32 s{sT3}, s{sW}, 4"); a(f"s_add_u32 s{sT2}, s{sT2}, s{sT3}")
    a(f"s_mul_i32 s{sT3}, s{sH}, 384")
    a(f"s_cmp_lt_u32 s{sW}, 5")
    a(f"s_cselect_b32 s{sT0}, s{sT2}, s{sT0}"); a(f"s_cselect_b32 s{sT1}, s{sT3}, s{sT1}")
    a(f"s_cselect_b32 s{sT2}, 12, 3"); a(f"s_cselect_b32 s{sT3}, 4, 3"); a(f"s_cselect_b32 s{sQo}, 1, 192")
    a(f"s_lshl_b32 s{sT2}, s{sT2}, 10")
    a(f"s_mul_i32 s{dS1+2}, s{sT2}, 640"); a(f"s_mov_b32 s{dS1+3}, 0x20000")
    a(f"v_add_u32 v{vT}, s{sT0}, v{vSlot}")
    a(f"v_mul_lo_u32 v{vS1a}, v{vT}, s{sT2}")
    a(f"v_lshl_add_u32 v{vT+1}, v{vCh}, 4, s{sT1}")
    a(f"v_add_u32 v{vS1a}, v{vS1a}, v{vT+1}")
    a(f"s_lshl_b32 s{sS1}, s{sQo}, 7"); a(f"s_lshl_b32 s{sS2}, s{sQo}, 8")
    a("s_waitcnt lgkmcnt(0)")
    def s1desc():
        a(f"s_bitcmp1_b32 s{sPhi}, 0"); a(f"s_cselect_b64 {sr(dS1,2)}, {sr(pW3,2)}, {sr(pW1,2)}")
        a(f"s_cmp_lt_u32 s{sW}, 5"); a(f"s_cselect_b64 {sr(dS1,2)}, {sr(pWQ,2)}, {sr(dS1,2)}")
    if kfirst:
        a(f"s_mov_b64 {sr(dK,2)}, {sr(pK,2)}"); step(kfirst); s1desc(); step(3 - kfirst)
    else:
        s1desc()
        if rr:
            a.c("the waves take turns, so that their loads alternate in the CU's queue from the start")
            step(1); a("s_barrier"); step(1); a("s_barrier"); step(1)
            if rr > 1: a("s_barrier")
        else: step(3)
        a(f"s_mov_b64 {sr(dK,2)}, {sr(pK,2)}")
    a(f"s_load_dword s{sE}, {sr(pWS,2)}, {WS_E}")
    a(f"s_mov_b64 {sr(dX,2)}, {sr(pX,2)}"); a(f"s_mov_b32 s{dX+2}, 1280"); a(f"s_mov_b32 s{dX+3}, 0x20000")
    a(f"v_lshlrev_b32 v{vL16}, 4, v{vL}"); a(f"v_lshlrev_b32 v{vT+4}, 2, v{vL}")
    a(f"v_add_lshl_u32 v{vT+2}, v{vL}, s{sT0}, 1")
    a(f"buffer_load_dwordx4 {vr(vXa,4)}, v{vL16}, {sr(dX,4)}, 0 offen", "xa")
    a(f"buffer_load_dword v{vXb}, v{vT+4}, {sr(dX,4)}, 0 offen offset:1024", "xb")
    a(f"buffer_load_ushort v{vXr}, v{vT+2}, {sr(dX,4)}, 0 offen", "xr")
    if not rr: a("s_barrier")
    a(f"s_mul_i32 s{sT3}, s{sT3}, 24576")
    a(f"v_add_u32 v{vS1b}, s{sT3}, v{vS1a}")
    a(f"s_cmp_lt_u32 s{sW}, 6"); a(f"s_cselect_b32 s{sT3}, 0, {OOB}")
    a(f"v_or_b32 v{vS1c}, s{sT3}, v{vS1b}")
    if not kfirst: kaddr()
    a(f"v_mov_b32 v{vZ+1}, 1")
    if diag is not None: a(f"s_mov_b32 s{sSt}, s{sStart}")
    if trace: a(f"v_mov_b32 v{vTr}, 0")
    if stamps:
        for i in range(13): a(f"s_mov_b32 s{sSt+i}, 0")
    if prefetch:
        a.c("pull this kernel's code into the L2 (each wave one line)")
        a(f"s_getpc_b64 {sr(sTm,2)}")
        a(f"s_lshl_b32 s{sT0}, s{sC}, 3"); a(f"s_add_u32 s{sT0}, s{sT0}, s{sW}"); a(f"s_and_b32 s{sT0}, s{sT0}, 63")
        a(f"s_lshl_b32 s{sT0}, s{sT0}, 7"); a(f"s_addk_i32 s{sT0}, 768")
        a(f"s_load_dword s{sCnt}, {sr(sTm,2)}, s{sT0}")
    a(f"s_mov_b64 {sr(dV,2)}, {sr(pV,2)}"); a(f"s_mov_b32 s{dV+2}, 50331648"); a(f"s_mov_b32 s{dV+3}, 0x20000")
    a(f"s_mov_b64 {sr(dWS,2)}, {sr(pWS,2)}"); a(f"s_mov_b32 s{dWS+2}, {WS_SIZE}"); a(f"s_mov_b32 s{dWS+3}, 0x20000")
    a(f"s_mov_b64 {sr(dOUT,2)}, {sr(pOUT,2)}"); a(f"s_mov_b32 s{dOUT+2}, 1280"); a(f"s_mov_b32 s{dOUT+3}, 0x20000")
    a(f"s_mov_b32 s{dWO+2}, 7864320"); a(f"s_mov_b32 s{dWO+3}, 0x20000")
    a(f"s_mov_b32 s{dW2+2}, 1966080"); a(f"s_mov_b32 s{dW2+3}, 0x20000")
    for i in range(3): a(f"s_mov_b32 s{sOff[i]}, {6144*(i+1)}")
    a(f"s_mov_b32 s{sBase}, s{sStart}")
    if adj: a(f"s_sub_u32 s{sStart+1}, s{sStart}, {adj}")
    if bucket: a(f"s_mov_b32 s{sAn}, 0")
    if gbase:
        a.c("one wave per group posts its start time in the zeroed debug buffer")
        a(f"s_mov_b32 s{dDBG+2}, 256"); a(f"s_mov_b32 s{dDBG+3}, 0x20000")
        a(f"s_or_b32 s{sT0}, s{sStart}, 1"); a(f"v_mov_b32 v{vT}, s{sT0}")
        a(f"s_lshl_b32 s{sT0}, s{sG}, 2"); a(f"s_or_b32 s{sT1}, s{sC}, s{sW}"); a(f"s_cselect_b32 s{sT0}, {OOB}, s{sT0}")
        a(f"v_mov_b32 v{vT+1}, s{sT0}")
        a(f"buffer_store_dword v{vT}, v{vT+1}, {sr(dDBG,4)}, 0 offen sc1")
    if anchors:
        a(f"s_mov_b32 s{dDBG+2}, 256"); a(f"s_mov_b32 s{dDBG+3}, 0x20000")
        a.c("sample waves: one per head, every wave number equally often")
        a(f"s_add_u32 s{sSmp}, s{sH}, s{sW}"); a(f"s_and_b32 s{sSmp}, s{sSmp}, 7"); a(f"s_xor_b32 s{sT0}, s{sS}, 3"); a(f"s_or_b32 s{sSmp}, s{sSmp}, s{sT0}")
    a(f"s_mov_b32 s{sSpin}, {spin}"); a(f"s_mov_b32 s{sReg}, 0"); a(f"s_mov_b32 s{sMask}, 0xffffff00")
    a(f"s_mov_b32 s{sVal}, 0x00ff00ff"); a(f"s_mov_b32 s{sVal+1}, 0xff00ff00")
    a.c("MFMA A-operand masks")
    a(f"v_and_b32 v{vT}, 1, v{vL}"); a(f"v_lshlrev_b32 v{vT}, 4, v{vT}")
    a(f"v_mov_b32 v{vT+1}, 0xffff"); a(f"v_lshlrev_b32 v{vT}, v{vT}, v{vT+1}")
    a(f"v_lshrrev_b32 v{vT+1}, 1, v{vCh}")
    for k in range(4):
        a(f"v_cmp_eq_u32 vcc, {k}, v{vT+1}"); a(f"v_cndmask_b32 v{vM+k}, 0, v{vT}, vcc")
    a.c("LDS reduce addresses")
    a(f"v_lshrrev_b32 v{vT+2}, 5, v{vL}"); a(f"v_mul_u32_u24 v{vT}, 768, v{vT+2}")
    a(f"v_bfe_u32 v{vT+1}, v{vL}, 4, 1"); a(f"v_lshl_add_u32 v{vT+1}, v{vCh}, 1, v{vT+1}")
    a(f"v_lshl_add_u32 v{vT+1}, v{vT+1}, 4, v{vT}")
    a(f"s_mul_i32 s{sT0}, s{sW}, 1536")
    a(f"v_add_u32 v{vRedW}, s{sT0}, v{vT+1}")
    a(f"v_and_b32 v{vT+3}, 31, v{vL}")
    a(f"s_sub_u32 s{sT3}, s{sW}, 6"); a(f"s_min_u32 s{sT3}, s{sT3}, s{sW}")
    a(f"s_lshl_b32 s{sT0}, s{sT3}, 7")
    a(f"v_lshl_add_u32 v{vT+1}, v{vT+3}, 2, s{sT0}")
    a(f"v_add_u32 v{vRedR}, v{vT}, v{vT+1}")
    a.c("publish offsets: waves 0-5 lanes 0-31 q/o slot, waves 6-7 lanes 32-63 ffn slot, wave 7 lane 0 die id")
    a(f"s_mul_i32 s{sT0}, s{sH}, 6"); a(f"s_add_u32 s{sT0}, s{sT0}, s{sW}"); a(f"s_lshl_b32 s{sT0}, s{sT0}, 10")
    a(f"s_lshl_b32 s{sT1}, s{sS}, 4"); a(f"s_add_u32 s{sT0}, s{sT0}, s{sT1}"); a(f"s_add_u32 s{sT0}, s{sT0}, {WS_QP}")
    a(f"s_lshl_b32 s{sFo}, s{sG}, 13"); a(f"s_add_u32 s{sFo}, s{sFo}, {WS_FP}")
    a(f"s_and_b32 s{sT1}, s{sPhi}, 6"); a(f"s_add_u32 s{sT1}, s{sT1}, s{sT3}"); a(f"s_mul_i32 s{sT1}, s{sT1}, 1280")
    a(f"s_and_b32 s{sT2}, s{sPhi}, 1"); a(f"s_mul_i32 s{sT2}, s{sT2}, 5"); a(f"s_add_u32 s{sT2}, s{sT2}, s{sK}"); a(f"s_lshl_b32 s{sT2}, s{sT2}, 4")
    a(f"s_add_u32 s{sT1}, s{sT1}, s{sT2}"); a(f"s_add_u32 s{sT1}, s{sT1}, s{sFo}")
    a(f"s_cmp_lt_u32 s{sC}, 2"); a(f"s_cselect_b32 s{sT1}, {OOB}, s{sT1}")
    a(f"s_cmp_lt_u32 s{sW}, 6"); a(f"s_cselect_b32 s{sT0}, s{sT0}, {OOB}"); a(f"s_cselect_b32 s{sT1}, {OOB}, s{sT1}")
    a(f"v_lshrrev_b32 v{vT}, 2, v{vT+3}")
    a(f"v_lshl_add_u32 v{vT+1}, v{vT}, 7, s{sT0}")
    a(f"v_mul_u32_u24 v{vT+4}, 160, v{vT}"); a(f"v_add_u32 v{vT+4}, s{sT1}, v{vT+4}")
    a(f"v_cmp_gt_u32 vcc, 32, v{vL}")
    a(f"v_and_b32 v{vT+5}, 3, v{vL}")
    a(f"v_cndmask_b32 v{vT+1}, v{vT+4}, v{vT+1}, vcc")
    a(f"v_lshl_add_u32 v{vPubA}, v{vT+5}, 2, v{vT+1}")
    step(3)
    if skel == 1:
        snap1 = a.snapshot()
    a.c("stage-3 task: range rho = c/10, slab k = c%10 (c >= 30: reducers, slab (c-30)*8+G)")
    a(f"s_mul_i32 s{sT0}, s{sC}, 26"); a(f"s_lshr_b32 s{sT0}, s{sT0}, 8")
    a(f"s_mul_i32 s{sT1}, s{sT0}, 10"); a(f"s_sub_u32 s{sK}, s{sC}, s{sT1}")
    a(f"s_min_u32 s{sT2}, s{sT0}, 2"); a(f"s_lshl_b32 s{sT2}, s{sT2}, 3"); a(f"s_add_u32 s{sT3}, s{sT2}, s{sW}")
    a(f"s_mul_i32 s{sT2}, s{sG}, 24"); a(f"s_add_u32 s{sPhi}, s{sT3}, s{sT2}")
    a(f"s_lshl_b32 s{sT2}, s{sK}, 7")
    a(f"s_cmp_lt_u32 s{sC}, 30"); a(f"s_cselect_b32 s{sT2}, s{sT2}, {OOB}")
    a(f"v_lshl_add_u32 v{vT}, v{vCh}, 4, s{sT2}")
    a(f"s_mul_i32 s{sT2}, s{sPhi}, {8*1280}")
    a(f"v_mul_u32_u24 v{vT+1}, 1280, v{vSlot}"); a(f"v_add_u32 v{vT+1}, s{sT2}, v{vT+1}")
    a(f"v_add_u32 v{vW2o}, v{vT}, v{vT+1}")
    a(f"v_lshl_add_u32 v{vWo}, v{vT+1}, 2, v{vT}")
    if skel == 1:
        kdone[0] = 8; limit[0] = len(stream)
        a(f"buffer_store_dword v{vPubD}, v{vPubA}, {sr(dWS,4)}, 0 offen")
        while pos[0] < len(stream): step()
        a("s_waitcnt vmcnt(0)"); finish()
        a.restore(snap1); pos[0] = 6; arrived[0] = 2; kdone[0] = 0
    a.c("y publish offset: both copies of (slab, line w), slot 3G + rho")
    if ylast: a(f"s_lshl_b32 s{sT1}, s{sK}, 14")
    else: a(f"s_lshl_b32 s{sT1}, s{sK}, 2"); a(f"s_add_u32 s{sT1}, s{sT1}, s{sW}"); a(f"s_lshl_b32 s{sT1}, s{sT1}, 12")
    a(f"s_mul_i32 s{sT2}, s{sG}, 3"); a(f"s_add_u32 s{sT2}, s{sT2}, s{sT0}"); a(f"s_lshl_b32 s{sT2}, s{sT2}, 7")
    a(f"s_add_u32 s{sT1}, s{sT1}, s{sT2}"); a(f"s_add_u32 s{sT1}, s{sT1}, {WS_YP}")
    a(f"v_lshl_add_u32 v{vYo}, v{vT+3}, 2, s{sT1}"); a(f"v_lshl_add_u32 v{vYo}, v{vT+2}, {12 if ylast else 13}, v{vYo}")
    a.c("gather offsets")
    a(f"s_min_u32 s{sT0}, s{sW}, 5"); a(f"s_mul_i32 s{sT1}, s{sH}, 6"); a(f"s_add_u32 s{sT0}, s{sT0}, s{sT1}")
    a(f"s_lshl_b32 s{sT0}, s{sT0}, 10"); a(f"s_add_u32 s{sQo}, s{sT0}, {WS_QP}")
    a(f"s_mul_i32 s{sT3}, s{sT3}, 320")
    a(f"v_lshrrev_b32 v{vT}, 4, v{vL}"); a(f"v_mul_u32_u24 v{vT}, 80, v{vT}"); a(f"v_add_u32 v{vT}, s{sT3}, v{vT}")
    a(f"v_and_b32 v{vT+1}, 15, v{vL}"); a(f"v_cmp_gt_u32 vcc, 5, v{vT+1}")
    a(f"v_mov_b32 v{vT+1}, 7680")
    a(f"v_cndmask_b32 v{vT}, v{vT+1}, v{vT}, vcc"); a(f"v_lshl_add_u32 v{vFo}, v{vCh}, 4, v{vT}")
    phase("s1")
    step(1)
    a.wait_vm("xr")
    xs = [vQ + i for i in range(10)]
    for i in range(5):
        src = vXa + i if i < 4 else vXb
        a(f"v_lshlrev_b32 v{xs[2*i]}, 16, v{src}"); a(f"v_and_b32 v{xs[2*i+1]}, 0xffff0000, v{src}")
    a(f"v_add_f32 v{vT}, v{xs[0]}, v{xs[1]}"); a(f"v_add_f32 v{vT+1}, v{xs[2]}, v{xs[3]}")
    for i in range(4, 10): a(f"v_add_f32 v{vT+(i&1)}, v{vT+(i&1)}, v{xs[i]}")
    a(f"v_add_f32 v{vT}, v{vT}, v{vT+1}")
    red8("v_add_f32", [vT]); red_hi("v_add_f32", [vT])
    a(f"v_readlane_b32 s{sT0}, v{vT}, 63")
    a(f"v_mov_b32 v{vT+2}, {f2u(1/640.):#x}")
    step(1)
    a(f"v_mul_f32 v{vT+3}, s{sT0}, v{vT+2}")
    for i in range(10): a(f"v_sub_f32 v{xs[i]}, v{xs[i]}, v{vT+3}")
    a(f"v_mul_f32 v{vT}, v{xs[0]}, v{xs[0]}"); a(f"v_mul_f32 v{vT+1}, v{xs[1]}, v{xs[1]}")
    for i in range(2, 10): a(f"v_fmac_f32 v{vT+(i&1)}, v{xs[i]}, v{xs[i]}")
    a(f"v_add_f32 v{vT}, v{vT}, v{vT+1}")
    step(1)
    red8("v_add_f32", [vT]); red_hi("v_add_f32", [vT])
    a(f"v_readlane_b32 s{sT0}, v{vT}, 63")
    a(f"v_lshlrev_b32 v{vXr}, 16, v{vXr}")
    rne(vT+3, vT+3)
    a(f"v_mul_f32 v{vT+2}, s{sT0}, v{vT+2}")
    a(f"v_sub_f32 v{vXr}, v{vXr}, v{vT+3}")
    step(1)
    rne(vT+2, vT+2); rne(vXr, vXr)
    a(f"v_add_f32 v{vT+2}, {f2u(1e-5):#x}, v{vT+2}"); rne(vT+2, vT+2)
    a(f"v_sqrt_f32 v{vT+2}, v{vT+2}"); rne(vT+2, vT+2)
    a(f"v_rcp_f32 v{vT+4}, v{vT+2}")
    a(f"v_mul_f32 v{vT}, v{vXr}, v{vT+4}"); a(f"v_fma_f32 v{vT+1}, -v{vT}, v{vT+2}, v{vXr}")
    a(f"v_fma_f32 v{vT}, v{vT+1}, v{vT+4}, v{vT}")
    a(f"v_cvt_pk_bf16_f32 v{vXr}, v{vT}, v{vT}")
    a(f"v_lshlrev_b32 v{vT}, 2, v{vSlot}")
    for i in range(6): a(f"ds_bpermute_b32 v{vSc+i}, v{vT}, v{vXr} offset:{32*i}")
    step(1)
    a.c("hand-off tags of this launch")
    a("s_waitcnt lgkmcnt(0)")
    a(f"s_add_u32 s{sE}, s{sE}, 0x01010101")
    for k in range(4): a(f"s_bfe_u32 s{sTag[k]}, s{sE}, {(8 << 16) | (8*k):#x}")
    a(f"s_getreg_b32 s{sT0}, hwreg(HW_REG_XCC_ID, 0, 4)")
    if forceslow: a(f"s_and_b32 s{sT0}, s{sC}, 1")
    a(f"s_lshl_b32 s{sT0}, s{sT0}, 28"); a(f"s_and_b32 s{sId}, s{sE}, 0x0fffffff"); a(f"s_or_b32 s{sId}, s{sId}, s{sT0}")
    a(f"v_and_b32 v{vT}, 3, v{vL}"); a(f"v_lshlrev_b32 v{vT}, 3, v{vT}")
    a(f"v_bfe_u32 v{vPubD}, s{sE}, v{vT}, 8")
    a(f"s_add_u32 s{sE}, s{sE}, 0x01010101")
    a(f"v_bfe_u32 v{vTg2}, s{sE}, v{vT}, 8")
    a(f"s_mov_b32 s{sCnt}, {timeout}")
    buildA(vA, vSc); buildA(vA2, vSc+1)
    need("S5")
    if s1split: step(1)
    a(f"s_cmp_lt_u32 s{sW}, 5"); a("s_cbranch_scc1 L_s1q")
    for i in range(6):
        mfma(vD, (vA, vA2)[i & 1], vW+4*i, None if i == 0 else vD)
        if i < 4: buildA((vA, vA2)[i & 1], vSc+i+2)
    a("s_nop 0"); a("s_branch L_s1back")
    a.label("L_s1q")
    a.hist = []
    for i in range(6): mfma(vD+4*(i % 3), vA if i < 3 else vA2, vW+4*i, None if i < 3 else vD+4*(i % 3))
    a.label("L_s1back")
    a(f"s_mov_b64 exec, {sr(sVal,2)}")
    for j in range(3): a(f"ds_write_b128 v{vRedW}, {vr(vD+4*j,4)} offset:{LDS_RED+256*j}")
    arrive(0)
    step(nb)
    await_all(0, lambda: red_read(LDS_RED))
    a(f"v_add_f32 v{vT}, v{vT}, v{vT+1}"); a(f"v_add_f32 v{vT+2}, v{vT+2}, v{vT+3}"); a(f"v_add_f32 v{vT+5}, v{vT+5}, v{vT+6}")
    a(f"v_add_f32 v{vT}, v{vT}, v{vT+4}"); a(f"v_add_f32 v{vT+5}, v{vT+5}, v{vT+7}"); a(f"v_add_f32 v{vT}, v{vT}, v{vT+2}")
    a(f"s_lshl_b32 s{sT0}, s{sC}, 2"); a(f"s_add_u32 s{sT0}, s{sT0}, s{sFo}"); a(f"s_add_u32 s{sT0}, s{sT0}, 7680")
    a(f"v_permlane32_swap_b32 v{vT}, v{vT+5}")
    a(f"v_add_f32 v{vT}, v{vT}, v{vT+5}")
    a(f"v_and_or_b32 v{vPubD}, v{vT}, s{sMask}, v{vPubD}")
    a(f"s_cmp_eq_u32 s{sW}, 7"); a("s_cselect_b64 exec, 1, 0")
    a(f"v_mov_b32 v{vPubD}, s{sId}"); a(f"v_mov_b32 v{vPubA}, s{sT0}")
    a("s_mov_b64 exec, -1")
    a(f"buffer_store_dword v{vPubD}, v{vPubA}, {sr(dWS,4)}, 0 offen", "pubq")
    phase("")
    stamp(0)
    issue_to(f"K{qpos-1}")
    def x1loads(q, f): return [f"buffer_load_dwordx4 {vr(vG,4)}, v{vL16}, {sr(dWS,4)}, s{q} offen sc1",
                               f"buffer_load_dwordx4 {vr(vG2,4)}, v{vFo}, {sr(dWS,4)}, s{f} offen sc1"]
    a(x1loads(sQo, sFo)[0], "gq"); a(x1loads(sQo, sFo)[1], "gf")
    a.c("what the ffn gather must hold: tags on the data lanes, this die's id word on the others")
    a(f"v_and_b32 v{vT+1}, 15, v{vL}"); a(f"v_cmp_gt_u32 vcc, 5, v{vT+1}")
    a(f"v_mov_b32 v{vT+1}, s{sId}"); a(f"v_mov_b32 v{vT+2}, 0xff")
    for k in range(4):
        a(f"v_mov_b32 v{vA+k}, s{sTag[k]}"); a(f"v_cndmask_b32 v{vA+k}, v{vT+1}, v{vA+k}, vcc")
    a(f"v_cndmask_b32 v{vA2}, -1, v{vT+2}, vcc")
    step(D - 1)
    phase("x1")
    need(f"K{qpos-1}")
    a.wait_vm("gf")
    a.label("L_x1chk")
    for k in range(4): a(f"v_xor_b32 v{vG+k}, s{sTag[k]}, v{vG+k}")
    for k in range(4): a(f"v_xor_b32 v{vG2+k}, v{vA+k}, v{vG2+k}")
    or_all(vT, [vG+k for k in range(4)]); or_all(vT+1, [vG2+k for k in range(4)])
    a(f"v_and_b32 v{vT}, 0xff, v{vT}"); a(f"v_and_or_b32 v{vT}, v{vT+1}, v{vA2}, v{vT}")
    a(f"v_cmp_ne_u32 vcc, 0, v{vT}")
    a("s_cbranch_vccnz L_x1slow")
    a.label("L_x1ok")
    c = Asm(); c.label("L_x1slow")
    c.c("not all there yet, or a member of the group sits on another die")
    c(f"v_and_b32 v{vT}, 0x0fffffff, v{vT}"); c(f"v_cmp_ne_u32 vcc, 0, v{vT}")
    c("s_cbranch_vccnz L_x1wait")
    c(f"s_mov_b32 s{sReg}, {SLOW}")
    c(f"v_not_b32 v{vT}, v{vA2}")
    for k in range(4): c(f"v_and_b32 v{vG2+k}, v{vT}, v{vG2+k}")
    c(f"buffer_store_dword v{vPubD}, v{vPubA}, {sr(dWS,4)}, s{sReg} offen sc1")
    c("s_branch L_x1ok")
    c.label("L_x1wait")
    c(f"s_sub_u32 s{sSpin}, s{sSpin}, 1"); c("s_cbranch_scc1 L_end")
    c(f"s_sub_u32 s{sCnt}, s{sCnt}, 1")
    c(f"s_cmp_lg_u32 s{sCnt}, 0"); c("s_cbranch_scc1 L_x1nopub")
    c(f"s_mov_b32 s{sT0}, {SLOW}")
    c(f"buffer_store_dword v{vPubD}, v{vPubA}, {sr(dWS,4)}, s{sT0} offen sc1")
    c.label("L_x1nopub")
    c.c("after enough misses publish write-through as well and look at the two areas in turn")
    c(f"s_and_b32 s{sT0}, s{sCnt}, 0x80000001"); c(f"s_cmp_eq_u32 s{sT0}, 0x80000001"); c(f"s_cselect_b32 s{sT0}, {SLOW}, 0")
    c(f"s_add_u32 s{sT1}, s{sT0}, s{sFo}"); c(f"s_add_u32 s{sT0}, s{sT0}, s{sQo}")
    for t in x1loads(sT0, sT1): c(t)
    c("s_waitcnt vmcnt(0)"); c("s_branch L_x1chk")
    cold.append(c.out)
    red8("v_add_f32", [vG+k for k in range(4)])
    a(f"s_min_u32 s{sT0}, s{sW}, 5"); a(f"s_lshl_b32 s{sT0}, s{sT0}, 6")
    a(f"v_cvt_pk_bf16_f32 v{vG}, v{vG}, v{vG+1}"); a(f"v_cvt_pk_bf16_f32 v{vG+1}, v{vG+2}, v{vG+3}")
    a(f"v_lshl_add_u32 v{vT+2}, v{vSlot}, 3, s{sT0}")
    a(f"ds_write_b64 v{vT+2}, {vr(vG,2)} offset:{LDS_Q}")
    arrive(1)
    step(1)
    a.c("SwiGLU for this wave's eight hidden units")
    red8("v_add_f32", [vG2+k for k in range(4)], R8 + ("row_mirror",))
    a(f"v_and_b32 v{vT}, 1, v{vSlot}"); a(f"v_cmp_eq_u32 vcc, 1, v{vT}")
    a(f"v_lshlrev_b32 v{vT+3}, 4, v{vCh}")
    a(f"s_cmp_lt_u32 s{sW}, 6"); a(f"s_cselect_b32 s{sT0}, 0, {OOB}")
    a(f"v_cndmask_b32 v{vG2}, v{vG2}, v{vG2+1}, vcc"); a(f"v_cndmask_b32 v{vG2+2}, v{vG2+2}, v{vG2+3}, vcc")
    a(f"v_or_b32 v{vPubA}, s{sT0}, v{vPubA}")
    step(1)
    rne(vG2, vG2); rne(vG2+2, vG2+2)
    a(f"v_permlane16_swap_b32 v{vG2}, v{vG2+2}")
    a(f"v_mul_f32 v{vT}, {f2u(-1.4426950408889634):#x}, v{vG2}")
    a(f"v_exp_f32 v{vT}, v{vT}"); a(f"v_add_f32 v{vT}, 1.0, v{vT}"); a(f"v_rcp_f32 v{vT}, v{vT}")
    a(f"v_mul_f32 v{vT}, v{vT}, v{vG2}"); rne(vT, vT)
    a(f"v_mul_f32 v{vT}, v{vT}, v{vG2+2}")
    a(f"v_cvt_pk_bf16_f32 v{vT}, v{vT}, v{vT}")
    buildA(vAh, vT)
    if w4early:
        assert pos[0] <= idx["V5"] and voff == 2
        mfma(vY, vAh, w4reg, None)
    step(nb - 2)
    phase("qk")
    def qread():
        for j in range(3): a(f"ds_read_b128 {vr(vQ+4*j,4)}, v{vT+3} offset:{LDS_Q+128*j}")
    await_all(1, qread)
    stamp(1)
    sc = [vSc+g for g in range(8)]
    def dots(g):
        b = kreg(3*g)
        a(f"v_dot2_f32_bf16 v{vSc+g}, v{b}, v{vQ}, 0")
        a(f"v_dot2_f32_bf16 v{vT+g}, v{b+1}, v{vQ+1}, 0")
        for i in range(2, 12):
            d = vSc+g if i % 2 == 0 else vT+g
            a(f"v_dot2_f32_bf16 v{d}, v{b+i}, v{vQ+i}, v{d}")
        kdone[0] = g + 1
    def post(gs):
        r = [vSc+g for g in gs]
        for g in gs: a(f"v_add_f32 v{vSc+g}, v{vSc+g}, v{vT+g}")
        red8("v_add_f32", r); rne_pairs(r)
        for x in r: a(f"v_mul_f32 v{x}, {f2u(192 ** -0.5):#x}, v{x}")
        rne_pairs(r)
    def at(name):
        p0 = pos[0]; need(name)
        if pos[0] == p0: step(1)
    need("K5"); dots(0); dots(1)
    at("K11"); dots(2); dots(3)
    at("K11"); post(range(4))
    at("K17"); dots(4); dots(5)
    at("K20"); dots(6)
    phase("")
    issue_to(stream[idx["K23"] + D - 1][0] + str(stream[idx["K23"] + D - 1][1]))
    phase("sm")
    need("K23"); dots(7)
    step(1)
    post(range(4, 8))
    step(1)
    a(f"v_max3_f32 v{vG}, v{sc[0]}, v{sc[1]}, v{sc[2]}"); a(f"v_max3_f32 v{vG+1}, v{sc[3]}, v{sc[4]}, v{sc[5]}")
    a(f"v_max3_f32 v{vG}, v{vG}, v{sc[6]}, v{sc[7]}"); a(f"v_max_f32 v{vG}, v{vG}, v{vG+1}")
    red_hi("v_max_f32", [vG])
    a(f"v_readlane_b32 s{sMw}, v{vG}, 63")
    L2E = f"{f2u(1.4426950408889634):#x}"
    for r in sc: a(f"v_subrev_f32 v{r}, s{sMw}, v{r}")
    for r in sc: a(f"v_mul_f32 v{r}, {L2E}, v{r}")
    step(1)
    for r in sc: a(f"v_exp_f32 v{r}, v{r}")
    for k in range(4): a(f"v_add_f32 v{vT+k}, v{sc[k]}, v{sc[4+k]}")
    a(f"v_add_f32 v{vT}, v{vT}, v{vT+1}"); a(f"v_add_f32 v{vT+2}, v{vT+2}, v{vT+3}"); a(f"v_add_f32 v{vG+1}, v{vT}, v{vT+2}")
    a.c("(max, sum) of this wave: 16 tag bits under the bf16 max, 8 under the sum")
    a(f"s_and_b32 s{sT2}, s{sId}, 0xffff")
    a(f"s_lshl_b32 s{sT0}, s{sP}, 3"); a(f"s_add_u32 s{sT0}, s{sT0}, s{sW}"); a(f"s_lshl_b32 s{sT0}, s{sT0}, 3")
    red_hi("v_add_f32", [vG+1])
    a(f"s_add_u32 s{sT0}, s{sT0}, {WS_ML}"); a(f"v_mov_b32 v{vT}, s{sT0}")
    a(f"v_or_b32 v{vG}, s{sT2}, v{vG}")
    a(f"v_and_b32 v{vG+1}, 0xffffff00, v{vG+1}"); a(f"v_or_b32 v{vG+1}, s{sTag[2]}, v{vG+1}")
    a(f"s_mov_b32 exec_lo, 0"); a(f"s_mov_b32 exec_hi, 0x80000000")
    pub(f"buffer_store_dwordx2 {vr(vG,2)}, v{vT}, {sr(dWS,4)}, s{sReg} offen", "pubml")
    a("s_mov_b64 exec, -1")
    a(f"s_lshl_b32 s{sT0}, s{sC}, 3"); a(f"s_add_u32 s{sT0}, s{sT0}, s{sG}"); a(f"s_sub_u32 s{sT0}, s{sT0}, 240")
    a(f"s_lshl_b32 s{sT1}, s{sW}, 8"); a(f"s_or_b32 s{sT1}, s{sT1}, s{sT0}")
    a(f"s_cmp_lt_u32 s{sT1}, 10"); a("s_cbranch_scc1 L_park")
    a.label("L_parkback")
    c = Asm(); c.label("L_park")
    c.c("wave 0 of a reducer: park one probe line per mailbox copy in the memory-side cache")
    c(f"s_lshl_b32 s{sT0}, s{sT0}, 14"); c(f"s_add_u32 s{sT0}, s{sT0}, {WS_YP + 3072}")
    c(f"v_and_b32 v{vT}, 31, v{vL}"); c(f"v_lshrrev_b32 v{vT+1}, 5, v{vL}"); c(f"v_lshlrev_b32 v{vT+1}, 13, v{vT+1}")
    c(f"v_lshl_add_u32 v{vT}, v{vT}, 2, v{vT+1}")
    c(f"buffer_store_dword v{vZ}, v{vT}, {sr(dWS,4)}, s{sT0} offen sc1")
    c("s_branch L_parkback")
    cold.append(c.out)
    if touch:
        a.c("first touch of the stage-3 weight pages, so that their translations are there when the last loads go out")
        a("s_mov_b64 exec, 1")
        a(f"buffer_load_dword v{vQ}, v{vW2o}, {sr(dW2,4)}, 0 offen")
        if touch > 1: a(f"buffer_load_dword v{vQ+1}, v{vWo}, {sr(dWO,4)}, 0 offen")
        a("s_mov_b64 exec, -1")
    phase("")
    stamp(2)
    issue_to(f"V{mlpos-1}")
    a(f"s_lshl_b32 s{sT0}, s{sH}, 9"); a(f"s_add_u32 s{sT0}, s{sT0}, {WS_ML}"); a(f"s_add_u32 s{sT0}, s{sT0}, s{sReg}")
    a(f"v_lshlrev_b32 v{vFo}, 3, v{vL}")
    mload = f"buffer_load_dwordx2 {vr(vG,2)}, v{vFo}, {sr(dWS,4)}, s{sT0} offen sc1"
    a(mload, "gm")
    step(D - 1)
    phase("ml")
    need(f"V{mlpos-1}")
    a.wait_vm("gm")
    a.label("L_mlchk")
    a(f"v_xor_b32 v{vG}, s{sT2}, v{vG}"); a(f"v_xor_b32 v{vG+1}, s{sTag[2]}, v{vG+1}")
    a(f"v_and_b32 v{vT}, 0xffff, v{vG}"); a(f"v_and_b32 v{vT+1}, 0xff, v{vG+1}"); a(f"v_or_b32 v{vT}, v{vT}, v{vT+1}")
    a(f"v_cmp_ne_u32 vcc, 0, v{vT}")
    retry("L_mlchk", [mload])
    a(f"v_max_f32_dpp v{vT}, v{vG}, v{vG} {R8[0]} {DP}")
    red8("v_max_f32", [vT], R8[1:]); red_hi("v_max_f32", [vT])
    a(f"v_readlane_b32 s{sT0}, v{vT}, 63")
    a(f"v_mov_b32 v{vT+1}, s{sMw}")
    step(1)
    a(f"v_subrev_f32 v{vT}, s{sT0}, v{vG}"); a(f"v_subrev_f32 v{vT+1}, s{sT0}, v{vT+1}")
    a(f"v_mul_f32 v{vT}, {L2E}, v{vT}"); a(f"v_mul_f32 v{vT+1}, {L2E}, v{vT+1}")
    a(f"v_exp_f32 v{vT}, v{vT}"); a(f"v_exp_f32 v{vT+1}, v{vT+1}")
    a(f"v_mul_f32 v{vT}, v{vT}, v{vG+1}")
    red8("v_add_f32", [vT]); red_hi("v_add_f32", [vT])
    a(f"v_rcp_f32 v{vT}, v{vT}")
    a(f"v_mul_f32 v{vT}, v{vT}, v{vT+1}")
    a(f"v_readlane_b32 s{sT1}, v{vT}, 63")
    step(1)
    for r in sc: a(f"v_mul_f32 v{r}, s{sT1}, v{r}")
    for r in sc: a(f"v_cvt_pk_bf16_f32 v{r}, v{r}, v{r}")
    if ylast: a(f"v_lshlrev_b32 v{vFo}, 2, v{vL}"); a(f"s_movk_i32 s{sT2}, 8192")
    a.c("tags and offset of the o exchange")
    for k in range(4): a(f"s_bfe_u32 s{sTag[k]}, s{sE}, {(8 << 16) | (8*k):#x}")
    a(f"s_lshl_b32 s{sQo}, s{sPhi}, 10"); a(f"s_add_u32 s{sQo}, s{sQo}, {WS_QP}"); a(f"s_add_u32 s{sQo}, s{sQo}, s{sReg}")
    stamp(3)
    for g in range(8):
        if g in (0, 3) and arrived[0] >= idx[f"V{3*g+2}"]: step(1)
        if arrived[0] < idx[f"V{3*g+2}"]: phase("")
        A_ = vA if g % 2 == 0 else vA2
        buildA(A_, sc[g])
        for j in range(3):
            need(f"V{3*g+j}")
            mfma(vD+4*j, A_, vreg(3*g+j), None if g == 0 else vD+4*j)
            if g == 7:
                if j == 2:
                    while pos[0] < limit[0]: load(*stream[pos[0]]); pos[0] += 1
                    if skel == 2: a("s_waitcnt vmcnt(0)"); a("s_endpgm")
                    stamp(4)
                a(f"s_mov_b64 exec, {sr(sVal,2)}")
                a(f"ds_write_b128 v{vRedW}, {vr(vD+4*j,4)} offset:{LDS_RED+256*j}")
                a("s_mov_b64 exec, -1")
    if skip67: a(f"s_cmp_ge_u32 s{sW}, 6")
    a("s_waitcnt lgkmcnt(0)"); a("s_barrier")
    if skip67: a("s_cbranch_scc1 L_nopub")
    red_read(LDS_RED)
    if trim: a(f"s_cmp_lg_u32 s{sReg}, 0")
    red_sum8(vPubD, vTg2)
    pub(f"buffer_store_dword v{vPubD}, v{vPubA}, {sr(dWS,4)}, s{sReg} offen", "pubo", not trim)
    if skip67: a.label("L_nopub")
    stamp(5)
    if not trim:
        a(f"s_cmp_ge_u32 s{sC}, 30"); a("s_cbranch_scc1 L_reducer")
        snap = a.snapshot()
    if hold:
        a.c("a plain store waits behind older loads of the CU, so the last weight loads go out after the o stores")
        nh = 0
        while pos[0] < len(stream):
            if nh == 0 or rr2: a("s_barrier")
            load(*stream[pos[0]]); pos[0] += 1; nh += 1
    if trim:
        a(f"s_cmp_ge_u32 s{sC}, 30"); a("s_cbranch_scc1 L_reducer")
        snap = a.snapshot()
    if hold: a.wait_vm(pollat)
    oload = f"buffer_load_dwordx4 {vr(vG2,4)}, v{vL16}, {sr(dWS,4)}, s{sQo} offen sc1"
    a(oload)
    if not w4early:
        a.wait_vm("W4")
        stamp(10)
        mfma(vY, vAh, vW+16, None)
    a("s_branch L_ochk")
    a.label("L_opoll")
    a(oload)
    a(f"s_sub_u32 s{sSpin}, s{sSpin}, 1"); a("s_cbranch_scc1 L_end")
    a.label("L_ochk")
    a("s_waitcnt vmcnt(0)")
    untag([vG2])
    for k in range(4): a(f"v_add_f32_dpp v{vG+k}, v{vG2+k}, v{vG2+k} {R8[0]} {DP}")
    a("s_cbranch_vccnz L_opoll")
    if skel == 3: a("s_endpgm")
    stamp(6)
    red8("v_add_f32", [vG+k for k in range(4)], R8[1:])
    for k in range(4): a(f"v_cvt_pk_bf16_f32 v{vG+k}, v{vG+k}, v{vG+k}")
    As = (vA, vA2, vG2, vT)
    for r in range(4):
        buildA(As[r], vG+r)
        if r >= 1: mfma(vY, As[r-1], vW+4*(r-1), vY)
    mfma(vY, As[3], vW+12, vY)
    if ylast:
        a.c("no barrier: every wave writes, counts itself in and reads all partials; the last one in has them all")
        a(f"s_mov_b64 exec, {sr(sVal,2)}")
        a(f"ds_write_b128 v{vRedW}, {vr(vY,4)} offset:{LDS_RED2}")
        a("s_mov_b64 exec, 1")
        a(f"ds_add_rtn_u32 v{vCn}, v{vZ}, v{vZ+1} offset:{LDS_CNT}")
        a("s_mov_b64 exec, -1")
        b = LDS_RED2 // 256; yv = vKV
        for q in range(8): a(f"ds_read2st64_b32 {vr(yv+2*q,2)}, v{vFo} offset0:{b+6*q} offset1:{b+6*q+3}")
        a("s_waitcnt lgkmcnt(8)")
        a(f"v_readfirstlane_b32 s{sT0}, v{vCn}")
        a(f"s_cmp_lg_u32 s{sT0}, 15"); a("s_cbranch_scc1 L_exit3")
        a("s_waitcnt lgkmcnt(4)")
        a(f"v_pk_add_f32 {vr(yv,2)}, {vr(yv,2)}, {vr(yv+2,2)}"); a(f"v_pk_add_f32 {vr(yv+4,2)}, {vr(yv+4,2)}, {vr(yv+6,2)}")
        a(f"v_pk_add_f32 {vr(yv,2)}, {vr(yv,2)}, {vr(yv+4,2)}")
        a("s_waitcnt lgkmcnt(2)")
        a(f"v_pk_add_f32 {vr(yv+8,2)}, {vr(yv+8,2)}, {vr(yv+10,2)}")
        a(f"v_pk_add_f32 {vr(yv,2)}, {vr(yv,2)}, {vr(yv+8,2)}")
        a("s_waitcnt lgkmcnt(0)")
        a(f"v_pk_add_f32 {vr(yv+12,2)}, {vr(yv+12,2)}, {vr(yv+14,2)}")
        a(f"v_pk_add_f32 {vr(yv,2)}, {vr(yv,2)}, {vr(yv+12,2)}")
        a(f"v_add_f32 v{yv}, v{yv}, v{yv+1}")
        a(f"v_and_or_b32 v{vPubD}, v{yv}, s{sMask}, v{vTg2}")
        a(f"buffer_store_dword v{vPubD}, v{vYo}, {sr(dWS,4)}, 0 offen sc1")
        a(f"buffer_store_dword v{vPubD}, v{vYo}, {sr(dWS,4)}, s{sT2} offen sc1")
    else:
        a(f"s_mov_b64 exec, {sr(sVal,2)}")
        a(f"s_cmp_ge_u32 s{sW}, 2")
        a(f"ds_write_b128 v{vRedW}, {vr(vY,4)} offset:{LDS_RED2}")
        a("s_mov_b64 exec, -1")
        a("s_waitcnt lgkmcnt(0)"); a("s_barrier")
        a("s_cbranch_scc1 L_exit3")
        red_read(LDS_RED2)
        red_sum8(vPubD, vTg2)
        a(f"buffer_store_dword v{vPubD}, v{vYo}, {sr(dWS,4)}, 0 offen sc1", "puby")
    a.label("L_exit3")
    stamp(7)
    finish()
    a.label("L_reducer")
    a.restore(snap)
    if skel == 3: a("s_endpgm")
    a(f"s_lshl_b32 s{sK}, s{sK}, 3"); a(f"s_add_u32 s{sK}, s{sK}, s{sG}")
    a(f"s_cmp_ge_u32 s{sK}, 10"); a("s_cbranch_scc1 L_exitr")
    a(f"s_cmp_ge_u32 s{sW}, 2")
    if stamps or diag is not None:
        a("s_cbranch_scc1 L_barx"); cold.append(["L_barx:", "    s_barrier", "    s_branch L_exitr"])
    else: a("s_cbranch_scc1 L_exitr")
    a(f"s_lshl_b32 s{sT0}, s{sK}, 2"); a(f"s_add_u32 s{sT0}, s{sT0}, s{sW}"); a(f"s_lshl_b32 s{sT0}, s{sT0}, 12")
    a(f"s_add_u32 s{sT0}, s{sT0}, {WS_YP}")
    a(f"s_lshl_b32 s{sK}, s{sK}, 1"); a(f"s_add_u32 s{sK}, s{sK}, s{sW}")
    y = vD
    def yl(n): return [f"buffer_load_dwordx4 {vr(vKV+12*n+4*i,4)}, v{vL16}, {sr(dWS,4)}, s{sT0} offen offset:{1024*i} sc1" for i in range(3)]
    def colcalc():
        a.c("output column of this lane: 32*line + 4*(l&7) + (l>>4)")
        a(f"v_lshrrev_b32 v{vT+1}, 4, v{vL}"); a(f"v_lshl_add_u32 v{vT+1}, v{vCh}, 2, v{vT+1}")
        a(f"s_lshl_b32 s{sT1}, s{sK}, 6"); a(f"v_lshl_add_u32 v{vYo}, v{vT+1}, 1, s{sT1}")
        a.c("line 0's reducer hears (through its producers) from every workgroup: it advances the hand-off epoch")
        a(f"s_cmp_eq_u32 s{sK}, 0"); a(f"s_cselect_b32 s{sT2}, {WS_E}, {OOB}")
        a(f"v_mov_b32 v{vT+4}, s{sE}")
        if ydry: a(f"v_mov_b32 v{vT+5}, {OOB}"); a(f"v_mov_b32 v{vT+6}, {OOB}")
        else: a(f"v_mov_b32 v{vT+5}, s{sT2}"); a(f"v_mov_b32 v{vT+6}, v{vYo}")
    if ibsts:
        a.c("which copy is nearer? loads return in order: the second is still out after the first only if it goes further")
        a(f"s_cmp_eq_u32 s{sW}, 0"); a(f"s_cselect_b32 s{sT1}, 0, {OOB}")
        a(f"v_mov_b32 v{vT+1}, s{sT1}"); a(f"v_or_b32 v{vT+2}, 8192, v{vT+1}")
        a("s_waitcnt vmcnt(0)")
        a(f"buffer_load_dword v{vT+3}, v{vT+1}, {sr(dWS,4)}, s{sT0} offen offset:3072 sc1")
        a(f"buffer_load_dword v{vT+7}, v{vT+2}, {sr(dWS,4)}, s{sT0} offen offset:3072 sc1")
        a("s_waitcnt vmcnt(1)")
        colcalc()
        a(f"s_lshl_b32 s{sT1}, s{sW}, 2"); a(f"v_mov_b32 v{vT+1}, s{sT1}")
        a("s_getreg_b32 s4, hwreg(HW_REG_IB_STS, 0, 4)")
        if stamps is True: a(f"s_add_u32 s{sSt+11}, s4, 100")
        a("s_cmp_lg_u32 s4, 0"); a("s_cselect_b32 s4, 0, 8192")
        a(f"v_mov_b32 v{vT+3}, s4")
        a(f"ds_write_b32 v{vT+1}, v{vT+3} offset:{LDS_Q}")
        a("s_waitcnt lgkmcnt(0)")
        a("s_barrier")
        a(f"ds_read_b32 v{vT+3}, v{vZ} offset:{LDS_Q}")
    else:
        a.c("which copy is nearer? loads return in order, so the gap behind the first one is long only if the second goes further")
        a(f"v_mov_b32 v{vT+2}, 8192")
        a(f"s_cmp_lg_u32 s{sW}, 0"); a("s_cbranch_scc1 L_probed")
        a("s_mov_b64 exec, 1")
        a("s_waitcnt vmcnt(0)")
        a(f"buffer_load_dword v{vT+3}, v{vZ}, {sr(dWS,4)}, s{sT0} offen offset:3072 sc1")
        a(f"buffer_load_dword v{vT+7}, v{vT+2}, {sr(dWS,4)}, s{sT0} offen offset:3072 sc1")
        a("s_waitcnt vmcnt(1)"); a("s_memtime s[4:5]")
        a("s_waitcnt vmcnt(0)"); a("s_memtime s[6:7]")
        a("s_waitcnt lgkmcnt(0)")
        a("s_sub_u32 s4, s6, s4")
        a("s_cmpk_gt_u32 s4, 90"); a("s_cselect_b32 s4, 0, 8192")
        a(f"v_mov_b32 v{vT+3}, s4")
        a(f"ds_write_b32 v{vZ}, v{vT+3} offset:{LDS_Q}")
        a("s_mov_b64 exec, -1")
        a("s_waitcnt lgkmcnt(0)")
        a.label("L_probed")
        a("s_barrier")
        a(f"ds_read_b32 v{vT+3}, v{vZ} offset:{LDS_Q}")
        colcalc()
    a(f"buffer_load_ushort v{vXo}, v{vYo}, {sr(dX,4)}, 0 offen")
    a("s_waitcnt lgkmcnt(0)")
    a(f"v_add_u32 v{vL16}, v{vL16}, v{vT+3}")
    for n in range(ypipe):
        for t in yl(n): a(t)
    if ydry:
        a.c("one pass through the last lines with every store out of range: they are in the instruction cache afterwards")
        a(f"s_mov_b32 s{sT1}, 1"); a("s_branch L_yfin")
        a.label("L_ystart")
        a(f"s_mov_b32 s{sT1}, 0")
    if ydry: a(f"v_mov_b32 v{vT+5}, s{sT2}"); a(f"v_mov_b32 v{vT+6}, v{vYo}")
    a(f"s_waitcnt vmcnt({3*ypipe})")
    a(f"v_lshlrev_b32 v{vXo}, 16, v{vXo}")
    a.label("L_ypoll")
    for n in range(ypipe):
        a(f"s_waitcnt vmcnt({3*(ypipe-1)})")
        b = vKV + 12*n
        untag([b, b+4, b+8])
        if trim:
            pk(y, b, b+4); pk(y+2, b+2, b+6); pk(y, y, b+8); pk(y+2, y+2, b+10)
        else:
            for k in range(4): a(f"v_add_f32 v{y+k}, v{b+k}, v{b+4+k}")
            for k in range(4): a(f"v_add_f32 v{y+k}, v{y+k}, v{b+8+k}")
        a("s_cbranch_vccz L_yfin")
        for t in yl(n): a(t)
    a(f"s_sub_u32 s{sSpin}, s{sSpin}, 1"); a("s_cbranch_scc0 L_ypoll")
    a("s_endpgm")
    a.label("L_yfin")
    a(f"buffer_store_dword v{vT+4}, v{vT+5}, {sr(dWS,4)}, 0 offen {efl}")
    stamp(9)
    a(f"v_permlane32_swap_b32 v{y}, v{y+2}"); a(f"v_permlane32_swap_b32 v{y+1}, v{y+3}")
    if trim: pk(y, y, y+2)
    else: a(f"v_add_f32 v{y}, v{y}, v{y+2}"); a(f"v_add_f32 v{y+1}, v{y+1}, v{y+3}")
    a(f"v_permlane16_swap_b32 v{y}, v{y+1}")
    a(f"v_add_f32 v{y}, v{y}, v{y+1}")
    if ydry: a(f"s_cmp_lg_u32 s{sT1}, 0")
    a(f"v_add_f32_dpp v{y}, v{y}, v{y} row_ror:8 {DP}")
    a(f"v_add_f32 v{y}, v{y}, v{vXo}")
    a(f"v_cvt_pk_bf16_f32 v{y}, v{y}, v{y}")
    a(f"buffer_store_short v{y}, v{vT+6}, {sr(dOUT,4)}, 0 offen {outfl}")
    if ydry: a("s_cbranch_scc1 L_ystart")
    a.label("L_exitr")
    stamp(8)
    finish()
    for blk in cold:
        for ln in blk: a.raw(ln)
    a.label("L_end")
    a("s_endpgm")
    if prefetch: a.raw("    .fill 512, 4, 0xbf810000")
    nv = (V.n + 7) // 8 * 8
    a.raw('.section .rodata,"a"'); a.raw(".p2align 6"); a.raw(f".amdhsa_kernel {NAME}_kernel")
    a.raw(f"  .amdhsa_next_free_vgpr {nv}"); a.raw("  .amdhsa_next_free_sgpr 102"); a.raw(f"  .amdhsa_accum_offset {nv}")
    a.raw("  .amdhsa_group_segment_fixed_size 0"); a.raw("  .amdhsa_kernarg_size 96"); a.raw("  .amdhsa_user_sgpr_count 2")
    a.raw("  .amdhsa_user_sgpr_kernarg_segment_ptr 1"); a.raw("  .amdhsa_system_sgpr_workgroup_id_x 1")
    a.raw(".end_amdhsa_kernel")
    return a.text()

if __name__ == "__main__":
    kw = {}
    out = sys.argv[1]
    for x in sys.argv[2:]:
        k, v = x.split("=")
        try: v = eval(v)
        except Exception: pass
        kw[k] = v
    open(out, "w").write(gen(**kw))
```

```python
import sys, struct, re
sys.path.insert(0, "dev")
from asmlib import *

NAME = "parallel_sum__gqa_block_cached__glu_gated_swiglu__decode"
def f2u(x): return struct.unpack("<I", struct.pack("<f", x))[0]

WS_E  = 0
WS_QP = 0x10000
WS_FP = 0x40000
WS_ML = 0x50000
SLOW  = 0x50000
WS_YP = 0x100000
WS_ST = 0x400000
WS_SIZE = 0x800000
OOB = 0x40000000
LDS_RED = 0
LDS_RED2 = 12288
LDS_Q = 24576
LDS_CNT = 25088

DOC = """;
; stripped before use. Inside a group they stay in the L2 only after all 32 workgroups have reported the same die
; depends on it. The y mailboxes exist twice, once per side of the memory system; a reducer polls the nearer copy."""

def gen(qpos=14, mlpos=14, hold=2, nb=3, pace=(10, 27.6), pfrom=9, hi=(), ypipe=3, voff=2, kfirst=0, tpost=True, anchors=(), aoff=25, atau=None, lastdeep=1, lo2=None, relax=2, selw=None, rr=0, s1split=0, adj=0, gbase=0, ylast=False, outfl='', efl='', touch=0, ibsts=True, ydry=False, thin=3, DH=4, hi5=None, bucket=None, w4early=False, endthin=99, endrelax=99, thinto=99, thinph=0, trim=True, skip67=False, pollat='pubo', rr2=False, wb=False, wbk=None, wbend=None, ganch=(), grp=False, phoff=(-10, 35, 15), rlph=(0, 1, 2), fresh=None,
        ld="nt", lds=32768, spin=1 << 20, timeout=24, prefetch=False,
        stamps=False, diag=None, amp=0, trace=False, forceslow=False, skel=0):
    D = 3
    a = Asm()
    hdr = open("cdna_kernels/" + NAME + ".s.ref").read().split("\n")
    for ln in hdr:
        if ln.startswith(";") and "@launch" not in ln and "Override launch" not in ln and "grid=ceil" not in ln: a.raw(ln)
    a.raw(f"; @launch grid=(256,1,1) block=(512,1,1) lds={lds}")
    for ln in DOC.split("\n"): a.raw(ln)
    a.raw('.amdgcn_target "amdgcn-amd-amdhsa--gfx950"')
    a.raw(".text"); a.raw(f".globl {NAME}_kernel"); a.raw(".p2align 8"); a.raw(f".type {NAME}_kernel,@function")
    a.label(f"{NAME}_kernel")
    V = Regs(1, 256, "v"); S = Regs(28, 102, "s")
    pX, pK, pV, pWQ, pWO, pBX, pW1, pW3, pW2, pOUT, pDBG, pWS = [4 + 2*i for i in range(12)]
    dK, dV, dS1, dWS, dX = [S.get(4) for _ in range(5)]
    dWO, dW2, dOUT = 12, 20, S.get(4)
    sW, sG, sC, sP, sH, sS, sE, sT0, sT1, sT2, sT3, sSpin, sReg, sPhi, sK, sCnt, sQo, sFo, sId, sMask = [S.get() for _ in range(20)]
    sTag = [S.get() for _ in range(4)]
    sOff = [16, 17, 18]
    sS1, sS2 = S.get(), S.get(); sMw = sS1
    sBase, sAn, sSmp = 19, 8, 9
    dDBG = 24
    sVal = S.get(2); sTm = S.get(2); sStart = S.get(2)
    sSt = S.get(16) if (stamps or diag is not None) else None
    (vL, vSlot, vCh, vKoff, vS1a, vS1b, vS1c, vXr, vRedW, vRedR, vL16, vPubA, vPubD, vTg2, vWo, vW2o, vYo, vFo, vCn, vTr) = [V.get() for _ in range(20)]
    vZ = V.get(2)
    vM = V.get(4); vA = V.get(4); vA2 = V.get(4); vAh = V.get(4); vG = V.get(4); vG2 = V.get(4); vT = V.get(8)
    vY = V.get(4); vSc = V.get(8); vQ = V.get(12); vD = V.get(12); vW = V.get(24); vKV = V.get(96 + 12*voff)
    vXa, vXb, vXo = vY, vSc, vXr
    kreg = lambda i: vKV + 12*voff + 4*i
    vreg = lambda i: vKV + 4*i
    cold = []
    def stamp(n):
        if diag == n or stamps is True or (stamps == 'min' and n == 8) or (isinstance(stamps, tuple) and n in stamps):
            a(f"s_memrealtime {sr(0,2)}"); a("s_waitcnt lgkmcnt(0)"); a(f"s_mov_b32 s{sSt + (n if stamps else 0)}, s0")
    def finish():
        if diag is not None:
            if selw: a(f"s_cmpk_lg_u32 s2, {selw[0]}"); a("s_cbranch_scc1 L_end"); a(f"s_cmp_lg_u32 s{sW}, {selw[1]}"); a("s_cbranch_scc1 L_end")
            a(f"s_sub_u32 s{sSt}, s{sSt}, s{sStart}"); a(f"s_mul_i32 s{sSt}, s{sSt}, {amp or 1}"); a(f"s_add_u32 s{sSt}, s{sSt}, 5000")
            if wb:
                lq = a.newlabel("pre"); a.label(lq)
                a(f"s_memrealtime {sr(sTm,2)}"); a("s_waitcnt lgkmcnt(0)")
                a(f"s_sub_u32 s{sTm}, s{sTm}, s{sStart}"); a(f"s_cmpk_lt_u32 s{sTm}, 3000"); a(f"s_cbranch_scc1 {lq}")
                lq = a.newlabel("nowb")
                a(f"s_or_b32 s{sT0}, s{sC}, s{sW}"); a(f"s_cbranch_scc1 {lq}")
                a.raw("    buffer_wbl2 sc1"); a("s_waitcnt vmcnt(0)")
                a.label(lq)
            lp = a.newlabel("pad"); a.label(lp)
            a(f"s_memrealtime {sr(sTm,2)}"); a("s_waitcnt lgkmcnt(0)")
            a(f"s_sub_u32 s{sTm}, s{sTm}, s{sStart}"); a(f"s_cmp_lt_u32 s{sTm}, s{sSt}"); a(f"s_cbranch_scc1 {lp}")
        elif stamps:
            lp = a.newlabel("pad"); a.label(lp)
            a(f"s_memrealtime {sr(sTm,2)}"); a("s_waitcnt lgkmcnt(0)")
            a(f"s_sub_u32 s{sTm}, s{sTm}, s{sStart}"); a(f"s_cmp_lt_u32 s{sTm}, 3000"); a(f"s_cbranch_scc1 {lp}")
            a(f"s_mov_b32 s{sSt+13}, s{sReg}"); a(f"s_mov_b32 s{sSt+14}, s{sStart}"); a(f"s_mov_b32 s{sSt+15}, s{sSpin}")
            a(f"s_lshl_b32 s{sT0}, s{sP}, 3"); a(f"s_add_u32 s{sT0}, s{sT0}, s{sW}"); a(f"s_lshl_b32 s{sT0}, s{sT0}, 6")
            if trace:
                a("s_mov_b64 exec, -1")
                a(f"s_lshl_b32 s{sT1}, s{sT0}, 2"); a(f"s_add_u32 s{sT1}, s{sT1}, {WS_ST + 0x100000}")
                a(f"v_lshl_add_u32 v{vT}, v{vL}, 2, s{sT1}")
                a(f"buffer_store_dword v{vTr}, v{vT}, {sr(dWS,4)}, 0 offen")
            a("s_mov_b64 exec, 1")
            a(f"s_add_u32 s{sT0}, s{sT0}, {WS_ST}"); a(f"v_mov_b32 v{vT}, s{sT0}")
            for q in range(4):
                for k in range(4): a(f"v_mov_b32 v{vKV+80+4*q+k}, s{sSt+4*q+k}")
                a(f"buffer_store_dwordx4 {vr(vKV+80+4*q,4)}, v{vT}, {sr(dWS,4)}, 0 offen offset:{16*q}")
        a("s_endpgm")
    def rne(dst, src):
        a(f"v_cvt_pk_bf16_f32 v{dst}, v{src}, v{src}"); a(f"v_and_b32 v{dst}, 0xffff0000, v{dst}")
    def rne_pairs(regs):
        for x, y in zip(regs[0::2], regs[1::2]): a(f"v_cvt_pk_bf16_f32 v{y}, v{x}, v{y}")
        for x, y in zip(regs[0::2], regs[1::2]):
            a(f"v_lshlrev_b32 v{x}, 16, v{y}"); a(f"v_and_b32 v{y}, 0xffff0000, v{y}")
    DP = "row_mask:0xf bank_mask:0xf"
    R8 = ("quad_perm:[1,0,3,2]", "quad_perm:[2,3,0,1]", "row_half_mirror")
    def red8(op, regs, steps=R8):
        for m in steps:
            for r in regs: a(f"{op}_dpp v{r}, v{r}, v{r} {m} {DP}")
    def red_hi(op, regs):
        for r in regs: a(f"{op}_dpp v{r}, v{r}, v{r} row_ror:8 {DP}")
        for r in regs: a(f"{op}_dpp v{r}, v{r}, v{r} row_bcast:15 row_mask:0xa bank_mask:0xf")
        for r in regs: a(f"{op}_dpp v{r}, v{r}, v{r} row_bcast:31 row_mask:0xc bank_mask:0xf")
    def buildA(dst, dup, e=None):
        for k in range(4): (e or a)(f"v_and_b32 v{dst+k}, v{dup}, v{vM+k}")
    def mfma(d, A_, B_, c, e=None): (e or a)(f"v_mfma_f32_16x16x32_bf16 {vr(d,4)}, {vr(A_,4)}, {vr(B_,4)}, {'0' if c is None else vr(c,4)}")
    def or_all(dst, rs, e=None):
        e = e or a
        e(f"v_or3_b32 v{dst}, v{rs[0]}, v{rs[1]}, v{rs[2]}"); rs = rs[3:]
        while rs:
            if len(rs) >= 2: e(f"v_or3_b32 v{dst}, v{dst}, v{rs[0]}, v{rs[1]}"); rs = rs[2:]
            else: e(f"v_or_b32 v{dst}, v{dst}, v{rs[0]}"); rs = rs[1:]
    def untag(sets):
        for g in sets:
            for k in range(4): a(f"v_xor_b32 v{g+k}, s{sTag[k]}, v{g+k}")
        or_all(vT, [g+k for g in sets for k in range(4)])
        if trim: a(f"v_cmp_ne_u32_sdwa vcc, v{vT}, v{vZ} src0_sel:BYTE_0 src1_sel:DWORD")
        else:
            a(f"v_and_b32 v{vT}, 0xff, v{vT}")
            a(f"v_cmp_ne_u32 vcc, 0, v{vT}")
    def pub(text, name, cmp=True):
        ls = a.newlabel("pubslow"); lb = a.newlabel("pubback")
        if cmp: a(f"s_cmp_lg_u32 s{sReg}, 0")
        a(f"s_cbranch_scc1 {ls}")
        a(text, name)
        a.label(lb)
        cold.append([ls + ":", "    " + text + " sc1", f"    s_branch {lb}"])
    def retry(label, loads):
        lr = a.newlabel("retry")
        a(f"s_cbranch_vccnz {lr}")
        cold.append([lr + ":", f"    s_sub_u32 s{sSpin}, s{sSpin}, 1", "    s_cbranch_scc1 L_end"] + ["    " + t for t in loads] +
                    ["    s_waitcnt vmcnt(0)", f"    s_branch {label}"])
    def arrive(k):
        a("s_mov_b64 exec, 1"); a(f"ds_add_u32 v{vZ}, v{vZ+1} offset:{LDS_CNT+4*k}"); a("s_mov_b64 exec, -1")
    def await_all(k, reads):
        lb = a.newlabel("await"); a.label(lb)
        a(f"ds_read_b32 v{vCn}, v{vZ} offset:{LDS_CNT+4*k}")
        reads()
        a(f"s_sub_u32 s{sSpin}, s{sSpin}, 1"); a("s_cbranch_scc1 L_end")
        a("s_waitcnt lgkmcnt(0)")
        a(f"v_cmp_ne_u32 vcc, 8, v{vCn}"); a(f"s_cbranch_vccnz {lb}")
    def red_read(base):
        b = base // 256
        for q in range(4): a(f"ds_read2st64_b32 {vr(vT+2*q,2)}, v{vRedR} offset0:{b+12*q} offset1:{b+12*q+6}")
    def pk(d, x, y): a(f"v_pk_add_f32 {vr(d,2)}, {vr(x,2)}, {vr(y,2)}")
    def red_sum8(dst, tag):
        if trim:
            a("s_waitcnt lgkmcnt(2)"); pk(vT, vT, vT+2)
            a("s_waitcnt lgkmcnt(1)"); pk(vT, vT, vT+4)
            a("s_waitcnt lgkmcnt(0)"); pk(vT, vT, vT+6)
            a(f"v_pk_add_f32 {vr(vT,2)}, {vr(vT,2)}, {vr(vT,2)} op_sel:[0,1] op_sel_hi:[1,0]")
            a(f"v_permlane32_swap_b32 v{vT}, v{vT+1}")
            a(f"v_add_f32 v{vT}, v{vT}, v{vT+1}")
            a(f"v_and_or_b32 v{dst}, v{vT}, s{sMask}, v{tag}")
            return
        a("s_waitcnt lgkmcnt(2)")
        a(f"v_add_f32 v{vT}, v{vT}, v{vT+1}"); a(f"v_add_f32 v{vT+2}, v{vT+2}, v{vT+3}")
        a("s_waitcnt lgkmcnt(1)")
        a(f"v_add_f32 v{vT+4}, v{vT+4}, v{vT+5}"); a(f"v_add_f32 v{vT}, v{vT}, v{vT+2}")
        a("s_waitcnt lgkmcnt(0)")
        a(f"v_add_f32 v{vT+6}, v{vT+6}, v{vT+7}"); a(f"v_add_f32 v{vT}, v{vT}, v{vT+4}")
        a(f"v_add_f32 v{vT+1}, v{vT}, v{vT+6}"); a(f"v_add_f32 v{vT}, v{vT}, v{vT+6}")
        a(f"v_permlane32_swap_b32 v{vT}, v{vT+1}")
        a(f"v_add_f32 v{vT}, v{vT}, v{vT+1}")
        a(f"v_and_or_b32 v{dst}, v{vT}, s{sMask}, v{tag}")

    stream = [("K", i) for i in range(kfirst)] + [("S", i) for i in range(6)] + [("K", i) for i in range(kfirst, 24)]
    if w4early: stream.insert(kfirst + 6, ("W", 4))
    stream += [("V", i) for i in range(24)] + [("W", i) for i in range(4 if w4early else 5)]
    w4reg = vKV + 20 if w4early else vW + 16
    limit = [len(stream) - hold]
    idx = {f"{t}{i}": n for n, (t, i) in enumerate(stream)}
    kdone = [0]; pos = [0]; arrived = [-1]; deep = [False]
    def load(t, i):
        if t in "KV":
            g, j = divmod(i, 3)
            if t == "V": assert g - voff < kdone[0], "V load overwrites unconsumed K"
            so = "0" if g < 2 else f"s{sOff[(g>>1)-1]}"
            a(f"buffer_load_dwordx4 {vr(kreg(i) if t == 'K' else vreg(i),4)}, v{vKoff}, {sr(dK if t == 'K' else dV,4)}, {so} offen offset:{3072*(g&1)+128*j} {ld}", f"{t}{i}")
        elif t == "S":
            a(f"buffer_load_dwordx4 {vr(vW+4*i,4)}, v{(vS1a, vS1a, vS1a, vS1b, vS1b, vS1c)[i]}, {sr(dS1,4)}, {('0', f's{sS1}', f's{sS2}')[i % 3]} offen {ld}", f"S{i}")
        elif i < 4:
            a(f"buffer_load_dwordx4 {vr(vW+4*i,4)}, v{vWo}, {sr(dWO,4)}, 0 offen offset:{1280*i} {ld}", f"W{i}")
        else:
            a(f"buffer_load_dwordx4 {vr(w4reg,4)}, v{vW2o}, {sr(dW2,4)}, 0 offen {ld}", "W4")
    def wait_idx(n, extra=""):
        if n > arrived[0] or extra:
            t, i = stream[n]; a.wait_vm(f"{t}{i}", extra); arrived[0] = max(arrived[0], n)
    nchk = [0]; thpost = {}
    def thr(p): return int(pace[0] + pace[1]*p) + relax*nchk[0] + phoff[p % 3]
    def step(n=1):
        for _ in range(n):
            p = pos[0]
            if p >= limit[0]: return
            if trace == 1 and p >= DH:
                a(f"s_memrealtime {sr(4,2)}"); a("s_waitcnt lgkmcnt(0)"); a(f"v_writelane_b32 v{vTr}, s4, {p}")
            if deep[0] or (pace and p >= limit[0] - lastdeep): wait_idx(p - 4)
            elif fresh and p >= pfrom:
                base = int(pace[0] + pace[1]*p) + relax*nchk[0]
                lb = a.newlabel("go")
                wait_idx(p - 4)
                a(f"s_memrealtime {sr(sTm,2)}"); a("s_waitcnt lgkmcnt(0)"); a(f"s_sub_u32 s{sTm}, s{sTm}, s{sBase}")
                a(f"s_cmpk_gt_i32 s{sTm}, {base + fresh[0]}"); a(f"s_cbranch_scc1 {lb}")
                h = list(a.hist)
                if relax: a(f"s_sub_u32 s{sBase}, s{sBase}, {relax}"); nchk[0] += 1
                t, i = stream[p - 3]; a.wait_vm(f"{t}{i}")
                if fresh[1] is not None:
                    a(f"s_memrealtime {sr(sTm,2)}"); a("s_waitcnt lgkmcnt(0)"); a(f"s_sub_u32 s{sTm}, s{sTm}, s{sBase}")
                    a(f"s_cmpk_gt_i32 s{sTm}, {base + fresh[1]}"); a(f"s_cbranch_scc1 {lb}")
                    t, i = stream[p - 2]; a.wait_vm(f"{t}{i}")
                a.label(lb); a.hist = h
            elif pace and p >= pfrom and not (grp and p % 3 != thinph):
                if p - D > arrived[0] or tpost:
                    if not tpost: a(f"s_memrealtime {sr(sTm,2)}")
                    wait_idx(p - DH, "lgkmcnt(0)")
                    for k, (pp, pr) in enumerate(ganch):
                        if pp == p:
                            lb2 = a.newlabel("nopost")
                            a(f"s_cmp_lg_u32 s{sStart+1}, 0"); a(f"s_cbranch_scc1 {lb2}")
                            h = list(a.hist)
                            a(f"s_or_b32 s{sTm+1}, s{sTm}, 1"); a(f"v_mov_b32 v{vCn}, s{sTm+1}"); a(f"s_lshl_b32 s{sTm+1}, s{sG}, 2")
                            a.cond = True
                            a(f"buffer_store_dword v{vCn}, off, {sr(dDBG,4)}, s{sTm+1} offset:{64*k} sc1")
                            a.cond = False
                            a.label(lb2); a.hist = h
                            thpost[k] = thr(p) - relax*nchk[0]
                        if pr == p:
                            a(f"s_min_u32 s{sTm+1}, s4, s5")
                            for q in range(6, 12): a(f"s_min_u32 s{sTm+1}, s{sTm+1}, s{q}")
                            for q in range(5, 12): a(f"s_add_u32 s4, s4, s{q}")
                            a(f"s_lshl_b32 s5, s{sTm}, 3"); a("s_sub_u32 s4, s4, s5"); a("s_ashr_i32 s4, s4, 3")
                            a(f"s_add_u32 s4, s4, s{sTm}"); a(f"s_sub_u32 s4, s4, {thpost[k] + relax*nchk[0] - aoff}")
                            a(f"s_cmp_eq_u32 s{sTm+1}, 0"); a(f"s_cselect_b32 s{sBase}, s{sBase}, s4")
                            if trace == 2: a("s_cselect_b32 s4, 1, 32"); a(f"v_writelane_b32 v{vTr}, s4, {60+k}")
                    if gbase == p:
                        a.c("measure 'behind' from the mean start of the eight groups once all have posted")
                        a(f"s_min_u32 s{sTm+1}, s4, s5")
                        for k in range(6, 12): a(f"s_min_u32 s{sTm+1}, s{sTm+1}, s{k}")
                        for k in range(5, 12): a(f"s_add_u32 s4, s4, s{k}")
                        a(f"s_lshl_b32 s5, s{sStart}, 3"); a("s_sub_u32 s4, s4, s5"); a("s_ashr_i32 s4, s4, 3")
                        a(f"s_cmp_eq_u32 s{sTm+1}, 0"); a("s_cselect_b32 s4, 0, s4"); a(f"s_add_u32 s{sBase}, s{sBase}, s4")
                    for k, (pp, pr) in enumerate(anchors):
                        if pp == p:
                            a(f"s_cmp_eq_u32 s{sSmp}, 0"); a(f"s_cbranch_scc1 L_post{k}")
                            a.label(f"L_postback{k}")
                            c = Asm(); c.label(f"L_post{k}")
                            c.c("32 sample waves add their clock (and a count) to a word of the zeroed debug buffer")
                            c(f"s_and_b32 s{sTm+1}, s{sTm}, 0xfffff"); c(f"s_bitset1_b32 s{sTm+1}, 26")
                            c("s_mov_b64 exec, 1"); c(f"v_mov_b32 v{vCn}, s{sTm+1}")
                            c(f"buffer_atomic_add v{vCn}, off, {sr(dDBG,4)}, 0 offset:{64*k}")
                            c("s_mov_b64 exec, -1"); c(f"s_branch L_postback{k}")
                            cold.append(c.out)
                        if pr == p:
                            a.c("measure 'behind' from the samples' mean once all 32 are in")
                            a(f"s_lshl_b32 s{sTm+1}, s{sTm}, 5"); a(f"s_sub_u32 s{sTm+1}, s{sAn}, s{sTm+1}")
                            a(f"s_bfe_i32 s{sTm+1}, s{sTm+1}, {(15 << 16) | 5:#x}")
                            a(f"s_add_u32 s{sTm+1}, s{sTm+1}, s{sTm}"); a(f"s_sub_u32 s{sTm+1}, s{sTm+1}, {thr(pp) - (aoff[k] if isinstance(aoff, tuple) else aoff)}")
                            a(f"s_bitcmp1_b32 s{sAn}, 31"); a(f"s_cselect_b32 s{sBase}, s{sTm+1}, s{sBase}")
                            if trace == 2: a(f"s_lshr_b32 s{sAn}, s{sAn}, 26"); a(f"v_writelane_b32 v{vTr}, s{sAn}, {60+k}")
                    a(f"s_sub_u32 s{sTm}, s{sTm}, s{sBase}")
                    if trace == 2: a(f"s_sub_u32 s{sTm+1}, s{sTm}, {thr(p) - 100000}"); a(f"v_writelane_b32 v{vTr}, s{sTm+1}, {p}")
                    if p - D > arrived[0]:
                        lb = a.newlabel("deep")
                        if bucket:
                            a(f"s_lshr_b32 s{sTm+1}, s{sAn}, {bucket[2]}"); a(f"s_add_u32 s{sBase}, s{sBase}, s{sTm+1}"); a(f"s_add_u32 s{sAn}, s{sAn}, {bucket[0]}")
                        if hi5:
                            l4 = a.newlabel("deeper")
                            a(f"s_cmpk_gt_i32 s{sTm}, {thr(p) + hi5}"); a(f"s_cbranch_scc1 {lb}")
                            t, i = stream[p - 4]; a.wait_vm(f"{t}{i}"); a.hist[-1].states = 0
                        a(f"s_cmpk_gt_i32 s{sTm}, {thr(p)}")
                        if adj: a(f"s_cselect_b32 s{sBase}, s{sStart+1}, s{sStart}")
                        a(f"s_cbranch_scc1 {lb}")
                        th = thr(p)
                        if bucket:
                            a(f"s_sub_i32 s{sAn}, s{sAn}, {bucket[0] + bucket[1]}"); a.hist[-1].states = 0
                            a(f"s_max_i32 s{sAn}, s{sAn}, 0"); a.hist[-1].states = 0
                        if relax and p < endrelax and p % 3 in rlph: a(f"s_sub_u32 s{sBase}, s{sBase}, {relax}"); a.hist[-1].states = 0; nchk[0] += 1
                        t, i = stream[p - D + (1 if (thin and p % thin == thinph and p < thinto) or p >= endthin else 0)]; a.wait_vm(f"{t}{i}"); a.hist[-1].states = 0
                        if lo2:
                            a(f"s_cmpk_gt_i32 s{sTm}, {th - lo2}"); a.hist[-1].states = 0
                            a(f"s_cbranch_scc1 {lb}"); a.hist[-1].states = 0
                            t, i = stream[p - D + 1]; a.wait_vm(f"{t}{i}"); a.hist[-1].states = 0
                        a.label(lb)
            elif p >= D: wait_idx(p - D)
            load(*stream[p]); pos[0] += 1
            if diag == 100 + p: stamp(diag)
            if pace and tpost and not fresh and pfrom <= p + 1 < limit[0] - lastdeep and not (grp and (p + 1) % 3 != thinph):
                a(f"s_memrealtime {sr(sTm,2)}")
                for k, (pp, pr) in enumerate(ganch):
                    if pr == p + 1: a(f"s_buffer_load_dwordx8 s[4:11], {sr(dDBG,4)}, {64*k}")
                if gbase == p + 1: a(f"s_buffer_load_dwordx8 s[4:11], {sr(dDBG,4)}, 0")
                for k, (pp, pr) in enumerate(anchors):
                    if pr == p + 1: a(f"s_buffer_load_dword s{sAn}, {sr(dDBG,4)}, {64*k}")
    def need(name):
        n = idx[name]
        while arrived[0] < n and pos[0] < limit[0]: step()
        wait_idx(n)
    def issue_to(name):
        while pos[0] <= idx[name]: step()
    def phase(name):
        deep[0] = name in hi

    a("s_cmpk_ge_u32 s2, 256"); a("s_cbranch_scc1 L_end")
    a("s_load_dwordx16 s[4:19], s[0:1], 0")
    a("s_load_dwordx8 s[20:27], s[0:1], 64")
    a(f"s_memrealtime {sr(sStart,2)}")
    a(f"v_lshrrev_b32 v{vT}, 6, v0")
    a(f"v_and_b32 v{vL}, 63, v0")
    a(f"v_readfirstlane_b32 s{sW}, v{vT}")
    a(f"s_and_b32 s{sG}, s2, 7"); a(f"s_lshr_b32 s{sC}, s2, 3")
    a(f"s_lshl_b32 s{sP}, s{sG}, 5"); a(f"s_add_u32 s{sP}, s{sP}, s{sC}")
    a(f"v_lshrrev_b32 v{vSlot}, 3, v{vL}"); a(f"v_and_b32 v{vCh}, 7, v{vL}")
    def kaddr():
        a(f"s_lshl_b32 s{sT0}, s{sP}, 3"); a(f"s_add_u32 s{sT0}, s{sT0}, s{sW}"); a(f"s_mul_i32 s{sT0}, s{sT0}, 24576")
        a(f"v_mul_u32_u24 v{vKoff}, 384, v{vSlot}")
        a(f"v_lshl_add_u32 v{vT+1}, v{vCh}, 4, s{sT0}")
        a(f"v_add_u32 v{vKoff}, v{vKoff}, v{vT+1}")
        a(f"s_mov_b32 s{dK+2}, 50331648"); a(f"s_mov_b32 s{dK+3}, 0x20000")
    if kfirst: kaddr()
    a(f"s_lshr_b32 s{sH}, s{sP}, 3"); a(f"s_and_b32 s{sS}, s{sP}, 7")
    a(f"v_mov_b32 v{vZ}, 0"); a(f"v_mov_b32 v{vZ+1}, 0")
    a(f"ds_write_b64 v{vZ}, {vr(vZ,2)} offset:{LDS_CNT}")
    a.c("stage-1 role: waves 0-4 take 16 rows x 192 columns of wq, waves 5-7 take 48/40/40 rows x 64 columns of w1 or w3")
    a(f"s_max_u32 s{sT0}, s{sC}, 2"); a(f"s_sub_u32 s{sT0}, s{sT0}, 2")
    a(f"s_mul_i32 s{sPhi}, s{sT0}, 52"); a(f"s_lshr_b32 s{sPhi}, s{sPhi}, 8")
    a(f"s_mul_i32 s{sT1}, s{sPhi}, 5"); a(f"s_sub_u32 s{sK}, s{sT0}, s{sT1}")
    a(f"s_lshl_b32 s{sT0}, s{sK}, 7"); a(f"s_mul_i32 s{sT1}, s{sW}, 40"); a(f"s_add_u32 s{sT0}, s{sT0}, s{sT1}")
    a(f"s_cmp_eq_u32 s{sW}, 5"); a(f"s_cselect_b32 s{sT1}, 8, 0"); a(f"s_sub_u32 s{sT0}, s{sT0}, s{sT1}"); a(f"s_sub_u32 s{sT0}, s{sT0}, 192")
    a(f"s_lshr_b32 s{sT1}, s{sPhi}, 1"); a(f"s_mul_i32 s{sT2}, s{sG}, 3"); a(f"s_add_u32 s{sT1}, s{sT1}, s{sT2}"); a(f"s_lshl_b32 s{sT1}, s{sT1}, 7")
    a(f"s_cmp_lt_u32 s{sC}, 2"); a(f"s_cselect_b32 s{sT1}, {OOB}, s{sT1}")
    a(f"s_mul_i32 s{sT2}, s{sS}, 80"); a(f"s_lshl_b32 s{sT3}, s{sW}, 4"); a(f"s_add_u32 s{sT2}, s{sT2}, s{sT3}")
    a(f"s_mul_i32 s{sT3}, s{sH}, 384")
    a(f"s_cmp_lt_u32 s{sW}, 5")
    a(f"s_cselect_b32 s{sT0}, s{sT2}, s{sT0}"); a(f"s_cselect_b32 s{sT1}, s{sT3}, s{sT1}")
    a(f"s_cselect_b32 s{sT2}, 12, 3"); a(f"s_cselect_b32 s{sT3}, 4, 3"); a(f"s_cselect_b32 s{sQo}, 1, 192")
    a(f"s_lshl_b32 s{sT2}, s{sT2}, 10")
    a(f"s_mul_i32 s{dS1+2}, s{sT2}, 640"); a(f"s_mov_b32 s{dS1+3}, 0x20000")
    a(f"v_add_u32 v{vT}, s{sT0}, v{vSlot}")
    a(f"v_mul_lo_u32 v{vS1a}, v{vT}, s{sT2}")
    a(f"v_lshl_add_u32 v{vT+1}, v{vCh}, 4, s{sT1}")
    a(f"v_add_u32 v{vS1a}, v{vS1a}, v{vT+1}")
    a(f"s_lshl_b32 s{sS1}, s{sQo}, 7"); a(f"s_lshl_b32 s{sS2}, s{sQo}, 8")
    a("s_waitcnt lgkmcnt(0)")
    def s1desc():
        a(f"s_bitcmp1_b32 s{sPhi}, 0"); a(f"s_cselect_b64 {sr(dS1,2)}, {sr(pW3,2)}, {sr(pW1,2)}")
        a(f"s_cmp_lt_u32 s{sW}, 5"); a(f"s_cselect_b64 {sr(dS1,2)}, {sr(pWQ,2)}, {sr(dS1,2)}")
    if kfirst:
        a(f"s_mov_b64 {sr(dK,2)}, {sr(pK,2)}"); step(kfirst); s1desc(); step(3 - kfirst)
    else:
        s1desc()
        if rr:
            a.c("the waves take turns, so that their loads alternate in the CU's queue from the start")
            step(1); a("s_barrier"); step(1); a("s_barrier"); step(1)
            if rr > 1: a("s_barrier")
        else: step(3)
        a(f"s_mov_b64 {sr(dK,2)}, {sr(pK,2)}")
    a(f"s_load_dword s{sE}, {sr(pWS,2)}, {WS_E}")
    a(f"s_mov_b64 {sr(dX,2)}, {sr(pX,2)}"); a(f"s_mov_b32 s{dX+2}, 1280"); a(f"s_mov_b32 s{dX+3}, 0x20000")
    a(f"v_lshlrev_b32 v{vL16}, 4, v{vL}"); a(f"v_lshlrev_b32 v{vT+4}, 2, v{vL}")
    a(f"v_add_lshl_u32 v{vT+2}, v{vL}, s{sT0}, 1")
    a(f"buffer_load_dwordx4 {vr(vXa,4)}, v{vL16}, {sr(dX,4)}, 0 offen", "xa")
    a(f"buffer_load_dword v{vXb}, v{vT+4}, {sr(dX,4)}, 0 offen offset:1024", "xb")
    a(f"buffer_load_ushort v{vXr}, v{vT+2}, {sr(dX,4)}, 0 offen", "xr")
    if not rr: a("s_barrier")
    a(f"s_mul_i32 s{sT3}, s{sT3}, 24576")
    a(f"v_add_u32 v{vS1b}, s{sT3}, v{vS1a}")
    a(f"s_cmp_lt_u32 s{sW}, 6"); a(f"s_cselect_b32 s{sT3}, 0, {OOB}")
    a(f"v_or_b32 v{vS1c}, s{sT3}, v{vS1b}")
    if not kfirst: kaddr()
    a(f"v_mov_b32 v{vZ+1}, 1")
    if diag is not None: a(f"s_mov_b32 s{sSt}, s{sStart}")
    if trace: a(f"v_mov_b32 v{vTr}, 0")
    if stamps:
        for i in range(13): a(f"s_mov_b32 s{sSt+i}, 0")
    if prefetch:
        a.c("pull this kernel's code into the L2 (each wave one line)")
        a(f"s_getpc_b64 {sr(sTm,2)}")
        a(f"s_lshl_b32 s{sT0}, s{sC}, 3"); a(f"s_add_u32 s{sT0}, s{sT0}, s{sW}"); a(f"s_and_b32 s{sT0}, s{sT0}, 63")
        a(f"s_lshl_b32 s{sT0}, s{sT0}, 7"); a(f"s_addk_i32 s{sT0}, 768")
        a(f"s_load_dword s{sCnt}, {sr(sTm,2)}, s{sT0}")
    a(f"s_mov_b64 {sr(dV,2)}, {sr(pV,2)}"); a(f"s_mov_b32 s{dV+2}, 50331648"); a(f"s_mov_b32 s{dV+3}, 0x20000")
    a(f"s_mov_b64 {sr(dWS,2)}, {sr(pWS,2)}"); a(f"s_mov_b32 s{dWS+2}, {WS_SIZE}"); a(f"s_mov_b32 s{dWS+3}, 0x20000")
    a(f"s_mov_b64 {sr(dOUT,2)}, {sr(pOUT,2)}"); a(f"s_mov_b32 s{dOUT+2}, 1280"); a(f"s_mov_b32 s{dOUT+3}, 0x20000")
    a(f"s_mov_b32 s{dWO+2}, 7864320"); a(f"s_mov_b32 s{dWO+3}, 0x20000")
    a(f"s_mov_b32 s{dW2+2}, 1966080"); a(f"s_mov_b32 s{dW2+3}, 0x20000")
    for i in range(3): a(f"s_mov_b32 s{sOff[i]}, {6144*(i+1)}")
    a(f"s_mov_b32 s{sBase}, s{sStart}")
    if adj: a(f"s_sub_u32 s{sStart+1}, s{sStart}, {adj}")
    if bucket: a(f"s_mov_b32 s{sAn}, 0")
    if gbase:
        a.c("one wave per group posts its start time in the zeroed debug buffer")
        a(f"s_mov_b32 s{dDBG+2}, 256"); a(f"s_mov_b32 s{dDBG+3}, 0x20000")
        a(f"s_or_b32 s{sT0}, s{sStart}, 1"); a(f"v_mov_b32 v{vT}, s{sT0}")
        a(f"s_lshl_b32 s{sT0}, s{sG}, 2"); a(f"s_or_b32 s{sT1}, s{sC}, s{sW}"); a(f"s_cselect_b32 s{sT0}, {OOB}, s{sT0}")
        a(f"v_mov_b32 v{vT+1}, s{sT0}")
        a(f"buffer_store_dword v{vT}, v{vT+1}, {sr(dDBG,4)}, 0 offen sc1")
    if ganch:
        a(f"s_mov_b32 s{dDBG+2}, 256"); a(f"s_mov_b32 s{dDBG+3}, 0x20000")
        a.c("sample waves: one per group")
        a(f"s_xor_b32 s{sT0}, s{sC}, 13"); a(f"s_xor_b32 s{sT1}, s{sG}, s{sW}"); a(f"s_or_b32 s{sStart+1}, s{sT0}, s{sT1}")
    if anchors:
        a(f"s_mov_b32 s{dDBG+2}, 256"); a(f"s_mov_b32 s{dDBG+3}, 0x20000")
        a.c("sample waves: one per head, every wave number equally often")
        a(f"s_add_u32 s{sSmp}, s{sH}, s{sW}"); a(f"s_and_b32 s{sSmp}, s{sSmp}, 7"); a(f"s_xor_b32 s{sT0}, s{sS}, 3"); a(f"s_or_b32 s{sSmp}, s{sSmp}, s{sT0}")
    a(f"s_mov_b32 s{sSpin}, {spin}"); a(f"s_mov_b32 s{sReg}, 0"); a(f"s_mov_b32 s{sMask}, 0xffffff00")
    a(f"s_mov_b32 s{sVal}, 0x00ff00ff"); a(f"s_mov_b32 s{sVal+1}, 0xff00ff00")
    a.c("MFMA A-operand masks")
    a(f"v_and_b32 v{vT}, 1, v{vL}"); a(f"v_lshlrev_b32 v{vT}, 4, v{vT}")
    a(f"v_mov_b32 v{vT+1}, 0xffff"); a(f"v_lshlrev_b32 v{vT}, v{vT}, v{vT+1}")
    a(f"v_lshrrev_b32 v{vT+1}, 1, v{vCh}")
    for k in range(4):
        a(f"v_cmp_eq_u32 vcc, {k}, v{vT+1}"); a(f"v_cndmask_b32 v{vM+k}, 0, v{vT}, vcc")
    a.c("LDS reduce addresses")
    a(f"v_lshrrev_b32 v{vT+2}, 5, v{vL}"); a(f"v_mul_u32_u24 v{vT}, 768, v{vT+2}")
    a(f"v_bfe_u32 v{vT+1}, v{vL}, 4, 1"); a(f"v_lshl_add_u32 v{vT+1}, v{vCh}, 1, v{vT+1}")
    a(f"v_lshl_add_u32 v{vT+1}, v{vT+1}, 4, v{vT}")
    a(f"s_mul_i32 s{sT0}, s{sW}, 1536")
    a(f"v_add_u32 v{vRedW}, s{sT0}, v{vT+1}")
    a(f"v_and_b32 v{vT+3}, 31, v{vL}")
    a(f"s_sub_u32 s{sT3}, s{sW}, 6"); a(f"s_min_u32 s{sT3}, s{sT3}, s{sW}")
    a(f"s_lshl_b32 s{sT0}, s{sT3}, 7")
    a(f"v_lshl_add_u32 v{vT+1}, v{vT+3}, 2, s{sT0}")
    a(f"v_add_u32 v{vRedR}, v{vT}, v{vT+1}")
    a.c("publish offsets: waves 0-5 lanes 0-31 q/o slot, waves 6-7 lanes 32-63 ffn slot, wave 7 lane 0 die id")
    a(f"s_mul_i32 s{sT0}, s{sH}, 6"); a(f"s_add_u32 s{sT0}, s{sT0}, s{sW}"); a(f"s_lshl_b32 s{sT0}, s{sT0}, 10")
    a(f"s_lshl_b32 s{sT1}, s{sS}, 4"); a(f"s_add_u32 s{sT0}, s{sT0}, s{sT1}"); a(f"s_add_u32 s{sT0}, s{sT0}, {WS_QP}")
    a(f"s_lshl_b32 s{sFo}, s{sG}, 13"); a(f"s_add_u32 s{sFo}, s{sFo}, {WS_FP}")
    a(f"s_and_b32 s{sT1}, s{sPhi}, 6"); a(f"s_add_u32 s{sT1}, s{sT1}, s{sT3}"); a(f"s_mul_i32 s{sT1}, s{sT1}, 1280")
    a(f"s_and_b32 s{sT2}, s{sPhi}, 1"); a(f"s_mul_i32 s{sT2}, s{sT2}, 5"); a(f"s_add_u32 s{sT2}, s{sT2}, s{sK}"); a(f"s_lshl_b32 s{sT2}, s{sT2}, 4")
    a(f"s_add_u32 s{sT1}, s{sT1}, s{sT2}"); a(f"s_add_u32 s{sT1}, s{sT1}, s{sFo}")
    a(f"s_cmp_lt_u32 s{sC}, 2"); a(f"s_cselect_b32 s{sT1}, {OOB}, s{sT1}")
    a(f"s_cmp_lt_u32 s{sW}, 6"); a(f"s_cselect_b32 s{sT0}, s{sT0}, {OOB}"); a(f"s_cselect_b32 s{sT1}, {OOB}, s{sT1}")
    a(f"v_lshrrev_b32 v{vT}, 2, v{vT+3}")
    a(f"v_lshl_add_u32 v{vT+1}, v{vT}, 7, s{sT0}")
    a(f"v_mul_u32_u24 v{vT+4}, 160, v{vT}"); a(f"v_add_u32 v{vT+4}, s{sT1}, v{vT+4}")
    a(f"v_cmp_gt_u32 vcc, 32, v{vL}")
    a(f"v_and_b32 v{vT+5}, 3, v{vL}")
    a(f"v_cndmask_b32 v{vT+1}, v{vT+4}, v{vT+1}, vcc")
    a(f"v_lshl_add_u32 v{vPubA}, v{vT+5}, 2, v{vT+1}")
    step(3)
    if skel == 1:
        snap1 = a.snapshot()
    a.c("stage-3 task: range rho = c/10, slab k = c%10 (c >= 30: reducers, slab (c-30)*8+G)")
    a(f"s_mul_i32 s{sT0}, s{sC}, 26"); a(f"s_lshr_b32 s{sT0}, s{sT0}, 8")
    a(f"s_mul_i32 s{sT1}, s{sT0}, 10"); a(f"s_sub_u32 s{sK}, s{sC}, s{sT1}")
    a(f"s_min_u32 s{sT2}, s{sT0}, 2"); a(f"s_lshl_b32 s{sT2}, s{sT2}, 3"); a(f"s_add_u32 s{sT3}, s{sT2}, s{sW}")
    a(f"s_mul_i32 s{sT2}, s{sG}, 24"); a(f"s_add_u32 s{sPhi}, s{sT3}, s{sT2}")
    a(f"s_lshl_b32 s{sT2}, s{sK}, 7")
    a(f"s_cmp_lt_u32 s{sC}, 30"); a(f"s_cselect_b32 s{sT2}, s{sT2}, {OOB}")
    a(f"v_lshl_add_u32 v{vT}, v{vCh}, 4, s{sT2}")
    a(f"s_mul_i32 s{sT2}, s{sPhi}, {8*1280}")
    a(f"v_mul_u32_u24 v{vT+1}, 1280, v{vSlot}"); a(f"v_add_u32 v{vT+1}, s{sT2}, v{vT+1}")
    a(f"v_add_u32 v{vW2o}, v{vT}, v{vT+1}")
    a(f"v_lshl_add_u32 v{vWo}, v{vT+1}, 2, v{vT}")
    if skel == 1:
        kdone[0] = 8; limit[0] = len(stream)
        a(f"buffer_store_dword v{vPubD}, v{vPubA}, {sr(dWS,4)}, 0 offen")
        while pos[0] < len(stream): step()
        a("s_waitcnt vmcnt(0)"); finish()
        a.restore(snap1); pos[0] = 6; arrived[0] = 2; kdone[0] = 0
    a.c("y publish offset: both copies of (slab, line w), slot 3G + rho")
    if ylast: a(f"s_lshl_b32 s{sT1}, s{sK}, 14")
    else: a(f"s_lshl_b32 s{sT1}, s{sK}, 2"); a(f"s_add_u32 s{sT1}, s{sT1}, s{sW}"); a(f"s_lshl_b32 s{sT1}, s{sT1}, 12")
    a(f"s_mul_i32 s{sT2}, s{sG}, 3"); a(f"s_add_u32 s{sT2}, s{sT2}, s{sT0}"); a(f"s_lshl_b32 s{sT2}, s{sT2}, 7")
    a(f"s_add_u32 s{sT1}, s{sT1}, s{sT2}"); a(f"s_add_u32 s{sT1}, s{sT1}, {WS_YP}")
    a(f"v_lshl_add_u32 v{vYo}, v{vT+3}, 2, s{sT1}"); a(f"v_lshl_add_u32 v{vYo}, v{vT+2}, {12 if ylast else 13}, v{vYo}")
    a.c("gather offsets")
    a(f"s_min_u32 s{sT0}, s{sW}, 5"); a(f"s_mul_i32 s{sT1}, s{sH}, 6"); a(f"s_add_u32 s{sT0}, s{sT0}, s{sT1}")
    a(f"s_lshl_b32 s{sT0}, s{sT0}, 10"); a(f"s_add_u32 s{sQo}, s{sT0}, {WS_QP}")
    a(f"s_mul_i32 s{sT3}, s{sT3}, 320")
    a(f"v_lshrrev_b32 v{vT}, 4, v{vL}"); a(f"v_mul_u32_u24 v{vT}, 80, v{vT}"); a(f"v_add_u32 v{vT}, s{sT3}, v{vT}")
    a(f"v_and_b32 v{vT+1}, 15, v{vL}"); a(f"v_cmp_gt_u32 vcc, 5, v{vT+1}")
    a(f"v_mov_b32 v{vT+1}, 7680")
    a(f"v_cndmask_b32 v{vT}, v{vT+1}, v{vT}, vcc"); a(f"v_lshl_add_u32 v{vFo}, v{vCh}, 4, v{vT}")
    phase("s1")
    step(1)
    a.wait_vm("xr")
    xs = [vQ + i for i in range(10)]
    for i in range(5):
        src = vXa + i if i < 4 else vXb
        a(f"v_lshlrev_b32 v{xs[2*i]}, 16, v{src}"); a(f"v_and_b32 v{xs[2*i+1]}, 0xffff0000, v{src}")
    a(f"v_add_f32 v{vT}, v{xs[0]}, v{xs[1]}"); a(f"v_add_f32 v{vT+1}, v{xs[2]}, v{xs[3]}")
    for i in range(4, 10): a(f"v_add_f32 v{vT+(i&1)}, v{vT+(i&1)}, v{xs[i]}")
    a(f"v_add_f32 v{vT}, v{vT}, v{vT+1}")
    red8("v_add_f32", [vT]); red_hi("v_add_f32", [vT])
    a(f"v_readlane_b32 s{sT0}, v{vT}, 63")
    a(f"v_mov_b32 v{vT+2}, {f2u(1/640.):#x}")
    step(1)
    a(f"v_mul_f32 v{vT+3}, s{sT0}, v{vT+2}")
    for i in range(10): a(f"v_sub_f32 v{xs[i]}, v{xs[i]}, v{vT+3}")
    a(f"v_mul_f32 v{vT}, v{xs[0]}, v{xs[0]}"); a(f"v_mul_f32 v{vT+1}, v{xs[1]}, v{xs[1]}")
    for i in range(2, 10): a(f"v_fmac_f32 v{vT+(i&1)}, v{xs[i]}, v{xs[i]}")
    a(f"v_add_f32 v{vT}, v{vT}, v{vT+1}")
    step(1)
    red8("v_add_f32", [vT]); red_hi("v_add_f32", [vT])
    a(f"v_readlane_b32 s{sT0}, v{vT}, 63")
    a(f"v_lshlrev_b32 v{vXr}, 16, v{vXr}")
    rne(vT+3, vT+3)
    a(f"v_mul_f32 v{vT+2}, s{sT0}, v{vT+2}")
    a(f"v_sub_f32 v{vXr}, v{vXr}, v{vT+3}")
    step(1)
    rne(vT+2, vT+2); rne(vXr, vXr)
    a(f"v_add_f32 v{vT+2}, {f2u(1e-5):#x}, v{vT+2}"); rne(vT+2, vT+2)
    a(f"v_sqrt_f32 v{vT+2}, v{vT+2}"); rne(vT+2, vT+2)
    a(f"v_rcp_f32 v{vT+4}, v{vT+2}")
    a(f"v_mul_f32 v{vT}, v{vXr}, v{vT+4}"); a(f"v_fma_f32 v{vT+1}, -v{vT}, v{vT+2}, v{vXr}")
    a(f"v_fma_f32 v{vT}, v{vT+1}, v{vT+4}, v{vT}")
    a(f"v_cvt_pk_bf16_f32 v{vXr}, v{vT}, v{vT}")
    a(f"v_lshlrev_b32 v{vT}, 2, v{vSlot}")
    for i in range(6): a(f"ds_bpermute_b32 v{vSc+i}, v{vT}, v{vXr} offset:{32*i}")
    step(1)
    a.c("hand-off tags of this launch")
    a("s_waitcnt lgkmcnt(0)")
    a(f"s_add_u32 s{sE}, s{sE}, 0x01010101")
    for k in range(4): a(f"s_bfe_u32 s{sTag[k]}, s{sE}, {(8 << 16) | (8*k):#x}")
    a(f"s_getreg_b32 s{sT0}, hwreg(HW_REG_XCC_ID, 0, 4)")
    if forceslow: a(f"s_and_b32 s{sT0}, s{sC}, 1")
    a(f"s_lshl_b32 s{sT0}, s{sT0}, 28"); a(f"s_and_b32 s{sId}, s{sE}, 0x0fffffff"); a(f"s_or_b32 s{sId}, s{sId}, s{sT0}")
    a(f"v_and_b32 v{vT}, 3, v{vL}"); a(f"v_lshlrev_b32 v{vT}, 3, v{vT}")
    a(f"v_bfe_u32 v{vPubD}, s{sE}, v{vT}, 8")
    a(f"s_add_u32 s{sE}, s{sE}, 0x01010101")
    a(f"v_bfe_u32 v{vTg2}, s{sE}, v{vT}, 8")
    a(f"s_mov_b32 s{sCnt}, {timeout}")
    buildA(vA, vSc); buildA(vA2, vSc+1)
    need("S5")
    if s1split: step(1)
    a(f"s_cmp_lt_u32 s{sW}, 5"); a("s_cbranch_scc1 L_s1q")
    for i in range(6):
        mfma(vD, (vA, vA2)[i & 1], vW+4*i, None if i == 0 else vD)
        if i < 4: buildA((vA, vA2)[i & 1], vSc+i+2)
    a("s_nop 0"); a("s_branch L_s1back")
    a.label("L_s1q")
    a.hist = []
    for i in range(6): mfma(vD+4*(i % 3), vA if i < 3 else vA2, vW+4*i, None if i < 3 else vD+4*(i % 3))
    a.label("L_s1back")
    a(f"s_mov_b64 exec, {sr(sVal,2)}")
    for j in range(3): a(f"ds_write_b128 v{vRedW}, {vr(vD+4*j,4)} offset:{LDS_RED+256*j}")
    arrive(0)
    step(nb)
    await_all(0, lambda: red_read(LDS_RED))
    a(f"v_add_f32 v{vT}, v{vT}, v{vT+1}"); a(f"v_add_f32 v{vT+2}, v{vT+2}, v{vT+3}"); a(f"v_add_f32 v{vT+5}, v{vT+5}, v{vT+6}")
    a(f"v_add_f32 v{vT}, v{vT}, v{vT+4}"); a(f"v_add_f32 v{vT+5}, v{vT+5}, v{vT+7}"); a(f"v_add_f32 v{vT}, v{vT}, v{vT+2}")
    a(f"s_lshl_b32 s{sT0}, s{sC}, 2"); a(f"s_add_u32 s{sT0}, s{sT0}, s{sFo}"); a(f"s_add_u32 s{sT0}, s{sT0}, 7680")
    a(f"v_permlane32_swap_b32 v{vT}, v{vT+5}")
    a(f"v_add_f32 v{vT}, v{vT}, v{vT+5}")
    a(f"v_and_or_b32 v{vPubD}, v{vT}, s{sMask}, v{vPubD}")
    a(f"s_cmp_eq_u32 s{sW}, 7"); a("s_cselect_b64 exec, 1, 0")
    a(f"v_mov_b32 v{vPubD}, s{sId}"); a(f"v_mov_b32 v{vPubA}, s{sT0}")
    a("s_mov_b64 exec, -1")
    a(f"buffer_store_dword v{vPubD}, v{vPubA}, {sr(dWS,4)}, 0 offen", "pubq")
    phase("")
    stamp(0)
    issue_to(f"K{qpos-1}")
    def x1loads(q, f): return [f"buffer_load_dwordx4 {vr(vG,4)}, v{vL16}, {sr(dWS,4)}, s{q} offen sc1",
                               f"buffer_load_dwordx4 {vr(vG2,4)}, v{vFo}, {sr(dWS,4)}, s{f} offen sc1"]
    a(x1loads(sQo, sFo)[0], "gq"); a(x1loads(sQo, sFo)[1], "gf")
    a.c("what the ffn gather must hold: tags on the data lanes, this die's id word on the others")
    a(f"v_and_b32 v{vT+1}, 15, v{vL}"); a(f"v_cmp_gt_u32 vcc, 5, v{vT+1}")
    a(f"v_mov_b32 v{vT+1}, s{sId}"); a(f"v_mov_b32 v{vT+2}, 0xff")
    for k in range(4):
        a(f"v_mov_b32 v{vA+k}, s{sTag[k]}"); a(f"v_cndmask_b32 v{vA+k}, v{vT+1}, v{vA+k}, vcc")
    a(f"v_cndmask_b32 v{vA2}, -1, v{vT+2}, vcc")
    step(D - 1)
    phase("x1")
    need(f"K{qpos-1}")
    a.wait_vm("gf")
    a.label("L_x1chk")
    for k in range(4): a(f"v_xor_b32 v{vG+k}, s{sTag[k]}, v{vG+k}")
    for k in range(4): a(f"v_xor_b32 v{vG2+k}, v{vA+k}, v{vG2+k}")
    or_all(vT, [vG+k for k in range(4)]); or_all(vT+1, [vG2+k for k in range(4)])
    a(f"v_and_b32 v{vT}, 0xff, v{vT}"); a(f"v_and_or_b32 v{vT}, v{vT+1}, v{vA2}, v{vT}")
    a(f"v_cmp_ne_u32 vcc, 0, v{vT}")
    a("s_cbranch_vccnz L_x1slow")
    a.label("L_x1ok")
    c = Asm(); c.label("L_x1slow")
    c.c("not all there yet, or a member of the group sits on another die")
    c(f"v_and_b32 v{vT}, 0x0fffffff, v{vT}"); c(f"v_cmp_ne_u32 vcc, 0, v{vT}")
    c("s_cbranch_vccnz L_x1wait")
    c(f"s_mov_b32 s{sReg}, {SLOW}")
    c(f"v_not_b32 v{vT}, v{vA2}")
    for k in range(4): c(f"v_and_b32 v{vG2+k}, v{vT}, v{vG2+k}")
    c(f"buffer_store_dword v{vPubD}, v{vPubA}, {sr(dWS,4)}, s{sReg} offen sc1")
    c("s_branch L_x1ok")
    c.label("L_x1wait")
    c(f"s_sub_u32 s{sSpin}, s{sSpin}, 1"); c("s_cbranch_scc1 L_end")
    c(f"s_sub_u32 s{sCnt}, s{sCnt}, 1")
    c(f"s_cmp_lg_u32 s{sCnt}, 0"); c("s_cbranch_scc1 L_x1nopub")
    c(f"s_mov_b32 s{sT0}, {SLOW}")
    c(f"buffer_store_dword v{vPubD}, v{vPubA}, {sr(dWS,4)}, s{sT0} offen sc1")
    c.label("L_x1nopub")
    c.c("after enough misses publish write-through as well and look at the two areas in turn")
    c(f"s_and_b32 s{sT0}, s{sCnt}, 0x80000001"); c(f"s_cmp_eq_u32 s{sT0}, 0x80000001"); c(f"s_cselect_b32 s{sT0}, {SLOW}, 0")
    c(f"s_add_u32 s{sT1}, s{sT0}, s{sFo}"); c(f"s_add_u32 s{sT0}, s{sT0}, s{sQo}")
    for t in x1loads(sT0, sT1): c(t)
    c("s_waitcnt vmcnt(0)"); c("s_branch L_x1chk")
    cold.append(c.out)
    red8("v_add_f32", [vG+k for k in range(4)])
    a(f"s_min_u32 s{sT0}, s{sW}, 5"); a(f"s_lshl_b32 s{sT0}, s{sT0}, 6")
    a(f"v_cvt_pk_bf16_f32 v{vG}, v{vG}, v{vG+1}"); a(f"v_cvt_pk_bf16_f32 v{vG+1}, v{vG+2}, v{vG+3}")
    a(f"v_lshl_add_u32 v{vT+2}, v{vSlot}, 3, s{sT0}")
    a(f"ds_write_b64 v{vT+2}, {vr(vG,2)} offset:{LDS_Q}")
    arrive(1)
    step(1)
    a.c("SwiGLU for this wave's eight hidden units")
    red8("v_add_f32", [vG2+k for k in range(4)], R8 + ("row_mirror",))
    a(f"v_and_b32 v{vT}, 1, v{vSlot}"); a(f"v_cmp_eq_u32 vcc, 1, v{vT}")
    a(f"v_lshlrev_b32 v{vT+3}, 4, v{vCh}")
    a(f"s_cmp_lt_u32 s{sW}, 6"); a(f"s_cselect_b32 s{sT0}, 0, {OOB}")
    a(f"v_cndmask_b32 v{vG2}, v{vG2}, v{vG2+1}, vcc"); a(f"v_cndmask_b32 v{vG2+2}, v{vG2+2}, v{vG2+3}, vcc")
    a(f"v_or_b32 v{vPubA}, s{sT0}, v{vPubA}")
    step(1)
    rne(vG2, vG2); rne(vG2+2, vG2+2)
    a(f"v_permlane16_swap_b32 v{vG2}, v{vG2+2}")
    a(f"v_mul_f32 v{vT}, {f2u(-1.4426950408889634):#x}, v{vG2}")
    a(f"v_exp_f32 v{vT}, v{vT}"); a(f"v_add_f32 v{vT}, 1.0, v{vT}"); a(f"v_rcp_f32 v{vT}, v{vT}")
    a(f"v_mul_f32 v{vT}, v{vT}, v{vG2}"); rne(vT, vT)
    a(f"v_mul_f32 v{vT}, v{vT}, v{vG2+2}")
    a(f"v_cvt_pk_bf16_f32 v{vT}, v{vT}, v{vT}")
    buildA(vAh, vT)
    if w4early:
        assert pos[0] <= idx["V5"] and voff == 2
        mfma(vY, vAh, w4reg, None)
    step(nb - 2)
    phase("qk")
    def qread():
        for j in range(3): a(f"ds_read_b128 {vr(vQ+4*j,4)}, v{vT+3} offset:{LDS_Q+128*j}")
    await_all(1, qread)
    stamp(1)
    sc = [vSc+g for g in range(8)]
    def dots(g):
        b = kreg(3*g)
        a(f"v_dot2_f32_bf16 v{vSc+g}, v{b}, v{vQ}, 0")
        a(f"v_dot2_f32_bf16 v{vT+g}, v{b+1}, v{vQ+1}, 0")
        for i in range(2, 12):
            d = vSc+g if i % 2 == 0 else vT+g
            a(f"v_dot2_f32_bf16 v{d}, v{b+i}, v{vQ+i}, v{d}")
        kdone[0] = g + 1
    def post(gs):
        r = [vSc+g for g in gs]
        for g in gs: a(f"v_add_f32 v{vSc+g}, v{vSc+g}, v{vT+g}")
        red8("v_add_f32", r); rne_pairs(r)
        for x in r: a(f"v_mul_f32 v{x}, {f2u(192 ** -0.5):#x}, v{x}")
        rne_pairs(r)
    def at(name):
        p0 = pos[0]; need(name)
        if pos[0] == p0: step(1)
    need("K5"); dots(0); dots(1)
    at("K11"); dots(2); dots(3)
    at("K11"); post(range(4))
    at("K17"); dots(4); dots(5)
    at("K20"); dots(6)
    phase("")
    issue_to(stream[idx["K23"] + D - 1][0] + str(stream[idx["K23"] + D - 1][1]))
    phase("sm")
    need("K23"); dots(7)
    step(1)
    post(range(4, 8))
    step(1)
    a(f"v_max3_f32 v{vG}, v{sc[0]}, v{sc[1]}, v{sc[2]}"); a(f"v_max3_f32 v{vG+1}, v{sc[3]}, v{sc[4]}, v{sc[5]}")
    a(f"v_max3_f32 v{vG}, v{vG}, v{sc[6]}, v{sc[7]}"); a(f"v_max_f32 v{vG}, v{vG}, v{vG+1}")
    red_hi("v_max_f32", [vG])
    a(f"v_readlane_b32 s{sMw}, v{vG}, 63")
    L2E = f"{f2u(1.4426950408889634):#x}"
    for r in sc: a(f"v_subrev_f32 v{r}, s{sMw}, v{r}")
    for r in sc: a(f"v_mul_f32 v{r}, {L2E}, v{r}")
    step(1)
    for r in sc: a(f"v_exp_f32 v{r}, v{r}")
    for k in range(4): a(f"v_add_f32 v{vT+k}, v{sc[k]}, v{sc[4+k]}")
    a(f"v_add_f32 v{vT}, v{vT}, v{vT+1}"); a(f"v_add_f32 v{vT+2}, v{vT+2}, v{vT+3}"); a(f"v_add_f32 v{vG+1}, v{vT}, v{vT+2}")
    a.c("(max, sum) of this wave: 16 tag bits under the bf16 max, 8 under the sum")
    a(f"s_and_b32 s{sT2}, s{sId}, 0xffff")
    a(f"s_lshl_b32 s{sT0}, s{sP}, 3"); a(f"s_add_u32 s{sT0}, s{sT0}, s{sW}"); a(f"s_lshl_b32 s{sT0}, s{sT0}, 3")
    red_hi("v_add_f32", [vG+1])
    a(f"s_add_u32 s{sT0}, s{sT0}, {WS_ML}"); a(f"v_mov_b32 v{vT}, s{sT0}")
    a(f"v_or_b32 v{vG}, s{sT2}, v{vG}")
    a(f"v_and_b32 v{vG+1}, 0xffffff00, v{vG+1}"); a(f"v_or_b32 v{vG+1}, s{sTag[2]}, v{vG+1}")
    a(f"s_mov_b32 exec_lo, 0"); a(f"s_mov_b32 exec_hi, 0x80000000")
    pub(f"buffer_store_dwordx2 {vr(vG,2)}, v{vT}, {sr(dWS,4)}, s{sReg} offen", "pubml")
    a("s_mov_b64 exec, -1")
    a(f"s_lshl_b32 s{sT0}, s{sC}, 3"); a(f"s_add_u32 s{sT0}, s{sT0}, s{sG}"); a(f"s_sub_u32 s{sT0}, s{sT0}, 240")
    a(f"s_lshl_b32 s{sT1}, s{sW}, 8"); a(f"s_or_b32 s{sT1}, s{sT1}, s{sT0}")
    a(f"s_cmp_lt_u32 s{sT1}, 10"); a("s_cbranch_scc1 L_park")
    a.label("L_parkback")
    c = Asm(); c.label("L_park")
    c.c("wave 0 of a reducer: park one probe line per mailbox copy in the memory-side cache")
    c(f"s_lshl_b32 s{sT0}, s{sT0}, 14"); c(f"s_add_u32 s{sT0}, s{sT0}, {WS_YP + 3072}")
    c(f"v_and_b32 v{vT}, 31, v{vL}"); c(f"v_lshrrev_b32 v{vT+1}, 5, v{vL}"); c(f"v_lshlrev_b32 v{vT+1}, 13, v{vT+1}")
    c(f"v_lshl_add_u32 v{vT}, v{vT}, 2, v{vT+1}")
    c(f"buffer_store_dword v{vZ}, v{vT}, {sr(dWS,4)}, s{sT0} offen sc1")
    c("s_branch L_parkback")
    cold.append(c.out)
    if touch:
        a.c("first touch of the stage-3 weight pages, so that their translations are there when the last loads go out")
        a("s_mov_b64 exec, 1")
        a(f"buffer_load_dword v{vQ}, v{vW2o}, {sr(dW2,4)}, 0 offen")
        if touch > 1: a(f"buffer_load_dword v{vQ+1}, v{vWo}, {sr(dWO,4)}, 0 offen")
        a("s_mov_b64 exec, -1")
    phase("")
    stamp(2)
    issue_to(f"V{mlpos-1}")
    a(f"s_lshl_b32 s{sT0}, s{sH}, 9"); a(f"s_add_u32 s{sT0}, s{sT0}, {WS_ML}"); a(f"s_add_u32 s{sT0}, s{sT0}, s{sReg}")
    a(f"v_lshlrev_b32 v{vFo}, 3, v{vL}")
    mload = f"buffer_load_dwordx2 {vr(vG,2)}, v{vFo}, {sr(dWS,4)}, s{sT0} offen sc1"
    a(mload, "gm")
    step(D - 1)
    phase("ml")
    need(f"V{mlpos-1}")
    a.wait_vm("gm")
    a.label("L_mlchk")
    a(f"v_xor_b32 v{vG}, s{sT2}, v{vG}"); a(f"v_xor_b32 v{vG+1}, s{sTag[2]}, v{vG+1}")
    a(f"v_and_b32 v{vT}, 0xffff, v{vG}"); a(f"v_and_b32 v{vT+1}, 0xff, v{vG+1}"); a(f"v_or_b32 v{vT}, v{vT}, v{vT+1}")
    a(f"v_cmp_ne_u32 vcc, 0, v{vT}")
    retry("L_mlchk", [mload])
    a(f"v_max_f32_dpp v{vT}, v{vG}, v{vG} {R8[0]} {DP}")
    red8("v_max_f32", [vT], R8[1:]); red_hi("v_max_f32", [vT])
    a(f"v_readlane_b32 s{sT0}, v{vT}, 63")
    a(f"v_mov_b32 v{vT+1}, s{sMw}")
    step(1)
    a(f"v_subrev_f32 v{vT}, s{sT0}, v{vG}"); a(f"v_subrev_f32 v{vT+1}, s{sT0}, v{vT+1}")
    a(f"v_mul_f32 v{vT}, {L2E}, v{vT}"); a(f"v_mul_f32 v{vT+1}, {L2E}, v{vT+1}")
    a(f"v_exp_f32 v{vT}, v{vT}"); a(f"v_exp_f32 v{vT+1}, v{vT+1}")
    a(f"v_mul_f32 v{vT}, v{vT}, v{vG+1}")
    red8("v_add_f32", [vT]); red_hi("v_add_f32", [vT])
    a(f"v_rcp_f32 v{vT}, v{vT}")
    a(f"v_mul_f32 v{vT}, v{vT}, v{vT+1}")
    a(f"v_readlane_b32 s{sT1}, v{vT}, 63")
    step(1)
    for r in sc: a(f"v_mul_f32 v{r}, s{sT1}, v{r}")
    for r in sc: a(f"v_cvt_pk_bf16_f32 v{r}, v{r}, v{r}")
    if ylast: a(f"v_lshlrev_b32 v{vFo}, 2, v{vL}"); a(f"s_movk_i32 s{sT2}, 8192")
    a.c("tags and offset of the o exchange")
    for k in range(4): a(f"s_bfe_u32 s{sTag[k]}, s{sE}, {(8 << 16) | (8*k):#x}")
    a(f"s_lshl_b32 s{sQo}, s{sPhi}, 10"); a(f"s_add_u32 s{sQo}, s{sQo}, {WS_QP}"); a(f"s_add_u32 s{sQo}, s{sQo}, s{sReg}")
    stamp(3)
    for g in range(8):
        if g in (0, 3) and arrived[0] >= idx[f"V{3*g+2}"]: step(1)
        if arrived[0] < idx[f"V{3*g+2}"]: phase("")
        A_ = vA if g % 2 == 0 else vA2
        buildA(A_, sc[g])
        for j in range(3):
            need(f"V{3*g+j}")
            mfma(vD+4*j, A_, vreg(3*g+j), None if g == 0 else vD+4*j)
            if g == 7:
                if j == 2:
                    while pos[0] < limit[0]: load(*stream[pos[0]]); pos[0] += 1
                    if skel == 2: a("s_waitcnt vmcnt(0)"); a("s_endpgm")
                    stamp(4)
                a(f"s_mov_b64 exec, {sr(sVal,2)}")
                a(f"ds_write_b128 v{vRedW}, {vr(vD+4*j,4)} offset:{LDS_RED+256*j}")
                a("s_mov_b64 exec, -1")
    if skip67: a(f"s_cmp_ge_u32 s{sW}, 6")
    a("s_waitcnt lgkmcnt(0)"); a("s_barrier")
    if skip67: a("s_cbranch_scc1 L_nopub")
    red_read(LDS_RED)
    if trim: a(f"s_cmp_lg_u32 s{sReg}, 0")
    red_sum8(vPubD, vTg2)
    pub(f"buffer_store_dword v{vPubD}, v{vPubA}, {sr(dWS,4)}, s{sReg} offen", "pubo", not trim)
    if skip67: a.label("L_nopub")
    stamp(5)
    if not trim:
        a(f"s_cmp_ge_u32 s{sC}, 30"); a("s_cbranch_scc1 L_reducer")
        snap = a.snapshot()
    if hold:
        a.c("a plain store waits behind older loads of the CU, so the last weight loads go out after the o stores")
        nh = 0
        while pos[0] < len(stream):
            if nh == 0 or rr2: a("s_barrier")
            load(*stream[pos[0]]); pos[0] += 1; nh += 1
    if trim:
        a(f"s_cmp_ge_u32 s{sC}, 30"); a("s_cbranch_scc1 L_reducer")
        snap = a.snapshot()
    if hold: a.wait_vm(pollat)
    oload = f"buffer_load_dwordx4 {vr(vG2,4)}, v{vL16}, {sr(dWS,4)}, s{sQo} offen sc1"
    a(oload)
    if not w4early:
        a.wait_vm("W4")
        stamp(10)
        mfma(vY, vAh, vW+16, None)
    a("s_branch L_ochk")
    a.label("L_opoll")
    a(oload)
    a(f"s_sub_u32 s{sSpin}, s{sSpin}, 1"); a("s_cbranch_scc1 L_end")
    a.label("L_ochk")
    a("s_waitcnt vmcnt(0)")
    untag([vG2])
    for k in range(4): a(f"v_add_f32_dpp v{vG+k}, v{vG2+k}, v{vG2+k} {R8[0]} {DP}")
    a("s_cbranch_vccnz L_opoll")
    if skel == 3: a("s_endpgm")
    stamp(6)
    red8("v_add_f32", [vG+k for k in range(4)], R8[1:])
    for k in range(4): a(f"v_cvt_pk_bf16_f32 v{vG+k}, v{vG+k}, v{vG+k}")
    As = (vA, vA2, vG2, vT)
    for r in range(4):
        buildA(As[r], vG+r)
        if r >= 1: mfma(vY, As[r-1], vW+4*(r-1), vY)
    mfma(vY, As[3], vW+12, vY)
    if ylast:
        a.c("no barrier: every wave writes, counts itself in and reads all partials; the last one in has them all")
        a(f"s_mov_b64 exec, {sr(sVal,2)}")
        a(f"ds_write_b128 v{vRedW}, {vr(vY,4)} offset:{LDS_RED2}")
        a("s_mov_b64 exec, 1")
        a(f"ds_add_rtn_u32 v{vCn}, v{vZ}, v{vZ+1} offset:{LDS_CNT}")
        a("s_mov_b64 exec, -1")
        b = LDS_RED2 // 256; yv = vKV
        for q in range(8): a(f"ds_read2st64_b32 {vr(yv+2*q,2)}, v{vFo} offset0:{b+6*q} offset1:{b+6*q+3}")
        a("s_waitcnt lgkmcnt(8)")
        a(f"v_readfirstlane_b32 s{sT0}, v{vCn}")
        a(f"s_cmp_lg_u32 s{sT0}, 15"); a("s_cbranch_scc1 L_exit3")
        a("s_waitcnt lgkmcnt(4)")
        a(f"v_pk_add_f32 {vr(yv,2)}, {vr(yv,2)}, {vr(yv+2,2)}"); a(f"v_pk_add_f32 {vr(yv+4,2)}, {vr(yv+4,2)}, {vr(yv+6,2)}")
        a(f"v_pk_add_f32 {vr(yv,2)}, {vr(yv,2)}, {vr(yv+4,2)}")
        a("s_waitcnt lgkmcnt(2)")
        a(f"v_pk_add_f32 {vr(yv+8,2)}, {vr(yv+8,2)}, {vr(yv+10,2)}")
        a(f"v_pk_add_f32 {vr(yv,2)}, {vr(yv,2)}, {vr(yv+8,2)}")
        a("s_waitcnt lgkmcnt(0)")
        a(f"v_pk_add_f32 {vr(yv+12,2)}, {vr(yv+12,2)}, {vr(yv+14,2)}")
        a(f"v_pk_add_f32 {vr(yv,2)}, {vr(yv,2)}, {vr(yv+12,2)}")
        a(f"v_add_f32 v{yv}, v{yv}, v{yv+1}")
        a(f"v_and_or_b32 v{vPubD}, v{yv}, s{sMask}, v{vTg2}")
        a(f"buffer_store_dword v{vPubD}, v{vYo}, {sr(dWS,4)}, 0 offen sc1")
        a(f"buffer_store_dword v{vPubD}, v{vYo}, {sr(dWS,4)}, s{sT2} offen sc1")
    else:
        a(f"s_mov_b64 exec, {sr(sVal,2)}")
        a(f"s_cmp_ge_u32 s{sW}, 2")
        a(f"ds_write_b128 v{vRedW}, {vr(vY,4)} offset:{LDS_RED2}")
        a("s_mov_b64 exec, -1")
        a("s_waitcnt lgkmcnt(0)"); a("s_barrier")
        a("s_cbranch_scc1 L_exit3")
        red_read(LDS_RED2)
        red_sum8(vPubD, vTg2)
        a(f"buffer_store_dword v{vPubD}, v{vYo}, {sr(dWS,4)}, 0 offen sc1", "puby")
    if wbk is not None:
        a.c("one workgroup per range writes the die's hand-off lines back while the reducers finish")
        a(f"s_or_b32 s{sT0}, s{sK}, s{sW}"); a("s_cbranch_scc1 L_exit3")
        if stamps is True: a(f"s_memrealtime s[4:5]")
        a.raw(f"    buffer_wbl2 {wbk}")
        if stamps is True:
            a("s_waitcnt vmcnt(0)"); a(f"s_memrealtime s[6:7]"); a("s_waitcnt lgkmcnt(0)"); a(f"s_sub_u32 s{sSt+11}, s6, s4")
    a.label("L_exit3")
    stamp(7)
    finish()
    a.label("L_reducer")
    a.restore(snap)
    if skel == 3: a("s_endpgm")
    a(f"s_lshl_b32 s{sK}, s{sK}, 3"); a(f"s_add_u32 s{sK}, s{sK}, s{sG}")
    a(f"s_cmp_ge_u32 s{sK}, 10"); a("s_cbranch_scc1 L_exitr")
    a(f"s_cmp_ge_u32 s{sW}, 2")
    if stamps or diag is not None:
        a("s_cbranch_scc1 L_barx"); cold.append(["L_barx:", "    s_barrier", "    s_branch L_exitr"])
    else: a("s_cbranch_scc1 L_exitr")
    a(f"s_lshl_b32 s{sT0}, s{sK}, 2"); a(f"s_add_u32 s{sT0}, s{sT0}, s{sW}"); a(f"s_lshl_b32 s{sT0}, s{sT0}, 12")
    a(f"s_add_u32 s{sT0}, s{sT0}, {WS_YP}")
    a(f"s_lshl_b32 s{sK}, s{sK}, 1"); a(f"s_add_u32 s{sK}, s{sK}, s{sW}")
    y = vD
    def yl(n): return [f"buffer_load_dwordx4 {vr(vKV+12*n+4*i,4)}, v{vL16}, {sr(dWS,4)}, s{sT0} offen offset:{1024*i} sc1" for i in range(3)]
    def colcalc():
        a.c("output column of this lane: 32*line + 4*(l&7) + (l>>4)")
        a(f"v_lshrrev_b32 v{vT+1}, 4, v{vL}"); a(f"v_lshl_add_u32 v{vT+1}, v{vCh}, 2, v{vT+1}")
        a(f"s_lshl_b32 s{sT1}, s{sK}, 6"); a(f"v_lshl_add_u32 v{vYo}, v{vT+1}, 1, s{sT1}")
        a.c("line 0's reducer hears (through its producers) from every workgroup: it advances the hand-off epoch")
        a(f"s_cmp_eq_u32 s{sK}, 0"); a(f"s_cselect_b32 s{sT2}, {WS_E}, {OOB}")
        a(f"v_mov_b32 v{vT+4}, s{sE}")
        if ydry: a(f"v_mov_b32 v{vT+5}, {OOB}"); a(f"v_mov_b32 v{vT+6}, {OOB}")
        else: a(f"v_mov_b32 v{vT+5}, s{sT2}"); a(f"v_mov_b32 v{vT+6}, v{vYo}")
    if ibsts:
        a.c("which copy is nearer? loads return in order: the second is still out after the first only if it goes further")
        a(f"s_cmp_eq_u32 s{sW}, 0"); a(f"s_cselect_b32 s{sT1}, 0, {OOB}")
        a(f"v_mov_b32 v{vT+1}, s{sT1}"); a(f"v_or_b32 v{vT+2}, 8192, v{vT+1}")
        a("s_waitcnt vmcnt(0)")
        a(f"buffer_load_dword v{vT+3}, v{vT+1}, {sr(dWS,4)}, s{sT0} offen offset:3072 sc1")
        a(f"buffer_load_dword v{vT+7}, v{vT+2}, {sr(dWS,4)}, s{sT0} offen offset:3072 sc1")
        a("s_waitcnt vmcnt(1)")
        colcalc()
        a(f"s_lshl_b32 s{sT1}, s{sW}, 2"); a(f"v_mov_b32 v{vT+1}, s{sT1}")
        a("s_getreg_b32 s4, hwreg(HW_REG_IB_STS, 0, 4)")
        if stamps is True: a(f"s_add_u32 s{sSt+11}, s4, 100")
        a("s_cmp_lg_u32 s4, 0"); a("s_cselect_b32 s4, 0, 8192")
        a(f"v_mov_b32 v{vT+3}, s4")
        a(f"ds_write_b32 v{vT+1}, v{vT+3} offset:{LDS_Q}")
        a("s_waitcnt lgkmcnt(0)")
        a("s_barrier")
        a(f"ds_read_b32 v{vT+3}, v{vZ} offset:{LDS_Q}")
    else:
        a.c("which copy is nearer? loads return in order, so the gap behind the first one is long only if the second goes further")
        a(f"v_mov_b32 v{vT+2}, 8192")
        a(f"s_cmp_lg_u32 s{sW}, 0"); a("s_cbranch_scc1 L_probed")
        a("s_mov_b64 exec, 1")
        a("s_waitcnt vmcnt(0)")
        a(f"buffer_load_dword v{vT+3}, v{vZ}, {sr(dWS,4)}, s{sT0} offen offset:3072 sc1")
        a(f"buffer_load_dword v{vT+7}, v{vT+2}, {sr(dWS,4)}, s{sT0} offen offset:3072 sc1")
        a("s_waitcnt vmcnt(1)"); a("s_memtime s[4:5]")
        a("s_waitcnt vmcnt(0)"); a("s_memtime s[6:7]")
        a("s_waitcnt lgkmcnt(0)")
        a("s_sub_u32 s4, s6, s4")
        a("s_cmpk_gt_u32 s4, 90"); a("s_cselect_b32 s4, 0, 8192")
        a(f"v_mov_b32 v{vT+3}, s4")
        a(f"ds_write_b32 v{vZ}, v{vT+3} offset:{LDS_Q}")
        a("s_mov_b64 exec, -1")
        a("s_waitcnt lgkmcnt(0)")
        a.label("L_probed")
        a("s_barrier")
        a(f"ds_read_b32 v{vT+3}, v{vZ} offset:{LDS_Q}")
        colcalc()
    a(f"buffer_load_ushort v{vXo}, v{vYo}, {sr(dX,4)}, 0 offen")
    a("s_waitcnt lgkmcnt(0)")
    a(f"v_add_u32 v{vL16}, v{vL16}, v{vT+3}")
    for n in range(ypipe):
        for t in yl(n): a(t)
    if ydry:
        a.c("one pass through the last lines with every store out of range: they are in the instruction cache afterwards")
        a(f"s_mov_b32 s{sT1}, 1"); a("s_branch L_yfin")
        a.label("L_ystart")
        a(f"s_mov_b32 s{sT1}, 0")
    if ydry: a(f"v_mov_b32 v{vT+5}, s{sT2}"); a(f"v_mov_b32 v{vT+6}, v{vYo}")
    a(f"s_waitcnt vmcnt({3*ypipe})")
    a(f"v_lshlrev_b32 v{vXo}, 16, v{vXo}")
    a.label("L_ypoll")
    for n in range(ypipe):
        a(f"s_waitcnt vmcnt({3*(ypipe-1)})")
        b = vKV + 12*n
        untag([b, b+4, b+8])
        if trim:
            pk(y, b, b+4); pk(y+2, b+2, b+6); pk(y, y, b+8); pk(y+2, y+2, b+10)
        else:
            for k in range(4): a(f"v_add_f32 v{y+k}, v{b+k}, v{b+4+k}")
            for k in range(4): a(f"v_add_f32 v{y+k}, v{y+k}, v{b+8+k}")
        a("s_cbranch_vccz L_yfin")
        for t in yl(n): a(t)
    a(f"s_sub_u32 s{sSpin}, s{sSpin}, 1"); a("s_cbranch_scc0 L_ypoll")
    a("s_endpgm")
    a.label("L_yfin")
    a(f"buffer_store_dword v{vT+4}, v{vT+5}, {sr(dWS,4)}, 0 offen {efl}")
    if wbend == "before": a.raw("    buffer_wbl2 sc1")
    if wbend == "before0":
        a(f"s_cmp_lg_u32 s{sW}, 0"); a("s_cbranch_scc1 L_nowb"); a.raw("    buffer_wbl2 sc1"); a.label("L_nowb")
    stamp(9)
    a(f"v_permlane32_swap_b32 v{y}, v{y+2}"); a(f"v_permlane32_swap_b32 v{y+1}, v{y+3}")
    if trim: pk(y, y, y+2)
    else: a(f"v_add_f32 v{y}, v{y}, v{y+2}"); a(f"v_add_f32 v{y+1}, v{y+1}, v{y+3}")
    a(f"v_permlane16_swap_b32 v{y}, v{y+1}")
    a(f"v_add_f32 v{y}, v{y}, v{y+1}")
    if ydry: a(f"s_cmp_lg_u32 s{sT1}, 0")
    a(f"v_add_f32_dpp v{y}, v{y}, v{y} row_ror:8 {DP}")
    a(f"v_add_f32 v{y}, v{y}, v{vXo}")
    a(f"v_cvt_pk_bf16_f32 v{y}, v{y}, v{y}")
    a(f"buffer_store_short v{y}, v{vT+6}, {sr(dOUT,4)}, 0 offen {outfl}")
    if wbend == "after": a.raw("    buffer_wbl2 sc1")
    if ydry: a("s_cbranch_scc1 L_ystart")
    a.label("L_exitr")
    stamp(8)
    finish()
    for blk in cold:
        for ln in blk: a.raw(ln)
    a.label("L_end")
    a("s_endpgm")
    if prefetch: a.raw("    .fill 512, 4, 0xbf810000")
    nv = (V.n + 7) // 8 * 8
    a.raw('.section .rodata,"a"'); a.raw(".p2align 6"); a.raw(f".amdhsa_kernel {NAME}_kernel")
    a.raw(f"  .amdhsa_next_free_vgpr {nv}"); a.raw("  .amdhsa_next_free_sgpr 102"); a.raw(f"  .amdhsa_accum_offset {nv}")
    a.raw("  .amdhsa_group_segment_fixed_size 0"); a.raw("  .amdhsa_kernarg_size 96"); a.raw("  .amdhsa_user_sgpr_count 2")
    a.raw("  .amdhsa_user_sgpr_kernarg_segment_ptr 1"); a.raw("  .amdhsa_system_sgpr_workgroup_id_x 1")
    a.raw(".end_amdhsa_kernel")
    return a.text()

if __name__ == "__main__":
    kw = {}
    out = sys.argv[1]
    for x in sys.argv[2:]:
        k, v = x.split("=")
        try: v = eval(v)
        except Exception: pass
        kw[k] = v
    open(out, "w").write(gen(**kw))
```
